```python
import torch

def _softmax(x, axis=-1):
    return torch.softmax(x, dim=axis)
def _gelu(x):
    return torch.nn.functional.gelu(x, approximate="tanh")
def _silu(x):
    return torch.nn.functional.silu(x)
def _sigmoid(x):
    return torch.sigmoid(x)
def _layernorm(x, axis=-1, eps=1e-5):
    m = x.mean(dim=axis, keepdim=True)
    v = x.var(dim=axis, keepdim=True, unbiased=False)
    return (x - m) / torch.sqrt(v + eps)
def _scatter_add(tgt, idx, src, axis=0):
    return tgt.clone().index_add_(axis, idx, src)
def _segment_sum(src, seg, n):
    out = torch.zeros((n,) + src.shape[1:], dtype=src.dtype)
    return out.index_add_(0, seg, src)
def _pad(x, pw):
    flat = tuple(v for pair in reversed(pw) for v in pair)
    return torch.nn.functional.pad(x, flat)

kernel_name = 'interleave_layers__sliding_local_dilated__glu_gated_bilinear__prompt'

def setup_inputs():

    _w = (lambda a: (lambda t: t.to(torch.bfloat16) if t.is_floating_point() else t)(torch.as_tensor(a)))
    def _A_setup():
        B, S, D = 1, 2048, 576
        return {
            "x": _w((lambda *s: torch.randn(*s, dtype=torch.bfloat16) * 0.05)(B, S, D)),
            "wqkv": _w((lambda *s: torch.randn(*s, dtype=torch.bfloat16) * 0.05)(D, 3 * D)),
            "wo": _w((lambda *s: torch.randn(*s, dtype=torch.bfloat16) * 0.05)(D, D)),
        }
    _A_in = _A_setup()

    def _B_setup():
        B, S, D, F = 1, 2048, 576, 4608
        return {
            "x": _w((lambda *s: torch.randn(*s, dtype=torch.bfloat16) * 0.05)(B, S, D)),
            "w_gate": _w((lambda *s: torch.randn(*s, dtype=torch.bfloat16) * 0.8)(D, F) * (D ** -0.5)),
            "w_up": _w((lambda *s: torch.randn(*s, dtype=torch.bfloat16) * 0.8)(D, F) * (D ** -0.5)),
            "w_down": _w((lambda *s: torch.randn(*s, dtype=torch.bfloat16) * 0.8)(F, D) * (F ** -0.5)),
        }
    _B_in = _B_setup()

    return {
        "A_x": _A_in["x"],
        "A_wqkv": _A_in["wqkv"],
        "A_wo": _A_in["wo"],
        "B_x": _B_in["x"],
        "B_w_gate": _B_in["w_gate"],
        "B_w_up": _B_in["w_up"],
        "B_w_down": _B_in["w_down"],
    }

def reference(A_x, A_wqkv, A_wo, B_x, B_w_gate, B_w_up, B_w_down):
    def _A_ref(x, wqkv, wo):
        B, S, D = x.shape
        H = 32; Dh = D // H
        W, dil = 8, 2
        qkv = (lambda x, *d: x.permute(*d))((x @ wqkv).reshape(B, S, 3, H, Dh), 2, 0, 3, 1, 4)
        q, k, v = qkv[0], qkv[1], qkv[2]
        scale = Dh ** -0.5
        pos = torch.arange(S)
        off = torch.arange(W) * dil
        idx = pos[:, None] - off[None, :]
        mask = idx >= 0
        idx_c = torch.where(mask, idx, 0).reshape(-1)
        kg = k[:, :, idx_c, :].reshape(B, H, S, W, Dh)
        vg = v[:, :, idx_c, :].reshape(B, H, S, W, Dh)
        logits = torch.einsum("bhsd,bhswd->bhsw", q, kg) * scale
        logits = torch.where(mask[None, None, :, :], logits, -1e9)
        attn = _softmax(logits, axis=-1)
        o = torch.einsum("bhsw,bhswd->bhsd", attn, vg)
        return (lambda x, *d: x.permute(*d))(o, 0, 2, 1, 3).reshape(B, S, D) @ wo

    def _B_ref(x, w_gate, w_up, w_down):
        g = torch.einsum("bsd,df->bsf", x, w_gate)
        u = torch.einsum("bsd,df->bsf", x, w_up)
        h = g * u
        return torch.einsum("bsf,fd->bsd", h, w_down)

    x = A_x
    x = x + _A_ref(_layernorm(x, axis=-1), A_wqkv, A_wo)
    x = x + _B_ref(_layernorm(x, axis=-1), B_w_gate, B_w_up, B_w_down)
    x = x + _A_ref(_layernorm(x, axis=-1), A_wqkv, A_wo)
    x = x + _B_ref(_layernorm(x, axis=-1), B_w_gate, B_w_up, B_w_down)
    return x
```

```python
from fw import *
from layout import *

S_WS = 4
S_X  = 8
S_A  = 12
S_O  = 16
S_WAVE = 20
S_XCD = 21
S_IDX = 22
S_PTR = 24
P_X, P_WQKV, P_WO, P_WG, P_WU, P_WD, P_OUT, P_DBG, P_WS = 24, 26, 28, 32, 34, 36, 38, 40, 42
BF16_ONES = 0x3F803F80

def srd(p, s, ptr, nbytes):
    p(f"""s_mov_b32 s{s}, s{ptr}
    s_mov_b32 s{s+1}, s{ptr+1}
    s_mov_b32 s{s+2}, {nbytes:#x}
    s_mov_b32 s{s+3}, 0x20000""")

def prologue(p, end_label, nwg=256, v_lane=1, v_l16=2):
    p(f"""s_cmp_ge_u32 s2, {nwg}
    s_cbranch_scc1 {end_label}
    s_load_dwordx16 s[24:39], s[0:1], 0
    s_load_dwordx4 s[40:43], s[0:1], 64
    v_lshrrev_b32 v{v_lane}, 6, v0
    s_and_b32 s{S_XCD}, s2, 7
    v_readfirstlane_b32 s{S_WAVE}, v{v_lane}
    s_lshr_b32 s{S_IDX}, s2, 3
    v_and_b32 v{v_lane}, 63, v0
    v_lshlrev_b32 v{v_l16}, 4, v{v_lane}""")
    p.drain(vm=False)
    srd(p, S_WS, P_WS, WS_BYTES)

def magic(d, n):
    m = (65536 + d - 1) // d
    assert all((x * m) >> 16 == x // d for x in range(n)), (d, n)
    return m

def sdiv(p, sq, sx, d, n):
    p(f"s_mul_i32 s{sq}, s{sx}, {magic(d, n)}\ns_lshr_b32 s{sq}, s{sq}, 16")

def unpack8(p, dst, src):
    for j in range(4):
        p(f"v_lshlrev_b32 v{dst+2*j}, 16, v{src+j}")
        p(f"v_and_b32 v{dst+2*j+1}, 0xffff0000, v{src+j}")

def round_bf16(p, v, tmp=None):
    p(f"v_cvt_pk_bf16_f32 v{v}, v{v}, v{v}\nv_lshlrev_b32 v{v}, 16, v{v}")

def xsum_g(p, v, t):
    p(f"""v_mov_b32 v{t}, v{v}
    v_permlane16_swap_b32 v{v}, v{t}
    v_add_f32 v{v}, v{v}, v{t}
    v_mov_b32 v{t}, v{v}
    v_permlane32_swap_b32 v{v}, v{t}
    v_add_f32 v{v}, v{v}, v{t}""")

def xsum8(p, v):
    p(f"v_add_f32_dpp v{v}, v{v}, v{v} row_ror:8 row_mask:0xf bank_mask:0xf")
```

```python
import re

def regs_of(tok):
    tok = tok.strip()
    if tok.startswith("-"):
        tok = tok[1:]
    if tok.startswith("abs(") or tok.startswith("|"):
        tok = tok.strip("|").replace("abs(", "").rstrip(")")
    m = re.fullmatch(r"([vas])(\d+)", tok)
    if m:
        return {(m.group(1), int(m.group(2)))}
    m = re.fullmatch(r"([vas])\[(\d+):(\d+)\]", tok)
    if m:
        return {(m.group(1), i) for i in range(int(m.group(2)), int(m.group(3)) + 1)}
    if tok == "vcc":
        return {("s", "vcc")}
    if tok in ("exec", "exec_lo", "exec_hi"):
        return {("s", "exec")}
    if tok == "m0":
        return {("s", "m0")}
    return set()

TRANS = ("v_exp_f32", "v_log_f32", "v_rcp_f32", "v_rsq_f32", "v_sqrt_f32", "v_sin_f32", "v_cos_f32")

class I:
    __slots__ = ("text", "op", "kind", "dst", "src", "tag", "srcC", "srcAB", "data", "maybe", "passes")
    def __init__(self, text, tag=None):
        self.text = text.strip()
        self.tag = tag
        self.maybe = None
        body = self.text.split(";")[0].strip()
        parts = body.split(None, 1)
        op = parts[0]
        self.op = op
        rest = parts[1] if len(parts) > 1 else ""
        ops = [x.strip() for x in rest.split(",")] if rest else []
        mods = []
        if ops:
            last = ops[-1].split()
            ops[-1] = last[0] if last else ""
            mods = last[1:]
        R = [regs_of(o) for o in ops]
        U = lambda l: set().union(*l) if l else set()
        self.srcC = set(); self.srcAB = set(); self.data = set(); self.passes = 0
        if op.startswith("v_mfma"):
            self.kind = "mfma"; self.dst = R[0]; self.srcAB = R[1] | R[2]; self.srcC = R[3]; self.src = self.srcAB | self.srcC
            self.passes = {"v_mfma_f32_16x16x32_bf16": 4, "v_mfma_f32_32x32x16_bf16": 8, "v_mfma_f32_16x16x4_f32": 8}[op]
        elif op.startswith("v_cmp"):
            self.kind = "valu"; self.dst = set(R[0]); self.src = U(R[1:])
            if op.startswith("v_cmpx"): self.dst |= {("s", "exec")}
        elif op.startswith("v_permlane"):
            self.kind = "valu"; self.dst = R[0] | R[1]; self.src = R[0] | R[1]
        elif op.startswith(("v_fmac", "v_dot2c", "v_pk_fmac")):
            self.kind = "valu"; self.dst = R[0]; self.src = U(R)
        elif op.startswith(("v_add_co", "v_sub_co", "v_addc_co", "v_subb_co")):
            self.kind = "valu"; self.dst = R[0] | R[1]; self.src = U(R[2:])
        elif op.startswith("v_writelane"):
            self.kind = "valu"; self.dst = R[0]; self.src = U(R)
        elif op.startswith("v_"):
            self.kind = "valu"; self.dst = R[0] if R else set(); self.src = U(R[1:])
            if "row_" in rest or "quad_perm" in rest or "dpp" in op:
                self.src |= R[0]
        elif op.startswith(("ds_read", "ds_bpermute", "ds_permute", "ds_swizzle")):
            self.kind = "ds"; self.dst = R[0]; self.src = U(R[1:])
        elif op.startswith("ds_write"):
            self.kind = "ds"; self.dst = set(); self.src = U(R); self.data = U(R[1:])
        elif op.startswith("buffer_load") or op.startswith("global_load"):
            self.kind = "vmem"
            if "lds" in mods or "_lds_" in op:
                self.dst = set(); self.src = U(R) | {("s", "m0")}
            else:
                self.dst = R[0]; self.src = U(R[1:])
        elif op.startswith("buffer_store"):
            self.kind = "vmem"; self.dst = set(); self.src = U(R); self.data = R[0]
        elif op.startswith("global_store"):
            self.kind = "vmem"; self.dst = set(); self.src = U(R); self.data = R[1]
        elif op.startswith(("buffer_atomic", "global_atomic")):
            self.kind = "vmem"; self.src = U(R); self.dst = R[0] if "sc0" in mods else set()
        elif op.startswith(("buffer_inv", "buffer_wbl2")):
            self.kind = "vmem"; self.dst = set(); self.src = set()
        elif op.startswith(("s_load", "s_memtime", "s_memrealtime")):
            self.kind = "smem"; self.dst = R[0]; self.src = U(R[1:])
        elif op in ("s_waitcnt", "s_barrier", "s_nop", "s_endpgm", "s_setprio", "s_sleep", "s_branch") or op.startswith("s_cbranch"):
            self.kind = "ctl"; self.dst = set(); self.src = set()
            if op.startswith("s_cbranch_scc"): self.src = {("s", "scc")}
            if op.startswith("s_cbranch_vcc"): self.src = {("s", "vcc")}
            if op.startswith("s_cbranch_exec"): self.src = {("s", "exec")}
        elif op.startswith("s_cmp") or op.startswith("s_bitcmp"):
            self.kind = "salu"; self.dst = {("s", "scc")}; self.src = U(R)
        elif "saveexec" in op:
            self.kind = "salu"; self.dst = R[0] | {("s", "exec"), ("s", "scc")}; self.src = U(R[1:]) | {("s", "exec")}
        elif op.startswith("s_"):
            self.kind = "salu"; self.dst = set(R[0]); self.src = U(R[1:])
            if op.startswith(("s_addk", "s_mulk")): self.src |= R[0]
            if op.startswith(("s_addc", "s_subb", "s_cselect")): self.src |= {("s", "scc")}
            if not op.startswith(("s_mov", "s_mul", "s_cselect", "s_getreg", "s_getpc")): self.dst |= {("s", "scc")}
        else:
            raise ValueError("unknown instruction: " + text)
    def states(self):
        if self.op == "s_nop":
            return int(self.text.split()[1]) + 1
        return 1

class Label:
    def __init__(self, name): self.name = name
class Raw:
    def __init__(self, text): self.text = text
class WaitTag:
    def __init__(self, tag, cnt): self.tag = tag; self.cnt = cnt
class Drain:
    def __init__(self, vm=True, lg=True): self.vm = vm; self.lg = lg
class Forget:
    def __init__(self, vm=True, lg=True): self.vm = vm; self.lg = lg
class Cond:
    def __init__(self, begin): self.begin = begin

def hazard_need(prev, cur):
    n = 0
    pv = {r for r in prev.dst if r[0] in "va"}
    ps = {r for r in prev.dst if r[0] == "s"}
    if prev.kind == "valu":
        if cur.kind == "mfma" and (pv & cur.src): n = max(n, 2)
        if cur.kind == "mfma" and ("s", "exec") in ps: n = max(n, 4)
        if cur.kind == "vmem" and (ps & cur.src): n = max(n, 5)
        if cur.kind == "valu" and (ps & cur.src):
            n = max(n, 4 if cur.op.startswith(("v_readlane", "v_writelane")) else 2)
        if cur.kind == "valu" and ("s", "exec") in ps and cur.op.startswith(("v_readlane", "v_readfirstlane", "v_writelane", "v_permlane")): n = max(n, 4)
        if cur.kind == "valu" and (pv & cur.src):
            if cur.op.startswith(("v_readlane", "v_readfirstlane")): n = max(n, 1)
            if cur.op.startswith("v_permlane") or "row_" in cur.text or "quad_perm" in cur.text: n = max(n, 2)
            if prev.op.startswith(TRANS) and not cur.op.startswith(TRANS): n = max(n, 1)
            if prev.op.startswith("v_dot") and (prev.op != cur.op or (pv & (cur.src - cur.dst))): n = max(n, 3)
            if "op_sel" in prev.text or "sdwa" in prev.text: n = max(n, 1)
        if prev.op.startswith("v_dot") and cur.kind in ("valu", "mfma", "vmem", "ds") and prev.op != cur.op and (pv & (cur.src | cur.dst)): n = max(n, 3)
        if cur.kind == "salu" and (ps & cur.src) and prev.op.startswith(("v_readfirstlane", "v_readlane", "v_cmp")): n = max(n, 1)
        if cur.kind == "ctl" and (ps & cur.src): n = max(n, 5)
    if prev.kind == "mfma":
        sg = prev.op.endswith("x4_f32")
        p = prev.passes
        if cur.kind == "mfma":
            if pv & cur.srcAB: n = max(n, p + (2 if sg else 4))
            if pv & cur.srcC:
                if not (pv == cur.srcC and prev.op == cur.op): n = max(n, p + (0 if sg else 2))
            if (pv & cur.dst) and not (pv == cur.dst and prev.op == cur.op) : n = max(n, p + 2)
        elif cur.kind in ("valu", "vmem", "ds"):
            if pv & (cur.src | cur.dst): n = max(n, p + (2 if sg else 4))
        if cur.kind == "valu" and not sg and (prev.srcC & cur.dst): n = max(n, p - 1)
    if prev.kind == "vmem" and prev.data and ("x4" in prev.op or "x3" in prev.op):
        if prev.data & cur.dst: n = max(n, 2 if cur.kind in ("valu", "mfma") else 1)
    if prev.kind == "salu" and ("s", "m0") in prev.dst and cur.kind == "vmem" and ("s", "m0") in cur.src: n = max(n, 1)
    return n

class Prog:
    def __init__(self):
        self.items = []
        self.uid = 0
        self.stats = {"nops": 0, "waits": 0}
    def __call__(self, text, tag=None):
        for l in text.split("\n"):
            l = l.strip()
            if not l or l.startswith(";"):
                continue
            if l.endswith(":"):
                self.items.append(Label(l[:-1]))
            elif l.startswith("."):
                self.items.append(Raw(l))
            else:
                self.items.append(I(l, tag))
    def add(self, it):
        if isinstance(it, str): self(it)
        elif isinstance(it, (list, tuple)):
            for x in it: self.add(x)
        else: self.items.append(it)
    _gid = [0]
    def label(self, base):
        Prog._gid[0] += 1
        return f"L_{base}_{Prog._gid[0]}"
    def wait_vm(self, tag): self.items.append(WaitTag(tag, "vm"))
    def wait_lg(self, tag): self.items.append(WaitTag(tag, "lg"))
    def drain(self, vm=True, lg=True): self.items.append(Drain(vm, lg))
    def forget(self, vm=True, lg=True): self.items.append(Forget(vm, lg))
    def cond_begin(self): self.items.append(Cond(True))
    def cond_end(self): self.items.append(Cond(False))

    def finalize(self, verbose=False):
        out = []
        vmq = []; lgq = []
        hist = []
        cond = []; cid = 0
        def emit(ins):
            need = 0; dist = 0
            for p in reversed(hist):
                h = hazard_need(p, ins)
                if h - dist > need: need = h - dist
                dist += p.states()
                if dist >= 24: break
            while need > 0:
                k = min(need, 16)
                nop = I(f"s_nop {k-1}")
                out.append("    " + nop.text); hist.append(nop); need -= k
                self.stats["nops"] += 1
                if verbose: print("nop", k, "before", ins.text)
            out.append("    " + ins.text); hist.append(ins)
            if len(hist) > 40: del hist[:10]
        def count_after(q, idx):
            n = 0
            for e in q[idx + 1:]:
                if e.maybe is None or e.maybe in cond: n += 1
            return n
        def do_wait(vidx, lidx):
            parts = []
            if vidx is not None:
                n = min(count_after(vmq, vidx), 63)
                parts.append(f"vmcnt({n})"); del vmq[:vidx + 1]
            if lidx is not None:
                if any(e.kind == "smem" for e in lgq): n = 0; lgq.clear()
                else:
                    n = min(count_after(lgq, lidx), 15); del lgq[:lidx + 1]
                parts.append(f"lgkmcnt({n})")
            if parts:
                emit(I("s_waitcnt " + " ".join(parts))); self.stats["waits"] += 1
        for it in self.items:
            if isinstance(it, Label):
                out.append(it.name + ":")
            elif isinstance(it, Raw):
                out.append(it.text)
            elif isinstance(it, Cond):
                if it.begin: cid += 1; cond.append(cid)
                else: cond.pop()
            elif isinstance(it, Forget):
                if it.vm: vmq.clear()
                if it.lg: lgq.clear()
            elif isinstance(it, Drain):
                parts = []
                if it.vm: parts.append("vmcnt(0)"); vmq.clear()
                if it.lg: parts.append("lgkmcnt(0)"); lgq.clear()
                emit(I("s_waitcnt " + " ".join(parts)))
            elif isinstance(it, WaitTag):
                q = vmq if it.cnt == "vm" else lgq
                idx = None
                for i, e in enumerate(q):
                    if e.tag == it.tag: idx = i
                if idx is not None:
                    do_wait(idx if it.cnt == "vm" else None, idx if it.cnt == "lg" else None)
            else:
                touch = it.src | it.dst
                vidx = lidx = None
                for i, e in enumerate(vmq):
                    if e.dst & touch: vidx = i
                for i, e in enumerate(lgq):
                    if e.dst & touch: lidx = i
                do_wait(vidx, lidx)
                if it.op == "s_waitcnt":
                    m = re.search(r"vmcnt\((\d+)\)", it.text)
                    if m and int(m.group(1)) == 0: vmq.clear()
                    m = re.search(r"lgkmcnt\((\d+)\)", it.text)
                    if m and int(m.group(1)) == 0: lgq.clear()
                emit(it)
                it.maybe = cond[-1] if cond else None
                if it.kind == "vmem": vmq.append(it)
                elif it.kind in ("ds", "smem"): lgq.append(it)
        return "\n".join(out) + "\n"

def ins(text, tag=None):
    return I(text, tag)

class Stream:
    def __init__(self, name=""):
        self.q = []; self.name = name
    def add(self, item, earliest=0, deadline=10**9, tag=None, cost=1):
        if isinstance(item, str): item = I(item, tag)
        self.q.append([earliest, deadline, item, cost])

def weave(p, backbone, streams, cap=2):
    n = len(backbone)
    pos = [0] * len(streams)
    for s in streams:
        d = 10**9
        for e in reversed(s.q):
            d = min(d, e[1]); e[1] = d
    for g in range(n + 1):
        used = 0
        while True:
            best = None
            for si, s in enumerate(streams):
                if pos[si] < len(s.q):
                    e = s.q[pos[si]]
                    if e[0] <= g or g == n:
                        if best is None or e[1] < streams[best].q[pos[best]][1]:
                            best = si
            if best is None: break
            e = streams[best].q[pos[best]]
            if g < n and used + e[3] > cap and e[1] > g: break
            p.add(e[2]); pos[best] += 1; used += e[3]
        if g < n: p.add(backbone[g])

def vr(b, n=1): return f"v{b}" if n == 1 else f"v[{b}:{b+n-1}]"
def ar(b, n=1): return f"a{b}" if n == 1 else f"a[{b}:{b+n-1}]"
def sr(b, n=1): return f"s{b}" if n == 1 else f"s[{b}:{b+n-1}]"

def kernel_text(name, body, vgpr=512, accum=256, sgpr=102):
    t = f".text\n.globl {name}\n.p2align 8\n.type {name},@function\n{name}:\n" + body
    t += f'''.section .rodata,"a"
.p2align 6
.amdhsa_kernel {name}
  .amdhsa_next_free_vgpr {vgpr}
  .amdhsa_next_free_sgpr {sgpr}
  .amdhsa_accum_offset {accum}
  .amdhsa_group_segment_fixed_size 0
  .amdhsa_kernarg_size 80
  .amdhsa_user_sgpr_count 2
  .amdhsa_user_sgpr_kernarg_segment_ptr 1
  .amdhsa_system_sgpr_workgroup_id_x 1
  .amdhsa_float_denorm_mode_32 3
.end_amdhsa_kernel
'''
    return t
```

```python
from common import *
MF = "v_mfma_f32_16x16x32_bf16"
NEG_BIG = 0xF149F2CA

def qkv_phase(p, l, sc="", ld=""):
    V_LANE, V_L16 = 1, 2
    V_W, V_HT, V_HN = 3, 4, 5
    ACC, HACC, WB, HB_ = 16, 80, 88, 144
    S_AB, S_HP, S_T0, S_SRC0, S_SRC1, S_STR1, S_M0, S_XS = 44, 45, 46, 47, 48, 49, 50, 51
    p(f"""s_lshr_b32 s{S_AB}, s{S_IDX}, 4
    s_lshl_b32 s52, s{S_XCD}, 1
    s_add_u32 s{S_AB}, s{S_AB}, s52
    s_and_b32 s{S_HP}, s{S_IDX}, 15
    s_lshl_b32 s{S_T0}, s{S_AB}, 3
    s_mul_i32 s{S_SRC0}, s{S_HP}, {126*1024}
    s_lshl_b32 s{S_M0}, s{S_WAVE}, 11
    s_add_u32 s{S_SRC0}, s{S_SRC0}, s{S_M0}
    s_add_u32 s{S_SRC0}, s{S_SRC0}, {WQ}
    s_add_u32 s{S_SRC1}, s{S_SRC0}, 1024
    s_max_u32 s52, s{S_T0}, 1
    s_sub_u32 s52, s52, 1
    s_mul_i32 s52, s52, {18*1024}
    s_add_u32 s52, s52, {LB(l)+XN}
    s_cmp_eq_u32 s{S_WAVE}, 3
    s_cselect_b32 s{S_SRC1}, s52, s{S_SRC1}
    s_mov_b32 s{S_STR1}, {7*1024}
    s_cselect_b32 s{S_STR1}, 1024, s{S_STR1}
    s_lshl_b32 s52, s{S_WAVE}, 1
    s_add_u32 s{S_T0}, s{S_T0}, s52
    s_mul_i32 s{S_XS}, s{S_T0}, {18*1024}
    s_add_u32 s{S_XS}, s{S_XS}, {LB(l)+XN}""")
    def dma(c):
        r = [ins(f"s_mov_b32 m0, s{S_M0}"),
             ins(f"buffer_load_dwordx4 v{V_L16}, s[{S_WS}:{S_WS+3}], s{S_SRC0} offen lds", f"g{c//3}"),
             ins(f"s_add_u32 m0, s{S_M0}, 1024"),
             ins(f"buffer_load_dwordx4 v{V_L16}, s[{S_WS}:{S_WS+3}], s{S_SRC1} offen{ld} lds", f"g{c//3}"),
             ins(f"s_add_u32 s{S_M0}, s{S_M0}, 8192"),
             ins(f"s_add_u32 s{S_SRC0}, s{S_SRC0}, {7*1024}"),
             ins(f"s_add_u32 s{S_SRC1}, s{S_SRC1}, s{S_STR1}")]
        return r
    def xload(c):
        r = []
        for tt in range(2):
            off = tt * 18 * 1024 + c * 1024
            r.append(ins(f"s_add_u32 s52, s{S_XS}, {off}"))
            r.append(ins(f"buffer_load_dwordx4 a[{72*tt+4*c}:{72*tt+4*c+3}], v{V_L16}, s[{S_WS}:{S_WS+3}], s52 offen{ld}"))
        return r
    for c in range(12):
        p.add(dma(c)); p.add(xload(c))
    p(f"""s_min_u32 s52, s{S_WAVE}, 2
    s_add_u32 s53, s52, 2
    s_add_u32 s54, s52, 4
    s_cmp_ge_u32 s{S_WAVE}, 2
    s_cselect_b32 s53, 6, s53
    s_lshl_b32 s53, s53, 10
    s_lshl_b32 s54, s54, 10
    v_mov_b32 v{V_W}, v{V_L16}
    v_add_u32 v{V_HT}, s53, v{V_L16}
    v_add_u32 v{V_HN}, s54, v{V_L16}""")
    BO, BP, BP0 = 168, 172, 176
    p(f"""v_and_b32 v6, 15, v{V_LANE}
    v_lshrrev_b32 v7, 4, v{V_LANE}
    v_lshlrev_b32 v7, 2, v7
    v_sub_u32 v6, v6, v7
    v_mov_b32 v8, {NEG_BIG:#x}
    s_or_b32 s52, s{S_AB}, s{S_WAVE}
    s_cmp_eq_u32 s52, 0
    s_cselect_b64 s[56:57], -1, 0""")
    for r in range(4):
        p(f"""v_subrev_u32 v7, {r}, v6
        v_and_b32 v9, 0xfffffff1, v7
        v_cmp_eq_u32 vcc, 0, v9
        v_add_u32 v7, 16, v7
        v_and_b32 v9, 0xfffffff1, v7
        v_cndmask_b32_e64 v{BO+r}, v8, 0, vcc
        v_cmp_eq_u32 vcc, 0, v9
        v_cndmask_b32_e64 v{BP+r}, v8, 0, vcc
        v_cndmask_b32_e64 v{BP0+r}, v{BP+r}, v8, s[56:57]""")
    acc = lambda tt, j: vr(ACC + 32 * tt + 4 * j, 4)
    wf = lambda c, t: vr(WB + 28 * (c & 1) + 4 * t, 4)
    hf = lambda c, j: vr(HB_ + 12 * (c & 1) + 4 * j, 4)
    xf = lambda tt, c: ar(72 * tt + 4 * c, 4)
    def reads(c):
        o = (c & 7) * 8192
        r = []
        if c in (8, 16):
            r += [f"v_add_u32 v{v}, 0x10000, v{v}" for v in (V_W, V_HT, V_HN)]
        r += [f"ds_read_b128 {wf(c, t)}, v{V_W} offset:{o+1024*t}" for t in (0, 1, 2, 3, 6, 4, 5)]
        r += [f"ds_read_b128 {hf(c, 0)}, v{V_W} offset:{o+7168}", f"ds_read_b128 {hf(c, 1)}, v{V_HT} offset:{o}", f"ds_read_b128 {hf(c, 2)}, v{V_HN} offset:{o}"]
        return r
    p.wait_vm("g0"); p("s_barrier")
    p.add(reads(0))
    bb = []; sr_ = Stream(); sl = Stream()
    for c in range(18):
        g0 = len(bb)
        C = lambda d: "0" if c == 0 else d
        for j, t in enumerate((0, 1, 2, 3, 6)):
            for tt in range(2): bb.append(ins(f"{MF} {acc(tt, j)}, {wf(c, t)}, {xf(tt, c)}, {C(acc(tt, j))}"))
        for j, t in ((7, 6), (5, 4), (6, 5)):
            for tt in range(2): bb.append(ins(f"{MF} {acc(tt, j)}, {xf(tt, c)}, {wf(c, t)}, {C(acc(tt, j))}"))
        bb.append(ins(f"{MF} {vr(HACC, 4)}, {hf(c, 1)}, {hf(c, 0)}, {C(vr(HACC, 4))}"))
        bb.append(ins(f"{MF} {vr(HACC+4, 4)}, {hf(c, 0)}, {hf(c, 2)}, {C(vr(HACC+4, 4))}"))
        if c + 1 < 18:
            if (c + 1) % 3 == 0:
                sr_.add(WaitTag(f"g{(c+1)//3}", "vm"), g0 + 1, g0 + 1)
                sr_.add("s_barrier", g0 + 1, g0 + 1)
            for k, r in enumerate(reads(c + 1)):
                sr_.add(r, g0 + 1 + k, g0 + 14)
        if c < 6:
            for it in dma(12 + c) + xload(12 + c): sl.add(it, g0)
    weave(p, bb, [sr_, sl], cap=2)
    KP, K0, K1 = 88, 94, 100
    VE, VO_, VR_ = 106, 112, 118
    Q = 124
    HT, HN = 140, 142
    def pack(d, s):
        p(f"v_cvt_pk_bf16_f32 v{d}, v{s}, v{s+1}\nv_cvt_pk_bf16_f32 v{d+1}, v{s+2}, v{s+3}")
    a_ = lambda tt, j: ACC + 32 * tt + 4 * j
    V_EX = 6
    EXB = 147456
    p(f"""v_lshlrev_b32 v{V_EX}, 3, v{V_LANE}
    v_add_u32 v{V_EX}, {EXB}, v{V_EX}
    s_mul_i32 s52, s{S_WAVE}, 3072
    v_add_u32 v7, s52, v{V_EX}""")
    for tt, K in ((1, K1), (0, K0)):
        q = Q + 8 * tt
        pack(K, a_(tt, 2)); pack(K + 4, a_(tt, 3))
        p(f"""v_cvt_pk_bf16_f32 v{q+2}, v{a_(tt,4)}, v{a_(tt,4)+1}
        v_cvt_pk_bf16_f32 v{q+5}, v{a_(tt,4)+2}, v{a_(tt,4)+3}
        v_mov_b32 v{K+2}, 0
        v_mov_b32 v{K+3}, 0""")
        for j, V in ((5, VE), (6, VO_), (7, VR_)): pack(V + 2 + 2 * tt, a_(tt, j))
        p(f"v_permlane32_swap_b32 v{q+2}, v{K+2}\nv_permlane32_swap_b32 v{q+5}, v{K+3}")
        if tt == 1:
            for f, r in enumerate((K1, K1 + 2, K1 + 4, VE + 4, VO_ + 4, VR_ + 4)):
                p(f"ds_write_b64 v7, v[{r}:{r+1}] offset:{3072+512*f}")
            pack(HT, HACC); pack(HN, HACC + 4)
            lsk = p.label("noswap")
            p(f"""s_min_u32 s52, s{S_WAVE}, 2
            s_lshl_b32 s53, s52, 1
            s_cmp_ge_u32 s{S_WAVE}, 2
            s_cselect_b32 s53, 1, s53
            s_lshl_b32 s53, s53, 9
            s_add_u32 s52, s52, 3
            s_lshl_b32 s52, s52, 9
            v_add_u32 v8, s53, v{V_EX}
            v_add_u32 v9, s52, v{V_EX}
            s_cmp_lt_u32 s{S_WAVE}, 2
            s_cbranch_scc1 {lsk}
            v_mov_b32 v10, 0
            v_mov_b32 v11, 0
            s_nop 1
            v_permlane32_swap_b32 v{HT}, v10
            v_permlane32_swap_b32 v{HT+1}, v11
            v_mov_b32 v{HT}, v10
            v_mov_b32 v{HT+1}, v11
            {lsk}:
            ds_write_b64 v8, v[{HT}:{HT+1}]
            ds_write_b64 v9, v[{HN}:{HN+1}]""")
        pack(q, a_(tt, 0)); pack(q + 6, a_(tt, 1))
        p(f"v_mov_b32 v{q+3}, 0\nv_mov_b32 v{q+4}, 0")
    ONE = 12
    for j in range(4): p(f"v_mov_b32 v{ONE+j}, {BF16_ONES:#x}")
    SS = 16
    th = [(tt, h) for tt in (1, 0) for h in range(2)]
    sreg = lambda tt, h: SS + 16 * tt + 8 * h
    Kop = lambda K, h: vr(K + 2 * h, 4)
    Qop = lambda tt, h: vr(Q + 8 * tt + 4 * h, 4)
    for h in range(2):
        p(f"{MF} {vr(sreg(1,h),4)}, {Kop(K0,h)}, {Qop(1,h)}, {vr(BP,4)}")
        p(f"{MF} {vr(sreg(1,h)+4,4)}, {Kop(K1,h)}, {Qop(1,h)}, {vr(BO,4)}")
        p(f"{MF} {vr(sreg(0,h)+4,4)}, {Kop(K0,h)}, {Qop(0,h)}, {vr(BO,4)}")
    p.drain(vm=False)
    p("s_barrier")
    for f, r in enumerate((KP, KP + 2, KP + 4, VE, VO_, VR_)):
        p(f"ds_read_b64 v[{r}:{r+1}], v7 offset:{512*f}")
    MX, TMP, PP, OO = 48, 52, 56, 180
    p(f"s_mov_b32 s52, 0x3eae1a93")
    def softmax(group):
        for k, (tt, h) in group:
            s = sreg(tt, h)
            p(f"v_max3_f32 v{MX+k}, v{s}, v{s+1}, v{s+2}")
        for j in (3, 5):
            for k, (tt, h) in group:
                s = sreg(tt, h)
                p(f"v_max3_f32 v{MX+k}, v{MX+k}, v{s+j}, v{s+j+1}")
        for k, (tt, h) in group:
            p(f"v_max_f32 v{MX+k}, v{MX+k}, v{sreg(tt,h)+7}")
        for op in ("v_permlane16_swap_b32", "v_permlane32_swap_b32"):
            for k, _ in group: p(f"v_mov_b32 v{TMP+k}, v{MX+k}")
            for k, _ in group: p(f"{op} v{MX+k}, v{TMP+k}")
            for k, _ in group: p(f"v_max_f32 v{MX+k}, v{MX+k}, v{TMP+k}")
        for k, _ in group: p(f"v_mul_f32 v{MX+k}, s52, v{MX+k}")
        for j in range(8):
            for k, (tt, h) in group:
                s = sreg(tt, h) + j
                p(f"v_fma_f32 v{s}, v{s}, s52, -v{MX+k}")
        for j in range(8):
            for k, (tt, h) in group:
                s = sreg(tt, h) + j
                p(f"v_exp_f32 v{s}, v{s}")
        for j in range(4):
            for k, (tt, h) in group:
                s = sreg(tt, h) + 2 * j
                p(f"v_cvt_pk_bf16_f32 v{PP+4*k+j}, v{s}, v{s+1}")
        for k, (tt, h) in group:
            o = OO + 12 * k
            p(f"{MF} {vr(o+8,4)}, {vr(ONE,4)}, {vr(PP+4*k,4)}, 0")
            p(f"{MF} {vr(o,4)}, {vr((VE, VO_)[h]+2*tt,4)}, {vr(PP+4*k,4)}, 0")
            p(f"{MF} {vr(o+4,4)}, {vr(VR_+2*tt,4)}, {vr(PP+4*k,4)}, 0")
    g1 = [(0, (1, 0)), (1, (1, 1))]
    g0 = [(2, (0, 0)), (3, (0, 1))]
    for h in range(2):
        p(f"{MF} {vr(sreg(0,h),4)}, {Kop(KP,h)}, {Qop(0,h)}, {vr(BP0,4)}")
    softmax(g1 + g0)
    OP, RP = 72, 80
    p(f"""s_lshl_b32 s53, s{S_T0}, 4
    s_add_u32 s53, s53, s{S_HP}
    s_lshl_b32 s54, s53, 10
    s_add_u32 s54, s54, {LB(l)+OM}
    s_lshl_b32 s55, s53, 7
    s_add_u32 s55, s55, {LB(l)+OR_-128}
    v_lshlrev_b32 v6, 3, v{V_LANE}""")
    for k, (tt, h) in g1 + g0:
        o = OO + 12 * k
        p(f"v_rcp_f32 v{o+8}, v{o+8}")
    for k, (tt, h) in g1 + g0:
        o = OO + 12 * k
        for j in range(4): p(f"v_mul_f32 v{o+j}, v{o+j}, v{o+8}")
        for j in range(2): p(f"v_mul_f32 v{o+4+2*h+j}, v{o+4+2*h+j}, v{o+8}")
        pack(OP + 4 * tt + 2 * h, o)
        p(f"v_cvt_pk_bf16_f32 v{RP+2*tt+h}, v{o+4+2*h}, v{o+5+2*h}")
        if h == 1:
            p(f"s_add_u32 s53, s54, {tt*16*1024}")
            p(f"buffer_store_dwordx4 {vr(OP+4*tt,4)}, v{V_L16}, s[{S_WS}:{S_WS+3}], s53 offen{sc}")
    p("s_mov_b32 exec_lo, 0xffff0000\ns_mov_b32 exec_hi, 0")
    for tt in range(2):
        p(f"buffer_store_dwordx2 {vr(RP+2*tt,2)}, v6, s[{S_WS}:{S_WS+3}], s55 offen offset:{tt*16*128}{sc}")
    p("s_mov_b64 exec, -1")

def gen_qkv(name, l):
    p = Prog(); end = f"{name}_end"
    prologue(p, end)
    qkv_phase(p, l)
    p(f"{end}:\ns_endpgm")
    return kernel_text(name, p.finalize(), vgpr=256 + 144, accum=256), (256, 256, 147456 + 5 * 3072)

def wo_phase(p, l, sc="", ld=""):
    V_LANE, V_L16 = 1, 2
    S_TB, S_CG, S_T, S_SRC, S_M0 = 44, 45, 46, 47, 48
    sdiv(p, S_TB, S_IDX, 6, 32)
    p(f"""s_mul_i32 s52, s{S_TB}, 6
    s_sub_u32 s{S_CG}, s{S_IDX}, s52
    s_lshl_b32 s52, s{S_XCD}, 2
    s_add_u32 s{S_TB}, s{S_TB}, s52
    s_lshl_b32 s{S_T}, s{S_TB}, 2
    s_add_u32 s{S_T}, s{S_T}, s{S_WAVE}
    s_mul_i32 s{S_SRC}, s{S_CG}, {108*1024}
    s_mul_i32 s{S_M0}, s{S_WAVE}, {3*1024}
    s_add_u32 s{S_SRC}, s{S_SRC}, s{S_M0}
    s_add_u32 s{S_SRC}, s{S_SRC}, {WOS}
    s_lshl_b32 s49, s{S_T}, 14
    s_add_u32 s49, s49, {LB(l)+OM}
    s_lshl_b32 s50, s{S_T}, 11
    s_add_u32 s50, s50, {LB(l)+OR_}
    v_and_b32 v3, 15, v{V_LANE}
    v_lshrrev_b32 v4, 4, v{V_LANE}
    v_lshlrev_b32 v5, 3, v3
    v_lshl_add_u32 v5, v4, 8, v5
    s_lshl_b32 s52, s{S_T}, 4
    v_add_u32 v6, s52, v3
    v_lshlrev_b32 v7, 3, v6
    v_mul_u32_u24 v6, 1152, v6
    v_lshl_add_u32 v6, v4, 4, v6
    s_mul_i32 s51, s{S_CG}, 192""")
    if l == 0: srd(p, S_X, P_X, XBYTES)
    else:
        p(f"s_add_u32 s{S_X}, s{P_WS}, {LB(0)+X2R}\ns_addc_u32 s{S_X+1}, s{P_WS+1}, 0\ns_mov_b32 s{S_X+2}, {XBYTES:#x}\ns_mov_b32 s{S_X+3}, 0x20000")
    OF, ACC, WB, RES = 16, 88, 112, 160
    for g in range(9):
        p(f"s_mov_b32 m0, s{S_M0}")
        for j in range(3):
            p(f"buffer_load_dwordx4 v{V_L16}, s[{S_WS}:{S_WS+3}], s{S_SRC} offen offset:{1024*j} lds", tag=f"w{g//3}")
        p(f"s_add_u32 s{S_M0}, s{S_M0}, {12*1024}\ns_add_u32 s{S_SRC}, s{S_SRC}, {12*1024}")
        for c in (2 * g, 2 * g + 1):
            if c < 16:
                if c % 4 == 0 and c: p("s_add_u32 s49, s49, 4096")
                p(f"buffer_load_dwordx4 {vr(OF+4*c,4)}, v{V_L16}, s[{S_WS}:{S_WS+3}], s49 offen offset:{1024*(c&3)}{ld}")
            else:
                for hh in range(2):
                    p(f"buffer_load_dwordx2 {vr(OF+4*c+2*hh,2)}, v5, s[{S_WS}:{S_WS+3}], s50 offen offset:{1024*(c-16)+128*hh}{ld}")
    for j in range(3):
        p(f"buffer_load_dwordx4 {vr(RES+4*j,4)}, v6, s[{S_X}:{S_X+3}], s51 offen offset:{64*j}{ld}")
    V_W = 8
    p(f"v_mov_b32 v{V_W}, v{V_L16}")
    wf = lambda c, t: vr(WB + 24 * (c & 1) + 4 * t, 4)
    def reads(c):
        r = []
        if c == 10: r.append(f"v_add_u32 v{V_W}, {10*6144}, v{V_W}")
        return r + [f"ds_read_b128 {wf(c,t)}, v{V_W} offset:{(c%10)*6144+1024*t}" for t in range(6)]
    p.wait_vm("w0"); p("s_barrier")
    p.add(reads(0))
    bb = []; sr_ = Stream()
    for c in range(18):
        g0 = len(bb)
        for t in range(6):
            bb.append(ins(f"{MF} {vr(ACC+4*t,4)}, {wf(c,t)}, {vr(OF+4*c,4)}, {'0' if c == 0 else vr(ACC+4*t,4)}"))
        if c + 1 < 18:
            if (c + 1) % 6 == 0:
                sr_.add(WaitTag(f"w{(c+1)//6}", "vm"), g0, g0)
                sr_.add("s_barrier", g0, g0)
            for k, r in enumerate(reads(c + 1)): sr_.add(r, g0 + max(0, k - 1), g0 + 5)
    weave(p, bb, [sr_], cap=2)
    X, PK = 16, 40
    for j in range(3): unpack8(p, X + 8 * j, RES + 4 * j)
    for e in range(24): p(f"v_add_f32 v{X+e}, v{X+e}, v{ACC+e}")
    p(f"""s_mul_i32 s52, s{S_T}, 18
    s_mul_i32 s53, s{S_CG}, 3
    s_add_u32 s52, s52, s53
    s_lshl_b32 s52, s52, 10
    s_add_u32 s52, s52, {LB(l)+X1}""")
    for j in range(3):
        for e in range(4): p(f"v_cvt_pk_bf16_f32 v{PK+4*j+e}, v{X+8*j+2*e}, v{X+8*j+2*e+1}")
        p(f"buffer_store_dwordx4 {vr(PK+4*j,4)}, v{V_L16}, s[{S_WS}:{S_WS+3}], s52 offen offset:{1024*j}{sc}")
    for j in range(3): unpack8(p, X + 8 * j, PK + 4 * j)
    SM, M2, T = 56, 57, 58
    p(f"v_add_f32 v{SM}, v{X}, v{X+1}\nv_add_f32 v{T}, v{X+2}, v{X+3}")
    for j in range(4, 24, 2):
        p(f"v_add_f32 v{SM}, v{SM}, v{X+j}\nv_add_f32 v{T}, v{T}, v{X+j+1}")
    p(f"v_add_f32 v{SM}, v{SM}, v{T}")
    xsum_g(p, SM, T)
    p(f"v_mul_f32 v{T+1}, 0x3c2aaaab, v{SM}")
    p(f"v_sub_f32 v{T}, v{X}, v{T+1}\nv_mul_f32 v{M2}, v{T}, v{T}")
    for j in range(1, 24):
        p(f"v_sub_f32 v{T+2+(j&1)}, v{X+j}, v{T+1}\nv_fmac_f32 v{M2}, v{T+2+(j&1)}, v{T+2+(j&1)}")
    xsum_g(p, M2, T)
    p(f"""s_lshl_b32 s52, s{S_CG}, 14
    s_add_u32 s52, s52, {LB(l)+ST}
    s_mov_b32 exec_lo, 0xffff
    s_mov_b32 exec_hi, 0
    buffer_store_dwordx2 v[{SM}:{M2}], v7, s[{S_WS}:{S_WS+3}], s52 offen{sc}
    s_mov_b64 exec, -1""")

def colsum_task(p, s_task, sc="", ld=""):
    V_LANE, V_L16 = 1, 2
    p(f"""s_mul_i32 s44, s{s_task}, {18*576}
    s_add_u32 s44, s44, {CSP}
    s_lshr_b32 s45, s{s_task}, 1
    s_mul_i32 s45, s45, 1152
    s_and_b32 s46, s{s_task}, 1
    s_lshl_b32 s46, s46, 6
    s_add_u32 s45, s45, s46
    s_add_u32 s45, s45, {CSF}
    v_lshrrev_b32 v3, 2, v{V_LANE}
    v_lshlrev_b32 v3, 7, v3
    v_and_b32 v4, 3, v{V_LANE}
    v_lshl_add_u32 v3, v4, 4, v3
    s_mov_b32 exec_hi, 15""")
    for c in range(18):
        if c and c % 6 == 0: p(f"s_add_u32 s44, s44, {6*576}")
        p(f"buffer_load_dwordx4 {vr(8+4*c,4)}, v{V_L16}, s[{S_WS}:{S_WS+3}], s44 offen offset:{(c%6)*576}{ld}")
    for c in range(1, 18):
        for j in range(4): p(f"v_add_f32 v{8+j}, v{8+j}, v{8+4*c+j}")
    p(f"buffer_store_dwordx4 v[8:11], v3, s[{S_WS}:{S_WS+3}], s45 offen{sc}\ns_mov_b64 exec, -1")

def gen_wo(name, l):
    p = Prog(); end = f"{name}_end"
    prologue(p, end)
    l_cs = p.label("cs")
    p(f"s_cmp_ge_u32 s{S_IDX}, 24\ns_cbranch_scc1 {l_cs if l == 0 else end}")
    wo_phase(p, l)
    if l == 0:
        p.drain()
        p(f"""s_branch {end}
        {l_cs}:
        s_cmp_lg_u32 s{S_WAVE}, 0
        s_cbranch_scc1 {end}
        s_lshl_b32 s23, s{S_XCD}, 3
        s_add_u32 s23, s23, s{S_IDX}
        s_sub_u32 s23, s23, 24""")
        colsum_task(p, 23)
    p(f"{end}:\ns_endpgm")
    return kernel_text(name, p.finalize(), vgpr=176, accum=176), (256, 256, 108 * 1024)
```

```python
from common import *
from k_prep import ln_addr, ln_local_stats, ln_finish, ln_exchange_write, ln_exchange_read
MF = "v_mfma_f32_16x16x32_bf16"
RING = 36 * 1024
LDS_CS = 4 * RING
WSR = f"s[{S_WS}:{S_WS+3}]"

class Poll:
    def __init__(self, p, v_flag, v_addr, s_off, val, name):
        self.p, self.v, self.va, self.so, self.val = p, v_flag, v_addr, s_off, val
        self.slow, self.back = p.label(name + "_slow"), p.label(name + "_back")
    def issue(self): return ins(f"buffer_load_dword v{self.v}, v{self.va}, {WSR}, s{self.so} offen sc1")
    def check(self):
        return [ins(f"v_cmp_le_u32 vcc, {self.val}, v{self.v}"), ins("s_cmp_eq_u64 vcc, exec"),
                ins(f"s_cbranch_scc0 {self.slow}"), Label(self.back)]
    def slow_path(self, p, s_cnt):
        lp = p.label("spin")
        p.add(Raw(f"""{self.slow}:
    s_mov_b32 s{s_cnt}, 0x40000
{lp}:
    buffer_load_dword v{self.v}, v{self.va}, {WSR}, s{self.so} offen sc1
    s_waitcnt vmcnt(0)
    v_cmp_le_u32 vcc, {self.val}, v{self.v}
    s_sub_u32 s{s_cnt}, s{s_cnt}, 1
    s_cbranch_scc1 {self.back}
    s_cmp_eq_u64 vcc, exec
    s_cbranch_scc1 {self.back}
    s_branch {lp}"""))

def ffn_phase(p, l, sc=" sc1", ld="", tail=None):
    V_LANE, V_L16, V_L8, V_W, V_CS, V_T0, V_T1 = 1, 2, 3, 4, 5, 6, 7
    WB, XO, ACA, ACB, NM, RS2, CS, TMP, HO, H8 = 8, 32, 64, 96, 128, 132, 136, 152, 176, 240
    ACX = 208
    S_RB, S_Q, S_M, S_SL, S_SRC, S_M0, S_XS, S_H, S_FL, S_P, S_T, S_R = 44, 45, 46, 47, 48, 49, 50, 51, 52, 53, 54, 56
    S_TMP, S_TMP2, S_LASTSRC, S_LASTM0, S_CNT = 60, 61, 62, 63, 64
    p(f"""s_lshr_b32 s{S_RB}, s{S_IDX}, 4
    s_and_b32 s{S_TMP}, s{S_XCD}, 6
    s_add_u32 s{S_RB}, s{S_RB}, s{S_TMP}
    s_and_b32 s{S_TMP}, s{S_XCD}, 1
    s_lshl_b32 s{S_TMP}, s{S_TMP}, 4
    s_and_b32 s{S_SL}, s{S_IDX}, 15
    s_add_u32 s{S_SL}, s{S_SL}, s{S_TMP}
    s_lshr_b32 s{S_Q}, s{S_SL}, 2
    s_and_b32 s{S_M}, s{S_SL}, 3
    s_mul_i32 s{S_SRC}, s{S_SL}, {486*1024}
    s_add_u32 s{S_SRC}, s{S_SRC}, {WF}
    s_mul_i32 s{S_LASTM0}, s{S_WAVE}, 9
    s_lshr_b32 s{S_LASTM0}, s{S_LASTM0}, 1
    s_lshl_b32 s{S_LASTM0}, s{S_LASTM0}, 10
    s_add_u32 s{S_LASTSRC}, s{S_SRC}, s{S_LASTM0}
    s_mul_i32 s{S_M0}, s{S_WAVE}, {9*1024}
    s_add_u32 s{S_SRC}, s{S_SRC}, s{S_M0}
    s_lshl_b32 s{S_T}, s{S_RB}, 4
    s_lshl_b32 s{S_TMP}, s{S_WAVE}, 2
    s_add_u32 s{S_T}, s{S_T}, s{S_TMP}
    s_mul_i32 s{S_XS}, s{S_T}, {18*1024}
    s_mul_i32 s{S_P}, s{S_Q}, {XBYTES}
    s_add_u32 s{S_P}, s{S_P}, s{S_XS}
    s_add_u32 s{S_XS}, s{S_XS}, {LB(l)+X1}
    s_lshr_b32 s{S_TMP}, s{S_M}, 1
    s_mul_i32 s{S_TMP}, s{S_TMP}, {9*1024}
    s_add_u32 s{S_P}, s{S_P}, s{S_TMP}
    s_add_u32 s{S_P}, s{S_P}, {LB(l)+PB}
    v_lshlrev_b32 v{V_L8}, 3, v{V_LANE}
    v_mov_b32 v{V_W}, v{V_L16}""")
    def slot_dma(k):
        r = []
        if k < 13:
            for g in range(3):
                r.append(ins(f"s_add_u32 m0, s{S_M0}, {(k&3)*RING+4096*g}"))
                r.append(ins(f"s_add_u32 s{S_TMP2}, s{S_SRC}, {k*RING+4096*g}"))
                for j in range(4 if g < 2 else 1):
                    r.append(ins(f"buffer_load_dwordx4 v{V_L16}, {WSR}, s{S_TMP2} offen offset:{1024*j} lds", f"slot{k}"))
        else:
            for g in range(2):
                r.append(ins(f"s_add_u32 m0, s{S_LASTM0}, {(k&3)*RING+4096*g}"))
                r.append(ins(f"s_add_u32 s{S_TMP2}, s{S_LASTSRC}, {k*RING+4096*g}"))
                for j in range(4 if g < 1 else 1):
                    r.append(ins(f"buffer_load_dwordx4 v{V_L16}, {WSR}, s{S_TMP2} offen offset:{1024*j} lds", f"slot{k}"))
        return r
    xf = lambda c, tt: ar(16 * c + 4 * tt, 4) if c < 16 else vr(XO + 16 * (c - 16) + 4 * tt, 4)
    def xload(c4, tt):
        r = [ins(f"s_add_u32 s{S_TMP}, s{S_XS}, {tt*18*1024+c4*4096}")]
        for c in range(4 * c4, min(4 * c4 + 4, 18)):
            r.append(ins(f"buffer_load_dwordx4 {xf(c,tt)}, v{V_L16}, {WSR}, s{S_TMP} offen offset:{1024*(c&3)}{ld}"))
        return r
    p(f"""s_and_b32 s{S_TMP}, s{S_WAVE}, 1
    s_lshl_b32 s{S_TMP}, s{S_TMP}, 10
    s_add_u32 m0, s{S_TMP}, {LDS_CS}
    s_mul_i32 s{S_TMP2}, s{S_SL}, 1152
    s_add_u32 s{S_TMP2}, s{S_TMP2}, s{S_TMP}
    s_add_u32 s{S_TMP2}, s{S_TMP2}, {CSF}""")
    p(f"buffer_load_dwordx4 v{V_L16}, {WSR}, s{S_TMP2} offen lds", tag="slot1")
    p.add(slot_dma(0)); p.add(slot_dma(1))
    for c4 in range(2):
        for tt in range(4): p.add(xload(c4, tt))
    p(f"""s_lshl_b32 s{S_TMP}, s{S_RB}, 5
    s_add_u32 s{S_TMP}, s{S_TMP}, s{S_SL}
    s_mul_i32 s{S_H}, s{S_TMP}, {72*1024}
    s_add_u32 s{S_H}, s{S_H}, {LB(l)+HB}""")
    for j in range(3):
        p(f"""s_xor_b32 s{S_TMP2}, s{S_TMP}, {j+1}
        s_mul_i32 s{S_R+j}, s{S_TMP2}, {72*1024}
        s_add_u32 s{S_R+j}, s{S_R+j}, {LB(l)+HB}""")
    p(f"""s_lshr_b32 s{S_FL}, s{S_TMP}, 2
    s_lshl_b32 s{S_FL}, s{S_FL}, 2
    s_add_u32 s{S_FL}, s{S_FL}, s{S_WAVE}
    s_lshl_b32 s{S_FL}, s{S_FL}, 7
    s_add_u32 s{S_FL}, s{S_FL}, {FLAGS+l*0x10000}
    v_lshrrev_b32 v{V_CS}, 4, v{V_LANE}
    v_lshlrev_b32 v{V_CS}, 4, v{V_CS}
    v_add_u32 v{V_CS}, {LDS_CS}, v{V_CS}
    v_and_b32 v{V_T0}, 15, v{V_LANE}
    s_lshl_b32 s{S_TMP}, s{S_T}, 4
    v_add_u32 v{V_T0}, s{S_TMP}, v{V_T0}
    v_lshlrev_b32 v{V_T0}, 3, v{V_T0}
    s_lshl_b32 s{S_TMP}, s{S_WAVE}, 12""")
    for r in (S_H, S_R, S_R + 1, S_R + 2):
        p(f"s_add_u32 s{r}, s{r}, s{S_TMP}")
    p(f"s_lshl_b32 s65, s{S_WAVE}, 11\ns_sub_u32 s65, {64*1024}, s65")
    p(f"s_lshl_b32 s67, s{S_M}, 2\ns_add_u32 s67, s67, s{S_FL}")

    frs = []
    tiles = [(8, ACX), (0, ACA)]
    acc1 = lambda buf, mat, tt: vr(buf + 16 * mat + 4 * tt, 4)
    def g1(tile, buf, c, mat):
        f = pos_of_tile(tile) * 36 + 2 * c + mat
        return (f, [(acc1(buf, mat, tt), xf(c, tt), c == 0) for tt in range(4)])
    marks = {}
    for c in range(18):
        for tile, buf in tiles:
            for mat in range(2): frs.append(g1(tile, buf, c, mat))
    marks["pass0_end"] = len(frs)
    bufs = {8: ACX, 0: ACA}
    for tile in range(1, 8):
        buf = ACB if tile & 1 else ACA
        bufs[tile] = buf
        marks[f"pass{tile}"] = len(frs)
        for c in range(18):
            for mat in range(2): frs.append(g1(tile, buf, c, mat))
    marks["g2"] = len(frs)
    acc2 = lambda n, tt: 32 + 32 * (n >> 1) + 8 * tt + 4 * (n & 1) if n < 8 else 160 + 4 * tt
    def hstep(st, tt):
        if st < 4: return vr(HO + 16 * st + 4 * tt, 4)
        if st == 4: return vr(H8 + 4 * tt, 4)
        return ar(16 * (st - 5) + 4 * tt, 4)
    order = gemm2_order()
    last_of = {}
    for i, (st, n) in enumerate(order):
        marks.setdefault(f"step{st}", len(frs))
        frs.append((324 + i, [(vr(acc2(n, tt), 4), hstep(st, tt), st == 0) for tt in range(4)]))
        last_of[n] = len(frs)
    NB, LOOK = 6, 4
    bb = []; s_rd = Stream("rd"); s_dma = Stream("dma"); s_ep = Stream("ep"); s_ld = Stream("ld")
    G = lambda s: 4 * s
    cur_base = [0]
    def read(s):
        f = frs[s][0]
        a = ((f // 36) & 3) * RING + (f % 36) * 1024
        r = []
        if s < marks["pass0_end"]:
            if a < 65536: va, off = V_W, a
            else: va, off = V_T1, a - 65536
        else:
            base = ((f // 36) & 3) * RING
            if base != cur_base[0]:
                r.append(f"v_add_u32 v{V_W}, {base - cur_base[0] & 0xffffffff:#x}, v{V_W}")
                cur_base[0] = base
            va, off = V_W, a - base
        r.append(f"ds_read_b128 {vr(WB+4*(s%NB),4)}, v{va} offset:{off}")
        return r
    p(f"v_add_u32 v{V_T1}, 0x10000, v{V_L16}")
    p.wait_vm("slot1"); p("s_barrier")
    for s in range(LOOK): p.add(read(s))
    seen = {0, 1}
    for s, (f, ms) in enumerate(frs):
        for d, b, first in ms:
            bb.append(ins(f"{MF} {d}, {vr(WB+4*(s%NB),4)}, {b}, {'0' if first else d}"))
        t = s + LOOK
        if t < len(frs):
            k = frs[t][0] // 36
            g = G(s) + 1
            if k not in seen:
                seen.add(k)
                s_rd.add(WaitTag(f"slot{k}", "vm"), g, g)
                if k == 2: s_rd.add(Drain(vm=False), g, g)
                s_rd.add("s_barrier", g, g)
                for kk in ([4, 5] if k == 2 else [k + 2] if k >= 4 else []):
                    if kk <= 13:
                        for j, it in enumerate(slot_dma(kk)): s_dma.add(it, g + 1, g + 6 + 2 * j + (30 if kk == 5 else 0))
            for r in read(t): s_rd.add(r, g, g + 1)
    for c4 in range(2, 5):
        for tt in range(4):
            for it in xload(c4, tt): s_ld.add(it, 0, 16 * (4 * c4) - 8)
    STR = lambda tt, cg: (ACB + 12 * tt + 2 * cg) if tt < 2 else (ACB + 24 + 2 * cg if (tt == 2 and cg < 4) else TMP + (2 * (cg - 4) if tt == 2 else 4 + 2 * cg))
    for cg in range(6):
        s_ld.add(f"s_mov_b32 s{S_TMP}, {LB(l)+ST+cg*16384}")
        for tt in range(4):
            s_ld.add(f"buffer_load_dwordx2 {vr(STR(tt,cg),2)}, v{V_T0}, {WSR}, s{S_TMP} offen offset:{128*tt}{ld}")
    for k in (2, 3):
        for it in slot_dma(k): s_ld.add(it, 0, G(marks["pass0_end"]) - 100)
    ga = G(marks["pass0_end"]) - 90
    A_, B_ = TMP + 16, TMP + 17
    for tt in range(4):
        s = lambda cg: STR(tt, cg)
        e = [f"v_add_f32 v{NM+tt}, v{s(0)}, v{s(1)}", f"v_add_f32 v{RS2+tt}, v{s(0)+1}, v{s(1)+1}"]
        for cg in range(2, 6): e += [f"v_add_f32 v{NM+tt}, v{NM+tt}, v{s(cg)}", f"v_add_f32 v{RS2+tt}, v{RS2+tt}, v{s(cg)+1}"]
        e += [f"v_mul_f32 v{NM+tt}, 0xbae38e39, v{NM+tt}"]
        for cg in range(6):
            e += [f"v_fmamk_f32 v{B_}, v{s(cg)}, 0x3c2aaaab, v{NM+tt}",
                  f"v_mul_f32 v{A_}, v{B_}, v{B_}" if cg == 0 else f"v_fmac_f32 v{A_}, v{B_}, v{B_}"]
        e += [f"v_fmac_f32 v{RS2+tt}, 0x42c00000, v{A_}", f"v_mov_b32 v{B_}, 0x3727c5ac",
              f"v_fmac_f32 v{B_}, 0x3ae38e39, v{RS2+tt}", f"v_rcp_f32 v{RS2+tt}, v{B_}"]
        for x in e: s_ep.add(x, ga, G(marks["pass0_end"]))
    def cs_reads(tile, g):
        cb = CS + 8 * (pos_of_tile(tile) & 1)
        for mat in range(2):
            s_ep.add(f"ds_read_b128 {vr(cb+4*mat,4)}, v{V_CS} offset:{pos_of_tile(tile)*128+64*mat}", g)
    def epilogue(tile, g, dl):
        buf = bufs[tile]; cb = CS + 8 * (pos_of_tile(tile) & 1)
        for tt in range(4):
            gq, uq = buf + 4 * tt, buf + 16 + 4 * tt
            for r in range(4): s_ep.add(f"v_fmac_f32 v{gq+r}, v{cb+r}, v{NM+tt}", g, dl)
            for r in range(4): s_ep.add(f"v_fmac_f32 v{uq+r}, v{cb+4+r}, v{NM+tt}", g, dl)
            for r in range(4): s_ep.add(f"v_mul_f32 v{gq+r}, v{gq+r}, v{RS2+tt}", g, dl)
            for r in range(4): s_ep.add(f"v_mul_f32 v{gq+r}, v{gq+r}, v{uq+r}", g, dl)
            dst = H8 + 4 * tt if tile == 8 else HO + 16 * (tile >> 1) + 4 * tt + 2 * (tile & 1)
            for j in range(2): s_ep.add(f"v_cvt_pk_bf16_f32 v{dst+j}, v{gq+2*j}, v{gq+2*j+1}", g, dl)
            if tile == 8:
                if tt == 0: s_ep.add(f"s_add_u32 s66, s{S_H}, s65", g, dl)
                s_ep.add(f"buffer_store_dwordx2 {vr(dst,2)}, v{V_L8}, {WSR}, s66 offen offset:{512*tt}{sc}", g, dl, tag="h8")
            elif tile & 1:
                if tt == 0: s_ep.add(f"s_add_u32 s66, s{S_H}, {(tile>>1)*16*1024}", g, dl)
                s_ep.add(f"buffer_store_dwordx4 {vr(dst-2,4)}, v{V_L16}, {WSR}, s66 offen offset:{1024*tt}{sc}", g, dl, tag=f"h{tile>>1}")
    g1s = G(marks["pass1"])
    cs_reads(8, g1s - 20); cs_reads(0, g1s - 20)
    epilogue(0, g1s + 6, G(marks["pass2"])); epilogue(8, g1s + 6, G(marks["pass2"]) + 60)
    for tile in range(1, 8):
        nxt = G(marks[f"pass{tile+1}"]) if tile < 7 else G(marks["g2"])
        cs_reads(tile, nxt - 20)
        epilogue(tile, nxt + 6, nxt + (140 if tile < 7 else 48))
    def signal(val, tag, g):
        s_ep.add(f"v_mov_b32 v{V_T0}, {val}", g)
        s_ep.add(f"v_mov_b32 v{V_T1}, 0", g)
        s_ep.add(WaitTag(tag, "vm"), g)
        s_ep.add([ins("s_mov_b64 exec, 1"), ins(f"buffer_store_dword v{V_T0}, v{V_T1}, {WSR}, s67 offen sc1"), ins("s_mov_b64 exec, -1")], g + 1, cost=2)
    q = s_ep.q; s_ep.q = []
    iA = max(i for i, e in enumerate(q) if e[0] == G(marks["pass5"]) + 6)
    s_ep.q = q[:iA + 1]
    signal(1, "h1", G(marks["pass5"]) + 80)
    s_ep.q += q[iA + 1:]
    signal(2, "h3", G(marks["step3"]) + 10)
    V_PA = V_T1
    pollA, pollB = Poll(p, V_T0, V_PA, S_FL, 1, "pa"), Poll(p, V_T0, V_PA, S_FL, 2, "pb")
    def addpoll(pl, g_issue, g_check):
        s_ld.add(f"v_and_b32 v{V_PA}, 3, v{V_LANE}", g_issue - 2); s_ld.add(f"v_lshlrev_b32 v{V_PA}, 2, v{V_PA}", g_issue - 1)
        s_ld.add(pl.issue(), g_issue)
        s_ld.add(pl.check(), g_check, cost=2)
    g7 = G(marks["pass7"])
    addpoll(pollA, g7 - 60, g7 - 12)
    ldh = " sc1"
    for tt in range(4):
        if tt == 0: s_ld.add(f"s_add_u32 s{S_TMP}, s{S_R}, s65", g7)
        s_ld.add(f"buffer_load_dwordx2 {vr(H8+4*tt+2,2)}, v{V_L8}, {WSR}, s{S_TMP} offen offset:{512*tt}{ldh}", g7)
    for j in range(2):
        s_ld.add(f"s_add_u32 s{S_TMP}, s{S_R+1+j}, s65", g7 + 8)
        for tt in range(4):
            s_ld.add(f"buffer_load_dwordx2 {ar(4*tt+2*j,2)}, v{V_L8}, {WSR}, s{S_TMP} offen offset:{512*tt}{ldh}", g7 + 8, g7 + 30)
    def hload(st, g):
        i = st - 6
        s_ld.add(f"s_add_u32 s{S_TMP}, s{S_R+i%3}, {(i//3)*16*1024}", g)
        for tt in range(4):
            s_ld.add(f"buffer_load_dwordx4 {hstep(st,tt)}, v{V_L16}, {WSR}, s{S_TMP} offen offset:{1024*tt}{ldh}", g, g + 16)
    for st in range(6, 12): hload(st, g7 + 8 * (st - 4) + 8 * (st - 6))
    gB = G(marks["step6"])
    addpoll(pollB, gB - 30, gB)
    for st in range(12, 18): hload(st, gB + 1 + 6 * (st - 12))
    s_o = Stream("out")
    s_o.add(f"s_and_b32 s68, s{S_M}, 1", gB)
    s_o.add(f"s_mul_i32 s69, s68, {5*1024}", gB); s_o.add(f"s_add_u32 s69, s69, s{S_P}", gB)
    s_o.add(f"s_lshl_b32 s68, s68, 9", gB); s_o.add(f"s_add_u32 s68, s68, s{S_P}", gB)
    s_o.add(f"v_and_b32 v0, 15, v{V_LANE}", gB); s_o.add(f"v_lshlrev_b32 v0, 5, v0", gB)
    s_o.add(f"v_lshrrev_b32 v{V_CS}, 4, v{V_LANE}", gB); s_o.add(f"v_lshl_add_u32 v0, v{V_CS}, 3, v0", gB)
    for pr in range(4):
        g = G(last_of[2 * pr + 1]) + 4
        for tt in range(4):
            a = acc2(2 * pr, tt)
            for j in range(4): s_o.add(f"v_cvt_pk_bf16_f32 v{a+j}, v{a+2*j}, v{a+2*j+1}", g)
            s_o.add(f"s_add_u32 s70, s69, {tt*18*1024+pr*1024}", g)
            s_o.add(f"buffer_store_dwordx4 {vr(a,4)}, v{V_L16}, {WSR}, s70 offen{sc}", g, tag="pout")
    g = len(bb)
    for tt in range(4):
        a = acc2(8, tt)
        for j in range(2): s_o.add(f"v_cvt_pk_bf16_f32 v{a+j}, v{a+2*j}, v{a+2*j+1}", g)
        s_o.add(f"s_add_u32 s70, s68, {tt*18*1024+4*1024}", g)
        s_o.add(f"buffer_store_dwordx2 {vr(a,2)}, v0, {WSR}, s70 offen{sc}", g, tag="pout")
    weave(p, bb, [s_rd, s_ld, s_ep, s_o, s_dma], cap=2)
    return [lambda pp: pollA.slow_path(pp, S_CNT), lambda pp: pollB.slow_path(pp, S_CNT)]

def gen_ffn(name, l):
    p = Prog(); end = f"{name}_end"
    prologue(p, end)
    ool = ffn_phase(p, l)
    p(f"{end}:\ns_endpgm")
    for f in ool: f(p)
    t = p.finalize()
    print(name, p.stats)
    return kernel_text(name, t, vgpr=512, accum=256), (256, 256, LDS_CS + 2048)

def reduce_phase(p, l, lds_off=0, sc="", ld=""):
    V_LANE = 1
    VROW, VFR, VP, VLD, VX, VS, VO = 3, 4, 5, 16, 128, 152, 160
    p(f"s_lshl_b32 s47, s{S_XCD}, 5\ns_add_u32 s47, s47, s{S_IDX}")
    ln_addr(p, 47, V_LANE, VROW, VFR, 8, 48)
    p(f"""v_lshrrev_b32 v8, 3, v{V_LANE}
    v_and_b32 v9, 7, v{V_LANE}
    s_and_b32 s48, s47, 1
    s_lshl_b32 s48, s48, 3
    v_add_u32 v9, s48, v9
    v_lshlrev_b32 v9, 4, v9
    v_bfe_u32 v10, v8, 1, 1
    v_and_b32 v11, 1, v8
    v_lshl_add_u32 v9, v11, 4, v9
    v_lshl_add_u32 v9, v10, 9, v9
    v_and_b32 v10, 3, v8
    v_lshlrev_b32 v10, 8, v10
    v_sub_u32 v9, v9, v10
    s_mul_i32 s48, s{S_WAVE}, 6
    v_lshrrev_b32 v8, 2, v8
    v_add_u32 v8, s48, v8""")
    for i in range(3):
        p(f"""v_add_u32 v10, {2*i}, v8
        v_cmp_eq_u32 vcc, 4, v10
        v_cmp_eq_u32 s[56:57], 13, v10
        s_or_b64 vcc, vcc, s[56:57]
        v_cndmask_b32 v10, 0, v9, vcc
        v_add3_u32 v{VP+i}, v{VFR}, v10, {0}
        v_add_u32 v{VP+i}, {2048*i}, v{VP+i}""")
    l_skip = p.label("w3a")
    p(f"s_cmp_eq_u32 s{S_WAVE}, 3\ns_cbranch_scc1 {l_skip}")
    p(f"s_mov_b32 s48, {LB(l)+X1}")
    for i in range(3):
        if i == 2: p("s_add_u32 s48, s48, 4096")
        p(f"buffer_load_dwordx4 {vr(VLD+36*i,4)}, v{VFR}, {WSR}, s48 offen offset:{2048*(i&1)}{ld}")
    for q in range(8):
        p(f"s_mov_b32 s48, {LB(l)+PB+q*XBYTES}")
        for i in range(3):
            p(f"buffer_load_dwordx4 {vr(VLD+36*i+4+4*q,4)}, v{VP+i}, {WSR}, s48 offen{ld}")
    for i in range(3): unpack8(p, VX + 8 * i, VLD + 36 * i)
    for q in range(8):
        for i in range(3):
            b = VLD + 36 * i + 4 + 4 * q
            for j in range(4):
                p(f"""v_lshlrev_b32 v{8+2*(j&1)}, 16, v{b+j}
                v_and_b32 v{9+2*(j&1)}, 0xffff0000, v{b+j}
                v_add_f32 v{VX+8*i+2*j}, v{VX+8*i+2*j}, v{8+2*(j&1)}
                v_add_f32 v{VX+8*i+2*j+1}, v{VX+8*i+2*j+1}, v{9+2*(j&1)}""")
    if l == 1: srd(p, S_O, P_OUT, XBYTES)
    else: p(f"s_add_u32 s{S_O}, s{P_WS}, {LB(0)+X2R}\ns_addc_u32 s{S_O+1}, s{P_WS+1}, 0\ns_mov_b32 s{S_O+2}, {XBYTES:#x}\ns_mov_b32 s{S_O+3}, 0x20000")
    for i in range(3):
        for j in range(4): p(f"v_cvt_pk_bf16_f32 v{VO+4*i+j}, v{VX+8*i+2*j}, v{VX+8*i+2*j+1}")
        p(f"buffer_store_dwordx4 {vr(VO+4*i,4)}, v{VROW}, s[{S_O}:{S_O+3}], 0 offen offset:{128*i}{sc if l == 0 else ''}")
    if l == 1:
        p(f"{l_skip}:")
        return
    for i in range(3): unpack8(p, VX + 8 * i, VO + 4 * i)
    ln_local_stats(p, VX, VS, VS + 1, 8)
    ln_exchange_write(p, VS, V_LANE, 8, lds_off)
    p.drain(vm=False)
    p(f"{l_skip}:\ns_barrier")
    l_skip2 = p.label("w3b")
    p(f"s_cmp_eq_u32 s{S_WAVE}, 3\ns_cbranch_scc1 {l_skip2}")
    ln_exchange_read(p, VS, V_LANE, 8, lds_off)
    ln_finish(p, VX, VS, 16, 8)
    p(f"s_mov_b32 s46, {LB(l+1)+XN}")
    for i in range(3):
        if i == 2: p("s_add_u32 s46, s46, 4096")
        p(f"buffer_store_dwordx4 {vr(16+4*i,4)}, v{VFR}, {WSR}, s46 offen offset:{2048*(i&1)}{sc}")
    p(f"{l_skip2}:")

def gen_reduce(name, l):
    p = Prog(); end = f"{name}_end"
    prologue(p, end)
    reduce_phase(p, l)
    p(f"{end}:\ns_endpgm")
    return kernel_text(name, p.finalize(), vgpr=176, accum=176), (256, 256, 256)
```

```python
from common import *

def shuffle_dma(p, srd_, ppr, ndma, s_rowbase, s_grs, s_hrs, s_rs, s_lds, v_lane, vt, tag, qkv=False):
    for i in range(ndma):
        p(f"""v_add_u32 v{vt}, {64*i}, v{v_lane}
        v_mul_u32_u24 v{vt+1}, {magic(ppr, 64*ndma)}, v{vt}
        v_lshrrev_b32 v{vt+1}, 16, v{vt+1}
        v_mul_u32_u24 v{vt+2}, {ppr}, v{vt+1}
        v_sub_u32 v{vt}, v{vt}, v{vt+2}""")
        if qkv:
            p(f"""v_mul_u32_u24 v{vt+2}, {magic(5, 16)}, v{vt}
            v_lshrrev_b32 v{vt+2}, 16, v{vt+2}
            v_mul_u32_u24 v{vt+2}, {1152-80}, v{vt+2}
            v_lshl_add_u32 v{vt}, v{vt}, 4, v{vt+2}""")
        else:
            p(f"v_lshlrev_b32 v{vt}, 4, v{vt}")
        p(f"""v_lshrrev_b32 v{vt+2}, 3, v{vt+1}
        v_mul_lo_u32 v{vt+2}, v{vt+2}, s{s_grs}
        v_bfe_u32 v{vt+3}, v{vt+1}, 2, 1
        v_mul_lo_u32 v{vt+3}, v{vt+3}, s{s_hrs}
        v_and_b32 v{vt+1}, 3, v{vt+1}
        v_mul_lo_u32 v{vt+1}, v{vt+1}, s{s_rs}
        v_add3_u32 v{vt}, v{vt}, v{vt+2}, v{vt+3}
        v_add3_u32 v{vt}, v{vt}, v{vt+1}, s{s_rowbase}
        s_add_u32 m0, s{s_lds}, {1024*i}""")
        p(f"buffer_load_dwordx4 v{vt}, s[{srd_}:{srd_+3}], 0 offen lds", tag=tag)

def tr_base(p, vd, v_lane, stride, s_lds, vt):
    p(f"""v_lshrrev_b32 v{vd}, 4, v{v_lane}
    v_bfe_u32 v{vt}, v{v_lane}, 2, 2
    v_lshl_add_u32 v{vd}, v{vd}, 3, v{vt}
    v_mul_u32_u24 v{vd}, {stride}, v{vd}
    v_add_u32 v{vd}, s{s_lds}, v{vd}
    v_and_b32 v{vt}, 3, v{v_lane}""")

def tr_frag(p, vf, va, off, stride):
    p(f"ds_read_b64_tr_b16 v[{vf}:{vf+1}], v{va} offset:{off}")
    p(f"ds_read_b64_tr_b16 v[{vf+2}:{vf+3}], v{va} offset:{off+4*stride}")

U_ROW, U_GRS, U_HRS, U_RS, U_PB, U_T8, U_SL, U_CS = range(0, 8)
U_DST = 8
U_N = 17

def ffn_unit_setup(p, s_u, sb, ssrd, st):
    L = p.label
    l_d, l_done = L("ud"), L("udone")
    p(f"s_cmp_ge_u32 s{s_u}, 1152\ns_cbranch_scc1 {l_d}")
    sdiv(p, sb + U_SL, s_u, 36, 1152)
    p(f"""s_mul_i32 s{st}, s{sb+U_SL}, 36
    s_sub_u32 s{st}, s{s_u}, s{st}
    s_and_b32 s{st+1}, s{st}, 1
    s_lshr_b32 s{st+2}, s{st}, 1
    s_cmp_eq_u32 s{st+1}, 0
    s_cselect_b32 s{ssrd}, s{P_WG}, s{P_WU}
    s_cselect_b32 s{ssrd+1}, s{P_WG+1}, s{P_WU+1}
    s_mul_i32 s{sb+U_ROW}, s{st+2}, {32*9216}
    s_mul_i32 s{st+3}, s{sb+U_SL}, 288
    s_add_u32 s{sb+U_ROW}, s{sb+U_ROW}, s{st+3}
    s_mov_b32 s{sb+U_GRS}, {8*9216}
    s_mov_b32 s{sb+U_HRS}, {4*9216}
    s_mov_b32 s{sb+U_RS}, 9216
    s_mov_b32 s{sb+U_PB}, 0
    s_mov_b32 s{sb+U_T8}, 256
    s_mul_i32 s{st+3}, s{sb+U_SL}, 486
    s_add_u32 s{st+3}, s{st+3}, s{st}
    s_lshl_b32 s{st+3}, s{st+3}, 10
    s_add_u32 s{st+3}, s{st+3}, {WF}""")
    for n in range(9):
        p(f"s_add_u32 s{sb+U_DST+n}, s{st+3}, {pos_of_tile(n)*36*1024}")
    p(f"""s_lshl_b32 s{st+3}, s{sb+U_SL}, 1
    s_add_u32 s{st+3}, s{st+3}, s{st+1}
    s_mul_i32 s{st+3}, s{st+3}, 18
    s_add_u32 s{st+3}, s{st+3}, s{st+2}
    s_mul_i32 s{st+3}, s{st+3}, 576
    s_add_u32 s{sb+U_CS}, s{st+3}, {CSP}
    s_branch {l_done}""")
    p(f"{l_d}:")
    p(f"s_sub_u32 s{st}, s{s_u}, 1152")
    sdiv(p, sb + U_SL, st, 18, 576)
    p(f"""s_mul_i32 s{st+1}, s{sb+U_SL}, 18
    s_sub_u32 s{st}, s{st}, s{st+1}
    s_mov_b32 s{ssrd}, s{P_WD}
    s_mov_b32 s{ssrd+1}, s{P_WD+1}
    s_mov_b32 s{sb+U_CS}, 0
    s_mov_b32 s{sb+U_RS}, 1152
    s_and_b32 s{st+1}, s{sb+U_SL}, 3
    s_and_b32 s{st+2}, s{st+1}, 1
    s_lshl_b32 s{sb+U_PB}, s{st+2}, 5
    s_cmp_eq_u32 s{st+2}, 0
    s_cselect_b32 s{sb+U_T8}, 256, 0
    s_mov_b32 s{st+5}, {-144*1152}
    s_cselect_b32 s{st+5}, {144*1152}, s{st+5}""")
    l_sh, l_rm, l_rows = L("ush"), L("urm"), L("urows")
    p(f"""s_mov_b32 s{sb+U_GRS}, {8*1152}
    s_mov_b32 s{sb+U_HRS}, {4*1152}
    s_cmp_ge_u32 s{st}, 4
    s_cbranch_scc1 {l_sh}
    s_mov_b32 s{st+3}, s{st+1}
    s_lshl_b32 s{st+4}, s{st}, 5
    s_branch {l_rows}
    {l_sh}:
    s_cmp_ge_u32 s{st}, 6
    s_cbranch_scc1 {l_rm}
    s_sub_u32 s{st+3}, s{st}, 4
    s_lshl_b32 s{st+3}, s{st+3}, 1
    s_xor_b32 s{st+3}, s{st+3}, s{st+1}
    s_mov_b32 s{st+4}, 128
    s_mov_b32 s{sb+U_GRS}, {4*1152}
    s_mov_b32 s{sb+U_HRS}, s{st+5}
    s_branch {l_rows}
    {l_rm}:
    s_sub_u32 s{st+3}, s{st}, 6""")
    sdiv(p, st + 4, st + 3, 3, 12)
    p(f"""s_mul_i32 s{st+5}, s{st+4}, 3
    s_sub_u32 s{st+3}, s{st+3}, s{st+5}
    s_add_u32 s{st+3}, s{st+3}, 1
    s_xor_b32 s{st+3}, s{st+3}, s{st+1}
    s_lshl_b32 s{st+4}, s{st+4}, 5
    {l_rows}:
    s_mul_i32 s{st+3}, s{st+3}, 144
    s_add_u32 s{st+3}, s{st+3}, s{st+4}
    s_lshr_b32 s{st+4}, s{sb+U_SL}, 2
    s_mul_i32 s{st+4}, s{st+4}, 576
    s_add_u32 s{st+3}, s{st+3}, s{st+4}
    s_mul_i32 s{st+3}, s{st+3}, 1152
    s_mul_i32 s{st+4}, s{st+1}, 288
    s_add_u32 s{sb+U_ROW}, s{st+3}, s{st+4}
    s_mul_i32 s{st+3}, s{sb+U_SL}, 486
    s_add_u32 s{st+3}, s{st+3}, 324
    s_lshl_b32 s{st+3}, s{st+3}, 10
    s_add_u32 s{st+3}, s{st+3}, {WF}""")
    order = gemm2_order()
    idx = {k: i for i, k in enumerate(order)}
    l_b, l_c = L("ub"), L("uc")
    def dests(st0, nsteps):
        strides = sorted({idx[(st0 + 1, n)] - idx[(st0, n)] for n in range(9)})
        p(f"s_sub_u32 s{st+4}, s{st}, {st0}")
        for n in range(9):
            sd = idx[(st0 + 1, n)] - idx[(st0, n)]
            for k in range(nsteps): assert idx[(st0 + k, n)] == idx[(st0, n)] + k * sd
            p(f"""s_mul_i32 s{st+5}, s{st+4}, {sd*1024}
            s_add_u32 s{st+5}, s{st+5}, {idx[(st0, n)]*1024}
            s_add_u32 s{sb+U_DST+n}, s{st+5}, s{st+3}""")
    p(f"s_cmp_ge_u32 s{st}, 3\ns_cbranch_scc1 {l_b}")
    dests(0, 3); p(f"s_branch {l_done}\n{l_b}:")
    p(f"s_cmp_ge_u32 s{st}, 9\ns_cbranch_scc1 {l_c}")
    dests(3, 6); p(f"s_branch {l_done}\n{l_c}:")
    dests(9, 9)
    p(f"{l_done}:")
    p(f"s_mov_b32 s{ssrd+2}, {D*F*2:#x}\ns_mov_b32 s{ssrd+3}, 0x20000")

def ffn_unit_finish(p, sb, s_lds, v_lane, v_l16, vf, vt, tag, sc=""):
    va, vb = vt, vt + 1
    tr_base(p, va, v_lane, 288, s_lds, vt + 2)
    p(f"""v_lshl_add_u32 v{vb}, v{vt+2}, 3, v{va}
    v_add_u32 v{vb}, s{sb+U_T8}, v{vb}
    v_lshl_add_u32 v{va}, v{vt+2}, 4, v{va}
    v_add_u32 v{va}, s{sb+U_PB}, v{va}""")
    p.wait_vm(tag)
    for n in range(9):
        if n < 8: tr_frag(p, vf + 4 * n, va, 64 * (n >> 1) + 8 * (n & 1), 288)
        else: tr_frag(p, vf + 4 * n, vb, 0, 288)
    for n in range(9):
        p(f"buffer_store_dwordx4 v[{vf+4*n}:{vf+4*n+3}], v{v_l16}, s[{S_WS}:{S_WS+3}], s{sb+U_DST+n} offen{sc}")
    l_skip = p.label("nocs")
    p(f"s_cmp_eq_u32 s{sb+U_CS}, 0\ns_cbranch_scc1 {l_skip}")
    p.cond_begin()
    vo, vd = vt + 4, vf + 36
    for j in range(4): p(f"v_mov_b32 v{vo+j}, {BF16_ONES:#x}")
    for n in range(9):
        p(f"v_mfma_f32_16x16x32_bf16 v[{vd+4*n}:{vd+4*n+3}], v[{vf+4*n}:{vf+4*n+3}], v[{vo}:{vo+3}], 0")
    p(f"""v_and_b32 v{vt+2}, 15, v{v_lane}
    v_cmp_eq_u32 vcc, 0, v{vt+2}
    s_and_saveexec_b64 s[44:45], vcc""")
    for n in range(9):
        p(f"buffer_store_dwordx4 v[{vd+4*n}:{vd+4*n+3}], v{v_lane}, s[{S_WS}:{S_WS+3}], s{sb+U_CS} offen offset:{pos_of_tile(n)*64}{sc}")
    p("s_mov_b64 exec, s[44:45]")
    p.cond_end()
    p(f"{l_skip}:")

def qkv_unit(p, s_u, s_lds, v_lane, v_l16, vf, vt, st, sc=""):
    sdiv(p, st, s_u, 18, 288)
    p(f"""s_mul_i32 s{st+1}, s{st}, 18
    s_sub_u32 s{st+1}, s{s_u}, s{st+1}
    s_mul_i32 s{st+2}, s{st}, 72
    s_and_b32 s{st+3}, s{st+2}, 8
    s_and_b32 s{st+2}, s{st+2}, -16
    s_mul_i32 s{st+4}, s{st+1}, {32*3456}
    s_add_u32 s{st+2}, s{st+2}, s{st+4}
    s_mov_b32 s{st+4}, {8*3456}
    s_mov_b32 s{st+5}, {4*3456}
    s_mov_b32 s{st+6}, 3456
    s_mul_i32 s{st+7}, s{s_u}, {7*1024}""")
    srd(p, S_A, P_WQKV, D * 3 * D * 2)
    shuffle_dma(p, S_A, 15, 8, st + 2, st + 4, st + 5, st + 6, s_lds, v_lane, vt, "qu", qkv=True)
    va, vb = vt, vt + 1
    tr_base(p, va, v_lane, 240, s_lds, vt + 2)
    p(f"""v_add_u32 v{va}, s{st+3}, v{va}
    v_and_b32 v{vt+3}, 1, v{vt+2}
    v_mul_u32_u24 v{vt+3}, 160, v{vt+3}
    v_lshrrev_b32 v{vb}, 1, v{vt+2}
    v_mul_u32_u24 v{vb}, 80, v{vb}
    v_add3_u32 v{vb}, v{vb}, v{vt+3}, v{va}
    v_cmp_eq_u32 vcc, 3, v{vt+2}
    v_cndmask_b32 v{vb}, v{vb}, v{va}, vcc
    v_lshl_add_u32 v{va}, v{vt+2}, 3, v{va}""")
    p.wait_vm("qu")
    for t in range(6): tr_frag(p, vf + 4 * t, va, 80 * (t >> 1) + 40 * (t & 1), 240)
    tr_frag(p, vf + 24, vb, 32, 240)
    p(f"v_and_b32 v{vt+2}, 15, v{v_lane}\nv_cmp_gt_u32 vcc, 12, v{vt+2}")
    for j in range(4): p(f"v_cndmask_b32 v{vf+24+j}, 0, v{vf+24+j}, vcc")
    p(f"s_add_u32 s{st+7}, s{st+7}, {WQ}")
    for t in range(7):
        if t == 4: p(f"s_add_u32 s{st+7}, s{st+7}, 4096")
        p(f"buffer_store_dwordx4 v[{vf+4*t}:{vf+4*t+3}], v{v_l16}, s[{S_WS}:{S_WS+3}], s{st+7} offen offset:{(t&3)*1024}{sc}")

def wo_unit(p, s_u, s_lds, v_lane, v_l16, vf, vt, st, sc=""):
    sdiv(p, st, s_u, 18, 108)
    p(f"""s_mul_i32 s{st+1}, s{st}, 18
    s_sub_u32 s{st+1}, s{s_u}, s{st+1}
    s_mul_i32 s{st+2}, s{st+1}, {36*1152}
    s_sub_u32 s{st+3}, s{st+1}, 16
    s_mul_i32 s{st+3}, s{st+3}, {288*1152}
    s_add_u32 s{st+3}, s{st+3}, {16*1152}
    s_cmp_lt_u32 s{st+1}, 16
    s_cselect_b32 s{st+2}, s{st+2}, s{st+3}
    s_mov_b32 s{st+4}, {72*1152}
    s_mov_b32 s{st+5}, {36*1152}
    s_cselect_b32 s{st+4}, {4*1152}, s{st+4}
    s_cselect_b32 s{st+5}, {20*1152}, s{st+5}
    s_mul_i32 s{st+3}, s{st}, 192
    s_add_u32 s{st+2}, s{st+2}, s{st+3}
    s_mov_b32 s{st+6}, 1152
    s_mul_i32 s{st+7}, s{s_u}, {6*1024}""")
    srd(p, S_A, P_WO, D * D * 2)
    shuffle_dma(p, S_A, 12, 6, st + 2, st + 4, st + 5, st + 6, s_lds, v_lane, vt, "wu")
    va = vt
    tr_base(p, va, v_lane, 192, s_lds, vt + 2)
    p(f"v_lshl_add_u32 v{va}, v{vt+2}, 4, v{va}")
    p.wait_vm("wu")
    for t in range(6): tr_frag(p, vf + 4 * t, va, 64 * (t >> 1) + 8 * (t & 1), 192)
    p(f"s_add_u32 s{st+7}, s{st+7}, {WOS}")
    for t in range(6):
        if t == 4: p(f"s_add_u32 s{st+7}, s{st+7}, 4096")
        p(f"buffer_store_dwordx4 v[{vf+4*t}:{vf+4*t+3}], v{v_l16}, s[{S_WS}:{S_WS+3}], s{st+7} offen offset:{(t&3)*1024}{sc}")

def ln_addr(p, s_tg, v_lane, v_row, v_frag, vt, st):
    p(f"""v_and_b32 v{vt}, 7, v{v_lane}
    v_lshrrev_b32 v{vt+1}, 3, v{v_lane}
    s_lshl_b32 s{st}, s{s_tg}, 3
    v_add_u32 v{v_row}, s{st}, v{vt}
    v_mul_u32_u24 v{v_row}, 1152, v{v_row}
    s_mul_i32 s{st}, s{S_WAVE}, {24*16}
    v_lshl_add_u32 v{v_row}, v{vt+1}, 4, v{v_row}
    v_add_u32 v{v_row}, s{st}, v{v_row}
    s_lshr_b32 s{st}, s{s_tg}, 1
    s_mul_i32 s{st}, s{st}, {18*1024}
    s_and_b32 s{st+1}, s{s_tg}, 1
    s_lshl_b32 s{st+1}, s{st+1}, 7
    s_add_u32 s{st}, s{st}, s{st+1}
    s_mul_i32 s{st+1}, s{S_WAVE}, {6*1024}
    s_add_u32 s{st}, s{st}, s{st+1}
    v_lshlrev_b32 v{vt}, 4, v{vt}
    v_lshl_add_u32 v{vt}, v{vt+1}, 8, v{vt}
    v_add_u32 v{v_frag}, s{st}, v{vt}""")

def ln_local_stats(p, vx, v_sum, v_m2, vt):
    p(f"v_add_f32 v{v_sum}, v{vx}, v{vx+1}\nv_add_f32 v{vt}, v{vx+2}, v{vx+3}")
    for j in range(4, 24, 2):
        p(f"v_add_f32 v{v_sum}, v{v_sum}, v{vx+j}\nv_add_f32 v{vt}, v{vt}, v{vx+j+1}")
    p(f"v_add_f32 v{v_sum}, v{v_sum}, v{vt}")
    xsum8(p, v_sum); xsum_g(p, v_sum, vt)
    p(f"v_mul_f32 v{vt+1}, {1/192!r}, v{v_sum}".replace(repr(1/192), "0x3baaaaab"))
    p(f"v_sub_f32 v{vt}, v{vx}, v{vt+1}\nv_mul_f32 v{v_m2}, v{vt}, v{vt}")
    for j in range(1, 24):
        p(f"v_sub_f32 v{vt+2+(j&1)}, v{vx+j}, v{vt+1}\nv_fmac_f32 v{v_m2}, v{vt+2+(j&1)}, v{vt+2+(j&1)}")
    xsum8(p, v_m2); xsum_g(p, v_m2, vt)

def ln_finish(p, vx, vs, vo, vt):
    mean, a, b = vt, vt + 1, vt + 2
    p(f"""v_add_f32 v{mean}, v{vs}, v{vs+2}
    v_add_f32 v{mean}, v{mean}, v{vs+4}
    v_mul_f32 v{mean}, 0x3ae38e39, v{mean}
    v_add_f32 v{a}, v{vs+1}, v{vs+3}
    v_add_f32 v{a}, v{a}, v{vs+5}""")
    for w in range(3):
        p(f"""v_mul_f32 v{b}, 0x3baaaaab, v{vs+2*w}
        v_sub_f32 v{b}, v{b}, v{mean}
        v_mul_f32 v{b}, v{b}, v{b}
        v_fmac_f32 v{a}, 0x43400000, v{b}""")
    p(f"v_mul_f32 v{a}, 0x3ae38e39, v{a}")
    round_bf16(p, a)
    p(f"v_add_f32 v{a}, 0x3727c5ac, v{a}")
    round_bf16(p, a)
    p(f"v_sqrt_f32 v{a}, v{a}")
    round_bf16(p, a)
    p(f"v_rcp_f32 v{a}, v{a}")
    round_bf16(p, mean)
    for j in range(0, 24, 2):
        p(f"""v_sub_f32 v{vx+j}, v{vx+j}, v{mean}
        v_sub_f32 v{vx+j+1}, v{vx+j+1}, v{mean}
        v_cvt_pk_bf16_f32 v{b}, v{vx+j}, v{vx+j+1}
        v_lshlrev_b32 v{vx+j}, 16, v{b}
        v_and_b32 v{vx+j+1}, 0xffff0000, v{b}
        v_mul_f32 v{vx+j}, v{vx+j}, v{a}
        v_mul_f32 v{vx+j+1}, v{vx+j+1}, v{a}
        v_cvt_pk_bf16_f32 v{vo+j//2}, v{vx+j}, v{vx+j+1}""")

def ln_exchange_write(p, v_sum, v_lane, vt, lds_off):
    p(f"""v_and_b32 v{vt}, 7, v{v_lane}
    s_mul_i32 s46, s{S_WAVE}, 64
    v_lshl_add_u32 v{vt}, v{vt}, 3, s46
    ds_write_b64 v{vt}, v[{v_sum}:{v_sum+1}] offset:{lds_off}""")

def ln_exchange_read(p, vs, v_lane, vt, lds_off):
    p(f"v_and_b32 v{vt}, 7, v{v_lane}\nv_lshlrev_b32 v{vt}, 3, v{vt}")
    for w in range(3):
        p(f"ds_read_b64 v[{vs+2*w}:{vs+2*w+1}], v{vt} offset:{lds_off+64*w}")

def gen_prep(name):
    p = Prog()
    end = f"{name}_end"
    V_LANE, V_L16 = 1, 2
    prologue(p, end)
    srd(p, S_X, P_X, XBYTES)
    p(f"""s_lshl_b32 s46, s2, 10
    s_add_u32 s46, s46, {FLAGS}
    v_lshlrev_b32 v5, 2, v0
    v_mov_b32 v6, 0
    buffer_store_dword v6, v5, s[{S_WS}:{S_WS+3}], s46 offen""")
    LDS_LN = 0
    VROW, VFR, VRAW, VX, VS, VO = 3, 4, 8, 20, 44, 52
    p(f"s_lshl_b32 s47, s{S_XCD}, 5\ns_add_u32 s47, s47, s{S_IDX}")
    l_noln = p.label("noln")
    ln_addr(p, 47, V_LANE, VROW, VFR, 5, 48)
    for i in range(3):
        p(f"buffer_load_dwordx4 v[{VRAW+4*i}:{VRAW+4*i+3}], v{VROW}, s[{S_X}:{S_X+3}], 0 offen offset:{128*i}")
    SB0, SB1, ST_ = 50, 68, 86
    p(f"""s_lshl_b32 s23, s2, 2
    s_add_u32 s23, s23, s{S_WAVE}
    s_mul_i32 s94, s{S_WAVE}, {2*9216}
    s_add_u32 s94, s94, 256
    s_add_u32 s95, s94, 9216""")
    ffn_unit_setup(p, 23, SB0, S_A, ST_)
    shuffle_dma(p, S_A, 18, 9, SB0 + U_ROW, SB0 + U_GRS, SB0 + U_HRS, SB0 + U_RS, 94, V_LANE, 64, "u0")
    l_no1 = p.label("no1")
    p(f"s_add_u32 s96, s23, 1024\ns_cmp_ge_u32 s96, 1728\ns_cbranch_scc1 {l_no1}")
    p.cond_begin()
    ffn_unit_setup(p, 96, SB1, S_O, ST_)
    shuffle_dma(p, S_O, 18, 9, SB1 + U_ROW, SB1 + U_GRS, SB1 + U_HRS, SB1 + U_RS, 95, V_LANE, 64, "u1")
    p.cond_end()
    p(f"{l_no1}:")
    for i in range(3): unpack8(p, VX + 8 * i, VRAW + 4 * i)
    ln_local_stats(p, VX, VS, VS + 1, 64)
    ln_exchange_write(p, VS, V_LANE, 64, LDS_LN)
    p.drain(vm=False)
    p("s_barrier")
    ln_exchange_read(p, VS, V_LANE, 64, LDS_LN)
    ln_finish(p, VX, VS, VO, 64)
    p(f"s_cmp_eq_u32 s{S_WAVE}, 3\ns_cbranch_scc1 {l_noln}")
    p.cond_begin()
    p(f"s_mov_b32 s46, {LB(0)+XN}")
    for i in range(3):
        if i == 2: p("s_add_u32 s46, s46, 4096")
        p(f"buffer_store_dwordx4 v[{VO+4*i}:{VO+4*i+3}], v{VFR}, s[{S_WS}:{S_WS+3}], s46 offen offset:{2048*(i&1)}")
    p.cond_end()
    p(f"{l_noln}:")
    ffn_unit_finish(p, SB0, 94, V_LANE, V_L16, 72, 64, "u0")
    l_no2, l_att = p.label("no2"), p.label("att")
    p(f"s_cmp_ge_u32 s96, 1728\ns_cbranch_scc1 {l_no2}")
    p.drain()
    ffn_unit_finish(p, SB1, 95, V_LANE, V_L16, 72, 64, "u1")
    p(f"{l_no2}:")
    p.drain()
    l_wo = p.label("wo")
    p(f"""s_cmp_lt_u32 s23, 628
    s_cbranch_scc1 {end}
    s_sub_u32 s23, s23, 628
    s_cmp_ge_u32 s23, 288
    s_cbranch_scc1 {l_wo}""")
    qkv_unit(p, 23, 94, V_LANE, V_L16, 72, 64, ST_)
    p.drain()
    p(f"s_branch {end}\n{l_wo}:\ns_sub_u32 s23, s23, 288")
    wo_unit(p, 23, 94, V_LANE, V_L16, 72, 64, ST_)
    p.drain()
    p(f"{end}:\ns_endpgm")
    return kernel_text(name, p.finalize(), vgpr=152, accum=152), (256, 256, 8 * 9216 + 256)
```

```python
KB = 1024
S, D, F = 2048, 576, 4608
NT, NC = 128, 18
WS_BYTES = 268435456
WQ  = 0x0
WOS = 0x200000
CSP = 0x2C0000
CSF = 0x380000
FLAGS = 0x3C0000
WF  = 0x400000
def LB(l): return 0x1400000 + l * 0x3000000
XN, OM, OR_, X1, ST, X2R, HB, PB = 0x0, 0x240000, 0x440000, 0x480000, 0x6C0000, 0x700000, 0x940000, 0x1C00000
XBYTES = S * D * 2

def pos_of_tile(n): return 0 if n == 8 else n + 1

def gemm2_order():
    o = []
    for st in range(3):
        for n in range(4): o.append((st, n))
    for st in range(3):
        for n in range(4, 9): o.append((st, n))
    for st in range(3, 9):
        for n in range(9): o.append((st, n))
    for grp in ((0, 1), (2, 3), (4, 5), (6, 7), (8,)):
        for st in range(9, 18):
            for n in grp: o.append((st, n))
    assert len(o) == 162
    return o

def d_step_rows(q, m, step):
    Fb = lambda mm: 576 * q + 144 * mm
    if step < 4: Fa, G, H = Fb(m) + 32 * step, 8, 4
    elif step == 4: Fa, G, H = Fb(m) + 128, 4, Fb(m ^ 1) - Fb(m)
    elif step == 5: Fa, G, H = Fb(m ^ 2) + 128, 4, Fb(m ^ 3) - Fb(m ^ 2)
    else:
        i = step - 6
        Fa, G, H = Fb(m ^ (i % 3 + 1)) + 32 * (i // 3), 8, 4
    return [Fa + (r >> 3) * G + ((r >> 2) & 1) * H + (r & 3) for r in range(32)]

def tile_cols(n, pb, t8):
    if n == 8: return [t8 + i for i in range(16)]
    return [pb + 32 * (n >> 1) + 8 * (i >> 2) + 4 * (n & 1) + (i & 3) for i in range(16)]

def wo_rows(c):
    if c < 16: Fa, G, H = 36 * c, 4, 20
    else: Fa, G, H = 36 * 8 * (c - 16) + 16, 72, 36
    return [Fa + (r >> 3) * G + ((r >> 2) & 1) * H + (r & 3) for r in range(32)]

def qkv_cols(hp, tile):
    b = 36 * hp
    if tile < 6:
        return [576 * (tile >> 1) + b + 20 * (tile & 1) + i for i in range(16)]
    return [b + 16 + i for i in range(4)] + [1152 + b + 16 + i for i in range(4)] + [576 + b + 16 + i for i in range(4)] + [None] * 4
```

```python
import sys
sys.path.insert(0, "gen")
import build as B
from fw import kernel_text
ks = B.kernels()
empty = kernel_text("empty_kernel", "    s_endpgm\n", vgpr=8, accum=8, sgpr=16)
def w(name, l): open(name, "w").write(B.build(l))
w("test_a.s", ks + [("empty_kernel", empty, (256, 256, 0))] * 8)
w("test_b.s", [("empty_kernel", empty, (256, 256, 0))] * 8 + ks)
```

```python
from fw import *
from layout import *

S_WS = 4
S_X  = 8
S_A  = 12
S_O  = 16
S_WAVE = 20
S_XCD = 21
S_IDX = 22
S_PTR = 24
P_X, P_WQKV, P_WO, P_WG, P_WU, P_WD, P_OUT, P_DBG, P_WS = 24, 26, 28, 32, 34, 36, 38, 40, 42
BF16_ONES = 0x3F803F80

def srd(p, s, ptr, nbytes):
    p(f"""s_mov_b32 s{s}, s{ptr}
    s_mov_b32 s{s+1}, s{ptr+1}
    s_mov_b32 s{s+2}, {nbytes:#x}
    s_mov_b32 s{s+3}, 0x20000""")

OPT = {}
STAMP = [False]
STAMPS = 0xF000000
def stamp_ins(k, base=72): return ins(f"{'s_memtime' if STAMP[0] == 2 else 's_memrealtime'} s[{base+2*k}:{base+2*k+1}]")
def stamp(p, k, base=72):
    if STAMP[0]: p.add(stamp_ins(k, base))
def stamp_flush(p, kidx, n, base=72):
    if not STAMP[0]: return
    l = p.label("nostamp")
    p.drain()
    p(f"s_cmp_lg_u32 s{S_WAVE}, 0\ns_cbranch_scc1 {l}\ns_lshl_b32 s23, s2, 7\ns_add_u32 s23, s23, {STAMPS+kidx*256*128}\ns_mov_b64 exec, 1\nv_mov_b32 v0, 0")
    for k in range(n):
        p(f"v_mov_b32 v2, s{base+2*k}\nv_mov_b32 v3, s{base+2*k+1}\nbuffer_store_dwordx2 v[2:3], v0, s[{S_WS}:{S_WS+3}], s23 offen offset:{8*k}")
    p.drain()
    p(f"{l}:")

def prologue(p, end_label, nwg=256, v_lane=1, v_l16=2, sbase=72, code_pf=0):
    p(f"s_cmp_ge_u32 s2, {nwg}\ns_cbranch_scc1 {end_label}")
    stamp(p, 0, sbase)
    p(f"""    s_load_dwordx16 s[24:39], s[0:1], 0
    s_load_dwordx4 s[40:43], s[0:1], 64
    v_lshrrev_b32 v{v_lane}, 6, v0
    s_and_b32 s{S_XCD}, s2, 7
    v_readfirstlane_b32 s{S_WAVE}, v{v_lane}
    s_lshr_b32 s{S_IDX}, s2, 3
    v_and_b32 v{v_lane}, 63, v0
    v_lshlrev_b32 v{v_l16}, 4, v{v_lane}""")
    if OPT.get("codepf"):
        p(f"s_getpc_b64 s[{S_O}:{S_O+1}]\nv_lshlrev_b32 v3, 7, v0")
        for k in range(code_pf):
            if k: p("v_add_u32 v3, 0x8000, v3")
            p(f"global_load_dword v{4+k}, v3, s[{S_O}:{S_O+1}]")
    p.drain(vm=False)
    srd(p, S_WS, P_WS, WS_BYTES)

def magic(d, n):
    m = (65536 + d - 1) // d
    assert all((x * m) >> 16 == x // d for x in range(n)), (d, n)
    return m

def sdiv(p, sq, sx, d, n):
    p(f"s_mul_i32 s{sq}, s{sx}, {magic(d, n)}\ns_lshr_b32 s{sq}, s{sq}, 16")

def unpack8(p, dst, src):
    for j in range(4):
        p(f"v_lshlrev_b32 v{dst+2*j}, 16, v{src+j}")
        p(f"v_and_b32 v{dst+2*j+1}, 0xffff0000, v{src+j}")

def round_bf16(p, v, tmp=None):
    p(f"v_cvt_pk_bf16_f32 v{v}, v{v}, v{v}\nv_lshlrev_b32 v{v}, 16, v{v}")

def xsum_g(p, v, t):
    p(f"""v_mov_b32 v{t}, v{v}
    v_permlane16_swap_b32 v{v}, v{t}
    v_add_f32 v{v}, v{v}, v{t}
    v_mov_b32 v{t}, v{v}
    v_permlane32_swap_b32 v{v}, v{t}
    v_add_f32 v{v}, v{v}, v{t}""")

def xsum8(p, v):
    p(f"v_add_f32_dpp v{v}, v{v}, v{v} row_ror:8 row_mask:0xf bank_mask:0xf")
```

```python
import re

def regs_of(tok):
    tok = tok.strip()
    if tok.startswith("-"):
        tok = tok[1:]
    if tok.startswith("abs(") or tok.startswith("|"):
        tok = tok.strip("|").replace("abs(", "").rstrip(")")
    m = re.fullmatch(r"([vas])(\d+)", tok)
    if m:
        return {(m.group(1), int(m.group(2)))}
    m = re.fullmatch(r"([vas])\[(\d+):(\d+)\]", tok)
    if m:
        return {(m.group(1), i) for i in range(int(m.group(2)), int(m.group(3)) + 1)}
    if tok == "vcc":
        return {("s", "vcc")}
    if tok in ("exec", "exec_lo", "exec_hi"):
        return {("s", "exec")}
    if tok == "m0":
        return {("s", "m0")}
    return set()

TRANS = ("v_exp_f32", "v_log_f32", "v_rcp_f32", "v_rsq_f32", "v_sqrt_f32", "v_sin_f32", "v_cos_f32")

class I:
    __slots__ = ("text", "op", "kind", "dst", "src", "tag", "srcC", "srcAB", "data", "maybe", "passes")
    def __init__(self, text, tag=None):
        self.text = text.strip()
        self.tag = tag
        self.maybe = None
        body = self.text.split(";")[0].strip()
        parts = body.split(None, 1)
        op = parts[0]
        self.op = op
        rest = parts[1] if len(parts) > 1 else ""
        ops = [x.strip() for x in rest.split(",")] if rest else []
        mods = []
        if ops:
            last = ops[-1].split()
            ops[-1] = last[0] if last else ""
            mods = last[1:]
        R = [regs_of(o) for o in ops]
        U = lambda l: set().union(*l) if l else set()
        self.srcC = set(); self.srcAB = set(); self.data = set(); self.passes = 0
        if op.startswith("v_mfma"):
            self.kind = "mfma"; self.dst = R[0]; self.srcAB = R[1] | R[2]; self.srcC = R[3]; self.src = self.srcAB | self.srcC
            self.passes = {"v_mfma_f32_16x16x32_bf16": 4, "v_mfma_f32_32x32x16_bf16": 8, "v_mfma_f32_16x16x4_f32": 8}[op]
        elif op.startswith("v_cmp"):
            self.kind = "valu"; self.dst = set(R[0]); self.src = U(R[1:])
            if op.startswith("v_cmpx"): self.dst |= {("s", "exec")}
        elif op.startswith("v_permlane"):
            self.kind = "valu"; self.dst = R[0] | R[1]; self.src = R[0] | R[1]
        elif op.startswith(("v_fmac", "v_dot2c", "v_pk_fmac")):
            self.kind = "valu"; self.dst = R[0]; self.src = U(R)
        elif op.startswith(("v_add_co", "v_sub_co", "v_addc_co", "v_subb_co")):
            self.kind = "valu"; self.dst = R[0] | R[1]; self.src = U(R[2:])
        elif op.startswith("v_writelane"):
            self.kind = "valu"; self.dst = R[0]; self.src = U(R)
        elif op.startswith("v_"):
            self.kind = "valu"; self.dst = R[0] if R else set(); self.src = U(R[1:])
            if "row_" in rest or "quad_perm" in rest or "dpp" in op:
                self.src |= R[0]
        elif op.startswith(("ds_read", "ds_bpermute", "ds_permute", "ds_swizzle")):
            self.kind = "ds"; self.dst = R[0]; self.src = U(R[1:])
        elif op.startswith("ds_write"):
            self.kind = "ds"; self.dst = set(); self.src = U(R); self.data = U(R[1:])
        elif op.startswith("buffer_load") or op.startswith("global_load"):
            self.kind = "vmem"
            if "lds" in mods or "_lds_" in op:
                self.dst = set(); self.src = U(R) | {("s", "m0")}
            else:
                self.dst = R[0]; self.src = U(R[1:])
        elif op.startswith("buffer_store"):
            self.kind = "vmem"; self.dst = set(); self.src = U(R); self.data = R[0]
        elif op.startswith("global_store"):
            self.kind = "vmem"; self.dst = set(); self.src = U(R); self.data = R[1]
        elif op.startswith(("buffer_atomic", "global_atomic")):
            self.kind = "vmem"; self.src = U(R); self.dst = R[0] if "sc0" in mods else set()
        elif op.startswith(("buffer_inv", "buffer_wbl2")):
            self.kind = "vmem"; self.dst = set(); self.src = set()
        elif op.startswith(("s_load", "s_memtime", "s_memrealtime")):
            self.kind = "smem"; self.dst = R[0]; self.src = U(R[1:])
        elif op in ("s_waitcnt", "s_barrier", "s_nop", "s_endpgm", "s_setprio", "s_sleep", "s_branch") or op.startswith("s_cbranch"):
            self.kind = "ctl"; self.dst = set(); self.src = set()
            if op.startswith("s_cbranch_scc"): self.src = {("s", "scc")}
            if op.startswith("s_cbranch_vcc"): self.src = {("s", "vcc")}
            if op.startswith("s_cbranch_exec"): self.src = {("s", "exec")}
        elif op.startswith("s_cmp") or op.startswith("s_bitcmp"):
            self.kind = "salu"; self.dst = {("s", "scc")}; self.src = U(R)
        elif "saveexec" in op:
            self.kind = "salu"; self.dst = R[0] | {("s", "exec"), ("s", "scc")}; self.src = U(R[1:]) | {("s", "exec")}
        elif op.startswith("s_"):
            self.kind = "salu"; self.dst = set(R[0]); self.src = U(R[1:])
            if op.startswith(("s_addk", "s_mulk")): self.src |= R[0]
            if op.startswith(("s_addc", "s_subb", "s_cselect")): self.src |= {("s", "scc")}
            if not op.startswith(("s_mov", "s_mul", "s_cselect", "s_getreg", "s_getpc")): self.dst |= {("s", "scc")}
        else:
            raise ValueError("unknown instruction: " + text)
    def states(self):
        if self.op == "s_nop":
            return int(self.text.split()[1]) + 1
        return 1

class Label:
    def __init__(self, name): self.name = name
class Raw:
    def __init__(self, text): self.text = text
class WaitTag:
    def __init__(self, tag, cnt): self.tag = tag; self.cnt = cnt
class Drain:
    def __init__(self, vm=True, lg=True): self.vm = vm; self.lg = lg
class Forget:
    def __init__(self, vm=True, lg=True): self.vm = vm; self.lg = lg
class Cond:
    def __init__(self, begin): self.begin = begin

def hazard_need(prev, cur):
    n = 0
    pv = {r for r in prev.dst if r[0] in "va"}
    ps = {r for r in prev.dst if r[0] == "s"}
    if prev.kind == "valu":
        if cur.kind == "mfma" and (pv & cur.src): n = max(n, 2)
        if cur.kind == "mfma" and ("s", "exec") in ps: n = max(n, 4)
        if cur.kind == "vmem" and (ps & cur.src): n = max(n, 5)
        if cur.kind == "valu" and (ps & cur.src):
            n = max(n, 4 if cur.op.startswith(("v_readlane", "v_writelane")) else 2)
        if cur.kind == "valu" and ("s", "exec") in ps and cur.op.startswith(("v_readlane", "v_readfirstlane", "v_writelane", "v_permlane")): n = max(n, 4)
        if cur.kind == "valu" and (pv & cur.src):
            if cur.op.startswith(("v_readlane", "v_readfirstlane")): n = max(n, 1)
            if cur.op.startswith("v_permlane") or "row_" in cur.text or "quad_perm" in cur.text: n = max(n, 2)
            if prev.op.startswith(TRANS) and not cur.op.startswith(TRANS): n = max(n, 1)
            if prev.op.startswith("v_dot") and (prev.op != cur.op or (pv & (cur.src - cur.dst))): n = max(n, 3)
            if "op_sel" in prev.text or "sdwa" in prev.text: n = max(n, 1)
        if prev.op.startswith("v_dot") and cur.kind in ("valu", "mfma", "vmem", "ds") and prev.op != cur.op and (pv & (cur.src | cur.dst)): n = max(n, 3)
        if cur.kind == "salu" and (ps & cur.src) and prev.op.startswith(("v_readfirstlane", "v_readlane", "v_cmp")): n = max(n, 1)
        if cur.kind == "ctl" and (ps & cur.src): n = max(n, 5)
    if prev.kind == "mfma":
        sg = prev.op.endswith("x4_f32")
        p = prev.passes
        if cur.kind == "mfma":
            if pv & cur.srcAB: n = max(n, p + (2 if sg else 4))
            if pv & cur.srcC:
                if not (pv == cur.srcC and prev.op == cur.op): n = max(n, p + (0 if sg else 2))
            if (pv & cur.dst) and not (pv == cur.dst and prev.op == cur.op) : n = max(n, p + 2)
        elif cur.kind in ("valu", "vmem", "ds"):
            if pv & (cur.src | cur.dst): n = max(n, p + (2 if sg else 4))
        if cur.kind == "valu" and not sg and (prev.srcC & cur.dst): n = max(n, p - 1)
    if prev.kind == "vmem" and prev.data and ("x4" in prev.op or "x3" in prev.op):
        if prev.data & cur.dst: n = max(n, 2 if cur.kind in ("valu", "mfma") else 1)
    if prev.kind == "salu" and ("s", "m0") in prev.dst and cur.kind == "vmem" and ("s", "m0") in cur.src: n = max(n, 1)
    return n

class Prog:
    def __init__(self):
        self.items = []
        self.uid = 0
        self.stats = {"nops": 0, "waits": 0}
    def __call__(self, text, tag=None):
        for l in text.split("\n"):
            l = l.strip()
            if not l or l.startswith(";"):
                continue
            if l.endswith(":"):
                self.items.append(Label(l[:-1]))
            elif l.startswith("."):
                self.items.append(Raw(l))
            else:
                self.items.append(I(l, tag))
    def add(self, it):
        if isinstance(it, str): self(it)
        elif isinstance(it, (list, tuple)):
            for x in it: self.add(x)
        else: self.items.append(it)
    _gid = [0]
    def label(self, base):
        Prog._gid[0] += 1
        return f"L_{base}_{Prog._gid[0]}"
    def wait_vm(self, tag): self.items.append(WaitTag(tag, "vm"))
    def wait_lg(self, tag): self.items.append(WaitTag(tag, "lg"))
    def drain(self, vm=True, lg=True): self.items.append(Drain(vm, lg))
    def forget(self, vm=True, lg=True): self.items.append(Forget(vm, lg))
    def cond_begin(self): self.items.append(Cond(True))
    def cond_end(self): self.items.append(Cond(False))

    def finalize(self, verbose=False):
        out = []
        vmq = []; lgq = []
        hist = []
        cond = []; cid = 0
        def emit(ins):
            need = 0; dist = 0
            for p in reversed(hist):
                h = hazard_need(p, ins)
                if h - dist > need: need = h - dist
                dist += p.states()
                if dist >= 24: break
            while need > 0:
                k = min(need, 16)
                nop = I(f"s_nop {k-1}")
                out.append("    " + nop.text); hist.append(nop); need -= k
                self.stats["nops"] += 1
                if verbose: print("nop", k, "before", ins.text)
            out.append("    " + ins.text); hist.append(ins)
            if len(hist) > 40: del hist[:10]
        def count_after(q, idx):
            n = 0
            for e in q[idx + 1:]:
                if e.maybe is None or e.maybe in cond: n += 1
            return n
        def do_wait(vidx, lidx):
            parts = []
            if vidx is not None:
                n = min(count_after(vmq, vidx), 63)
                parts.append(f"vmcnt({n})"); del vmq[:vidx + 1]
            if lidx is not None:
                if any(e.kind == "smem" for e in lgq): n = 0; lgq.clear()
                else:
                    n = min(count_after(lgq, lidx), 15); del lgq[:lidx + 1]
                parts.append(f"lgkmcnt({n})")
            if parts:
                emit(I("s_waitcnt " + " ".join(parts))); self.stats["waits"] += 1
        for it in self.items:
            if isinstance(it, Label):
                out.append(it.name + ":")
            elif isinstance(it, Raw):
                out.append(it.text)
            elif isinstance(it, Cond):
                if it.begin: cid += 1; cond.append(cid)
                else: cond.pop()
            elif isinstance(it, Forget):
                if it.vm: vmq.clear()
                if it.lg: lgq.clear()
            elif isinstance(it, Drain):
                parts = []
                if it.vm: parts.append("vmcnt(0)"); vmq.clear()
                if it.lg: parts.append("lgkmcnt(0)"); lgq.clear()
                emit(I("s_waitcnt " + " ".join(parts)))
            elif isinstance(it, WaitTag):
                q = vmq if it.cnt == "vm" else lgq
                idx = None
                for i, e in enumerate(q):
                    if e.tag == it.tag: idx = i
                if idx is not None:
                    do_wait(idx if it.cnt == "vm" else None, idx if it.cnt == "lg" else None)
            else:
                touch = it.src | it.dst
                vidx = lidx = None
                for i, e in enumerate(vmq):
                    if e.dst & touch: vidx = i
                for i, e in enumerate(lgq):
                    if e.dst & touch: lidx = i
                do_wait(vidx, lidx)
                if it.op == "s_waitcnt":
                    m = re.search(r"vmcnt\((\d+)\)", it.text)
                    if m and int(m.group(1)) == 0: vmq.clear()
                    m = re.search(r"lgkmcnt\((\d+)\)", it.text)
                    if m and int(m.group(1)) == 0: lgq.clear()
                emit(it)
                it.maybe = cond[-1] if cond else None
                if it.kind == "vmem": vmq.append(it)
                elif it.kind in ("ds", "smem"): lgq.append(it)
        return "\n".join(out) + "\n"

def ins(text, tag=None):
    return I(text, tag)

class Stream:
    def __init__(self, name=""):
        self.q = []; self.name = name
    def add(self, item, earliest=0, deadline=10**9, tag=None, cost=1):
        if isinstance(item, str): item = I(item, tag)
        self.q.append([earliest, deadline, item, cost])

def _is_vm(item):
    if isinstance(item, (list, tuple)): return any(_is_vm(x) for x in item)
    return isinstance(item, I) and item.kind == "vmem"

def weave(p, backbone, streams, cap=2, vm_gap=4):
    n = len(backbone)
    pos = [0] * len(streams)
    for s in streams:
        d = 10**9
        for e in reversed(s.q):
            d = min(d, e[1]); e[1] = d
    last_vm = -10**9
    forced = 0
    for g in range(n + 1):
        used = 0
        while True:
            best = None
            for si, s in enumerate(streams):
                if pos[si] < len(s.q):
                    e = s.q[pos[si]]
                    if g < n:
                        if e[0] > g: continue
                        if e[1] > g:
                            if used + e[3] > cap: continue
                            if _is_vm(e[2]) and g - last_vm < vm_gap: continue
                    key = (0 if e[1] <= g + 1 else 1 if (_is_vm(e[2]) or getattr(e[2], "kind", "") == "salu") else 2, e[1])
                    if best is None or key < bkey:
                        best = si; bkey = key
            if best is None: break
            e = streams[best].q[pos[best]]
            if g < n and (used + e[3] > cap or (_is_vm(e[2]) and g - last_vm < vm_gap)): forced += 1
            if _is_vm(e[2]): last_vm = g
            p.add(e[2]); pos[best] += 1; used += e[3]
        if g < n: p.add(backbone[g])
    p.stats["forced"] = p.stats.get("forced", 0) + forced

def vr(b, n=1): return f"v{b}" if n == 1 else f"v[{b}:{b+n-1}]"
def ar(b, n=1): return f"a{b}" if n == 1 else f"a[{b}:{b+n-1}]"
def sr(b, n=1): return f"s{b}" if n == 1 else f"s[{b}:{b+n-1}]"

def kernel_text(name, body, vgpr=512, accum=256, sgpr=102):
    t = f".text\n.globl {name}\n.p2align 8\n.type {name},@function\n{name}:\n" + body
    t += f'''.section .rodata,"a"
.p2align 6
.amdhsa_kernel {name}
  .amdhsa_next_free_vgpr {vgpr}
  .amdhsa_next_free_sgpr {sgpr}
  .amdhsa_accum_offset {accum}
  .amdhsa_group_segment_fixed_size 0
  .amdhsa_kernarg_size 80
  .amdhsa_user_sgpr_count 2
  .amdhsa_user_sgpr_kernarg_segment_ptr 1
  .amdhsa_system_sgpr_workgroup_id_x 1
  .amdhsa_float_denorm_mode_32 3
.end_amdhsa_kernel
'''
    return t
```

```python
from common import *
MF = "v_mfma_f32_16x16x32_bf16"
NEG_BIG = 0xF149F2CA

def qkv_phase(p, l, sc="", ld=""):
    V_LANE, V_L16 = 1, 2
    V_W, V_HT, V_HN = 3, 4, 5
    ACC, HACC, WB, HB_ = 16, 80, 88, 144
    S_AB, S_HP, S_T0, S_SRC0, S_SRC1, S_STR1, S_M0, S_XS = 44, 45, 46, 47, 48, 49, 50, 51
    p(f"""s_lshr_b32 s{S_AB}, s{S_IDX}, 4
    s_lshl_b32 s52, s{S_XCD}, 1
    s_add_u32 s{S_AB}, s{S_AB}, s52
    s_and_b32 s{S_HP}, s{S_IDX}, 15
    s_lshl_b32 s{S_T0}, s{S_AB}, 3
    s_mul_i32 s{S_SRC0}, s{S_HP}, {126*1024}
    s_lshl_b32 s{S_M0}, s{S_WAVE}, 11
    s_add_u32 s{S_SRC0}, s{S_SRC0}, s{S_M0}
    s_add_u32 s{S_SRC0}, s{S_SRC0}, {WQ}
    s_add_u32 s{S_SRC1}, s{S_SRC0}, 1024
    s_max_u32 s52, s{S_T0}, 1
    s_sub_u32 s52, s52, 1
    s_mul_i32 s52, s52, {18*1024}
    s_add_u32 s52, s52, {LB(l)+XN}
    s_cmp_eq_u32 s{S_WAVE}, 3
    s_cselect_b32 s{S_SRC1}, s52, s{S_SRC1}
    s_mov_b32 s{S_STR1}, {7*1024}
    s_cselect_b32 s{S_STR1}, 1024, s{S_STR1}
    s_lshl_b32 s52, s{S_WAVE}, 1
    s_add_u32 s{S_T0}, s{S_T0}, s52
    s_mul_i32 s{S_XS}, s{S_T0}, {18*1024}
    s_add_u32 s{S_XS}, s{S_XS}, {LB(l)+XN}""")
    def dma(c):
        r = [ins(f"s_mov_b32 m0, s{S_M0}"),
             ins(f"buffer_load_dwordx4 v{V_L16}, s[{S_WS}:{S_WS+3}], s{S_SRC0} offen lds", f"g{c//3}"),
             ins(f"s_add_u32 m0, s{S_M0}, 1024"),
             ins(f"buffer_load_dwordx4 v{V_L16}, s[{S_WS}:{S_WS+3}], s{S_SRC1} offen{ld} lds", f"g{c//3}"),
             ins(f"s_add_u32 s{S_M0}, s{S_M0}, 8192"),
             ins(f"s_add_u32 s{S_SRC0}, s{S_SRC0}, {7*1024}"),
             ins(f"s_add_u32 s{S_SRC1}, s{S_SRC1}, s{S_STR1}")]
        return r
    def xload(c):
        r = []
        for tt in range(2):
            off = tt * 18 * 1024 + c * 1024
            r.append(ins(f"s_add_u32 s52, s{S_XS}, {off}"))
            r.append(ins(f"buffer_load_dwordx4 a[{72*tt+4*c}:{72*tt+4*c+3}], v{V_L16}, s[{S_WS}:{S_WS+3}], s52 offen{ld}"))
        return r
    for c in range(12):
        p.add(dma(c)); p.add(xload(c))
    p(f"""s_min_u32 s52, s{S_WAVE}, 2
    s_add_u32 s53, s52, 2
    s_add_u32 s54, s52, 4
    s_cmp_ge_u32 s{S_WAVE}, 2
    s_cselect_b32 s53, 6, s53
    s_lshl_b32 s53, s53, 10
    s_lshl_b32 s54, s54, 10
    v_mov_b32 v{V_W}, v{V_L16}
    v_add_u32 v{V_HT}, s53, v{V_L16}
    v_add_u32 v{V_HN}, s54, v{V_L16}""")
    BO, BP, BP0 = 168, 172, 176
    p(f"""v_and_b32 v6, 15, v{V_LANE}
    v_lshrrev_b32 v7, 4, v{V_LANE}
    v_lshlrev_b32 v7, 2, v7
    v_sub_u32 v6, v6, v7
    v_mov_b32 v8, {NEG_BIG:#x}
    s_or_b32 s52, s{S_AB}, s{S_WAVE}
    s_cmp_eq_u32 s52, 0
    s_cselect_b64 s[56:57], -1, 0""")
    for r in range(4):
        p(f"""v_subrev_u32 v7, {r}, v6
        v_and_b32 v9, 0xfffffff1, v7
        v_cmp_eq_u32 vcc, 0, v9
        v_add_u32 v7, 16, v7
        v_and_b32 v9, 0xfffffff1, v7
        v_cndmask_b32_e64 v{BO+r}, v8, 0, vcc
        v_cmp_eq_u32 vcc, 0, v9
        v_cndmask_b32_e64 v{BP+r}, v8, 0, vcc
        v_cndmask_b32_e64 v{BP0+r}, v{BP+r}, v8, s[56:57]""")
    acc = lambda tt, j: vr(ACC + 32 * tt + 4 * j, 4)
    wf = lambda c, t: vr(WB + 28 * (c & 1) + 4 * t, 4)
    hf = lambda c, j: vr(HB_ + 12 * (c & 1) + 4 * j, 4)
    xf = lambda tt, c: ar(72 * tt + 4 * c, 4)
    def reads(c):
        o = (c & 7) * 8192
        r = []
        if c in (8, 16):
            r += [f"v_add_u32 v{v}, 0x10000, v{v}" for v in (V_W, V_HT, V_HN)]
        r += [f"ds_read_b128 {wf(c, t)}, v{V_W} offset:{o+1024*t}" for t in (0, 1, 2, 3, 6, 4, 5)]
        r += [f"ds_read_b128 {hf(c, 0)}, v{V_W} offset:{o+7168}", f"ds_read_b128 {hf(c, 1)}, v{V_HT} offset:{o}", f"ds_read_b128 {hf(c, 2)}, v{V_HN} offset:{o}"]
        return r
    p.wait_vm("g0"); p("s_barrier"); stamp(p, 1)
    p.add(reads(0))
    bb = []; sr_ = Stream(); sl = Stream()
    for c in range(18):
        g0 = len(bb)
        C = lambda d: "0" if c == 0 else d
        for j, t in enumerate((0, 1, 2, 3, 6)):
            for tt in range(2): bb.append(ins(f"{MF} {acc(tt, j)}, {wf(c, t)}, {xf(tt, c)}, {C(acc(tt, j))}"))
        for j, t in ((7, 6), (5, 4), (6, 5)):
            for tt in range(2): bb.append(ins(f"{MF} {acc(tt, j)}, {xf(tt, c)}, {wf(c, t)}, {C(acc(tt, j))}"))
        bb.append(ins(f"{MF} {vr(HACC, 4)}, {hf(c, 1)}, {hf(c, 0)}, {C(vr(HACC, 4))}"))
        bb.append(ins(f"{MF} {vr(HACC+4, 4)}, {hf(c, 0)}, {hf(c, 2)}, {C(vr(HACC+4, 4))}"))
        if c + 1 < 18:
            if (c + 1) % 3 == 0:
                sr_.add(WaitTag(f"g{(c+1)//3}", "vm"), g0 + 1, g0 + 1)
                sr_.add("s_barrier", g0 + 1, g0 + 1)
            for k, r in enumerate(reads(c + 1)):
                sr_.add(r, g0 + 1 + k, g0 + 14)
        if c < 6:
            for it in dma(12 + c) + xload(12 + c): sl.add(it, g0)
    weave(p, bb, [sr_, sl], cap=2)
    stamp(p, 2)
    KP, K0, K1 = 88, 94, 100
    VE, VO_, VR_ = 106, 112, 118
    Q = 124
    HT, HN = 140, 142
    def pack(d, s):
        p(f"v_cvt_pk_bf16_f32 v{d}, v{s}, v{s+1}\nv_cvt_pk_bf16_f32 v{d+1}, v{s+2}, v{s+3}")
    a_ = lambda tt, j: ACC + 32 * tt + 4 * j
    V_EX = 6
    EXB = 147456
    p(f"""v_lshlrev_b32 v{V_EX}, 3, v{V_LANE}
    v_add_u32 v{V_EX}, {EXB}, v{V_EX}
    s_mul_i32 s52, s{S_WAVE}, 3072
    v_add_u32 v7, s52, v{V_EX}""")
    for tt, K in ((1, K1), (0, K0)):
        q = Q + 8 * tt
        pack(K, a_(tt, 2)); pack(K + 4, a_(tt, 3))
        p(f"""v_cvt_pk_bf16_f32 v{q+2}, v{a_(tt,4)}, v{a_(tt,4)+1}
        v_cvt_pk_bf16_f32 v{q+5}, v{a_(tt,4)+2}, v{a_(tt,4)+3}
        v_mov_b32 v{K+2}, 0
        v_mov_b32 v{K+3}, 0""")
        for j, V in ((5, VE), (6, VO_), (7, VR_)): pack(V + 2 + 2 * tt, a_(tt, j))
        p(f"v_permlane32_swap_b32 v{q+2}, v{K+2}\nv_permlane32_swap_b32 v{q+5}, v{K+3}")
        if tt == 1:
            for f, r in enumerate((K1, K1 + 2, K1 + 4, VE + 4, VO_ + 4, VR_ + 4)):
                p(f"ds_write_b64 v7, v[{r}:{r+1}] offset:{3072+512*f}")
            pack(HT, HACC); pack(HN, HACC + 4)
            lsk = p.label("noswap")
            p(f"""s_min_u32 s52, s{S_WAVE}, 2
            s_lshl_b32 s53, s52, 1
            s_cmp_ge_u32 s{S_WAVE}, 2
            s_cselect_b32 s53, 1, s53
            s_lshl_b32 s53, s53, 9
            s_add_u32 s52, s52, 3
            s_lshl_b32 s52, s52, 9
            v_add_u32 v8, s53, v{V_EX}
            v_add_u32 v9, s52, v{V_EX}
            s_cmp_lt_u32 s{S_WAVE}, 2
            s_cbranch_scc1 {lsk}
            v_mov_b32 v10, 0
            v_mov_b32 v11, 0
            s_nop 1
            v_permlane32_swap_b32 v{HT}, v10
            v_permlane32_swap_b32 v{HT+1}, v11
            v_mov_b32 v{HT}, v10
            v_mov_b32 v{HT+1}, v11
            {lsk}:
            ds_write_b64 v8, v[{HT}:{HT+1}]
            ds_write_b64 v9, v[{HN}:{HN+1}]""")
        pack(q, a_(tt, 0)); pack(q + 6, a_(tt, 1))
        p(f"v_mov_b32 v{q+3}, 0\nv_mov_b32 v{q+4}, 0")
    ONE = 12
    for j in range(4): p(f"v_mov_b32 v{ONE+j}, {BF16_ONES:#x}")
    SS = 16
    th = [(tt, h) for tt in (1, 0) for h in range(2)]
    sreg = lambda tt, h: SS + 16 * tt + 8 * h
    Kop = lambda K, h: vr(K + 2 * h, 4)
    Qop = lambda tt, h: vr(Q + 8 * tt + 4 * h, 4)
    for h in range(2):
        p(f"{MF} {vr(sreg(1,h),4)}, {Kop(K0,h)}, {Qop(1,h)}, {vr(BP,4)}")
        p(f"{MF} {vr(sreg(1,h)+4,4)}, {Kop(K1,h)}, {Qop(1,h)}, {vr(BO,4)}")
        p(f"{MF} {vr(sreg(0,h)+4,4)}, {Kop(K0,h)}, {Qop(0,h)}, {vr(BO,4)}")
    p.drain(vm=False)
    p("s_barrier")
    for f, r in enumerate((KP, KP + 2, KP + 4, VE, VO_, VR_)):
        p(f"ds_read_b64 v[{r}:{r+1}], v7 offset:{512*f}")
    MX, TMP, PP, OO = 48, 52, 56, 180
    p(f"s_mov_b32 s52, 0x3eae1a93")
    def softmax(group):
        for k, (tt, h) in group:
            s = sreg(tt, h)
            p(f"v_max3_f32 v{MX+k}, v{s}, v{s+1}, v{s+2}")
        for j in (3, 5):
            for k, (tt, h) in group:
                s = sreg(tt, h)
                p(f"v_max3_f32 v{MX+k}, v{MX+k}, v{s+j}, v{s+j+1}")
        for k, (tt, h) in group:
            p(f"v_max_f32 v{MX+k}, v{MX+k}, v{sreg(tt,h)+7}")
        for op in ("v_permlane16_swap_b32", "v_permlane32_swap_b32"):
            for k, _ in group: p(f"v_mov_b32 v{TMP+k}, v{MX+k}")
            for k, _ in group: p(f"{op} v{MX+k}, v{TMP+k}")
            for k, _ in group: p(f"v_max_f32 v{MX+k}, v{MX+k}, v{TMP+k}")
        for k, _ in group: p(f"v_mul_f32 v{MX+k}, s52, v{MX+k}")
        for j in range(8):
            for k, (tt, h) in group:
                s = sreg(tt, h) + j
                p(f"v_fma_f32 v{s}, v{s}, s52, -v{MX+k}")
        for j in range(8):
            for k, (tt, h) in group:
                s = sreg(tt, h) + j
                p(f"v_exp_f32 v{s}, v{s}")
        for j in range(4):
            for k, (tt, h) in group:
                s = sreg(tt, h) + 2 * j
                p(f"v_cvt_pk_bf16_f32 v{PP+4*k+j}, v{s}, v{s+1}")
        for k, (tt, h) in group:
            o = OO + 12 * k
            p(f"{MF} {vr(o+8,4)}, {vr(ONE,4)}, {vr(PP+4*k,4)}, 0")
            p(f"{MF} {vr(o,4)}, {vr((VE, VO_)[h]+2*tt,4)}, {vr(PP+4*k,4)}, 0")
            p(f"{MF} {vr(o+4,4)}, {vr(VR_+2*tt,4)}, {vr(PP+4*k,4)}, 0")
    g1 = [(0, (1, 0)), (1, (1, 1))]
    g0 = [(2, (0, 0)), (3, (0, 1))]
    for h in range(2):
        p(f"{MF} {vr(sreg(0,h),4)}, {Kop(KP,h)}, {Qop(0,h)}, {vr(BP0,4)}")
    softmax(g1 + g0)
    OP, RP = 72, 80
    p(f"""s_lshl_b32 s53, s{S_T0}, 4
    s_add_u32 s53, s53, s{S_HP}
    s_lshl_b32 s54, s53, 10
    s_add_u32 s54, s54, {LB(l)+OM}
    s_lshl_b32 s55, s53, 7
    s_add_u32 s55, s55, {LB(l)+OR_-128}
    v_lshlrev_b32 v6, 3, v{V_LANE}""")
    for k, (tt, h) in g1 + g0:
        o = OO + 12 * k
        p(f"v_rcp_f32 v{o+8}, v{o+8}")
    for k, (tt, h) in g1 + g0:
        o = OO + 12 * k
        for j in range(4): p(f"v_mul_f32 v{o+j}, v{o+j}, v{o+8}")
        for j in range(2): p(f"v_mul_f32 v{o+4+2*h+j}, v{o+4+2*h+j}, v{o+8}")
        pack(OP + 4 * tt + 2 * h, o)
        p(f"v_cvt_pk_bf16_f32 v{RP+2*tt+h}, v{o+4+2*h}, v{o+5+2*h}")
        if h == 1:
            p(f"s_add_u32 s53, s54, {tt*16*1024}")
            p(f"buffer_store_dwordx4 {vr(OP+4*tt,4)}, v{V_L16}, s[{S_WS}:{S_WS+3}], s53 offen{sc}")
    p("s_mov_b32 exec_lo, 0xffff0000\ns_mov_b32 exec_hi, 0")
    for tt in range(2):
        p(f"buffer_store_dwordx2 {vr(RP+2*tt,2)}, v6, s[{S_WS}:{S_WS+3}], s55 offen offset:{tt*16*128}{sc}")
    p("s_mov_b64 exec, -1")

def gen_qkv(name, l, kidx=0):
    p = Prog(); end = f"{name}_end"
    prologue(p, end, code_pf=1)
    qkv_phase(p, l)
    stamp(p, 3); p.drain(); stamp(p, 4); stamp_flush(p, kidx, 5)
    p(f"{end}:\ns_endpgm")
    return kernel_text(name, p.finalize(), vgpr=256 + 144, accum=256), (256, 256, 147456 + 5 * 3072)

def wo_phase(p, l, sc="", ld=""):
    V_LANE, V_L16 = 1, 2
    S_TB, S_CG, S_T, S_SRC, S_M0 = 44, 45, 46, 47, 48
    sdiv(p, S_TB, S_IDX, 6, 32)
    p(f"""s_mul_i32 s52, s{S_TB}, 6
    s_sub_u32 s{S_CG}, s{S_IDX}, s52
    s_lshl_b32 s52, s{S_XCD}, 2
    s_add_u32 s{S_TB}, s{S_TB}, s52
    s_lshl_b32 s{S_T}, s{S_TB}, 2
    s_add_u32 s{S_T}, s{S_T}, s{S_WAVE}
    s_mul_i32 s{S_SRC}, s{S_CG}, {108*1024}
    s_mul_i32 s{S_M0}, s{S_WAVE}, {3*1024}
    s_add_u32 s{S_SRC}, s{S_SRC}, s{S_M0}
    s_add_u32 s{S_SRC}, s{S_SRC}, {WOS}
    s_lshl_b32 s49, s{S_T}, 14
    s_add_u32 s49, s49, {LB(l)+OM}
    s_lshl_b32 s50, s{S_T}, 11
    s_add_u32 s50, s50, {LB(l)+OR_}
    v_and_b32 v3, 15, v{V_LANE}
    v_lshrrev_b32 v4, 4, v{V_LANE}
    v_lshlrev_b32 v5, 3, v3
    v_lshl_add_u32 v5, v4, 8, v5
    s_lshl_b32 s52, s{S_T}, 4
    v_add_u32 v6, s52, v3
    v_lshlrev_b32 v7, 3, v6
    v_mul_u32_u24 v6, 1152, v6
    v_lshl_add_u32 v6, v4, 4, v6
    s_mul_i32 s51, s{S_CG}, 192""")
    if l == 0: srd(p, S_X, P_X, XBYTES)
    else:
        p(f"s_add_u32 s{S_X}, s{P_WS}, {LB(0)+X2R}\ns_addc_u32 s{S_X+1}, s{P_WS+1}, 0\ns_mov_b32 s{S_X+2}, {XBYTES:#x}\ns_mov_b32 s{S_X+3}, 0x20000")
    OF, ACC, WB, RES = 16, 88, 112, 160
    for g in range(9):
        p(f"s_mov_b32 m0, s{S_M0}")
        for j in range(3):
            p(f"buffer_load_dwordx4 v{V_L16}, s[{S_WS}:{S_WS+3}], s{S_SRC} offen offset:{1024*j} lds", tag=f"w{g//3}")
        p(f"s_add_u32 s{S_M0}, s{S_M0}, {12*1024}\ns_add_u32 s{S_SRC}, s{S_SRC}, {12*1024}")
        for c in (2 * g, 2 * g + 1):
            if c < 16:
                if c % 4 == 0 and c: p("s_add_u32 s49, s49, 4096")
                p(f"buffer_load_dwordx4 {vr(OF+4*c,4)}, v{V_L16}, s[{S_WS}:{S_WS+3}], s49 offen offset:{1024*(c&3)}{ld}")
            else:
                for hh in range(2):
                    p(f"buffer_load_dwordx2 {vr(OF+4*c+2*hh,2)}, v5, s[{S_WS}:{S_WS+3}], s50 offen offset:{1024*(c-16)+128*hh}{ld}")
    for j in range(3):
        p(f"buffer_load_dwordx4 {vr(RES+4*j,4)}, v6, s[{S_X}:{S_X+3}], s51 offen offset:{64*j}{ld}")
    V_W = 8
    p(f"v_mov_b32 v{V_W}, v{V_L16}")
    wf = lambda c, t: vr(WB + 24 * (c & 1) + 4 * t, 4)
    def reads(c):
        r = []
        if c == 10: r.append(f"v_add_u32 v{V_W}, {10*6144}, v{V_W}")
        return r + [f"ds_read_b128 {wf(c,t)}, v{V_W} offset:{(c%10)*6144+1024*t}" for t in range(6)]
    p.wait_vm("w0"); p("s_barrier"); stamp(p, 1)
    p.add(reads(0))
    bb = []; sr_ = Stream()
    for c in range(18):
        g0 = len(bb)
        for t in range(6):
            bb.append(ins(f"{MF} {vr(ACC+4*t,4)}, {wf(c,t)}, {vr(OF+4*c,4)}, {'0' if c == 0 else vr(ACC+4*t,4)}"))
        if c + 1 < 18:
            if (c + 1) % 6 == 0:
                sr_.add(WaitTag(f"w{(c+1)//6}", "vm"), g0, g0)
                sr_.add("s_barrier", g0, g0)
            for k, r in enumerate(reads(c + 1)): sr_.add(r, g0 + max(0, k - 1), g0 + 5)
    weave(p, bb, [sr_], cap=2)
    stamp(p, 2)
    X, PK = 16, 40
    for j in range(3): unpack8(p, X + 8 * j, RES + 4 * j)
    for e in range(24): p(f"v_add_f32 v{X+e}, v{X+e}, v{ACC+e}")
    p(f"""s_mul_i32 s52, s{S_T}, 18
    s_mul_i32 s53, s{S_CG}, 3
    s_add_u32 s52, s52, s53
    s_lshl_b32 s52, s52, 10
    s_add_u32 s52, s52, {LB(l)+X1}""")
    for j in range(3):
        for e in range(4): p(f"v_cvt_pk_bf16_f32 v{PK+4*j+e}, v{X+8*j+2*e}, v{X+8*j+2*e+1}")
        p(f"buffer_store_dwordx4 {vr(PK+4*j,4)}, v{V_L16}, s[{S_WS}:{S_WS+3}], s52 offen offset:{1024*j}{sc}")
    for j in range(3): unpack8(p, X + 8 * j, PK + 4 * j)
    SM, M2, T = 56, 57, 58
    p(f"v_add_f32 v{SM}, v{X}, v{X+1}\nv_add_f32 v{T}, v{X+2}, v{X+3}")
    for j in range(4, 24, 2):
        p(f"v_add_f32 v{SM}, v{SM}, v{X+j}\nv_add_f32 v{T}, v{T}, v{X+j+1}")
    p(f"v_add_f32 v{SM}, v{SM}, v{T}")
    xsum_g(p, SM, T)
    p(f"v_mul_f32 v{T+1}, 0x3c2aaaab, v{SM}")
    p(f"v_sub_f32 v{T}, v{X}, v{T+1}\nv_mul_f32 v{M2}, v{T}, v{T}")
    for j in range(1, 24):
        p(f"v_sub_f32 v{T+2+(j&1)}, v{X+j}, v{T+1}\nv_fmac_f32 v{M2}, v{T+2+(j&1)}, v{T+2+(j&1)}")
    xsum_g(p, M2, T)
    p(f"""s_lshl_b32 s52, s{S_CG}, 14
    s_add_u32 s52, s52, {LB(l)+ST}
    s_mov_b32 exec_lo, 0xffff
    s_mov_b32 exec_hi, 0
    buffer_store_dwordx2 v[{SM}:{M2}], v7, s[{S_WS}:{S_WS+3}], s52 offen{sc}
    s_mov_b64 exec, -1""")

def colsum_task(p, s_task, sc="", ld=""):
    V_LANE, V_L16 = 1, 2
    p(f"""s_mul_i32 s44, s{s_task}, {18*576}
    s_add_u32 s44, s44, {CSP}
    s_lshr_b32 s45, s{s_task}, 1
    s_mul_i32 s45, s45, 1152
    s_and_b32 s46, s{s_task}, 1
    s_lshl_b32 s46, s46, 6
    s_add_u32 s45, s45, s46
    s_add_u32 s45, s45, {CSF}
    v_lshrrev_b32 v3, 2, v{V_LANE}
    v_lshlrev_b32 v3, 7, v3
    v_and_b32 v4, 3, v{V_LANE}
    v_lshl_add_u32 v3, v4, 4, v3
    s_mov_b32 exec_hi, 15""")
    for c in range(18):
        if c and c % 6 == 0: p(f"s_add_u32 s44, s44, {6*576}")
        p(f"buffer_load_dwordx4 {vr(8+4*c,4)}, v{V_L16}, s[{S_WS}:{S_WS+3}], s44 offen offset:{(c%6)*576}{ld}")
    for c in range(1, 18):
        for j in range(4): p(f"v_add_f32 v{8+j}, v{8+j}, v{8+4*c+j}")
    p(f"buffer_store_dwordx4 v[8:11], v3, s[{S_WS}:{S_WS+3}], s45 offen{sc}\ns_mov_b64 exec, -1")

def gen_wo(name, l, kidx=0):
    p = Prog(); end = f"{name}_end"
    prologue(p, end, code_pf=1)
    l_cs = p.label("cs")
    p(f"s_cmp_ge_u32 s{S_IDX}, 24\ns_cbranch_scc1 {l_cs if l == 0 else end}")
    wo_phase(p, l)
    stamp(p, 3); p.drain(); stamp(p, 4); stamp_flush(p, kidx, 5)
    if l == 0:
        p.drain()
        p(f"""s_branch {end}
        {l_cs}:
        s_cmp_lg_u32 s{S_WAVE}, 0
        s_cbranch_scc1 {end}
        s_lshl_b32 s23, s{S_XCD}, 3
        s_add_u32 s23, s23, s{S_IDX}
        s_sub_u32 s23, s23, 24""")
        colsum_task(p, 23)
    p(f"{end}:\ns_endpgm")
    return kernel_text(name, p.finalize(), vgpr=176, accum=176), (256, 256, 108 * 1024)
```

```python
from common import *
from k_prep import ln_addr, ln_local_stats, ln_finish, ln_exchange_write, ln_exchange_read
MF = "v_mfma_f32_16x16x32_bf16"
RING = 36 * 1024
LDS_CS = 4 * RING
WSR = f"s[{S_WS}:{S_WS+3}]"

from fw import _is_vm as _isvm
DBG = set()
class Poll:
    def __init__(self, p, v_flag, v_addr, s_off, val, name):
        self.p, self.v, self.va, self.so, self.val = p, v_flag, v_addr, s_off, val
        self.slow, self.back = p.label(name + "_slow"), p.label(name + "_back")
    def issue(self): return ins(f"buffer_load_dword v{self.v}, v{self.va}, {WSR}, s{self.so} offen sc1")
    def check(self):
        return [ins(f"v_cmp_le_u32 vcc, {self.val}, v{self.v}"), ins("s_cmp_eq_u64 vcc, exec"),
                ins(f"s_cbranch_scc0 {self.slow}", "ool"), Label(self.back)]
    def slow_path(self, p, s_cnt):
        lp = p.label("spin")
        p.add(Raw(f"""{self.slow}:
    s_mov_b32 s{s_cnt}, 0x40000
{lp}:
    buffer_load_dword v{self.v}, v{self.va}, {WSR}, s{self.so} offen sc1
    s_waitcnt vmcnt(0)
    v_cmp_le_u32 vcc, {self.val}, v{self.v}
    s_sub_u32 s{s_cnt}, s{s_cnt}, 1
    s_cbranch_scc1 {self.back}
    s_cmp_eq_u64 vcc, exec
    s_cbranch_scc1 {self.back}
    s_branch {lp}"""))

def ffn_phase(p, l, sc=" sc1", ld="", prefetched=False):
    if "plain" in DBG: sc = ""
    lh = 0 if OPT.get("reuse") else l
    scp = "" if OPT.get("plainp") else sc
    V_LANE, V_L16, V_L8, V_W, V_CS, V_T0, V_T1 = 1, 2, 3, 4, 5, 6, 7
    WB, XO, ACA, ACB, NM, RS2, CS, TMP, HO, H8 = 8, 32, 64, 96, 128, 132, 136, 152, 176, 240
    ACX = 208
    S_RB, S_Q, S_M, S_SL, S_SRC, S_M0, S_XS, S_H, S_FL, S_P, S_T, S_R = 44, 45, 46, 47, 48, 49, 50, 51, 52, 53, 54, 56
    S_TMP, S_TMP2, S_LASTSRC, S_LASTM0, S_CNT = 60, 61, 62, 63, 64
    p(f"""s_lshr_b32 s{S_RB}, s{S_IDX}, 4
    s_and_b32 s{S_TMP}, s{S_XCD}, 6
    s_add_u32 s{S_RB}, s{S_RB}, s{S_TMP}
    s_and_b32 s{S_TMP}, s{S_XCD}, 1
    s_lshl_b32 s{S_TMP}, s{S_TMP}, 4
    s_and_b32 s{S_SL}, s{S_IDX}, 15
    s_add_u32 s{S_SL}, s{S_SL}, s{S_TMP}
    s_lshr_b32 s{S_Q}, s{S_SL}, 2
    s_and_b32 s{S_M}, s{S_SL}, 3
    s_mul_i32 s{S_SRC}, s{S_SL}, {486*1024}
    s_add_u32 s{S_SRC}, s{S_SRC}, {WF}
    s_mul_i32 s{S_LASTM0}, s{S_WAVE}, 9
    s_lshr_b32 s{S_LASTM0}, s{S_LASTM0}, 1
    s_lshl_b32 s{S_LASTM0}, s{S_LASTM0}, 10
    s_add_u32 s{S_LASTSRC}, s{S_SRC}, s{S_LASTM0}
    s_mul_i32 s{S_M0}, s{S_WAVE}, {9*1024}
    s_add_u32 s{S_SRC}, s{S_SRC}, s{S_M0}
    s_lshl_b32 s{S_T}, s{S_RB}, 4
    s_lshl_b32 s{S_TMP}, s{S_WAVE}, 2
    s_add_u32 s{S_T}, s{S_T}, s{S_TMP}
    s_mul_i32 s{S_XS}, s{S_T}, {18*1024}
    s_mul_i32 s{S_P}, s{S_Q}, {XBYTES}
    s_add_u32 s{S_P}, s{S_P}, s{S_XS}
    s_add_u32 s{S_XS}, s{S_XS}, {LB(l)+X1}
    s_lshr_b32 s{S_TMP}, s{S_M}, 1
    s_mul_i32 s{S_TMP}, s{S_TMP}, {9*1024}
    s_add_u32 s{S_P}, s{S_P}, s{S_TMP}
    s_add_u32 s{S_P}, s{S_P}, {LB(lh)+PB}
    v_lshlrev_b32 v{V_L8}, 3, v{V_LANE}
    v_mov_b32 v{V_W}, v{V_L16}""")
    def slot_dma(k):
        r = []
        if k < 13:
            for g in range(3):
                r.append(ins(f"s_add_u32 m0, s{S_M0}, {(k&3)*RING+4096*g}"))
                r.append(ins(f"s_add_u32 s{S_TMP2}, s{S_SRC}, {k*RING+4096*g}"))
                for j in range(4 if g < 2 else 1):
                    r.append(ins(f"buffer_load_dwordx4 v{V_L16}, {WSR}, s{S_TMP2} offen offset:{1024*j} lds", f"slot{k}"))
        else:
            for g in range(2):
                r.append(ins(f"s_add_u32 m0, s{S_LASTM0}, {(k&3)*RING+4096*g}"))
                r.append(ins(f"s_add_u32 s{S_TMP2}, s{S_LASTSRC}, {k*RING+4096*g}"))
                for j in range(4 if g < 1 else 1):
                    r.append(ins(f"buffer_load_dwordx4 v{V_L16}, {WSR}, s{S_TMP2} offen offset:{1024*j} lds", f"slot{k}"))
        return r
    xf = lambda c, tt: ar(16 * c + 4 * tt, 4) if c < 16 else vr(XO + 16 * (c - 16) + 4 * tt, 4)
    def xload(c4, tt):
        r = [ins(f"s_add_u32 s{S_TMP}, s{S_XS}, {tt*18*1024+c4*4096}")]
        for c in range(4 * c4, min(4 * c4 + 4, 18)):
            r.append(ins(f"buffer_load_dwordx4 {xf(c,tt)}, v{V_L16}, {WSR}, s{S_TMP} offen offset:{1024*(c&3)}{ld}"))
        return r
    p(f"""s_and_b32 s{S_TMP}, s{S_WAVE}, 1
    s_lshl_b32 s{S_TMP}, s{S_TMP}, 10
    s_add_u32 m0, s{S_TMP}, {LDS_CS}
    s_mul_i32 s{S_TMP2}, s{S_SL}, 1152
    s_add_u32 s{S_TMP2}, s{S_TMP2}, s{S_TMP}
    s_add_u32 s{S_TMP2}, s{S_TMP2}, {CSF}""")
    p(f"buffer_load_dwordx4 v{V_L16}, {WSR}, s{S_TMP2} offen lds", tag="slot1")
    p.add(slot_dma(0)); p.add(slot_dma(1))
    for c4 in range(2):
        for tt in range(4): p.add(xload(c4, tt))
    p(f"""s_lshl_b32 s{S_TMP}, s{S_RB}, 5
    s_add_u32 s{S_TMP}, s{S_TMP}, s{S_SL}
    s_mul_i32 s{S_H}, s{S_TMP}, {72*1024}
    s_add_u32 s{S_H}, s{S_H}, {LB(lh)+HB}""")
    for j in range(3):
        p(f"""s_xor_b32 s{S_TMP2}, s{S_TMP}, {j+1}
        s_mul_i32 s{S_R+j}, s{S_TMP2}, {72*1024}
        s_add_u32 s{S_R+j}, s{S_R+j}, {LB(lh)+HB}""")
    p(f"""s_lshr_b32 s{S_FL}, s{S_TMP}, 2
    s_lshl_b32 s{S_FL}, s{S_FL}, 2
    s_add_u32 s{S_FL}, s{S_FL}, s{S_WAVE}
    s_lshl_b32 s{S_FL}, s{S_FL}, 7
    s_add_u32 s{S_FL}, s{S_FL}, {FLAGS+l*0x10000}
    v_lshrrev_b32 v{V_CS}, 4, v{V_LANE}
    v_lshlrev_b32 v{V_CS}, 4, v{V_CS}
    v_add_u32 v{V_CS}, {LDS_CS}, v{V_CS}
    s_lshl_b32 s{S_TMP}, s{S_T}, 4
    v_add_u32 v{V_T0}, s{S_TMP}, v{V_LANE}
    v_lshlrev_b32 v{V_T0}, 3, v{V_T0}
    s_lshl_b32 s{S_TMP}, s{S_WAVE}, 12""")
    for r in (S_H, S_R, S_R + 1, S_R + 2):
        p(f"s_add_u32 s{r}, s{r}, s{S_TMP}")
    p(f"s_lshl_b32 s65, s{S_WAVE}, 11\ns_sub_u32 s65, {64*1024}, s65")
    p(f"s_lshl_b32 s67, s{S_M}, 2\ns_add_u32 s67, s67, s{S_FL}")

    frs = []
    tiles = [(8, ACX), (0, ACA)]
    acc1 = lambda buf, mat, tt: vr(buf + 16 * mat + 4 * tt, 4)
    def g1(tile, buf, c, mat):
        f = pos_of_tile(tile) * 36 + 2 * c + mat
        return (f, [(acc1(buf, mat, tt), xf(c, tt), c == 0) for tt in range(4)])
    marks = {}
    for c in range(18):
        for tile, buf in tiles:
            for mat in range(2): frs.append(g1(tile, buf, c, mat))
    marks["pass0_end"] = len(frs)
    bufs = {8: ACX, 0: ACA}
    for tile in range(1, 8):
        buf = ACB if tile & 1 else ACA
        bufs[tile] = buf
        marks[f"pass{tile}"] = len(frs)
        for c in range(18):
            for mat in range(2): frs.append(g1(tile, buf, c, mat))
    marks["g2"] = len(frs)
    acc2 = lambda n, tt: 32 + 32 * (n >> 1) + 8 * tt + 4 * (n & 1) if n < 8 else 160 + 4 * tt
    def hstep(st, tt):
        if st < 4: return vr(HO + 16 * st + 4 * tt, 4)
        if st == 4: return vr(H8 + 4 * tt, 4)
        return ar(16 * (st - 5) + 4 * tt, 4)
    order = gemm2_order()
    last_of = {}
    for i, (st, n) in enumerate(order):
        marks.setdefault(f"step{st}", len(frs))
        frs.append((324 + i, [(vr(acc2(n, tt), 4), hstep(st, tt), st == 0) for tt in range(4)]))
        last_of[n] = len(frs)
    NB, LOOK = 6, 4
    bb = []; s_rd = Stream("rd"); s_dma = Stream("dma"); s_ep = Stream("ep"); s_ld = Stream("ld")
    G = lambda s: 4 * s
    cur_base = [0]
    def read(s):
        f = frs[s][0]
        a = ((f // 36) & 3) * RING + (f % 36) * 1024
        r = []
        if s < marks["pass0_end"]:
            if a < 65536: va, off = V_W, a
            else: va, off = V_T1, a - 65536
        else:
            base = ((f // 36) & 3) * RING
            if base != cur_base[0]:
                r.append(f"v_add_u32 v{V_W}, {base - cur_base[0] & 0xffffffff:#x}, v{V_W}")
                cur_base[0] = base
            va, off = V_W, a - base
        r.append(f"ds_read_b128 {vr(WB+4*(s%NB),4)}, v{va} offset:{off}")
        return r
    p(f"v_add_u32 v{V_T1}, 0x10000, v{V_L16}")
    p.wait_vm("slot1"); p("s_barrier"); stamp(p, 1)
    for s in range(LOOK): p.add(read(s))
    seen = {0, 1}
    for s, (f, ms) in enumerate(frs):
        for d, b, first in ms:
            bb.append(ins(f"{MF} {d}, {vr(WB+4*(s%NB),4)}, {b}, {'0' if first else d}"))
        t = s + LOOK
        if t < len(frs):
            k = frs[t][0] // 36
            g = G(s) + 1
            if k not in seen:
                seen.add(k)
                s_rd.add(WaitTag(f"slot{k}", "vm"), g, g)
                if k == 2: s_rd.add(Drain(vm=False), g, g)
                s_rd.add("s_barrier", g, g)
                for kk in ([4, 5] if k == 2 else [k + 2] if k >= 4 else []):
                    if kk <= 13:
                        for j, it in enumerate(slot_dma(kk)): s_dma.add(it, g + 1, g + 120 + (100 if kk == 5 else 0))
            for r in read(t): s_rd.add(r, g, g + 1)
    for c4 in range(2, 5):
        for tt in range(4):
            for it in xload(c4, tt): s_ld.add(it, 0, 16 * (4 * c4) - 40 + 8 * tt)
    for cg in range(6):
        s_ld.add(f"s_mov_b32 s{S_TMP}, {LB(l)+ST+cg*16384}")
        s_ld.add(f"buffer_load_dwordx2 {vr(TMP+2*cg,2)}, v{V_T0}, {WSR}, s{S_TMP} offen{ld}")
    if not prefetched:
        for k in (2, 3):
            for it in slot_dma(k): s_ld.add(it, 0, G(marks["pass0_end"]) - (40 if k == 2 else -60))
    ga = G(marks["pass0_end"]) - 50
    A_, B_, M_, R_ = TMP + 12, TMP + 13, TMP + 14, TMP + 15
    s = lambda cg: TMP + 2 * cg
    e = [f"v_add_f32 v{M_}, v{s(0)}, v{s(1)}", f"v_add_f32 v{R_}, v{s(0)+1}, v{s(1)+1}"]
    for cg in range(2, 6): e += [f"v_add_f32 v{M_}, v{M_}, v{s(cg)}", f"v_add_f32 v{R_}, v{R_}, v{s(cg)+1}"]
    e += [f"v_mul_f32 v{M_}, 0xbae38e39, v{M_}"]
    for cg in range(6):
        e += [f"v_fmamk_f32 v{B_}, v{s(cg)}, 0x3c2aaaab, v{M_}",
              f"v_mul_f32 v{A_}, v{B_}, v{B_}" if cg == 0 else f"v_fmac_f32 v{A_}, v{B_}, v{B_}"]
    e += [f"v_fmac_f32 v{R_}, 0x42c00000, v{A_}", f"v_mov_b32 v{B_}, 0x3727c5ac",
          f"v_fmac_f32 v{B_}, 0x3ae38e39, v{R_}", f"v_rcp_f32 v{R_}, v{B_}",
          f"v_and_b32 v{A_}, 15, v{V_LANE}", f"v_lshlrev_b32 v{A_}, 2, v{A_}"]
    for tt in range(4):
        e += [f"ds_bpermute_b32 v{NM+tt}, v{A_}, v{M_} offset:{64*tt}", f"ds_bpermute_b32 v{RS2+tt}, v{A_}, v{R_} offset:{64*tt}"]
    for x in e: s_ep.add(x, ga, G(marks["pass0_end"]))
    def cs_reads(tile, g):
        cb = CS + 8 * (pos_of_tile(tile) & 1)
        for mat in range(2):
            s_ep.add(f"ds_read_b128 {vr(cb+4*mat,4)}, v{V_CS} offset:{pos_of_tile(tile)*128+64*mat}", g)
    def epilogue(tile, g, dl):
        buf = bufs[tile]; cb = CS + 8 * (pos_of_tile(tile) & 1)
        for tt in range(4):
            gq, uq = buf + 4 * tt, buf + 16 + 4 * tt
            for r in range(4): s_ep.add(f"v_fmac_f32 v{gq+r}, v{cb+r}, v{NM+tt}", g, dl)
            for r in range(4): s_ep.add(f"v_fmac_f32 v{uq+r}, v{cb+4+r}, v{NM+tt}", g, dl)
            for r in range(4): s_ep.add(f"v_mul_f32 v{gq+r}, v{gq+r}, v{RS2+tt}", g, dl)
            for r in range(4): s_ep.add(f"v_mul_f32 v{gq+r}, v{gq+r}, v{uq+r}", g, dl)
            dst = H8 + 4 * tt if tile == 8 else HO + 16 * (tile >> 1) + 4 * tt + 2 * (tile & 1)
            for j in range(2): s_ep.add(f"v_cvt_pk_bf16_f32 v{dst+j}, v{gq+2*j}, v{gq+2*j+1}", g, dl)
            if tile == 8:
                if tt == 0: s_ep.add(f"s_add_u32 s66, s{S_H}, s65", g, dl)
                s_ep.add(f"buffer_store_dwordx2 {vr(dst,2)}, v{V_L8}, {WSR}, s66 offen offset:{512*tt}{sc}", g, dl, tag="h8")
            elif tile & 1:
                if tt == 0: s_ep.add(f"s_add_u32 s66, s{S_H}, {(tile>>1)*16*1024}", g, dl)
                s_ep.add(f"buffer_store_dwordx4 {vr(dst-2,4)}, v{V_L16}, {WSR}, s66 offen offset:{1024*tt}{sc}", g, dl, tag=f"h{tile>>1}")
    g1s = G(marks["pass1"])
    cs_reads(8, g1s - 20); cs_reads(0, g1s - 20)
    epilogue(0, g1s + 6, G(marks["pass2"])); epilogue(8, g1s + 6, G(marks["pass2"]) + 60)
    for tile in range(1, 8):
        nxt = G(marks[f"pass{tile+1}"]) if tile < 7 else G(marks["g2"])
        cs_reads(tile, nxt - 20)
        epilogue(tile, nxt + 6, nxt + (140 if tile < 7 else 48))
    s_sg = Stream("sig")
    def signal(val, tag, g):
        s_sg.add(f"v_mov_b32 v{V_T0}, {val}", g - 2, g)
        s_sg.add(f"v_mov_b32 v0, 0", g - 2, g)
        s_sg.add(WaitTag(tag, "vm"), g, g)
        s_sg.add([ins("s_mov_b64 exec, 1"), ins(f"buffer_store_dword v{V_T0}, v0, {WSR}, s67 offen sc1"), ins("s_mov_b64 exec, -1")], g + 1, g + 3, cost=2)
    g7 = G(marks["pass7"]); g2 = G(marks["g2"])
    signal(1, "h1", G(marks["pass5"]) + 60)
    signal(2, "h2", g7 - 4)
    signal(3, "h3", G(marks["step3"]) + 8)
    V_PA, V_PF = V_T1, V_CS
    polls = [Poll(p, TMP + 16 if k == 0 else V_PF, V_PA, S_FL, k + 1, f"p{k}") for k in range(3)]
    def addpoll(pl, g_issue, g_check):
        s_ld.add(pl.issue(), g_issue, g_issue + 3)
        s_ld.add(pl.check(), g_check, g_check + 1, cost=2)
    s_ld.add(f"v_and_b32 v{V_PA}, 3, v{V_LANE}", g7 - 80); s_ld.add(f"v_lshlrev_b32 v{V_PA}, 2, v{V_PA}", g7 - 80)
    addpoll(polls[0], g7 - 60, g7 - 20)
    ldh = " sc1"
    need = lambda st: G(marks[f"step{st}"]) if st < 9 else G(marks["step9"]) + 8 * (st - 9)
    for tt in range(4):
        if tt == 0: s_ld.add(f"s_add_u32 s{S_TMP}, s{S_R}, s65", g7 - 18)
        s_ld.add(f"buffer_load_dwordx2 {vr(H8+4*tt+2,2)}, v{V_L8}, {WSR}, s{S_TMP} offen offset:{512*tt}{ldh}", g7 - 18, need(4) - 150)
    for j in range(2):
        s_ld.add(f"s_add_u32 s{S_TMP}, s{S_R+1+j}, s65", g7 + 8)
        for tt in range(4):
            s_ld.add(f"buffer_load_dwordx2 {ar(4*tt+2*j,2)}, v{V_L8}, {WSR}, s{S_TMP} offen offset:{512*tt}{ldh}", g7 + 8, need(5) - 150)
    def hload(st, g, dl):
        i = st - 6
        s_ld.add(f"s_add_u32 s{S_TMP}, s{S_R+i%3}, {(i//3)*16*1024}", g)
        for tt in range(4):
            s_ld.add(f"buffer_load_dwordx4 {hstep(st,tt)}, v{V_L16}, {WSR}, s{S_TMP} offen offset:{1024*tt}{ldh}", g, dl)
    for st in range(6, 12): hload(st, g7 + 8 * (st - 4), need(st) - 150)
    addpoll(polls[1], g2 + 60, g2 + 100)
    for st in range(12, 15): hload(st, g2 + 101, need(st) - 100)
    gB = G(marks["step7"])
    addpoll(polls[2], gB - 40, gB)
    for st in range(15, 18): hload(st, gB + 1, need(st) - 60)
    s_o = Stream("out")
    gB += 4
    s_o.add(f"s_and_b32 s68, s{S_M}, 1", gB)
    s_o.add(f"s_mul_i32 s69, s68, {5*1024}", gB); s_o.add(f"s_add_u32 s69, s69, s{S_P}", gB)
    s_o.add(f"s_lshl_b32 s68, s68, 9", gB); s_o.add(f"s_add_u32 s68, s68, s{S_P}", gB)
    s_o.add(f"v_and_b32 v0, 15, v{V_LANE}", gB); s_o.add(f"v_lshlrev_b32 v0, 5, v0", gB)
    s_o.add(f"v_lshrrev_b32 v{V_CS}, 4, v{V_LANE}", gB); s_o.add(f"v_lshl_add_u32 v0, v{V_CS}, 3, v0", gB)
    for pr in range(4):
        g = G(last_of[2 * pr + 1]) + 4
        for tt in range(4):
            a = acc2(2 * pr, tt)
            for j in range(4): s_o.add(f"v_cvt_pk_bf16_f32 v{a+j}, v{a+2*j}, v{a+2*j+1}", g)
            s_o.add(f"s_add_u32 s70, s69, {tt*18*1024+pr*1024}", g)
            s_o.add(f"buffer_store_dwordx4 {vr(a,4)}, v{V_L16}, {WSR}, s70 offen{scp}", g, tag="pout")
    g = len(bb)
    for tt in range(4):
        a = acc2(8, tt)
        for j in range(2): s_o.add(f"v_cvt_pk_bf16_f32 v{a+j}, v{a+2*j}, v{a+2*j+1}", g)
        s_o.add(f"s_add_u32 s70, s68, {tt*18*1024+4*1024}", g)
        s_o.add(f"buffer_store_dwordx2 {vr(a,2)}, v0, {WSR}, s70 offen{scp}", g, tag="pout")
    if "nostore" in DBG: s_ep.q = [e for e in s_ep.q if not _isvm(e[2])]; s_o.q = [e for e in s_o.q if not _isvm(e[2])]
    if "nodma" in DBG: s_dma.q = []
    if "noep" in DBG: s_ep.q = [e for e in s_ep.q if getattr(e[2], "kind", "") != "valu"]
    if "nohld" in DBG: s_ld.q = [e for e in s_ld.q if not (e[0] > 500 and _isvm(e[2]) and "dwordx" in e[2].text)]
    s_st = Stream("stamp")
    if STAMP[0]:
        for k, mk in enumerate(("pass1", "pass3", "pass5", "pass7", "g2", "step3", "step6", "step9")):
            s_st.add(stamp_ins(2 + k), G(marks[mk]) + 2, G(marks[mk]) + 2)
    weave(p, bb, [s_rd, s_sg, s_ld, s_ep, s_o, s_dma, s_st], cap=2)
    return [(lambda pp, pl=pl: pl.slow_path(pp, S_CNT)) for pl in polls]

def gen_ffn(name, l, kidx=0):
    p = Prog(); end = f"{name}_end"
    prologue(p, end, code_pf=1)
    ool = ffn_phase(p, l)
    stamp(p, 10); p.drain(); stamp(p, 11); stamp_flush(p, kidx, 12)
    p(f"{end}:\ns_endpgm")
    for f in ool: f(p)
    t = p.finalize()
    print(name, p.stats)
    return kernel_text(name, t, vgpr=512, accum=256), (256, 256, LDS_CS + 2048)

def reduce_phase(p, l, lds_off=0, sc="", ld=""):
    V_LANE = 1
    lh = 0 if OPT.get("reuse") else l
    VROW, VFR, VP, VLD, VX, VS, VO = 3, 4, 5, 16, 128, 152, 160
    p(f"s_lshl_b32 s47, s{S_XCD}, 5\ns_add_u32 s47, s47, s{S_IDX}")
    ln_addr(p, 47, V_LANE, VROW, VFR, 8, 48)
    p(f"""v_lshrrev_b32 v8, 3, v{V_LANE}
    v_and_b32 v9, 7, v{V_LANE}
    s_and_b32 s48, s47, 1
    s_lshl_b32 s48, s48, 3
    v_add_u32 v9, s48, v9
    v_lshlrev_b32 v9, 4, v9
    v_bfe_u32 v10, v8, 1, 1
    v_and_b32 v11, 1, v8
    v_lshl_add_u32 v9, v11, 4, v9
    v_lshl_add_u32 v9, v10, 9, v9
    v_and_b32 v10, 3, v8
    v_lshlrev_b32 v10, 8, v10
    v_sub_u32 v9, v9, v10
    s_mul_i32 s48, s{S_WAVE}, 6
    v_lshrrev_b32 v8, 2, v8
    v_add_u32 v8, s48, v8""")
    for i in range(3):
        p(f"""v_add_u32 v10, {2*i}, v8
        v_cmp_eq_u32 vcc, 4, v10
        v_cmp_eq_u32 s[56:57], 13, v10
        s_or_b64 vcc, vcc, s[56:57]
        v_cndmask_b32 v10, 0, v9, vcc
        v_add3_u32 v{VP+i}, v{VFR}, v10, {0}
        v_add_u32 v{VP+i}, {2048*i}, v{VP+i}""")
    l_skip = p.label("w3a")
    p(f"s_cmp_eq_u32 s{S_WAVE}, 3\ns_cbranch_scc1 {l_skip}")
    p(f"s_mov_b32 s48, {LB(l)+X1}")
    for i in range(3):
        if i == 2: p("s_add_u32 s48, s48, 4096")
        p(f"buffer_load_dwordx4 {vr(VLD+36*i,4)}, v{VFR}, {WSR}, s48 offen offset:{2048*(i&1)}{ld}")
    for q in range(8):
        p(f"s_mov_b32 s48, {LB(lh)+PB+q*XBYTES}")
        for i in range(3):
            p(f"buffer_load_dwordx4 {vr(VLD+36*i+4+4*q,4)}, v{VP+i}, {WSR}, s48 offen{ld}")
    for i in range(3): unpack8(p, VX + 8 * i, VLD + 36 * i)
    for q in range(8):
        for i in range(3):
            b = VLD + 36 * i + 4 + 4 * q
            for j in range(4):
                p(f"""v_lshlrev_b32 v{8+2*(j&1)}, 16, v{b+j}
                v_and_b32 v{9+2*(j&1)}, 0xffff0000, v{b+j}
                v_add_f32 v{VX+8*i+2*j}, v{VX+8*i+2*j}, v{8+2*(j&1)}
                v_add_f32 v{VX+8*i+2*j+1}, v{VX+8*i+2*j+1}, v{9+2*(j&1)}""")
    if l == 1: srd(p, S_O, P_OUT, XBYTES)
    else: p(f"s_add_u32 s{S_O}, s{P_WS}, {LB(0)+X2R}\ns_addc_u32 s{S_O+1}, s{P_WS+1}, 0\ns_mov_b32 s{S_O+2}, {XBYTES:#x}\ns_mov_b32 s{S_O+3}, 0x20000")
    for i in range(3):
        for j in range(4): p(f"v_cvt_pk_bf16_f32 v{VO+4*i+j}, v{VX+8*i+2*j}, v{VX+8*i+2*j+1}")
        p(f"buffer_store_dwordx4 {vr(VO+4*i,4)}, v{VROW}, s[{S_O}:{S_O+3}], 0 offen offset:{128*i}{sc if l == 0 else ''}")
    if l == 1:
        p(f"{l_skip}:")
        return
    for i in range(3): unpack8(p, VX + 8 * i, VO + 4 * i)
    ln_local_stats(p, VX, VS, VS + 1, 8)
    ln_exchange_write(p, VS, V_LANE, 8, lds_off)
    p.drain(vm=False)
    p(f"{l_skip}:\ns_barrier")
    l_skip2 = p.label("w3b")
    p(f"s_cmp_eq_u32 s{S_WAVE}, 3\ns_cbranch_scc1 {l_skip2}")
    ln_exchange_read(p, VS, V_LANE, 8, lds_off)
    ln_finish(p, VX, VS, 16, 8)
    p(f"s_mov_b32 s46, {LB(l+1)+XN}")
    for i in range(3):
        if i == 2: p("s_add_u32 s46, s46, 4096")
        p(f"buffer_store_dwordx4 {vr(16+4*i,4)}, v{VFR}, {WSR}, s46 offen offset:{2048*(i&1)}{sc}")
    p(f"{l_skip2}:")

def gen_reduce(name, l, kidx=0):
    p = Prog(); end = f"{name}_end"
    prologue(p, end, code_pf=1)
    reduce_phase(p, l)
    stamp(p, 1); p.drain(); stamp(p, 2); stamp_flush(p, kidx, 3)
    p(f"{end}:\ns_endpgm")
    return kernel_text(name, p.finalize(), vgpr=176, accum=176), (256, 256, 256)
```

```python
from common import *

def shuffle_dma(p, srd_, ppr, ndma, s_rowbase, s_grs, s_hrs, s_rs, s_lds, v_lane, vt, tag, qkv=False):
    for i in range(ndma):
        p(f"""v_add_u32 v{vt}, {64*i}, v{v_lane}
        v_mul_u32_u24 v{vt+1}, {magic(ppr, 64*ndma)}, v{vt}
        v_lshrrev_b32 v{vt+1}, 16, v{vt+1}
        v_mul_u32_u24 v{vt+2}, {ppr}, v{vt+1}
        v_sub_u32 v{vt}, v{vt}, v{vt+2}""")
        if qkv:
            p(f"""v_mul_u32_u24 v{vt+2}, {magic(5, 16)}, v{vt}
            v_lshrrev_b32 v{vt+2}, 16, v{vt+2}
            v_mul_u32_u24 v{vt+2}, {1152-80}, v{vt+2}
            v_lshl_add_u32 v{vt}, v{vt}, 4, v{vt+2}""")
        else:
            p(f"v_lshlrev_b32 v{vt}, 4, v{vt}")
        p(f"""v_lshrrev_b32 v{vt+2}, 3, v{vt+1}
        v_mul_lo_u32 v{vt+2}, v{vt+2}, s{s_grs}
        v_bfe_u32 v{vt+3}, v{vt+1}, 2, 1
        v_mul_lo_u32 v{vt+3}, v{vt+3}, s{s_hrs}
        v_and_b32 v{vt+1}, 3, v{vt+1}
        v_mul_lo_u32 v{vt+1}, v{vt+1}, s{s_rs}
        v_add3_u32 v{vt}, v{vt}, v{vt+2}, v{vt+3}
        v_add3_u32 v{vt}, v{vt}, v{vt+1}, s{s_rowbase}
        s_add_u32 m0, s{s_lds}, {1024*i}""")
        p(f"buffer_load_dwordx4 v{vt}, s[{srd_}:{srd_+3}], 0 offen lds", tag=tag)

def tr_base(p, vd, v_lane, stride, s_lds, vt):
    p(f"""v_lshrrev_b32 v{vd}, 4, v{v_lane}
    v_bfe_u32 v{vt}, v{v_lane}, 2, 2
    v_lshl_add_u32 v{vd}, v{vd}, 3, v{vt}
    v_mul_u32_u24 v{vd}, {stride}, v{vd}
    v_add_u32 v{vd}, s{s_lds}, v{vd}
    v_and_b32 v{vt}, 3, v{v_lane}""")

def tr_frag(p, vf, va, off, stride):
    p(f"ds_read_b64_tr_b16 v[{vf}:{vf+1}], v{va} offset:{off}")
    p(f"ds_read_b64_tr_b16 v[{vf+2}:{vf+3}], v{va} offset:{off+4*stride}")

U_ROW, U_GRS, U_HRS, U_RS, U_PB, U_T8, U_SL, U_CS = range(0, 8)
U_DST = 8
U_N = 17

def ffn_unit_setup(p, s_u, sb, ssrd, st):
    L = p.label
    l_d, l_done = L("ud"), L("udone")
    p(f"s_cmp_ge_u32 s{s_u}, 1152\ns_cbranch_scc1 {l_d}")
    sdiv(p, sb + U_SL, s_u, 36, 1152)
    p(f"""s_mul_i32 s{st}, s{sb+U_SL}, 36
    s_sub_u32 s{st}, s{s_u}, s{st}
    s_and_b32 s{st+1}, s{st}, 1
    s_lshr_b32 s{st+2}, s{st}, 1
    s_cmp_eq_u32 s{st+1}, 0
    s_cselect_b32 s{ssrd}, s{P_WG}, s{P_WU}
    s_cselect_b32 s{ssrd+1}, s{P_WG+1}, s{P_WU+1}
    s_mul_i32 s{sb+U_ROW}, s{st+2}, {32*9216}
    s_mul_i32 s{st+3}, s{sb+U_SL}, 288
    s_add_u32 s{sb+U_ROW}, s{sb+U_ROW}, s{st+3}
    s_mov_b32 s{sb+U_GRS}, {8*9216}
    s_mov_b32 s{sb+U_HRS}, {4*9216}
    s_mov_b32 s{sb+U_RS}, 9216
    s_mov_b32 s{sb+U_PB}, 0
    s_mov_b32 s{sb+U_T8}, 256
    s_mul_i32 s{st+3}, s{sb+U_SL}, 486
    s_add_u32 s{st+3}, s{st+3}, s{st}
    s_lshl_b32 s{st+3}, s{st+3}, 10
    s_add_u32 s{st+3}, s{st+3}, {WF}""")
    for n in range(9):
        p(f"s_add_u32 s{sb+U_DST+n}, s{st+3}, {pos_of_tile(n)*36*1024}")
    p(f"""s_lshl_b32 s{st+3}, s{sb+U_SL}, 1
    s_add_u32 s{st+3}, s{st+3}, s{st+1}
    s_mul_i32 s{st+3}, s{st+3}, 18
    s_add_u32 s{st+3}, s{st+3}, s{st+2}
    s_mul_i32 s{st+3}, s{st+3}, 576
    s_add_u32 s{sb+U_CS}, s{st+3}, {CSP}
    s_branch {l_done}""")
    p(f"{l_d}:")
    p(f"s_sub_u32 s{st}, s{s_u}, 1152")
    sdiv(p, sb + U_SL, st, 18, 576)
    p(f"""s_mul_i32 s{st+1}, s{sb+U_SL}, 18
    s_sub_u32 s{st}, s{st}, s{st+1}
    s_mov_b32 s{ssrd}, s{P_WD}
    s_mov_b32 s{ssrd+1}, s{P_WD+1}
    s_mov_b32 s{sb+U_CS}, 0
    s_mov_b32 s{sb+U_RS}, 1152
    s_and_b32 s{st+1}, s{sb+U_SL}, 3
    s_and_b32 s{st+2}, s{st+1}, 1
    s_lshl_b32 s{sb+U_PB}, s{st+2}, 5
    s_cmp_eq_u32 s{st+2}, 0
    s_cselect_b32 s{sb+U_T8}, 256, 0
    s_mov_b32 s{st+5}, {-144*1152}
    s_cselect_b32 s{st+5}, {144*1152}, s{st+5}""")
    l_sh, l_rm, l_rows = L("ush"), L("urm"), L("urows")
    p(f"""s_mov_b32 s{sb+U_GRS}, {8*1152}
    s_mov_b32 s{sb+U_HRS}, {4*1152}
    s_cmp_ge_u32 s{st}, 4
    s_cbranch_scc1 {l_sh}
    s_mov_b32 s{st+3}, s{st+1}
    s_lshl_b32 s{st+4}, s{st}, 5
    s_branch {l_rows}
    {l_sh}:
    s_cmp_ge_u32 s{st}, 6
    s_cbranch_scc1 {l_rm}
    s_sub_u32 s{st+3}, s{st}, 4
    s_lshl_b32 s{st+3}, s{st+3}, 1
    s_xor_b32 s{st+3}, s{st+3}, s{st+1}
    s_mov_b32 s{st+4}, 128
    s_mov_b32 s{sb+U_GRS}, {4*1152}
    s_mov_b32 s{sb+U_HRS}, s{st+5}
    s_branch {l_rows}
    {l_rm}:
    s_sub_u32 s{st+3}, s{st}, 6""")
    sdiv(p, st + 4, st + 3, 3, 12)
    p(f"""s_mul_i32 s{st+5}, s{st+4}, 3
    s_sub_u32 s{st+3}, s{st+3}, s{st+5}
    s_add_u32 s{st+3}, s{st+3}, 1
    s_xor_b32 s{st+3}, s{st+3}, s{st+1}
    s_lshl_b32 s{st+4}, s{st+4}, 5
    {l_rows}:
    s_mul_i32 s{st+3}, s{st+3}, 144
    s_add_u32 s{st+3}, s{st+3}, s{st+4}
    s_lshr_b32 s{st+4}, s{sb+U_SL}, 2
    s_mul_i32 s{st+4}, s{st+4}, 576
    s_add_u32 s{st+3}, s{st+3}, s{st+4}
    s_mul_i32 s{st+3}, s{st+3}, 1152
    s_mul_i32 s{st+4}, s{st+1}, 288
    s_add_u32 s{sb+U_ROW}, s{st+3}, s{st+4}
    s_mul_i32 s{st+3}, s{sb+U_SL}, 486
    s_add_u32 s{st+3}, s{st+3}, 324
    s_lshl_b32 s{st+3}, s{st+3}, 10
    s_add_u32 s{st+3}, s{st+3}, {WF}""")
    order = gemm2_order()
    idx = {k: i for i, k in enumerate(order)}
    l_b, l_c = L("ub"), L("uc")
    def dests(st0, nsteps):
        strides = sorted({idx[(st0 + 1, n)] - idx[(st0, n)] for n in range(9)})
        p(f"s_sub_u32 s{st+4}, s{st}, {st0}")
        for n in range(9):
            sd = idx[(st0 + 1, n)] - idx[(st0, n)]
            for k in range(nsteps): assert idx[(st0 + k, n)] == idx[(st0, n)] + k * sd
            p(f"""s_mul_i32 s{st+5}, s{st+4}, {sd*1024}
            s_add_u32 s{st+5}, s{st+5}, {idx[(st0, n)]*1024}
            s_add_u32 s{sb+U_DST+n}, s{st+5}, s{st+3}""")
    p(f"s_cmp_ge_u32 s{st}, 3\ns_cbranch_scc1 {l_b}")
    dests(0, 3); p(f"s_branch {l_done}\n{l_b}:")
    p(f"s_cmp_ge_u32 s{st}, 9\ns_cbranch_scc1 {l_c}")
    dests(3, 6); p(f"s_branch {l_done}\n{l_c}:")
    dests(9, 9)
    p(f"{l_done}:")
    p(f"s_mov_b32 s{ssrd+2}, {D*F*2:#x}\ns_mov_b32 s{ssrd+3}, 0x20000")

def ffn_unit_finish(p, sb, s_lds, v_lane, v_l16, vf, vt, tag, sc=""):
    va, vb = vt, vt + 1
    tr_base(p, va, v_lane, 288, s_lds, vt + 2)
    p(f"""v_lshl_add_u32 v{vb}, v{vt+2}, 3, v{va}
    v_add_u32 v{vb}, s{sb+U_T8}, v{vb}
    v_lshl_add_u32 v{va}, v{vt+2}, 4, v{va}
    v_add_u32 v{va}, s{sb+U_PB}, v{va}""")
    p.wait_vm(tag)
    for n in range(9):
        if n < 8: tr_frag(p, vf + 4 * n, va, 64 * (n >> 1) + 8 * (n & 1), 288)
        else: tr_frag(p, vf + 4 * n, vb, 0, 288)
    for n in range(9):
        p(f"buffer_store_dwordx4 v[{vf+4*n}:{vf+4*n+3}], v{v_l16}, s[{S_WS}:{S_WS+3}], s{sb+U_DST+n} offen{sc}")
    l_skip = p.label("nocs")
    p(f"s_cmp_eq_u32 s{sb+U_CS}, 0\ns_cbranch_scc1 {l_skip}")
    p.cond_begin()
    vo, vd = vt + 4, vf + 36
    for j in range(4): p(f"v_mov_b32 v{vo+j}, {BF16_ONES:#x}")
    for n in range(9):
        p(f"v_mfma_f32_16x16x32_bf16 v[{vd+4*n}:{vd+4*n+3}], v[{vf+4*n}:{vf+4*n+3}], v[{vo}:{vo+3}], 0")
    p(f"""v_and_b32 v{vt+2}, 15, v{v_lane}
    v_cmp_eq_u32 vcc, 0, v{vt+2}
    s_and_saveexec_b64 s[44:45], vcc""")
    for n in range(9):
        p(f"buffer_store_dwordx4 v[{vd+4*n}:{vd+4*n+3}], v{v_lane}, s[{S_WS}:{S_WS+3}], s{sb+U_CS} offen offset:{pos_of_tile(n)*64}{sc}")
    p("s_mov_b64 exec, s[44:45]")
    p.cond_end()
    p(f"{l_skip}:")

def qkv_unit(p, s_u, s_lds, v_lane, v_l16, vf, vt, st, sc=""):
    sdiv(p, st, s_u, 18, 288)
    p(f"""s_mul_i32 s{st+1}, s{st}, 18
    s_sub_u32 s{st+1}, s{s_u}, s{st+1}
    s_mul_i32 s{st+2}, s{st}, 72
    s_and_b32 s{st+3}, s{st+2}, 8
    s_and_b32 s{st+2}, s{st+2}, -16
    s_mul_i32 s{st+4}, s{st+1}, {32*3456}
    s_add_u32 s{st+2}, s{st+2}, s{st+4}
    s_mov_b32 s{st+4}, {8*3456}
    s_mov_b32 s{st+5}, {4*3456}
    s_mov_b32 s{st+6}, 3456
    s_mul_i32 s{st+7}, s{s_u}, {7*1024}""")
    srd(p, S_A, P_WQKV, D * 3 * D * 2)
    shuffle_dma(p, S_A, 15, 8, st + 2, st + 4, st + 5, st + 6, s_lds, v_lane, vt, "qu", qkv=True)
    va, vb = vt, vt + 1
    tr_base(p, va, v_lane, 240, s_lds, vt + 2)
    p(f"""v_add_u32 v{va}, s{st+3}, v{va}
    v_and_b32 v{vt+3}, 1, v{vt+2}
    v_mul_u32_u24 v{vt+3}, 160, v{vt+3}
    v_lshrrev_b32 v{vb}, 1, v{vt+2}
    v_mul_u32_u24 v{vb}, 80, v{vb}
    v_add3_u32 v{vb}, v{vb}, v{vt+3}, v{va}
    v_cmp_eq_u32 vcc, 3, v{vt+2}
    v_cndmask_b32 v{vb}, v{vb}, v{va}, vcc
    v_lshl_add_u32 v{va}, v{vt+2}, 3, v{va}""")
    p.wait_vm("qu")
    for t in range(6): tr_frag(p, vf + 4 * t, va, 80 * (t >> 1) + 40 * (t & 1), 240)
    tr_frag(p, vf + 24, vb, 32, 240)
    p(f"v_and_b32 v{vt+2}, 15, v{v_lane}\nv_cmp_gt_u32 vcc, 12, v{vt+2}")
    for j in range(4): p(f"v_cndmask_b32 v{vf+24+j}, 0, v{vf+24+j}, vcc")
    p(f"s_add_u32 s{st+7}, s{st+7}, {WQ}")
    for t in range(7):
        if t == 4: p(f"s_add_u32 s{st+7}, s{st+7}, 4096")
        p(f"buffer_store_dwordx4 v[{vf+4*t}:{vf+4*t+3}], v{v_l16}, s[{S_WS}:{S_WS+3}], s{st+7} offen offset:{(t&3)*1024}{sc}")

def wo_unit(p, s_u, s_lds, v_lane, v_l16, vf, vt, st, sc=""):
    sdiv(p, st, s_u, 18, 108)
    p(f"""s_mul_i32 s{st+1}, s{st}, 18
    s_sub_u32 s{st+1}, s{s_u}, s{st+1}
    s_mul_i32 s{st+2}, s{st+1}, {36*1152}
    s_sub_u32 s{st+3}, s{st+1}, 16
    s_mul_i32 s{st+3}, s{st+3}, {288*1152}
    s_add_u32 s{st+3}, s{st+3}, {16*1152}
    s_cmp_lt_u32 s{st+1}, 16
    s_cselect_b32 s{st+2}, s{st+2}, s{st+3}
    s_mov_b32 s{st+4}, {72*1152}
    s_mov_b32 s{st+5}, {36*1152}
    s_cselect_b32 s{st+4}, {4*1152}, s{st+4}
    s_cselect_b32 s{st+5}, {20*1152}, s{st+5}
    s_mul_i32 s{st+3}, s{st}, 192
    s_add_u32 s{st+2}, s{st+2}, s{st+3}
    s_mov_b32 s{st+6}, 1152
    s_mul_i32 s{st+7}, s{s_u}, {6*1024}""")
    srd(p, S_A, P_WO, D * D * 2)
    shuffle_dma(p, S_A, 12, 6, st + 2, st + 4, st + 5, st + 6, s_lds, v_lane, vt, "wu")
    va = vt
    tr_base(p, va, v_lane, 192, s_lds, vt + 2)
    p(f"v_lshl_add_u32 v{va}, v{vt+2}, 4, v{va}")
    p.wait_vm("wu")
    for t in range(6): tr_frag(p, vf + 4 * t, va, 64 * (t >> 1) + 8 * (t & 1), 192)
    p(f"s_add_u32 s{st+7}, s{st+7}, {WOS}")
    for t in range(6):
        if t == 4: p(f"s_add_u32 s{st+7}, s{st+7}, 4096")
        p(f"buffer_store_dwordx4 v[{vf+4*t}:{vf+4*t+3}], v{v_l16}, s[{S_WS}:{S_WS+3}], s{st+7} offen offset:{(t&3)*1024}{sc}")

def ln_addr(p, s_tg, v_lane, v_row, v_frag, vt, st):
    p(f"""v_and_b32 v{vt}, 7, v{v_lane}
    v_lshrrev_b32 v{vt+1}, 3, v{v_lane}
    s_lshl_b32 s{st}, s{s_tg}, 3
    v_add_u32 v{v_row}, s{st}, v{vt}
    v_mul_u32_u24 v{v_row}, 1152, v{v_row}
    s_mul_i32 s{st}, s{S_WAVE}, {24*16}
    v_lshl_add_u32 v{v_row}, v{vt+1}, 4, v{v_row}
    v_add_u32 v{v_row}, s{st}, v{v_row}
    s_lshr_b32 s{st}, s{s_tg}, 1
    s_mul_i32 s{st}, s{st}, {18*1024}
    s_and_b32 s{st+1}, s{s_tg}, 1
    s_lshl_b32 s{st+1}, s{st+1}, 7
    s_add_u32 s{st}, s{st}, s{st+1}
    s_mul_i32 s{st+1}, s{S_WAVE}, {6*1024}
    s_add_u32 s{st}, s{st}, s{st+1}
    v_lshlrev_b32 v{vt}, 4, v{vt}
    v_lshl_add_u32 v{vt}, v{vt+1}, 8, v{vt}
    v_add_u32 v{v_frag}, s{st}, v{vt}""")

def ln_local_stats(p, vx, v_sum, v_m2, vt):
    p(f"v_add_f32 v{v_sum}, v{vx}, v{vx+1}\nv_add_f32 v{vt}, v{vx+2}, v{vx+3}")
    for j in range(4, 24, 2):
        p(f"v_add_f32 v{v_sum}, v{v_sum}, v{vx+j}\nv_add_f32 v{vt}, v{vt}, v{vx+j+1}")
    p(f"v_add_f32 v{v_sum}, v{v_sum}, v{vt}")
    xsum8(p, v_sum); xsum_g(p, v_sum, vt)
    p(f"v_mul_f32 v{vt+1}, {1/192!r}, v{v_sum}".replace(repr(1/192), "0x3baaaaab"))
    p(f"v_sub_f32 v{vt}, v{vx}, v{vt+1}\nv_mul_f32 v{v_m2}, v{vt}, v{vt}")
    for j in range(1, 24):
        p(f"v_sub_f32 v{vt+2+(j&1)}, v{vx+j}, v{vt+1}\nv_fmac_f32 v{v_m2}, v{vt+2+(j&1)}, v{vt+2+(j&1)}")
    xsum8(p, v_m2); xsum_g(p, v_m2, vt)

def ln_finish(p, vx, vs, vo, vt):
    mean, a, b = vt, vt + 1, vt + 2
    p(f"""v_add_f32 v{mean}, v{vs}, v{vs+2}
    v_add_f32 v{mean}, v{mean}, v{vs+4}
    v_mul_f32 v{mean}, 0x3ae38e39, v{mean}
    v_add_f32 v{a}, v{vs+1}, v{vs+3}
    v_add_f32 v{a}, v{a}, v{vs+5}""")
    for w in range(3):
        p(f"""v_mul_f32 v{b}, 0x3baaaaab, v{vs+2*w}
        v_sub_f32 v{b}, v{b}, v{mean}
        v_mul_f32 v{b}, v{b}, v{b}
        v_fmac_f32 v{a}, 0x43400000, v{b}""")
    p(f"v_mul_f32 v{a}, 0x3ae38e39, v{a}")
    round_bf16(p, a)
    p(f"v_add_f32 v{a}, 0x3727c5ac, v{a}")
    round_bf16(p, a)
    p(f"v_sqrt_f32 v{a}, v{a}")
    round_bf16(p, a)
    p(f"v_rcp_f32 v{a}, v{a}")
    round_bf16(p, mean)
    for j in range(0, 24, 2):
        p(f"""v_sub_f32 v{vx+j}, v{vx+j}, v{mean}
        v_sub_f32 v{vx+j+1}, v{vx+j+1}, v{mean}
        v_cvt_pk_bf16_f32 v{b}, v{vx+j}, v{vx+j+1}
        v_lshlrev_b32 v{vx+j}, 16, v{b}
        v_and_b32 v{vx+j+1}, 0xffff0000, v{b}
        v_mul_f32 v{vx+j}, v{vx+j}, v{a}
        v_mul_f32 v{vx+j+1}, v{vx+j+1}, v{a}
        v_cvt_pk_bf16_f32 v{vo+j//2}, v{vx+j}, v{vx+j+1}""")

def ln_exchange_write(p, v_sum, v_lane, vt, lds_off):
    p(f"""v_and_b32 v{vt}, 7, v{v_lane}
    s_mul_i32 s46, s{S_WAVE}, 64
    v_lshl_add_u32 v{vt}, v{vt}, 3, s46
    ds_write_b64 v{vt}, v[{v_sum}:{v_sum+1}] offset:{lds_off}""")

def ln_exchange_read(p, vs, v_lane, vt, lds_off):
    p(f"v_and_b32 v{vt}, 7, v{v_lane}\nv_lshlrev_b32 v{vt}, 3, v{vt}")
    for w in range(3):
        p(f"ds_read_b64 v[{vs+2*w}:{vs+2*w+1}], v{vt} offset:{lds_off+64*w}")

def gen_prep(name, kidx=0):
    p = Prog()
    end = f"{name}_end"
    V_LANE, V_L16 = 1, 2
    prologue(p, end, sbase=98, code_pf=1)
    fin = p.label('fin')
    srd(p, S_X, P_X, XBYTES)
    p(f"""s_lshl_b32 s46, s2, 10
    s_add_u32 s46, s46, {FLAGS}
    v_lshlrev_b32 v5, 2, v0
    v_mov_b32 v6, 0
    buffer_store_dword v6, v5, s[{S_WS}:{S_WS+3}], s46 offen""")
    LDS_LN = 0
    VROW, VFR, VRAW, VX, VS, VO = 3, 4, 8, 20, 44, 52
    p(f"s_lshl_b32 s47, s{S_XCD}, 5\ns_add_u32 s47, s47, s{S_IDX}")
    l_noln = p.label("noln")
    ln_addr(p, 47, V_LANE, VROW, VFR, 5, 48)
    for i in range(3):
        p(f"buffer_load_dwordx4 v[{VRAW+4*i}:{VRAW+4*i+3}], v{VROW}, s[{S_X}:{S_X+3}], 0 offen offset:{128*i}")
    SB0, SB1, ST_ = 50, 68, 86
    p(f"""s_lshl_b32 s23, s2, 2
    s_add_u32 s23, s23, s{S_WAVE}
    s_mul_i32 s94, s{S_WAVE}, {2*9216}
    s_add_u32 s94, s94, 256
    s_add_u32 s95, s94, 9216""")
    ffn_unit_setup(p, 23, SB0, S_A, ST_)
    shuffle_dma(p, S_A, 18, 9, SB0 + U_ROW, SB0 + U_GRS, SB0 + U_HRS, SB0 + U_RS, 94, V_LANE, 64, "u0")
    l_no1 = p.label("no1")
    p(f"s_add_u32 s96, s23, 1024\ns_cmp_ge_u32 s96, 1728\ns_cbranch_scc1 {l_no1}")
    p.cond_begin()
    ffn_unit_setup(p, 96, SB1, S_O, ST_)
    shuffle_dma(p, S_O, 18, 9, SB1 + U_ROW, SB1 + U_GRS, SB1 + U_HRS, SB1 + U_RS, 95, V_LANE, 64, "u1")
    p.cond_end()
    p(f"{l_no1}:")
    for i in range(3): unpack8(p, VX + 8 * i, VRAW + 4 * i)
    ln_local_stats(p, VX, VS, VS + 1, 64)
    ln_exchange_write(p, VS, V_LANE, 64, LDS_LN)
    p.drain(vm=False)
    p("s_barrier")
    ln_exchange_read(p, VS, V_LANE, 64, LDS_LN)
    ln_finish(p, VX, VS, VO, 64)
    p(f"s_cmp_eq_u32 s{S_WAVE}, 3\ns_cbranch_scc1 {l_noln}")
    p.cond_begin()
    p(f"s_mov_b32 s46, {LB(0)+XN}")
    for i in range(3):
        if i == 2: p("s_add_u32 s46, s46, 4096")
        p(f"buffer_store_dwordx4 v[{VO+4*i}:{VO+4*i+3}], v{VFR}, s[{S_WS}:{S_WS+3}], s46 offen offset:{2048*(i&1)}")
    p.cond_end()
    p(f"{l_noln}:")
    ffn_unit_finish(p, SB0, 94, V_LANE, V_L16, 72, 64, "u0")
    l_no2, l_att = p.label("no2"), p.label("att")
    p(f"s_cmp_ge_u32 s96, 1728\ns_cbranch_scc1 {l_no2}")
    p.drain()
    ffn_unit_finish(p, SB1, 95, V_LANE, V_L16, 72, 64, "u1")
    p(f"{l_no2}:")
    p.drain()
    l_wo = p.label("wo")
    p(f"""s_cmp_lt_u32 s23, 628
    s_cbranch_scc1 {fin}
    s_sub_u32 s23, s23, 628
    s_cmp_ge_u32 s23, 288
    s_cbranch_scc1 {l_wo}""")
    qkv_unit(p, 23, 94, V_LANE, V_L16, 72, 64, ST_)
    p.drain()
    p(f"s_branch {fin}\n{l_wo}:\ns_sub_u32 s23, s23, 288")
    wo_unit(p, 23, 94, V_LANE, V_L16, 72, 64, ST_)
    p.drain()
    p(f"{fin}:")
    stamp(p, 1, 98); stamp_flush(p, kidx, 2, 98)
    p(f"{end}:\ns_endpgm")
    return kernel_text(name, p.finalize(), vgpr=152, accum=152), (256, 256, 8 * 9216 + 256)
```

```python
from fw import *
from layout import *

S_WS = 4
S_X  = 8
S_A  = 12
S_O  = 16
S_WAVE = 20
S_XCD = 21
S_IDX = 22
S_PTR = 24
P_X, P_WQKV, P_WO, P_WG, P_WU, P_WD, P_OUT, P_DBG, P_WS = 24, 26, 28, 32, 34, 36, 38, 40, 42
BF16_ONES = 0x3F803F80

def srd(p, s, ptr, nbytes):
    p(f"""s_mov_b32 s{s}, s{ptr}
    s_mov_b32 s{s+1}, s{ptr+1}
    s_mov_b32 s{s+2}, {nbytes:#x}
    s_mov_b32 s{s+3}, 0x20000""")

OPT = {}
STAMP = [False]
STAMPS = 0xF000000
def stamp_ins(k, base=72): return ins(f"{'s_memtime' if STAMP[0] == 2 else 's_memrealtime'} s[{base+2*k}:{base+2*k+1}]")
def stamp(p, k, base=72):
    if STAMP[0]: p.add(stamp_ins(k, base))
def stamp_flush(p, kidx, n, base=72):
    if not STAMP[0]: return
    l = p.label("nostamp")
    p.drain()
    p(f"s_cmp_lg_u32 s{S_WAVE}, 0\ns_cbranch_scc1 {l}\ns_lshl_b32 s23, s2, 7\ns_add_u32 s23, s23, {STAMPS+kidx*256*128}\ns_mov_b64 exec, 1\nv_mov_b32 v0, 0")
    for k in range(n):
        p(f"v_mov_b32 v2, s{base+2*k}\nv_mov_b32 v3, s{base+2*k+1}\nbuffer_store_dwordx2 v[2:3], v0, s[{S_WS}:{S_WS+3}], s23 offen offset:{8*k}")
    p.drain()
    p(f"{l}:")

def prologue(p, end_label, nwg=256, v_lane=1, v_l16=2, sbase=72, code_pf=0):
    p(f"s_cmp_ge_u32 s2, {nwg}\ns_cbranch_scc1 {end_label}")
    stamp(p, 0, sbase)
    p(f"""    s_load_dwordx16 s[24:39], s[0:1], 0
    s_load_dwordx4 s[40:43], s[0:1], 64
    v_lshrrev_b32 v{v_lane}, 6, v0
    s_and_b32 s{S_XCD}, s2, 7
    v_readfirstlane_b32 s{S_WAVE}, v{v_lane}
    s_lshr_b32 s{S_IDX}, s2, 3
    v_and_b32 v{v_lane}, 63, v0
    v_lshlrev_b32 v{v_l16}, 4, v{v_lane}""")
    if OPT.get("codepf") and code_pf:
        lpc = p.label("pc")
        p(f"v_lshlrev_b32 v3, 7, v0\ns_getpc_b64 s[{S_O}:{S_O+1}]\n{lpc}:")
        for k in range(code_pf):
            if k: p("v_add_u32 v3, 0x8000, v3")
            p(f"v_min_u32 v{4+k}, {end_label}-{lpc}, v3")
            p(f"global_load_dword v{4+k}, v{4+k}, s[{S_O}:{S_O+1}]")
    p.drain(vm=False)
    srd(p, S_WS, P_WS, WS_BYTES)

def magic(d, n):
    m = (65536 + d - 1) // d
    assert all((x * m) >> 16 == x // d for x in range(n)), (d, n)
    return m

def sdiv(p, sq, sx, d, n):
    p(f"s_mul_i32 s{sq}, s{sx}, {magic(d, n)}\ns_lshr_b32 s{sq}, s{sq}, 16")

def unpack8(p, dst, src):
    for j in range(4):
        p(f"v_lshlrev_b32 v{dst+2*j}, 16, v{src+j}")
        p(f"v_and_b32 v{dst+2*j+1}, 0xffff0000, v{src+j}")

def round_bf16(p, v, tmp=None):
    p(f"v_cvt_pk_bf16_f32 v{v}, v{v}, v{v}\nv_lshlrev_b32 v{v}, 16, v{v}")

def xsum_g(p, v, t):
    p(f"""v_mov_b32 v{t}, v{v}
    v_permlane16_swap_b32 v{v}, v{t}
    v_add_f32 v{v}, v{v}, v{t}
    v_mov_b32 v{t}, v{v}
    v_permlane32_swap_b32 v{v}, v{t}
    v_add_f32 v{v}, v{v}, v{t}""")

def xsum8(p, v):
    p(f"v_add_f32_dpp v{v}, v{v}, v{v} row_ror:8 row_mask:0xf bank_mask:0xf")
```

```python
import re

def regs_of(tok):
    tok = tok.strip()
    if tok.startswith("-"):
        tok = tok[1:]
    if tok.startswith("abs(") or tok.startswith("|"):
        tok = tok.strip("|").replace("abs(", "").rstrip(")")
    m = re.fullmatch(r"([vas])(\d+)", tok)
    if m:
        return {(m.group(1), int(m.group(2)))}
    m = re.fullmatch(r"([vas])\[(\d+):(\d+)\]", tok)
    if m:
        return {(m.group(1), i) for i in range(int(m.group(2)), int(m.group(3)) + 1)}
    if tok == "vcc":
        return {("s", "vcc")}
    if tok in ("exec", "exec_lo", "exec_hi"):
        return {("s", "exec")}
    if tok == "m0":
        return {("s", "m0")}
    return set()

TRANS = ("v_exp_f32", "v_log_f32", "v_rcp_f32", "v_rsq_f32", "v_sqrt_f32", "v_sin_f32", "v_cos_f32")

class I:
    __slots__ = ("text", "op", "kind", "dst", "src", "tag", "srcC", "srcAB", "data", "maybe", "passes")
    def __init__(self, text, tag=None):
        self.text = text.strip()
        self.tag = tag
        self.maybe = None
        body = self.text.split(";")[0].strip()
        parts = body.split(None, 1)
        op = parts[0]
        self.op = op
        rest = parts[1] if len(parts) > 1 else ""
        ops = [x.strip() for x in rest.split(",")] if rest else []
        mods = []
        if ops:
            last = ops[-1].split()
            ops[-1] = last[0] if last else ""
            mods = last[1:]
        R = [regs_of(o) for o in ops]
        U = lambda l: set().union(*l) if l else set()
        self.srcC = set(); self.srcAB = set(); self.data = set(); self.passes = 0
        if op.startswith("v_mfma"):
            self.kind = "mfma"; self.dst = R[0]; self.srcAB = R[1] | R[2]; self.srcC = R[3]; self.src = self.srcAB | self.srcC
            self.passes = {"v_mfma_f32_16x16x32_bf16": 4, "v_mfma_f32_32x32x16_bf16": 8, "v_mfma_f32_16x16x4_f32": 8}[op]
        elif op.startswith("v_cmp"):
            self.kind = "valu"; self.dst = set(R[0]); self.src = U(R[1:])
            if op.startswith("v_cmpx"): self.dst |= {("s", "exec")}
        elif op.startswith("v_permlane"):
            self.kind = "valu"; self.dst = R[0] | R[1]; self.src = R[0] | R[1]
        elif op.startswith(("v_fmac", "v_dot2c", "v_pk_fmac")):
            self.kind = "valu"; self.dst = R[0]; self.src = U(R)
        elif op.startswith(("v_add_co", "v_sub_co", "v_addc_co", "v_subb_co")):
            self.kind = "valu"; self.dst = R[0] | R[1]; self.src = U(R[2:])
        elif op.startswith("v_writelane"):
            self.kind = "valu"; self.dst = R[0]; self.src = U(R)
        elif op.startswith("v_"):
            self.kind = "valu"; self.dst = R[0] if R else set(); self.src = U(R[1:])
            if "row_" in rest or "quad_perm" in rest or "dpp" in op:
                self.src |= R[0]
        elif op.startswith(("ds_read", "ds_bpermute", "ds_permute", "ds_swizzle")):
            self.kind = "ds"; self.dst = R[0]; self.src = U(R[1:])
        elif op.startswith("ds_write"):
            self.kind = "ds"; self.dst = set(); self.src = U(R); self.data = U(R[1:])
        elif op.startswith("buffer_load") or op.startswith("global_load"):
            self.kind = "vmem"
            if "lds" in mods or "_lds_" in op:
                self.dst = set(); self.src = U(R) | {("s", "m0")}
            else:
                self.dst = R[0]; self.src = U(R[1:])
        elif op.startswith("buffer_store"):
            self.kind = "vmem"; self.dst = set(); self.src = U(R); self.data = R[0]
        elif op.startswith("global_store"):
            self.kind = "vmem"; self.dst = set(); self.src = U(R); self.data = R[1]
        elif op.startswith(("buffer_atomic", "global_atomic")):
            self.kind = "vmem"; self.src = U(R); self.dst = R[0] if "sc0" in mods else set()
        elif op.startswith(("buffer_inv", "buffer_wbl2")):
            self.kind = "vmem"; self.dst = set(); self.src = set()
        elif op.startswith(("s_load", "s_memtime", "s_memrealtime")):
            self.kind = "smem"; self.dst = R[0]; self.src = U(R[1:])
        elif op in ("s_waitcnt", "s_barrier", "s_nop", "s_endpgm", "s_setprio", "s_sleep", "s_branch") or op.startswith("s_cbranch"):
            self.kind = "ctl"; self.dst = set(); self.src = set()
            if op.startswith("s_cbranch_scc"): self.src = {("s", "scc")}
            if op.startswith("s_cbranch_vcc"): self.src = {("s", "vcc")}
            if op.startswith("s_cbranch_exec"): self.src = {("s", "exec")}
        elif op.startswith("s_cmp") or op.startswith("s_bitcmp"):
            self.kind = "salu"; self.dst = {("s", "scc")}; self.src = U(R)
        elif "saveexec" in op:
            self.kind = "salu"; self.dst = R[0] | {("s", "exec"), ("s", "scc")}; self.src = U(R[1:]) | {("s", "exec")}
        elif op.startswith("s_"):
            self.kind = "salu"; self.dst = set(R[0]); self.src = U(R[1:])
            if op.startswith(("s_addk", "s_mulk")): self.src |= R[0]
            if op.startswith(("s_addc", "s_subb", "s_cselect")): self.src |= {("s", "scc")}
            if not op.startswith(("s_mov", "s_mul", "s_cselect", "s_getreg", "s_getpc")): self.dst |= {("s", "scc")}
        else:
            raise ValueError("unknown instruction: " + text)
    def states(self):
        if self.op == "s_nop":
            return int(self.text.split()[1]) + 1
        return 1

class Label:
    def __init__(self, name): self.name = name
class Raw:
    def __init__(self, text): self.text = text
class WaitTag:
    def __init__(self, tag, cnt): self.tag = tag; self.cnt = cnt
class Drain:
    def __init__(self, vm=True, lg=True): self.vm = vm; self.lg = lg
class Forget:
    def __init__(self, vm=True, lg=True): self.vm = vm; self.lg = lg
class Cond:
    def __init__(self, begin): self.begin = begin

def hazard_need(prev, cur):
    n = 0
    pv = {r for r in prev.dst if r[0] in "va"}
    ps = {r for r in prev.dst if r[0] == "s"}
    if prev.kind == "valu":
        if cur.kind == "mfma" and (pv & cur.src): n = max(n, 2)
        if cur.kind == "mfma" and ("s", "exec") in ps: n = max(n, 4)
        if cur.kind == "vmem" and (ps & cur.src): n = max(n, 5)
        if cur.kind == "valu" and (ps & cur.src):
            n = max(n, 4 if cur.op.startswith(("v_readlane", "v_writelane")) else 2)
        if cur.kind == "valu" and ("s", "exec") in ps and cur.op.startswith(("v_readlane", "v_readfirstlane", "v_writelane", "v_permlane")): n = max(n, 4)
        if cur.kind == "valu" and (pv & cur.src):
            if cur.op.startswith(("v_readlane", "v_readfirstlane")): n = max(n, 1)
            if cur.op.startswith("v_permlane") or "row_" in cur.text or "quad_perm" in cur.text: n = max(n, 2)
            if prev.op.startswith(TRANS) and not cur.op.startswith(TRANS): n = max(n, 1)
            if prev.op.startswith("v_dot") and (prev.op != cur.op or (pv & (cur.src - cur.dst))): n = max(n, 3)
            if "op_sel" in prev.text or "sdwa" in prev.text: n = max(n, 1)
        if prev.op.startswith("v_dot") and cur.kind in ("valu", "mfma", "vmem", "ds") and prev.op != cur.op and (pv & (cur.src | cur.dst)): n = max(n, 3)
        if cur.kind == "salu" and (ps & cur.src) and prev.op.startswith(("v_readfirstlane", "v_readlane", "v_cmp")): n = max(n, 1)
        if cur.kind == "ctl" and (ps & cur.src): n = max(n, 5)
    if prev.kind == "mfma":
        sg = prev.op.endswith("x4_f32")
        p = prev.passes
        if cur.kind == "mfma":
            if pv & cur.srcAB: n = max(n, p + (2 if sg else 4))
            if pv & cur.srcC:
                if not (pv == cur.srcC and prev.op == cur.op): n = max(n, p + (0 if sg else 2))
            if (pv & cur.dst) and not (pv == cur.dst and prev.op == cur.op) : n = max(n, p + 2)
        elif cur.kind in ("valu", "vmem", "ds"):
            if pv & (cur.src | cur.dst): n = max(n, p + (2 if sg else 4))
        if cur.kind == "valu" and not sg and (prev.srcC & cur.dst): n = max(n, p - 1)
    if prev.kind == "vmem" and prev.data and ("x4" in prev.op or "x3" in prev.op):
        if prev.data & cur.dst: n = max(n, 2 if cur.kind in ("valu", "mfma") else 1)
    if prev.kind == "salu" and ("s", "m0") in prev.dst and cur.kind == "vmem" and ("s", "m0") in cur.src: n = max(n, 1)
    return n

class Prog:
    def __init__(self):
        self.items = []
        self.uid = 0
        self.stats = {"nops": 0, "waits": 0}
    def __call__(self, text, tag=None):
        for l in text.split("\n"):
            l = l.strip()
            if not l or l.startswith(";"):
                continue
            if l.endswith(":"):
                self.items.append(Label(l[:-1]))
            elif l.startswith("."):
                self.items.append(Raw(l))
            else:
                self.items.append(I(l, tag))
    def add(self, it):
        if isinstance(it, str): self(it)
        elif isinstance(it, (list, tuple)):
            for x in it: self.add(x)
        else: self.items.append(it)
    _gid = [0]
    def label(self, base):
        Prog._gid[0] += 1
        return f"L_{base}_{Prog._gid[0]}"
    def wait_vm(self, tag): self.items.append(WaitTag(tag, "vm"))
    def wait_lg(self, tag): self.items.append(WaitTag(tag, "lg"))
    def drain(self, vm=True, lg=True): self.items.append(Drain(vm, lg))
    def forget(self, vm=True, lg=True): self.items.append(Forget(vm, lg))
    def cond_begin(self): self.items.append(Cond(True))
    def cond_end(self): self.items.append(Cond(False))

    def finalize(self, verbose=False):
        out = []
        st = {"vm": [], "lg": [], "hists": [[]], "dead": False}
        labels_ahead = {}
        for it in self.items:
            if isinstance(it, Label): labels_ahead[it.name] = True
        open_lab = set()
        snaps = {}
        seq = [0]
        def emit(ins_):
            need = 0
            for hist in st["hists"]:
                dist = 0
                for q in reversed(hist):
                    h = hazard_need(q, ins_)
                    if h - dist > need: need = h - dist
                    dist += q.states()
                    if dist >= 24: break
            while need > 0:
                k = min(need, 16)
                nop = I(f"s_nop {k-1}")
                out.append("    " + nop.text)
                for hist in st["hists"]: hist.append(nop)
                need -= k
                self.stats["nops"] += 1
                if verbose: print("nop", k, "before", ins_.text)
            out.append("    " + ins_.text)
            for hist in st["hists"]:
                hist.append(ins_)
                if len(hist) > 60: del hist[:20]
            if len(st["hists"]) > 1 and all(h[-24:] == st["hists"][0][-24:] for h in st["hists"]): del st["hists"][1:]
        def count_after(q, idx):
            return sum(1 for e in q[idx + 1:] if e[1] <= open_lab)
        def do_wait(vidx, lidx):
            parts = []
            if vidx is not None:
                n = min(count_after(st["vm"], vidx), 63)
                parts.append(f"vmcnt({n})"); del st["vm"][:vidx + 1]
                if n == 0: st["vm"].clear()
            if lidx is not None:
                if any(e[2].kind == "smem" for e in st["lg"]): n = 0
                else: n = min(count_after(st["lg"], lidx), 15)
                del st["lg"][:lidx + 1]
                if n == 0: st["lg"].clear()
                parts.append(f"lgkmcnt({n})")
            if parts:
                emit(I("s_waitcnt " + " ".join(parts))); self.stats["waits"] += 1
        for it in self.items:
            if isinstance(it, Label):
                out.append(it.name + ":")
                labels_ahead.pop(it.name, None)
                open_lab.discard(it.name)
                if it.name in snaps:
                    srcs = snaps.pop(it.name)
                    if not st["dead"]: srcs = srcs + [st]
                    for k in ("vm", "lg"):
                        m = {e[0]: e for s in srcs for e in s[k]}
                        st[k] = [m[x] for x in sorted(m)]
                    st["hists"] = [list(h) for s in srcs for h in s["hists"]]
                st["dead"] = False
            elif isinstance(it, Raw):
                out.append(it.text)
            elif isinstance(it, Cond):
                pass
            elif isinstance(it, Forget):
                if it.vm: st["vm"].clear()
                if it.lg: st["lg"].clear()
            elif isinstance(it, Drain):
                parts = []
                if it.vm: parts.append("vmcnt(0)"); st["vm"].clear()
                if it.lg: parts.append("lgkmcnt(0)"); st["lg"].clear()
                emit(I("s_waitcnt " + " ".join(parts)))
            elif isinstance(it, WaitTag):
                q = st[it.cnt]
                idx = None
                for i, e in enumerate(q):
                    if e[2].tag == it.tag: idx = i
                if idx is not None:
                    do_wait(idx if it.cnt == "vm" else None, idx if it.cnt == "lg" else None)
            else:
                touch = it.src | it.dst
                vidx = lidx = None
                for i, e in enumerate(st["vm"]):
                    if e[2].dst & touch: vidx = i
                for i, e in enumerate(st["lg"]):
                    if e[2].dst & touch: lidx = i
                do_wait(vidx, lidx)
                if it.op == "s_waitcnt":
                    m = re.search(r"vmcnt\((\d+)\)", it.text)
                    if m and int(m.group(1)) == 0: st["vm"].clear()
                    m = re.search(r"lgkmcnt\((\d+)\)", it.text)
                    if m and int(m.group(1)) == 0: st["lg"].clear()
                emit(it)
                seq[0] += 1
                if it.kind == "vmem": st["vm"].append((seq[0], frozenset(open_lab), it))
                elif it.kind in ("ds", "smem"): st["lg"].append((seq[0], frozenset(open_lab), it))
                if it.op == "s_branch" or it.op.startswith("s_cbranch"):
                    tgt = it.text.split()[1]
                    if tgt in labels_ahead:
                        snaps.setdefault(tgt, []).append({"vm": list(st["vm"]), "lg": list(st["lg"]), "hists": [list(h[-30:]) for h in st["hists"]]})
                        open_lab.add(tgt)
                    elif it.tag != "ool":
                        assert not [e for e in st["vm"] if e[2].dst] and not [e for e in st["lg"] if e[2].dst], "loads pending at backward branch " + it.text
                    if it.op == "s_branch":
                        st["dead"] = True; st["vm"] = []; st["lg"] = []; st["hists"] = [[]]
                if it.op == "s_endpgm":
                    st["dead"] = True; st["vm"] = []; st["lg"] = []; st["hists"] = [[]]
        return "\n".join(out) + "\n"

def ins(text, tag=None):
    return I(text, tag)

class Stream:
    def __init__(self, name=""):
        self.q = []; self.name = name
    def add(self, item, earliest=0, deadline=10**9, tag=None, cost=1):
        if isinstance(item, str): item = I(item, tag)
        self.q.append([earliest, deadline, item, cost])

def _is_vm(item):
    if isinstance(item, (list, tuple)): return any(_is_vm(x) for x in item)
    return isinstance(item, I) and item.kind == "vmem"

def weave(p, backbone, streams, cap=2, vm_gap=4):
    n = len(backbone)
    pos = [0] * len(streams)
    for s in streams:
        d = 10**9
        for e in reversed(s.q):
            d = min(d, e[1]); e[1] = d
    last_vm = -10**9
    forced = 0
    for g in range(n + 1):
        used = 0
        while True:
            best = None
            for si, s in enumerate(streams):
                if pos[si] < len(s.q):
                    e = s.q[pos[si]]
                    if g < n:
                        if e[0] > g: continue
                        if e[1] > g:
                            if used + e[3] > cap: continue
                            if _is_vm(e[2]) and g - last_vm < vm_gap: continue
                    key = (0 if e[1] <= g + 1 else 1 if (_is_vm(e[2]) or getattr(e[2], "kind", "") == "salu") else 2, e[1])
                    if best is None or key < bkey:
                        best = si; bkey = key
            if best is None: break
            e = streams[best].q[pos[best]]
            if g < n and (used + e[3] > cap or (_is_vm(e[2]) and g - last_vm < vm_gap)): forced += 1
            if _is_vm(e[2]): last_vm = g
            p.add(e[2]); pos[best] += 1; used += e[3]
        if g < n: p.add(backbone[g])
    p.stats["forced"] = p.stats.get("forced", 0) + forced

def vr(b, n=1): return f"v{b}" if n == 1 else f"v[{b}:{b+n-1}]"
def ar(b, n=1): return f"a{b}" if n == 1 else f"a[{b}:{b+n-1}]"
def sr(b, n=1): return f"s{b}" if n == 1 else f"s[{b}:{b+n-1}]"

def kernel_text(name, body, vgpr=512, accum=256, sgpr=102):
    t = f".text\n.globl {name}\n.p2align 8\n.type {name},@function\n{name}:\n" + body
    t += f'''.section .rodata,"a"
.p2align 6
.amdhsa_kernel {name}
  .amdhsa_next_free_vgpr {vgpr}
  .amdhsa_next_free_sgpr {sgpr}
  .amdhsa_accum_offset {accum}
  .amdhsa_group_segment_fixed_size 0
  .amdhsa_kernarg_size 80
  .amdhsa_user_sgpr_count 2
  .amdhsa_user_sgpr_kernarg_segment_ptr 1
  .amdhsa_system_sgpr_workgroup_id_x 1
  .amdhsa_float_denorm_mode_32 3
.end_amdhsa_kernel
'''
    return t
```

```python
from fw import *
from layout import *

S_WS = 4
S_X  = 8
S_A  = 12
S_O  = 16
S_WAVE = 20
S_XCD = 21
S_IDX = 22
S_PTR = 24
P_X, P_WQKV, P_WO, P_WG, P_WU, P_WD, P_OUT, P_DBG, P_WS = 24, 26, 28, 32, 34, 36, 38, 40, 42
BF16_ONES = 0x3F803F80

def srd(p, s, ptr, nbytes):
    p(f"""s_mov_b32 s{s}, s{ptr}
    s_mov_b32 s{s+1}, s{ptr+1}
    s_mov_b32 s{s+2}, {nbytes:#x}
    s_mov_b32 s{s+3}, 0x20000""")

OPT = {}
STAMP = [False]
STAMPS = 0xF000000
def stamp_ins(k, base=72): return ins(f"{'s_memtime' if STAMP[0] == 2 else 's_memrealtime'} s[{base+2*k}:{base+2*k+1}]")
def stamp(p, k, base=72):
    if STAMP[0]: p.add(stamp_ins(k, base))
def stamp_flush(p, kidx, n, base=72, light=False, s_row=None):
    if not STAMP[0]: return
    l = p.label("nostamp")
    p.drain(vm=not light)
    p(f"s_cmp_lg_u32 s{S_WAVE}, 0\ns_cbranch_scc1 {l}\ns_lshl_b32 s23, s2, 7\ns_add_u32 s23, s23, {STAMPS+kidx*256*128}")
    if s_row is not None:
        p(f"s_cmp_lg_u32 s{s_row}, 0\ns_cselect_b32 s96, {3*256*128}, 0\ns_add_u32 s23, s23, s96")
    p("s_mov_b64 exec, 1")
    for k in range(n):
        p(f"v_mov_b32 v8, s{base+2*k}\nv_mov_b32 v9, s{base+2*k+1}\nbuffer_store_dwordx2 v[8:9], off, s[{S_WS}:{S_WS+3}], s23 offset:{8*k}")
    if OPT.get("dbgstamp") is not None:
        l2 = p.label("nodbg")
        sel = {0: ((0, 2), (1, 3), (4, 4), (8, 5)), 1: ((1, 6), (11, 7)), 2: ((2, 8),), 3: ((4, 9), (8, 10)), 5: ((3, 13),)}[kidx]
        p(f"s_cmp_lg_u32 s2, {OPT['dbgstamp']}\ns_cbranch_scc1 {l2}")
        if s_row is not None: p(f"s_cmp_lg_u32 s{s_row}, 0\ns_cselect_b32 s96, 20, 0\nv_mov_b32 v9, s96")
        else: p("v_mov_b32 v9, 0")
        for k, slot in sel:
            p(f"s_sub_u32 s96, s{base+2*k}, s98\nv_mov_b32 v8, s96\nglobal_store_dword v9, v8, s[{P_DBG}:{P_DBG+1}] offset:{4*slot}")
        p(f"{l2}:")
    p("s_mov_b64 exec, -1")
    if not light: p.drain()
    p(f"{l}:")

def prologue(p, end_label, nwg=256, v_lane=1, v_l16=2, sbase=72, code_pf=0, pf_reg=4, pf_end=None):
    p(f"s_cmp_ge_u32 s2, {nwg}\ns_cbranch_scc1 {end_label}")
    stamp(p, 0, sbase)
    p(f"""    s_load_dwordx16 s[24:39], s[0:1], 0
    s_load_dwordx4 s[40:43], s[0:1], 64
    v_lshrrev_b32 v{v_lane}, 6, v0
    s_and_b32 s{S_XCD}, s2, 7
    v_readfirstlane_b32 s{S_WAVE}, v{v_lane}
    s_lshr_b32 s{S_IDX}, s2, 3
    v_and_b32 v{v_lane}, 63, v0
    v_lshlrev_b32 v{v_l16}, 4, v{v_lane}""")
    if OPT.get("codepf") and code_pf:
        lpc = p.label("pc")
        p(f"""s_lshl_b32 s23, s{S_IDX}, 2
        s_add_u32 s23, s23, s{S_WAVE}
        s_mul_i32 s23, s23, 5
        v_add_lshl_u32 v{pf_reg}, v{v_lane}, s23, 7
        s_getpc_b64 s[{S_O}:{S_O+1}]
        {lpc}:
        v_min_u32 v{pf_reg}, {pf_end or end_label}-{lpc}, v{pf_reg}
        s_mov_b64 exec, 31
        global_load_dword v{pf_reg}, v{pf_reg}, s[{S_O}:{S_O+1}]
        s_mov_b64 exec, -1""")
    p.drain(vm=False)
    srd(p, S_WS, P_WS, WS_BYTES)

def magic(d, n):
    m = (65536 + d - 1) // d
    assert all((x * m) >> 16 == x // d for x in range(n)), (d, n)
    return m

def sdiv(p, sq, sx, d, n):
    p(f"s_mul_i32 s{sq}, s{sx}, {magic(d, n)}\ns_lshr_b32 s{sq}, s{sq}, 16")

def unpack8(p, dst, src):
    for j in range(4):
        p(f"v_lshlrev_b32 v{dst+2*j}, 16, v{src+j}")
        p(f"v_and_b32 v{dst+2*j+1}, 0xffff0000, v{src+j}")

def round_bf16(p, v, tmp=None):
    p(f"v_cvt_pk_bf16_f32 v{v}, v{v}, v{v}\nv_lshlrev_b32 v{v}, 16, v{v}")

def xsum_g(p, v, t):
    p(f"""v_mov_b32 v{t}, v{v}
    v_permlane16_swap_b32 v{v}, v{t}
    v_add_f32 v{v}, v{v}, v{t}
    v_mov_b32 v{t}, v{v}
    v_permlane32_swap_b32 v{v}, v{t}
    v_add_f32 v{v}, v{v}, v{t}""")

def xsum8(p, v):
    p(f"v_add_f32_dpp v{v}, v{v}, v{v} row_ror:8 row_mask:0xf bank_mask:0xf")

WSR = f"s[{S_WS}:{S_WS+3}]"
S_NONCE, S_LB, S_LF, S_CNT = 98, 100, 101, 97
SPIN = 0x40000

class Poll:
    ool = []
    def __init__(self, p, v_flag, v_addr, s_off, name):
        self.v, self.va, self.so = v_flag, v_addr, s_off
        self.slow, self.back, self.lp = p.label(name + "_slow"), p.label(name + "_back"), p.label(name + "_spin")
        Poll.ool.append(self)
    def ld(self): return f"buffer_load_dwordx2 v[{self.v}:{self.v+1}], v{self.va}, {WSR}, s{self.so} offen sc1"
    def cmp(self): return f"v_cmp_eq_u64 vcc, s[{S_NONCE}:{S_NONCE+1}], v[{self.v}:{self.v+1}]"
    def issue(self): return ins(self.ld())
    def check(self):
        return [ins(self.cmp()), ins("s_cmp_eq_u64 vcc, exec"), ins(f"s_cbranch_scc0 {self.slow}", "ool"), Label(self.back)]
    def both(self): return [self.issue()] + self.check()
    def slow_path(self, p):
        p.add(Raw(f"""{self.slow}:
    s_mov_b32 s{S_CNT}, {SPIN:#x}
{self.lp}:
    {self.ld()}
    s_waitcnt vmcnt(0)
    {self.cmp()}
    s_sub_u32 s{S_CNT}, s{S_CNT}, 1
    s_cbranch_scc1 {self.back}
    s_cmp_eq_u64 vcc, exec
    s_cbranch_scc1 {self.back}
    s_branch {self.lp}"""))

class NoncePoll(Poll):
    def ld(self): return f"global_load_dwordx2 v[{self.v}:{self.v+1}], v{self.va}, s[{P_DBG}:{P_DBG+1}] sc1"
    def cmp(self): return f"v_cmp_ne_u64 vcc, 0, v[{self.v}:{self.v+1}]"

def signal_items(s_addr, vt):
    return [ins(f"v_mov_b32 v{vt}, s{S_NONCE}"), ins(f"v_mov_b32 v{vt+1}, s{S_NONCE+1}"),
            [ins("s_mov_b64 exec, 1"), ins(f"buffer_store_dwordx2 v[{vt}:{vt+1}], off, {WSR}, s{s_addr} sc1"), ins("s_mov_b64 exec, -1")]]

def signal(p, s_addr, vt, tag=None):
    it = signal_items(s_addr, vt)
    p.add(it[:2])
    if tag: p.wait_vm(tag)
    else: p.drain(lg=False)
    p.add(it[2])

def lane_min8(p, vd, v_lane, n):
    p(f"v_min_u32 v{vd}, {n-1}, v{v_lane}\nv_lshlrev_b32 v{vd}, 3, v{vd}")
```

```python
from common import *
MF = "v_mfma_f32_16x16x32_bf16"
NEG_BIG = 0xF149F2CA

def attn_bias(p, S_AB):
    V_LANE = 1
    BO, BP, BP0 = 168, 172, 176
    p(f"""v_and_b32 v6, 15, v{V_LANE}
    v_lshrrev_b32 v7, 4, v{V_LANE}
    v_lshlrev_b32 v7, 2, v7
    v_sub_u32 v6, v6, v7
    v_mov_b32 v8, {NEG_BIG:#x}
    s_or_b32 s52, s{S_AB}, s{S_WAVE}
    s_cmp_eq_u32 s52, 0
    s_cselect_b64 s[56:57], -1, 0""")
    for r in range(4):
        p(f"""v_subrev_u32 v7, {r}, v6
        v_and_b32 v9, 0xfffffff1, v7
        v_cmp_eq_u32 vcc, 0, v9
        v_add_u32 v7, 16, v7
        v_and_b32 v9, 0xfffffff1, v7
        v_cndmask_b32_e64 v{BO+r}, v8, 0, vcc
        v_cmp_eq_u32 vcc, 0, v9
        v_cndmask_b32_e64 v{BP+r}, v8, 0, vcc
        v_cndmask_b32_e64 v{BP0+r}, v{BP+r}, v8, s[56:57]""")

def attn_part(p, l, S_T0, S_HP, EXB, sc):
    V_LANE, V_L16 = 1, 2
    ACC, HACC = 16, 80
    BO, BP, BP0 = 168, 172, 176
    KP, K0, K1 = 88, 94, 100
    VE, VO_, VR_ = 106, 112, 118
    Q = 124
    HT, HN = 140, 142
    def pack(d, s):
        p(f"v_cvt_pk_bf16_f32 v{d}, v{s}, v{s+1}\nv_cvt_pk_bf16_f32 v{d+1}, v{s+2}, v{s+3}")
    a_ = lambda tt, j: ACC + 32 * tt + 4 * j
    V_EX = 6
    p(f"""v_lshlrev_b32 v{V_EX}, 3, v{V_LANE}
    v_add_u32 v{V_EX}, {EXB}, v{V_EX}
    s_mul_i32 s52, s{S_WAVE}, 3072
    v_add_u32 v7, s52, v{V_EX}""")
    for tt, K in ((1, K1), (0, K0)):
        q = Q + 8 * tt
        pack(K, a_(tt, 2)); pack(K + 4, a_(tt, 3))
        p(f"""v_cvt_pk_bf16_f32 v{q+2}, v{a_(tt,4)}, v{a_(tt,4)+1}
        v_cvt_pk_bf16_f32 v{q+5}, v{a_(tt,4)+2}, v{a_(tt,4)+3}
        v_mov_b32 v{K+2}, 0
        v_mov_b32 v{K+3}, 0""")
        for j, V in ((5, VE), (6, VO_), (7, VR_)): pack(V + 2 + 2 * tt, a_(tt, j))
        p(f"v_permlane32_swap_b32 v{q+2}, v{K+2}\nv_permlane32_swap_b32 v{q+5}, v{K+3}")
        if tt == 1:
            lw3 = p.label("w3")
            p(f"s_cmp_eq_u32 s{S_WAVE}, 3\ns_cbranch_scc1 {lw3}")
            for f, r in enumerate((K1, K1 + 2, K1 + 4, VE + 4, VO_ + 4, VR_ + 4)):
                p(f"ds_write_b64 v7, v[{r}:{r+1}] offset:{3072+512*f}")
            p(f"{lw3}:")
            pack(HT, HACC); pack(HN, HACC + 4)
            lsk = p.label("noswap")
            p(f"""s_min_u32 s52, s{S_WAVE}, 2
            s_lshl_b32 s53, s52, 1
            s_cmp_ge_u32 s{S_WAVE}, 2
            s_cselect_b32 s53, 1, s53
            s_lshl_b32 s53, s53, 9
            s_add_u32 s52, s52, 3
            s_lshl_b32 s52, s52, 9
            v_add_u32 v8, s53, v{V_EX}
            v_add_u32 v9, s52, v{V_EX}
            s_cmp_lt_u32 s{S_WAVE}, 2
            s_cbranch_scc1 {lsk}
            v_mov_b32 v10, 0
            v_mov_b32 v11, 0
            s_nop 1
            v_permlane32_swap_b32 v{HT}, v10
            v_permlane32_swap_b32 v{HT+1}, v11
            v_mov_b32 v{HT}, v10
            v_mov_b32 v{HT+1}, v11
            {lsk}:
            ds_write_b64 v8, v[{HT}:{HT+1}]
            ds_write_b64 v9, v[{HN}:{HN+1}]""")
        pack(q, a_(tt, 0)); pack(q + 6, a_(tt, 1))
        p(f"v_mov_b32 v{q+3}, 0\nv_mov_b32 v{q+4}, 0")
    ONE = 12
    for j in range(4): p(f"v_mov_b32 v{ONE+j}, {BF16_ONES:#x}")
    SS = 16
    th = [(tt, h) for tt in (1, 0) for h in range(2)]
    sreg = lambda tt, h: SS + 16 * tt + 8 * h
    Kop = lambda K, h: vr(K + 2 * h, 4)
    Qop = lambda tt, h: vr(Q + 8 * tt + 4 * h, 4)
    for h in range(2):
        p(f"{MF} {vr(sreg(1,h),4)}, {Kop(K0,h)}, {Qop(1,h)}, {vr(BP,4)}")
        p(f"{MF} {vr(sreg(1,h)+4,4)}, {Kop(K1,h)}, {Qop(1,h)}, {vr(BO,4)}")
        p(f"{MF} {vr(sreg(0,h)+4,4)}, {Kop(K0,h)}, {Qop(0,h)}, {vr(BO,4)}")
    p.drain(vm=False)
    p("s_barrier")
    for f, r in enumerate((KP, KP + 2, KP + 4, VE, VO_, VR_)):
        p(f"ds_read_b64 v[{r}:{r+1}], v7 offset:{512*f}")
    MX, TMP, PP, OO = 48, 52, 56, 180
    p(f"s_mov_b32 s52, 0x3eae1a93")
    def softmax(group):
        for k, (tt, h) in group:
            s = sreg(tt, h)
            p(f"v_max3_f32 v{MX+k}, v{s}, v{s+1}, v{s+2}")
        for j in (3, 5):
            for k, (tt, h) in group:
                s = sreg(tt, h)
                p(f"v_max3_f32 v{MX+k}, v{MX+k}, v{s+j}, v{s+j+1}")
        for k, (tt, h) in group:
            p(f"v_max_f32 v{MX+k}, v{MX+k}, v{sreg(tt,h)+7}")
        for op in ("v_permlane16_swap_b32", "v_permlane32_swap_b32"):
            for k, _ in group: p(f"v_mov_b32 v{TMP+k}, v{MX+k}")
            for k, _ in group: p(f"{op} v{MX+k}, v{TMP+k}")
            for k, _ in group: p(f"v_max_f32 v{MX+k}, v{MX+k}, v{TMP+k}")
        for k, _ in group: p(f"v_mul_f32 v{MX+k}, s52, v{MX+k}")
        for j in range(8):
            for k, (tt, h) in group:
                s = sreg(tt, h) + j
                p(f"v_fma_f32 v{s}, v{s}, s52, -v{MX+k}")
        for j in range(8):
            for k, (tt, h) in group:
                s = sreg(tt, h) + j
                p(f"v_exp_f32 v{s}, v{s}")
        for j in range(4):
            for k, (tt, h) in group:
                s = sreg(tt, h) + 2 * j
                p(f"v_cvt_pk_bf16_f32 v{PP+4*k+j}, v{s}, v{s+1}")
        for k, (tt, h) in group:
            o = OO + 12 * k
            p(f"{MF} {vr(o+8,4)}, {vr(ONE,4)}, {vr(PP+4*k,4)}, 0")
            p(f"{MF} {vr(o,4)}, {vr((VE, VO_)[h]+2*tt,4)}, {vr(PP+4*k,4)}, 0")
            p(f"{MF} {vr(o+4,4)}, {vr(VR_+2*tt,4)}, {vr(PP+4*k,4)}, 0")
    g1 = [(0, (1, 0)), (1, (1, 1))]
    g0 = [(2, (0, 0)), (3, (0, 1))]
    for h in range(2):
        p(f"{MF} {vr(sreg(0,h),4)}, {Kop(KP,h)}, {Qop(0,h)}, {vr(BP0,4)}")
    softmax(g1 + g0)
    OP, RP = 72, 80
    p(f"""s_lshl_b32 s53, s{S_T0}, 4
    s_add_u32 s53, s53, s{S_HP}
    s_lshl_b32 s54, s53, 10
    s_add_u32 s54, s54, {LB(l)+OM}
    s_lshl_b32 s55, s53, 7
    s_add_u32 s55, s55, {LB(l)+OR_-128}
    v_lshlrev_b32 v6, 3, v{V_LANE}""")
    for k, (tt, h) in g1 + g0:
        o = OO + 12 * k
        p(f"v_rcp_f32 v{o+8}, v{o+8}")
    for k, (tt, h) in g1 + g0:
        o = OO + 12 * k
        for j in range(4): p(f"v_mul_f32 v{o+j}, v{o+j}, v{o+8}")
        for j in range(2): p(f"v_mul_f32 v{o+4+2*h+j}, v{o+4+2*h+j}, v{o+8}")
        pack(OP + 4 * tt + 2 * h, o)
        p(f"v_cvt_pk_bf16_f32 v{RP+2*tt+h}, v{o+4+2*h}, v{o+5+2*h}")
        if h == 1:
            p(f"s_add_u32 s53, s54, {tt*16*1024}")
            p(f"buffer_store_dwordx4 {vr(OP+4*tt,4)}, v{V_L16}, s[{S_WS}:{S_WS+3}], s53 offen{sc}", tag="ost")
    p("s_mov_b32 exec_lo, 0xffff0000\ns_mov_b32 exec_hi, 0")
    for tt in range(2):
        p(f"buffer_store_dwordx2 {vr(RP+2*tt,2)}, v6, s[{S_WS}:{S_WS+3}], s55 offen offset:{tt*16*128}{sc}", tag="ost")
    p("s_mov_b64 exec, -1")

def qkv_phase(p, l, sc="", ld=""):
    V_LANE, V_L16 = 1, 2
    V_W, V_HT, V_HN = 3, 4, 5
    ACC, HACC, WB, HB_ = 16, 80, 88, 144
    S_AB, S_HP, S_T0, S_SRC0, S_SRC1, S_STR1, S_M0, S_XS = 44, 45, 46, 47, 48, 49, 50, 51
    p(f"""s_lshr_b32 s{S_AB}, s{S_IDX}, 4
    s_lshl_b32 s52, s{S_XCD}, 1
    s_add_u32 s{S_AB}, s{S_AB}, s52
    s_and_b32 s{S_HP}, s{S_IDX}, 15
    s_lshl_b32 s{S_T0}, s{S_AB}, 3
    s_mul_i32 s{S_SRC0}, s{S_HP}, {126*1024}
    s_lshl_b32 s{S_M0}, s{S_WAVE}, 11
    s_add_u32 s{S_SRC0}, s{S_SRC0}, s{S_M0}
    s_add_u32 s{S_SRC0}, s{S_SRC0}, {WQ}
    s_add_u32 s{S_SRC1}, s{S_SRC0}, 1024
    s_max_u32 s52, s{S_T0}, 1
    s_sub_u32 s52, s52, 1
    s_mul_i32 s52, s52, {18*1024}
    s_add_u32 s52, s52, {LB(l)+XN}
    s_cmp_eq_u32 s{S_WAVE}, 3
    s_cselect_b32 s{S_SRC1}, s52, s{S_SRC1}
    s_mov_b32 s{S_STR1}, {7*1024}
    s_cselect_b32 s{S_STR1}, 1024, s{S_STR1}
    s_lshl_b32 s52, s{S_WAVE}, 1
    s_add_u32 s{S_T0}, s{S_T0}, s52
    s_mul_i32 s{S_XS}, s{S_T0}, {18*1024}
    s_add_u32 s{S_XS}, s{S_XS}, {LB(l)+XN}""")
    def dma(c):
        r = [ins(f"s_mov_b32 m0, s{S_M0}"),
             ins(f"buffer_load_dwordx4 v{V_L16}, s[{S_WS}:{S_WS+3}], s{S_SRC0} offen lds", f"g{c//3}"),
             ins(f"s_add_u32 m0, s{S_M0}, 1024"),
             ins(f"buffer_load_dwordx4 v{V_L16}, s[{S_WS}:{S_WS+3}], s{S_SRC1} offen{ld} lds", f"g{c//3}"),
             ins(f"s_add_u32 s{S_M0}, s{S_M0}, 8192"),
             ins(f"s_add_u32 s{S_SRC0}, s{S_SRC0}, {7*1024}"),
             ins(f"s_add_u32 s{S_SRC1}, s{S_SRC1}, s{S_STR1}")]
        return r
    def xload(c):
        r = []
        for tt in range(2):
            off = tt * 18 * 1024 + c * 1024
            r.append(ins(f"s_add_u32 s52, s{S_XS}, {off}"))
            r.append(ins(f"buffer_load_dwordx4 a[{72*tt+4*c}:{72*tt+4*c+3}], v{V_L16}, s[{S_WS}:{S_WS+3}], s52 offen{ld}"))
        return r
    for c in range(12):
        p.add(dma(c)); p.add(xload(c))
    p(f"""s_min_u32 s52, s{S_WAVE}, 2
    s_add_u32 s53, s52, 2
    s_add_u32 s54, s52, 4
    s_cmp_ge_u32 s{S_WAVE}, 2
    s_cselect_b32 s53, 6, s53
    s_lshl_b32 s53, s53, 10
    s_lshl_b32 s54, s54, 10
    v_mov_b32 v{V_W}, v{V_L16}
    v_add_u32 v{V_HT}, s53, v{V_L16}
    v_add_u32 v{V_HN}, s54, v{V_L16}""")
    BO, BP, BP0 = 168, 172, 176
    attn_bias(p, S_AB)
    acc = lambda tt, j: vr(ACC + 32 * tt + 4 * j, 4)
    wf = lambda c, t: vr(WB + 28 * (c & 1) + 4 * t, 4)
    hf = lambda c, j: vr(HB_ + 12 * (c & 1) + 4 * j, 4)
    xf = lambda tt, c: ar(72 * tt + 4 * c, 4)
    def reads(c):
        o = (c & 7) * 8192
        r = []
        if c in (8, 16):
            r += [f"v_add_u32 v{v}, 0x10000, v{v}" for v in (V_W, V_HT, V_HN)]
        r += [f"ds_read_b128 {wf(c, t)}, v{V_W} offset:{o+1024*t}" for t in (0, 1, 2, 3, 6, 4, 5)]
        r += [f"ds_read_b128 {hf(c, 0)}, v{V_W} offset:{o+7168}", f"ds_read_b128 {hf(c, 1)}, v{V_HT} offset:{o}", f"ds_read_b128 {hf(c, 2)}, v{V_HN} offset:{o}"]
        return r
    p.wait_vm("g0"); p("s_barrier"); stamp(p, 1)
    p.add(reads(0))
    bb = []; sr_ = Stream(); sl = Stream()
    for c in range(18):
        g0 = len(bb)
        C = lambda d: "0" if c == 0 else d
        for j, t in enumerate((0, 1, 2, 3, 6)):
            for tt in range(2): bb.append(ins(f"{MF} {acc(tt, j)}, {wf(c, t)}, {xf(tt, c)}, {C(acc(tt, j))}"))
        for j, t in ((7, 6), (5, 4), (6, 5)):
            for tt in range(2): bb.append(ins(f"{MF} {acc(tt, j)}, {xf(tt, c)}, {wf(c, t)}, {C(acc(tt, j))}"))
        bb.append(ins(f"{MF} {vr(HACC, 4)}, {hf(c, 1)}, {hf(c, 0)}, {C(vr(HACC, 4))}"))
        bb.append(ins(f"{MF} {vr(HACC+4, 4)}, {hf(c, 0)}, {hf(c, 2)}, {C(vr(HACC+4, 4))}"))
        if c + 1 < 18:
            if (c + 1) % 3 == 0:
                sr_.add(WaitTag(f"g{(c+1)//3}", "vm"), g0 + 1, g0 + 1)
                sr_.add("s_barrier", g0 + 1, g0 + 1)
            for k, r in enumerate(reads(c + 1)):
                sr_.add(r, g0 + 1 + k, g0 + 14)
        if c < 6:
            for it in dma(12 + c) + xload(12 + c): sl.add(it, g0)
    weave(p, bb, [sr_, sl], cap=2)
    stamp(p, 2)
    attn_part(p, l, S_T0, S_HP, 147456, sc)

def gen_qkv(name, l, kidx=0):
    p = Prog(); end = f"{name}_end"
    prologue(p, end, code_pf=1)
    qkv_phase(p, l)
    stamp(p, 3); p.drain(); stamp(p, 4); stamp_flush(p, kidx, 5)
    p(f"{end}:\ns_endpgm")
    return kernel_text(name, p.finalize(), vgpr=256 + 144, accum=256), (256, 256, 147456 + 5 * 3072)

def wo_setup(p, l):
    V_LANE, V_L16 = 1, 2
    S_TB, S_CG, S_T, S_SRC, S_M0 = 44, 45, 46, 47, 48
    sdiv(p, S_TB, S_IDX, 6, 32)
    p(f"""s_mul_i32 s52, s{S_TB}, 6
    s_sub_u32 s{S_CG}, s{S_IDX}, s52
    s_lshl_b32 s52, s{S_XCD}, 2
    s_add_u32 s{S_TB}, s{S_TB}, s52
    s_lshl_b32 s{S_T}, s{S_TB}, 2
    s_add_u32 s{S_T}, s{S_T}, s{S_WAVE}
    s_mul_i32 s{S_SRC}, s{S_CG}, {108*1024}
    s_mul_i32 s{S_M0}, s{S_WAVE}, {3*1024}
    s_add_u32 s{S_SRC}, s{S_SRC}, s{S_M0}
    s_add_u32 s{S_SRC}, s{S_SRC}, {WOS}
    s_lshl_b32 s49, s{S_T}, 14
    s_add_u32 s49, s49, {LB(l)+OM}
    s_lshl_b32 s50, s{S_T}, 11
    s_add_u32 s50, s50, {LB(l)+OR_}
    v_and_b32 v3, 15, v{V_LANE}
    v_lshrrev_b32 v4, 4, v{V_LANE}
    v_lshlrev_b32 v5, 3, v3
    v_lshl_add_u32 v5, v4, 8, v5
    s_lshl_b32 s52, s{S_T}, 4
    v_add_u32 v6, s52, v3
    v_lshlrev_b32 v7, 3, v6
    v_mul_u32_u24 v6, 1152, v6
    v_lshl_add_u32 v6, v4, 4, v6
    s_mul_i32 s51, s{S_CG}, 192""")
    if l == 0: srd(p, S_X, P_X, XBYTES)
    else:
        p(f"s_add_u32 s{S_X}, s{P_WS}, {LB(0)+X2R}\ns_addc_u32 s{S_X+1}, s{P_WS+1}, 0\ns_mov_b32 s{S_X+2}, {XBYTES:#x}\ns_mov_b32 s{S_X+3}, 0x20000")

def wo_wdma(p):
    V_L16, S_SRC, S_M0 = 2, 47, 48
    for g in range(9):
        p(f"s_mov_b32 m0, s{S_M0}")
        for j in range(3):
            p(f"buffer_load_dwordx4 v{V_L16}, s[{S_WS}:{S_WS+3}], s{S_SRC} offen offset:{1024*j} lds", tag="wo_w")
        p(f"s_add_u32 s{S_M0}, s{S_M0}, {12*1024}\ns_add_u32 s{S_SRC}, s{S_SRC}, {12*1024}")

def wo_main(p, l, sc, ld):
    V_LANE, V_L16 = 1, 2
    S_TB, S_CG, S_T, S_SRC, S_M0 = 44, 45, 46, 47, 48
    OF, ACC, WB, RES = 16, 88, 112, 160
    for c in range(18):
        if c < 16:
            if c % 4 == 0 and c: p("s_add_u32 s49, s49, 4096")
            p(f"buffer_load_dwordx4 {vr(OF+4*c,4)}, v{V_L16}, s[{S_WS}:{S_WS+3}], s49 offen offset:{1024*(c&3)}{ld}")
        else:
            for hh in range(2):
                p(f"buffer_load_dwordx2 {vr(OF+4*c+2*hh,2)}, v5, s[{S_WS}:{S_WS+3}], s50 offen offset:{1024*(c-16)+128*hh}{ld}")
    for j in range(3):
        p(f"buffer_load_dwordx4 {vr(RES+4*j,4)}, v6, s[{S_X}:{S_X+3}], s51 offen offset:{64*j}{ld if l else ''}")
    V_W = 8
    p(f"v_mov_b32 v{V_W}, v{V_L16}")
    NB = 12
    wf = lambda s: vr(WB + 4 * (s % NB), 4)
    def read(s):
        r = []
        if s == 60: r.append(f"v_add_u32 v{V_W}, {60*1024}, v{V_W}")
        return r + [f"ds_read_b128 {wf(s)}, v{V_W} offset:{(s%60)*1024}"]
    p.wait_vm("wo_w"); p("s_barrier"); stamp(p, 6)
    for s in range(10): p.add(read(s))
    bb = []; sr_ = Stream()
    for s in range(108):
        c, t = divmod(s, 6)
        bb.append(ins(f"{MF} {vr(ACC+4*t,4)}, {wf(s)}, {vr(OF+4*c,4)}, {'0' if c == 0 else vr(ACC+4*t,4)}"))
        if s + 10 < 108:
            for r in read(s + 10): sr_.add(r, s + 1, s + 1)
    weave(p, bb, [sr_], cap=2)
    stamp(p, 7)
    X, PK = 16, 40
    for j in range(3): unpack8(p, X + 8 * j, RES + 4 * j)
    for e in range(24): p(f"v_add_f32 v{X+e}, v{X+e}, v{ACC+e}")
    p(f"""s_mul_i32 s52, s{S_T}, 18
    s_mul_i32 s53, s{S_CG}, 3
    s_add_u32 s52, s52, s53
    s_lshl_b32 s52, s52, 10
    s_add_u32 s52, s52, {LB(l)+X1}""")
    for j in range(3):
        for e in range(4): p(f"v_cvt_pk_bf16_f32 v{PK+4*j+e}, v{X+8*j+2*e}, v{X+8*j+2*e+1}")
        p(f"buffer_store_dwordx4 {vr(PK+4*j,4)}, v{V_L16}, s[{S_WS}:{S_WS+3}], s52 offen offset:{1024*j}{sc}", tag="x1st")
    for j in range(3): unpack8(p, X + 8 * j, PK + 4 * j)
    SM, M2, T = 56, 57, 58
    p(f"v_add_f32 v{SM}, v{X}, v{X+1}\nv_add_f32 v{T}, v{X+2}, v{X+3}")
    for j in range(4, 24, 2):
        p(f"v_add_f32 v{SM}, v{SM}, v{X+j}\nv_add_f32 v{T}, v{T}, v{X+j+1}")
    p(f"v_add_f32 v{SM}, v{SM}, v{T}")
    xsum_g(p, SM, T)
    p(f"v_mul_f32 v{T+1}, 0x3c2aaaab, v{SM}")
    p(f"v_sub_f32 v{T}, v{X}, v{T+1}\nv_mul_f32 v{M2}, v{T}, v{T}")
    for j in range(1, 24):
        p(f"v_sub_f32 v{T+2+(j&1)}, v{X+j}, v{T+1}\nv_fmac_f32 v{M2}, v{T+2+(j&1)}, v{T+2+(j&1)}")
    xsum_g(p, M2, T)
    p(f"""s_lshl_b32 s52, s{S_CG}, 14
    s_add_u32 s52, s52, {LB(l)+ST}
    s_mov_b32 exec_lo, 0xffff
    s_mov_b32 exec_hi, 0
    buffer_store_dwordx2 v[{SM}:{M2}], v7, s[{S_WS}:{S_WS+3}], s52 offen{sc}
    s_mov_b64 exec, -1""", tag="x1st")


def wo_phase(p, l, sc="", ld=""):
    wo_setup(p, l); wo_wdma(p); wo_main(p, l, sc, ld)

def colsum_task(p, s_task, sc="", ld=""):
    V_LANE, V_L16 = 1, 2
    p(f"""s_mul_i32 s44, s{s_task}, {18*576}
    s_add_u32 s44, s44, {CSP}
    s_lshr_b32 s45, s{s_task}, 1
    s_mul_i32 s45, s45, 1152
    s_and_b32 s46, s{s_task}, 1
    s_lshl_b32 s46, s46, 6
    s_add_u32 s45, s45, s46
    s_add_u32 s45, s45, {CSF}
    v_lshrrev_b32 v3, 2, v{V_LANE}
    v_lshlrev_b32 v3, 7, v3
    v_and_b32 v4, 3, v{V_LANE}
    v_lshl_add_u32 v3, v4, 4, v3
    s_mov_b32 exec_hi, 15""")
    for c in range(18):
        if c and c % 6 == 0: p(f"s_add_u32 s44, s44, {6*576}")
        p(f"buffer_load_dwordx4 {vr(8+4*c,4)}, v{V_L16}, s[{S_WS}:{S_WS+3}], s44 offen offset:{(c%6)*576}{ld}")
    for c in range(1, 18):
        for j in range(4): p(f"v_add_f32 v{8+j}, v{8+j}, v{8+4*c+j}")
    p(f"buffer_store_dwordx4 v[8:11], v3, s[{S_WS}:{S_WS+3}], s45 offen{sc}\ns_mov_b64 exec, -1")

def gen_wo(name, l, kidx=0):
    p = Prog(); end = f"{name}_end"
    prologue(p, end, code_pf=1)
    l_cs = p.label("cs")
    p(f"s_cmp_ge_u32 s{S_IDX}, 24\ns_cbranch_scc1 {l_cs if l == 0 else end}")
    wo_phase(p, l)
    stamp(p, 3); p.drain(); stamp(p, 4); stamp_flush(p, kidx, 5)
    if l == 0:
        p.drain()
        p(f"""s_branch {end}
        {l_cs}:
        s_cmp_lg_u32 s{S_WAVE}, 0
        s_cbranch_scc1 {end}
        s_lshl_b32 s23, s{S_XCD}, 3
        s_add_u32 s23, s23, s{S_IDX}
        s_sub_u32 s23, s23, 24""")
        colsum_task(p, 23)
    p(f"{end}:\ns_endpgm")
    return kernel_text(name, p.finalize(), vgpr=176, accum=176), (256, 256, 108 * 1024)
```

```python
from common import *
from k_prep import ln_addr, ln_local_stats, ln_finish, ln_exchange_write, ln_exchange_read
MF = "v_mfma_f32_16x16x32_bf16"
RING = 36 * 1024
LDS_CS = 4 * RING

from fw import _is_vm as _isvm
DBG = set()
def ffn_phase(p, sc=" sc1", ld=" sc1"):
    if "plain" in DBG: sc = ""
    scp = sc
    rr = OPT.get("r", 1)
    V_LANE, V_L16, V_L8, V_W, V_CS, V_T0, V_T1 = 1, 2, 3, 4, 5, 6, 7
    WB, XO, ACA, ACB, NM, RS2, CS, TMP, HO, H8 = 8, 32, 64, 96, 128, 132, 136, 152, 176, 240
    ACX = 208
    S_RB, S_Q, S_M, S_SL, S_SRC, S_M0, S_XS, S_H, S_FL, S_P, S_T, S_R = 44, 45, 46, 47, 48, 49, 50, 51, 52, 53, 54, 56
    S_TMP, S_TMP2, S_LASTSRC, S_LASTM0, S_FW = 60, 61, 62, 63, 64
    p("s_barrier")
    p(f"""s_lshr_b32 s{S_RB}, s{S_IDX}, {5-rr}
    s_and_b32 s{S_TMP}, s{S_XCD}, {7 & ~((1 << rr) - 1)}
    s_add_u32 s{S_RB}, s{S_RB}, s{S_TMP}
    s_and_b32 s{S_TMP}, s{S_XCD}, {(1 << rr) - 1}
    s_lshl_b32 s{S_TMP}, s{S_TMP}, {5-rr}
    s_and_b32 s{S_SL}, s{S_IDX}, {(1 << (5-rr)) - 1}
    s_add_u32 s{S_SL}, s{S_SL}, s{S_TMP}
    s_lshl_b32 s{S_FW}, s{S_SL}, 9
    s_add_u32 s{S_FW}, s{S_FW}, {FW}""")
    lane_min8(p, 0, V_LANE, 36)
    pw = Poll(p, V_T0, 0, S_FW, "pw")
    p.add(pw.issue())
    p(f"""s_lshr_b32 s{S_Q}, s{S_SL}, 2
    s_and_b32 s{S_M}, s{S_SL}, 3
    s_mul_i32 s{S_SRC}, s{S_SL}, {486*1024}
    s_add_u32 s{S_SRC}, s{S_SRC}, {WF}
    s_mul_i32 s{S_LASTM0}, s{S_WAVE}, 9
    s_lshr_b32 s{S_LASTM0}, s{S_LASTM0}, 1
    s_lshl_b32 s{S_LASTM0}, s{S_LASTM0}, 10
    s_add_u32 s{S_LASTSRC}, s{S_SRC}, s{S_LASTM0}
    s_mul_i32 s{S_M0}, s{S_WAVE}, {9*1024}
    s_add_u32 s{S_SRC}, s{S_SRC}, s{S_M0}
    s_lshl_b32 s{S_T}, s{S_RB}, 4
    s_lshl_b32 s{S_TMP}, s{S_WAVE}, 2
    s_add_u32 s{S_T}, s{S_T}, s{S_TMP}
    s_mul_i32 s{S_XS}, s{S_T}, {18*1024}
    s_mul_i32 s{S_P}, s{S_Q}, {XBYTES}
    s_add_u32 s{S_P}, s{S_P}, s{S_XS}
    s_add_u32 s{S_XS}, s{S_XS}, {X1}
    s_add_u32 s{S_XS}, s{S_XS}, s{S_LB}
    s_lshr_b32 s{S_TMP}, s{S_M}, 1
    s_mul_i32 s{S_TMP}, s{S_TMP}, {9*1024}
    s_add_u32 s{S_P}, s{S_P}, s{S_TMP}
    s_add_u32 s{S_P}, s{S_P}, {PB}
    s_add_u32 s{S_P}, s{S_P}, s{S_LB}
    v_lshlrev_b32 v{V_L8}, 3, v{V_LANE}
    v_mov_b32 v{V_W}, v{V_L16}""")
    def slot_dma(k):
        r = []
        if k < 13:
            for g in range(3):
                r.append(ins(f"s_add_u32 m0, s{S_M0}, {(k&3)*RING+4096*g}"))
                r.append(ins(f"s_add_u32 s{S_TMP2}, s{S_SRC}, {k*RING+4096*g}"))
                for j in range(4 if g < 2 else 1):
                    r.append(ins(f"buffer_load_dwordx4 v{V_L16}, {WSR}, s{S_TMP2} offen offset:{1024*j} lds", f"slot{k}"))
        else:
            for g in range(2):
                r.append(ins(f"s_add_u32 m0, s{S_LASTM0}, {(k&3)*RING+4096*g}"))
                r.append(ins(f"s_add_u32 s{S_TMP2}, s{S_LASTSRC}, {k*RING+4096*g}"))
                for j in range(4 if g < 1 else 1):
                    r.append(ins(f"buffer_load_dwordx4 v{V_L16}, {WSR}, s{S_TMP2} offen offset:{1024*j} lds", f"slot{k}"))
        return r
    xf = lambda c, tt: ar(16 * c + 4 * tt, 4) if c < 16 else vr(XO + 16 * (c - 16) + 4 * tt, 4)
    XB = (59, 66, 68, 69)
    def xload(c):
        r = []
        for tt in range(4):
            if c % 4 == 0: r.append(ins(f"s_add_u32 s{XB[tt]}, s{S_XS}, {tt*18*1024+c*1024}"))
            r.append(ins(f"buffer_load_dwordx4 {xf(c,tt)}, v{V_L16}, {WSR}, s{XB[tt]} offen offset:{1024*(c&3)}{ld}"))
        return r
    p.add(pw.check())
    for k in range(4): p.add(slot_dma(k))
    l_nocs = p.label("nocs")
    p(f"""s_cmp_lg_u32 s{S_LF}, 0
    s_cbranch_scc1 {l_nocs}
    s_cmp_ge_u32 s{S_WAVE}, 2
    s_cbranch_scc1 {l_nocs}
    s_lshl_b32 s{S_TMP}, s{S_SL}, 1
    s_add_u32 s{S_TMP}, s{S_TMP}, s{S_WAVE}
    s_mul_i32 s{S_TMP}, s{S_TMP}, {18*576}
    s_add_u32 s{S_TMP}, s{S_TMP}, {CSP}
    v_lshrrev_b32 v{V_T0}, 2, v{V_LANE}
    v_lshlrev_b32 v{V_T0}, 7, v{V_T0}
    v_and_b32 v{V_T1}, 3, v{V_LANE}
    v_lshl_add_u32 v{V_T0}, v{V_T1}, 4, v{V_T0}
    s_lshl_b32 s{S_TMP2}, s{S_WAVE}, 6
    s_add_u32 s{S_TMP2}, s{S_TMP2}, {LDS_CS}
    v_add_u32 v{V_T0}, s{S_TMP2}, v{V_T0}
    s_mov_b32 exec_hi, 15""")
    for c in range(18):
        if c and c % 6 == 0: p(f"s_add_u32 s{S_TMP}, s{S_TMP}, {6*576}")
        p(f"buffer_load_dwordx4 {vr(64+4*c,4)}, v{V_L16}, {WSR}, s{S_TMP} offen offset:{(c%6)*576} sc1")
    for c in range(1, 18):
        for j in range(4): p(f"v_add_f32 v{64+j}, v{64+j}, v{64+4*c+j}")
    p(f"ds_write_b128 v{V_T0}, v[64:67]\ns_mov_b64 exec, -1")
    p.drain(vm=False)
    p(f"{l_nocs}:")
    p(f"""s_lshr_b32 s{S_TMP}, s{S_T}, 2
    s_lshl_b32 s{S_TMP}, s{S_TMP}, 8
    s_add_u32 s{S_TMP}, s{S_TMP}, s{S_LF}
    s_add_u32 s55, s{S_TMP}, {F1B}
    v_and_b32 v0, 7, v{V_LANE}
    v_min_u32 v0, 5, v0
    v_and_b32 v{V_T0}, 24, v{V_LANE}
    v_add_lshl_u32 v0, v0, v{V_T0}, 3""")
    p1 = Poll(p, V_T0, 0, 55, "p1")
    p.add(p1.issue())
    p(f"""s_lshl_b32 s{S_TMP}, s{S_RB}, 5
    s_add_u32 s{S_TMP}, s{S_TMP}, s{S_SL}
    s_mul_i32 s{S_H}, s{S_TMP}, {72*1024}
    s_add_u32 s{S_H}, s{S_H}, {HB}
    s_add_u32 s{S_H}, s{S_H}, s{S_LB}""")
    for j in range(3):
        p(f"""s_xor_b32 s{S_TMP2}, s{S_TMP}, {j+1}
        s_mul_i32 s{S_R+j}, s{S_TMP2}, {72*1024}
        s_add_u32 s{S_R+j}, s{S_R+j}, {HB}
        s_add_u32 s{S_R+j}, s{S_R+j}, s{S_LB}""")
    p(f"""s_lshr_b32 s{S_FL}, s{S_TMP}, 2
    s_lshl_b32 s{S_FL}, s{S_FL}, 2
    s_add_u32 s{S_FL}, s{S_FL}, s{S_WAVE}
    s_lshl_b32 s{S_FL}, s{S_FL}, 7
    s_lshl_b32 s{S_TMP2}, s{S_LF}, 2
    s_add_u32 s{S_FL}, s{S_FL}, s{S_TMP2}
    s_add_u32 s{S_FL}, s{S_FL}, {FHB}
    v_lshrrev_b32 v{V_CS}, 4, v{V_LANE}
    v_lshlrev_b32 v{V_CS}, 4, v{V_CS}
    v_add_u32 v{V_CS}, {LDS_CS}, v{V_CS}
    s_lshl_b32 s{S_TMP}, s{S_WAVE}, 12""")
    for r in (S_H, S_R, S_R + 1, S_R + 2):
        p(f"s_add_u32 s{r}, s{r}, s{S_TMP}")
    p(f"s_lshl_b32 s65, s{S_WAVE}, 11\ns_sub_u32 s65, {64*1024}, s65")
    p(f"s_lshl_b32 s67, s{S_M}, 3\ns_add_u32 s67, s67, s{S_FL}")
    p.add(p1.check()); stamp(p, 1)
    for c in range(4): p.add(xload(c))
    p(f"""s_lshl_b32 s{S_TMP}, s{S_T}, 4
    v_add_u32 v{V_T0}, s{S_TMP}, v{V_LANE}
    v_lshlrev_b32 v{V_T0}, 3, v{V_T0}
    s_add_u32 s55, s{S_LB}, {ST}""")
    for cg in range(6):
        p(f"s_add_u32 s{S_TMP}, s55, {cg*16384}")
        p(f"buffer_load_dwordx2 {vr(TMP+2*cg,2)}, v{V_T0}, {WSR}, s{S_TMP} offen{ld}")

    frs = []
    tiles = [(8, ACX), (0, ACA)]
    acc1 = lambda buf, mat, tt: vr(buf + 16 * mat + 4 * tt, 4)
    def g1(tile, buf, c, mat):
        f = pos_of_tile(tile) * 36 + 2 * c + mat
        return (f, [(acc1(buf, mat, tt), xf(c, tt), c == 0) for tt in range(4)])
    marks = {}
    for c in range(18):
        for tile, buf in tiles:
            for mat in range(2): frs.append(g1(tile, buf, c, mat))
    marks["pass0_end"] = len(frs)
    bufs = {8: ACX, 0: ACA}
    for tile in range(1, 8):
        buf = ACB if tile & 1 else ACA
        bufs[tile] = buf
        marks[f"pass{tile}"] = len(frs)
        for c in range(18):
            for mat in range(2): frs.append(g1(tile, buf, c, mat))
    marks["g2"] = len(frs)
    acc2 = lambda n, tt: 32 + 32 * (n >> 1) + 8 * tt + 4 * (n & 1) if n < 8 else 160 + 4 * tt
    def hstep(st, tt):
        if st < 4: return vr(HO + 16 * st + 4 * tt, 4)
        if st == 4: return vr(H8 + 4 * tt, 4)
        return ar(16 * (st - 5) + 4 * tt, 4)
    order = gemm2_order()
    last_of = {}
    for i, (st, n) in enumerate(order):
        marks.setdefault(f"step{st}", len(frs))
        frs.append((324 + i, [(vr(acc2(n, tt), 4), hstep(st, tt), st == 0) for tt in range(4)]))
        last_of[n] = len(frs)
    NB, LOOK = 6, 4
    bb = []; s_rd = Stream("rd"); s_dma = Stream("dma"); s_ep = Stream("ep"); s_ld = Stream("ld")
    G = lambda s: 4 * s
    cur_base = [0]
    def read(s):
        f = frs[s][0]
        a = ((f // 36) & 3) * RING + (f % 36) * 1024
        r = []
        if s < marks["pass0_end"]:
            if a < 65536: va, off = V_W, a
            else: va, off = V_T1, a - 65536
        else:
            base = ((f // 36) & 3) * RING
            if base != cur_base[0]:
                r.append(f"v_add_u32 v{V_W}, {base - cur_base[0] & 0xffffffff:#x}, v{V_W}")
                cur_base[0] = base
            va, off = V_W, a - base
        r.append(f"ds_read_b128 {vr(WB+4*(s%NB),4)}, v{va} offset:{off}")
        return r
    p(f"v_add_u32 v{V_T1}, 0x10000, v{V_L16}")
    p.wait_vm("slot3"); p("s_barrier")
    for s in range(LOOK): p.add(read(s))
    seen = {0, 1}
    for s, (f, ms) in enumerate(frs):
        for d, b, first in ms:
            bb.append(ins(f"{MF} {d}, {vr(WB+4*(s%NB),4)}, {b}, {'0' if first else d}"))
        t = s + LOOK
        if t < len(frs):
            k = frs[t][0] // 36
            g = G(s) + 1
            if k not in seen:
                seen.add(k)
                s_rd.add(WaitTag(f"slot{k}", "vm"), g, g)
                if k == 2: s_rd.add(Drain(vm=False), g, g)
                s_rd.add("s_barrier", g, g)
                for kk in ([4, 5] if k == 2 else [k + 2] if k >= 4 else []):
                    if kk <= 13:
                        for j, it in enumerate(slot_dma(kk)): s_dma.add(it, g + 1, g + 120 + (100 if kk == 5 else 0))
            for r in read(t): s_rd.add(r, g, g + 1)
    for c in range(4, 18):
        for it in xload(c): s_ld.add(it, 0, 16 * c - 40)
    ga = G(marks["pass0_end"]) - 50
    A_, B_, M_, R_ = TMP + 12, TMP + 13, TMP + 14, TMP + 15
    s = lambda cg: TMP + 2 * cg
    e = [f"v_add_f32 v{M_}, v{s(0)}, v{s(1)}", f"v_add_f32 v{R_}, v{s(0)+1}, v{s(1)+1}"]
    for cg in range(2, 6): e += [f"v_add_f32 v{M_}, v{M_}, v{s(cg)}", f"v_add_f32 v{R_}, v{R_}, v{s(cg)+1}"]
    e += [f"v_mul_f32 v{M_}, 0xbae38e39, v{M_}"]
    for cg in range(6):
        e += [f"v_fmamk_f32 v{B_}, v{s(cg)}, 0x3c2aaaab, v{M_}",
              f"v_mul_f32 v{A_}, v{B_}, v{B_}" if cg == 0 else f"v_fmac_f32 v{A_}, v{B_}, v{B_}"]
    e += [f"v_fmac_f32 v{R_}, 0x42c00000, v{A_}", f"v_mov_b32 v{B_}, 0x3727c5ac",
          f"v_fmac_f32 v{B_}, 0x3ae38e39, v{R_}", f"v_rcp_f32 v{R_}, v{B_}",
          f"v_and_b32 v{A_}, 15, v{V_LANE}", f"v_lshlrev_b32 v{A_}, 2, v{A_}"]
    for tt in range(4):
        e += [f"ds_bpermute_b32 v{NM+tt}, v{A_}, v{M_} offset:{64*tt}", f"ds_bpermute_b32 v{RS2+tt}, v{A_}, v{R_} offset:{64*tt}"]
    for x in e: s_ep.add(x, ga, G(marks["pass0_end"]))
    def cs_reads(tile, g):
        cb = CS + 8 * (pos_of_tile(tile) & 1)
        for mat in range(2):
            s_ep.add(f"ds_read_b128 {vr(cb+4*mat,4)}, v{V_CS} offset:{pos_of_tile(tile)*128+64*mat}", g)
    def epilogue(tile, g, dl):
        buf = bufs[tile]; cb = CS + 8 * (pos_of_tile(tile) & 1)
        for tt in range(4):
            gq, uq = buf + 4 * tt, buf + 16 + 4 * tt
            for r in range(4): s_ep.add(f"v_fmac_f32 v{gq+r}, v{cb+r}, v{NM+tt}", g, dl)
            for r in range(4): s_ep.add(f"v_fmac_f32 v{uq+r}, v{cb+4+r}, v{NM+tt}", g, dl)
            for r in range(4): s_ep.add(f"v_mul_f32 v{gq+r}, v{gq+r}, v{RS2+tt}", g, dl)
            for r in range(4): s_ep.add(f"v_mul_f32 v{gq+r}, v{gq+r}, v{uq+r}", g, dl)
            dst = H8 + 4 * tt if tile == 8 else HO + 16 * (tile >> 1) + 4 * tt + 2 * (tile & 1)
            for j in range(2): s_ep.add(f"v_cvt_pk_bf16_f32 v{dst+j}, v{gq+2*j}, v{gq+2*j+1}", g, dl)
            if tile == 8:
                if tt == 0: s_ep.add(f"s_add_u32 s66, s{S_H}, s65", g, dl)
                s_ep.add(f"buffer_store_dwordx2 {vr(dst,2)}, v{V_L8}, {WSR}, s66 offen offset:{512*tt}{sc}", g, dl, tag="h8")
            elif tile & 1:
                if tt == 0: s_ep.add(f"s_add_u32 s66, s{S_H}, {(tile>>1)*16*1024}", g, dl)
                s_ep.add(f"buffer_store_dwordx4 {vr(dst-2,4)}, v{V_L16}, {WSR}, s66 offen offset:{1024*tt}{sc}", g, dl, tag=f"h{tile>>1}")
    g1s = G(marks["pass1"])
    cs_reads(8, g1s - 20); cs_reads(0, g1s - 20)
    epilogue(0, g1s + 6, G(marks["pass2"])); epilogue(8, g1s + 6, G(marks["pass2"]) + 60)
    for tile in range(1, 8):
        nxt = G(marks[f"pass{tile+1}"]) if tile < 7 else G(marks["g2"])
        cs_reads(tile, nxt - 20)
        epilogue(tile, nxt + 6, nxt + (140 if tile < 7 else 48))
    s_sg = Stream("sig")
    def sig(stage, tag, g):
        it = signal_items(71, V_T0)
        s_sg.add(f"s_add_u32 s71, s67, {32*stage}", g - 2, g)
        s_sg.add(it[0], g - 2, g); s_sg.add(it[1], g - 2, g)
        s_sg.add(WaitTag(tag, "vm"), g, g)
        s_sg.add(it[2], g + 1, g + 3, cost=2)
    g7 = G(marks["pass7"]); g2 = G(marks["g2"])
    sig(0, "h1", G(marks["pass5"]) + 60)
    sig(1, "h2", g7 - 4)
    sig(2, "h3", G(marks["step3"]) + 8)
    def addpoll(pl, g_issue, g_check, st=None):
        st = st or s_ld
        st.add(pl.issue(), g_issue, g_issue + 3)
        st.add(pl.check(), g_check, g_check + 1, cost=2)
    gw = G(marks["pass3"]) + 70
    s_ld.add(f"v_min_u32 v0, 17, v{V_LANE}", gw - 4); s_ld.add(f"v_lshlrev_b32 v0, 3, v0", gw - 4)
    s_ld.add(f"s_add_u32 s55, s{S_FW}, {36*8}", gw - 4)
    addpoll(Poll(p, V_T0, 0, 55, "pd"), gw, gw + 40)
    polls = [Poll(p, V_T0, 0, 55, f"p{k}") for k in range(3)]
    s_ld.add(f"v_and_b32 v0, 3, v{V_LANE}", g7 - 80); s_ld.add(f"v_lshlrev_b32 v0, 3, v0", g7 - 80)
    s_ld.add(f"s_mov_b32 s55, s{S_FL}", g7 - 80)
    addpoll(polls[0], g7 - 60, g7 - 20)
    ldh = " sc1"
    need = lambda st: G(marks[f"step{st}"]) if st < 9 else G(marks["step9"]) + 8 * (st - 9)
    for tt in range(4):
        if tt == 0: s_ld.add(f"s_add_u32 s{S_TMP}, s{S_R}, s65", g7 - 18)
        s_ld.add(f"buffer_load_dwordx2 {vr(H8+4*tt+2,2)}, v{V_L8}, {WSR}, s{S_TMP} offen offset:{512*tt}{ldh}", g7 - 18, need(4) - 150)
    for j in range(2):
        s_ld.add(f"s_add_u32 s{S_TMP}, s{S_R+1+j}, s65", g7 + 8)
        for tt in range(4):
            s_ld.add(f"buffer_load_dwordx2 {ar(4*tt+2*j,2)}, v{V_L8}, {WSR}, s{S_TMP} offen offset:{512*tt}{ldh}", g7 + 8, need(5) - 150)
    def hload(st, g, dl):
        i = st - 6
        s_ld.add(f"s_add_u32 s{S_TMP}, s{S_R+i%3}, {(i//3)*16*1024}", g)
        for tt in range(4):
            s_ld.add(f"buffer_load_dwordx4 {hstep(st,tt)}, v{V_L16}, {WSR}, s{S_TMP} offen offset:{1024*tt}{ldh}", g, dl)
    for st in range(6, 12): hload(st, g7 + 8 * (st - 4), need(st) - 150)
    s_ld.add(f"s_add_u32 s55, s{S_FL}, 32", g2 + 50)
    addpoll(polls[1], g2 + 60, g2 + 100)
    for st in range(12, 15): hload(st, g2 + 101, need(st) - 100)
    gB = G(marks["step7"])
    s_ld.add(f"s_add_u32 s55, s{S_FL}, 64", gB - 50)
    addpoll(polls[2], gB - 40, gB)
    for st in range(15, 18): hload(st, gB + 1, need(st) - 60)
    s_o = Stream("out")
    gB += 4
    s_o.add(f"s_and_b32 s68, s{S_M}, 1", gB)
    s_o.add(f"s_mul_i32 s69, s68, {5*1024}", gB); s_o.add(f"s_add_u32 s69, s69, s{S_P}", gB)
    s_o.add(f"s_lshl_b32 s68, s68, 9", gB); s_o.add(f"s_add_u32 s68, s68, s{S_P}", gB)
    s_o.add(f"v_and_b32 v0, 15, v{V_LANE}", gB); s_o.add(f"v_lshlrev_b32 v0, 5, v0", gB)
    s_o.add(f"v_lshrrev_b32 v{V_CS}, 4, v{V_LANE}", gB); s_o.add(f"v_lshl_add_u32 v0, v{V_CS}, 3, v0", gB)
    for pr in range(4):
        g = G(last_of[2 * pr + 1]) + 4
        for tt in range(4):
            a = acc2(2 * pr, tt)
            for j in range(4): s_o.add(f"v_cvt_pk_bf16_f32 v{a+j}, v{a+2*j}, v{a+2*j+1}", g)
            s_o.add(f"s_add_u32 s70, s69, {tt*18*1024+pr*1024}", g)
            s_o.add(f"buffer_store_dwordx4 {vr(a,4)}, v{V_L16}, {WSR}, s70 offen{scp}", g, tag="pout")
    g = len(bb)
    for tt in range(4):
        a = acc2(8, tt)
        for j in range(2): s_o.add(f"v_cvt_pk_bf16_f32 v{a+j}, v{a+2*j}, v{a+2*j+1}", g)
        s_o.add(f"s_add_u32 s70, s68, {tt*18*1024+4*1024}", g)
        s_o.add(f"buffer_store_dwordx2 {vr(a,2)}, v0, {WSR}, s70 offen{scp}", g, tag="pout")
    if "nostore" in DBG: s_ep.q = [e for e in s_ep.q if not _isvm(e[2])]; s_o.q = [e for e in s_o.q if not _isvm(e[2])]
    if "nodma" in DBG: s_dma.q = []
    if "noep" in DBG: s_ep.q = [e for e in s_ep.q if getattr(e[2], "kind", "") != "valu"]
    if "nohld" in DBG: s_ld.q = [e for e in s_ld.q if not (e[0] > 500 and _isvm(e[2]) and "dwordx" in e[2].text)]
    s_st = Stream("stamp")
    if STAMP[0]:
        for k, mk in enumerate(("pass1", "pass3", "pass5", "pass7", "g2", "step3", "step6", "step9")):
            s_st.add(stamp_ins(2 + k), G(marks[mk]) + 2, G(marks[mk]) + 2)
    weave(p, bb, [s_rd, s_sg, s_ld, s_ep, s_o, s_dma, s_st], cap=2)
    stamp(p, 10)
    p(f"""s_lshl_b32 s{S_TMP}, s{S_RB}, 2
    s_add_u32 s{S_TMP}, s{S_TMP}, s{S_WAVE}
    s_lshl_b32 s{S_TMP}, s{S_TMP}, 5
    s_add_u32 s{S_TMP}, s{S_TMP}, s{S_SL}
    s_lshl_b32 s{S_TMP}, s{S_TMP}, 3
    s_add_u32 s{S_TMP}, s{S_TMP}, s{S_LF}
    s_add_u32 s{S_TMP}, s{S_TMP}, {FPB}""")
    signal(p, S_TMP, V_T0, "pout")
    stamp(p, 11)

def reduce_phase(p, l, lds_off, sc=" sc1", ld=" sc1", pre=None):
    V_LANE = 1
    lh = l
    VROW, VFR, VP, VLD, VX, VS, VO = 3, 4, 5, 16, 128, 152, 160
    if pre: pre()
    p(f"s_lshl_b32 s47, s{S_XCD}, 5\ns_add_u32 s47, s47, s{S_IDX}")
    ln_addr(p, 47, V_LANE, VROW, VFR, 8, 48)
    p(f"""v_lshrrev_b32 v8, 3, v{V_LANE}
    v_and_b32 v9, 7, v{V_LANE}
    s_and_b32 s48, s47, 1
    s_lshl_b32 s48, s48, 3
    v_add_u32 v9, s48, v9
    v_lshlrev_b32 v9, 4, v9
    v_bfe_u32 v10, v8, 1, 1
    v_and_b32 v11, 1, v8
    v_lshl_add_u32 v9, v11, 4, v9
    v_lshl_add_u32 v9, v10, 9, v9
    v_and_b32 v10, 3, v8
    v_lshlrev_b32 v10, 8, v10
    v_sub_u32 v9, v9, v10
    s_mul_i32 s48, s{S_WAVE}, 6
    v_lshrrev_b32 v8, 2, v8
    v_add_u32 v8, s48, v8""")
    for i in range(3):
        p(f"""v_add_u32 v10, {2*i}, v8
        v_cmp_eq_u32 vcc, 4, v10
        v_cmp_eq_u32 s[56:57], 13, v10
        s_or_b64 vcc, vcc, s[56:57]
        v_cndmask_b32 v10, 0, v9, vcc
        v_add3_u32 v{VP+i}, v{VFR}, v10, {0}
        v_add_u32 v{VP+i}, {2048*i}, v{VP+i}""")
    l_skip = p.label("w3a")
    p(f"s_cmp_eq_u32 s{S_WAVE}, 3\ns_cbranch_scc1 {l_skip}")
    p(f"""s_lshr_b32 s49, s47, 3
    s_lshl_b32 s49, s49, 8
    s_add_u32 s49, s49, {FPB+l*0x2000}
    v_and_b32 v10, 31, v{V_LANE}
    v_lshlrev_b32 v10, 3, v10""")
    p.add(Poll(p, 8, 10, 49, "pp").both()); stamp(p, 1)
    p(f"s_mov_b32 s48, {LB(l)+X1}")
    for i in range(3):
        if i == 2: p("s_add_u32 s48, s48, 4096")
        p(f"buffer_load_dwordx4 {vr(VLD+36*i,4)}, v{VFR}, {WSR}, s48 offen offset:{2048*(i&1)}{ld}")
    for q in range(8):
        p(f"s_mov_b32 s48, {LB(lh)+PB+q*XBYTES}")
        for i in range(3):
            p(f"buffer_load_dwordx4 {vr(VLD+36*i+4+4*q,4)}, v{VP+i}, {WSR}, s48 offen{ld}")
    for i in range(3): unpack8(p, VX + 8 * i, VLD + 36 * i)
    for q in range(8):
        for i in range(3):
            b = VLD + 36 * i + 4 + 4 * q
            for j in range(4):
                p(f"""v_lshlrev_b32 v{8+2*(j&1)}, 16, v{b+j}
                v_and_b32 v{9+2*(j&1)}, 0xffff0000, v{b+j}
                v_add_f32 v{VX+8*i+2*j}, v{VX+8*i+2*j}, v{8+2*(j&1)}
                v_add_f32 v{VX+8*i+2*j+1}, v{VX+8*i+2*j+1}, v{9+2*(j&1)}""")
    if l == 1: srd(p, S_O, P_OUT, XBYTES)
    else: p(f"s_add_u32 s{S_O}, s{P_WS}, {LB(0)+X2R}\ns_addc_u32 s{S_O+1}, s{P_WS+1}, 0\ns_mov_b32 s{S_O+2}, {XBYTES:#x}\ns_mov_b32 s{S_O+3}, 0x20000")
    for i in range(3):
        for j in range(4): p(f"v_cvt_pk_bf16_f32 v{VO+4*i+j}, v{VX+8*i+2*j}, v{VX+8*i+2*j+1}")
        p(f"buffer_store_dwordx4 {vr(VO+4*i,4)}, v{VROW}, s[{S_O}:{S_O+3}], 0 offen offset:{128*i}{sc if l == 0 else ''}")
    if l == 1:
        p(f"{l_skip}:")
        return
    for i in range(3): unpack8(p, VX + 8 * i, VO + 4 * i)
    ln_local_stats(p, VX, VS, VS + 1, 8)
    p(f"""v_and_b32 v8, 7, v{V_LANE}
    s_mul_i32 s46, s{S_WAVE}, 64
    s_add_u32 s46, s46, {lds_off}
    v_lshl_add_u32 v8, v8, 3, s46
    ds_write_b64 v8, v[{VS}:{VS+1}]""")
    p.drain(vm=False)
    p(f"{l_skip}:\ns_barrier")
    l_skip2 = p.label("w3b")
    p(f"s_cmp_eq_u32 s{S_WAVE}, 3\ns_cbranch_scc1 {l_skip2}")
    p(f"v_and_b32 v8, 7, v{V_LANE}\nv_lshlrev_b32 v8, 3, v8\nv_add_u32 v8, {lds_off}, v8")
    for w in range(3): p(f"ds_read_b64 v[{VS+2*w}:{VS+2*w+1}], v8 offset:{64*w}")
    ln_finish(p, VX, VS, 16, 8)
    p(f"s_mov_b32 s46, {LB(l+1)+XN}")
    for i in range(3):
        if i == 2: p("s_add_u32 s46, s46, 4096")
        p(f"buffer_store_dwordx4 {vr(16+4*i,4)}, v{VFR}, {WSR}, s46 offen offset:{2048*(i&1)}{sc}")
    p(f"s_lshl_b32 s46, s47, 2\ns_add_u32 s46, s46, s{S_WAVE}\ns_lshl_b32 s46, s46, 3\ns_add_u32 s46, s46, {FX(l+1)}")
    signal(p, 46, 8)
    p(f"{l_skip2}:")
```

```python
from common import *
from k_prep import *
from k_attn import MF, attn_bias, attn_part, wo_setup, wo_wdma, wo_main
from k_ffn import ffn_phase, reduce_phase, LDS_CS
V_LANE, V_L16 = 1, 2
LDS_EX = LDS_CS + 1152
LDS_LN = LDS_EX + 4 * 3072
LDS_HALO = 126 * 1024
LDS_STG = 108 * 1024
LDS_TOTAL = 163840
S_AB, S_HP, S_T0, S_WSRC, S_WM0, S_XS, S_HS = 44, 45, 46, 47, 48, 51, 49
VTAB, A_U0, A_U1 = 232, 144, 180
SB0, SB1 = 58, 62

def qkv_setup(p, l):
    p(f"""s_lshr_b32 s{S_AB}, s{S_IDX}, 4
    s_lshl_b32 s52, s{S_XCD}, 1
    s_add_u32 s{S_AB}, s{S_AB}, s52
    s_and_b32 s{S_HP}, s{S_IDX}, 15
    s_mul_i32 s{S_WM0}, s{S_WAVE}, 21
    s_lshr_b32 s{S_WM0}, s{S_WM0}, 1
    s_lshl_b32 s{S_WM0}, s{S_WM0}, 10
    s_mul_i32 s{S_WSRC}, s{S_HP}, {126*1024}
    s_add_u32 s{S_WSRC}, s{S_WSRC}, s{S_WM0}
    s_add_u32 s{S_WSRC}, s{S_WSRC}, {WQ}""")

def qkv_wdma(g):
    r = []
    for j0 in range(0, 11, 4):
        r.append(ins(f"s_add_u32 m0, s{S_WM0}, {g*42*1024+j0*1024}"))
        r.append(ins(f"s_add_u32 s53, s{S_WSRC}, {g*42*1024+j0*1024}"))
        for j in range(j0, min(j0 + 4, 11)):
            r.append(ins(f"buffer_load_dwordx4 v{V_L16}, {WSR}, s53 offen offset:{1024*(j-j0)} lds", f"wq{g}"))
    return r

def qkv_main(p, l, extra=None):
    V_W, V_HT, V_HN, V_XH = 3, 4, 5, 10
    ACC, HACC, WB, HB_ = 16, 80, 88, 144
    p(f"""s_lshl_b32 s{S_T0}, s{S_AB}, 3
    s_max_u32 s52, s{S_T0}, 1
    s_sub_u32 s52, s52, 1
    s_mul_i32 s{S_HS}, s52, {18*1024}
    s_mul_i32 s50, s{S_WAVE}, 9
    s_lshr_b32 s50, s50, 1
    s_lshl_b32 s50, s50, 10
    s_add_u32 s{S_HS}, s{S_HS}, s50
    s_add_u32 s{S_HS}, s{S_HS}, {LB(l)+XN}
    s_add_u32 s50, s50, {LDS_HALO}
    s_lshl_b32 s54, s52, 6
    s_lshl_b32 s52, s{S_WAVE}, 1
    s_add_u32 s{S_T0}, s{S_T0}, s52
    s_mul_i32 s{S_XS}, s{S_T0}, {18*1024}
    s_add_u32 s{S_XS}, s{S_XS}, {LB(l)+XN}
    s_lshl_b32 s55, s{S_T0}, 6""")
    p(f"""v_and_b32 v6, 3, v{V_LANE}
    v_min_u32 v6, 2, v6
    v_and_b32 v7, 12, v{V_LANE}
    v_add_lshl_u32 v8, v6, v7, 3
    v_add_u32 v8, s55, v8
    v_and_b32 v7, 4, v{V_LANE}
    v_add_lshl_u32 v9, v6, v7, 3
    v_add_u32 v9, s54, v9
    v_and_b32 v7, 16, v{V_LANE}
    v_cmp_eq_u32 vcc, 0, v7
    v_cndmask_b32 v8, v9, v8, vcc""")
    if l == 0:
        p(f"""v_subrev_u32 v7, 32, v{V_LANE}
        v_min_u32 v7, 17, v7
        s_lshl_b32 s52, s{S_HP}, 8
        s_add_u32 s52, s52, {FWQ-FX(0)}
        v_lshl_add_u32 v7, v7, 3, s52
        v_cmp_gt_u32 vcc, 32, v{V_LANE}
        v_cndmask_b32 v8, v7, v8, vcc""")
    p(f"s_mov_b32 s52, {FX(l)}")
    px = Poll(p, 6, 8, 52, "px")
    p.add(px.issue())
    p(f"""s_min_u32 s56, s{S_WAVE}, 2
    s_add_u32 s57, s56, 2
    s_add_u32 s56, s56, 4
    s_cmp_ge_u32 s{S_WAVE}, 2
    s_cselect_b32 s57, 6, s57
    s_lshl_b32 s57, s57, 10
    s_lshl_b32 s56, s56, 10
    v_mov_b32 v{V_W}, v{V_L16}
    v_add_u32 v{V_HT}, s57, v{V_L16}
    v_add_u32 v{V_HN}, s56, v{V_L16}
    v_add_u32 v{V_XH}, {LDS_HALO}, v{V_L16}""")
    p.add(px.check()); stamp(p, 1)
    def xload(c):
        r = []
        for tt in range(2):
            if c % 4 == 0: r.append(ins(f"s_add_u32 s{54+tt}, s{S_XS}, {tt*18*1024+c*1024}"))
            r.append(ins(f"buffer_load_dwordx4 a[{72*tt+4*c}:{72*tt+4*c+3}], v{V_L16}, {WSR}, s{54+tt} offen offset:{1024*(c&3)} sc1"))
        return r
    def halo():
        r = []
        for g in range(2):
            r.append(ins(f"s_add_u32 m0, s50, {4096*g}")); r.append(ins(f"s_add_u32 s53, s{S_HS}, {4096*g}"))
            for j in range(4 if g == 0 else 1):
                r.append(ins(f"buffer_load_dwordx4 v{V_L16}, {WSR}, s53 offen offset:{1024*j} sc1 lds", "halo"))
        return r
    sl = Stream("ld")
    if l == 0:
        p("s_barrier")
        p.add(qkv_wdma(0))
        for c in range(6): p.add(xload(c))
        p.add(qkv_wdma(1))
        late = halo() + sum((xload(c) for c in range(6, 12)), []) + qkv_wdma(2) + sum((xload(c) for c in range(12, 18)), [])
    else:
        for c in range(8): p.add(xload(c))
        late = halo() + sum((xload(c) for c in range(8, 18)), [])
    attn_bias(p, S_AB)
    acc = lambda tt, j: vr(ACC + 32 * tt + 4 * j, 4)
    wf = lambda c, t: vr(WB + 28 * (c & 1) + 4 * t, 4)
    hf = lambda h, j: vr(HB_ + 12 * (h & 1) + 4 * j, 4)
    xf = lambda tt, c: ar(72 * tt + 4 * c, 4)
    def reads(c):
        r = [f"v_add_u32 v{V_W}, {9*7168}, v{V_W}"] if c == 9 else []
        return r + [f"ds_read_b128 {wf(c, t)}, v{V_W} offset:{(c%9)*7168+1024*t}" for t in (0, 1, 2, 3, 6, 4, 5)]
    def hreads(h):
        r = [f"v_add_u32 v{v}, {9*7168}, v{v}" for v in (V_HT, V_HN)] if h == 9 else []
        return r + [f"ds_read_b128 {hf(h, 0)}, v{V_XH} offset:{1024*h}", f"ds_read_b128 {hf(h, 1)}, v{V_HT} offset:{(h%9)*7168}",
                    f"ds_read_b128 {hf(h, 2)}, v{V_HN} offset:{(h%9)*7168}"]
    hs = {c: [] for c in range(18)}
    for h in range(18): hs[6 + h if h < 6 else 12 + (h - 6) // 2].append(h)
    p.wait_vm("wq0" if l == 0 else "wq2"); p("s_barrier")
    p.add(reads(0))
    bb = []; sr_ = Stream("rd"); sh = Stream("hrd")
    hpos = {}
    for c in range(18):
        g0 = len(bb)
        C = lambda d: "0" if c == 0 else d
        main = []
        for j, t in enumerate((0, 1, 2, 3, 6)):
            for tt in range(2): main.append(ins(f"{MF} {acc(tt, j)}, {wf(c, t)}, {xf(tt, c)}, {C(acc(tt, j))}"))
        for j, t in ((7, 6), (5, 4), (6, 5)):
            for tt in range(2): main.append(ins(f"{MF} {acc(tt, j)}, {xf(tt, c)}, {wf(c, t)}, {C(acc(tt, j))}"))
        def hm(h):
            hpos[h] = len(bb)
            z = lambda d: "0" if h == 0 else d
            bb.append(ins(f"{MF} {vr(HACC, 4)}, {hf(h, 1)}, {hf(h, 0)}, {z(vr(HACC, 4))}"))
            bb.append(ins(f"{MF} {vr(HACC+4, 4)}, {hf(h, 0)}, {hf(h, 2)}, {z(vr(HACC+4, 4))}"))
        if len(hs[c]) == 2:
            bb += main[:8]; hm(hs[c][0]); bb += main[8:]; hm(hs[c][1])
        else:
            bb += main
            for h in hs[c]: hm(h)
        if c + 1 < 18:
            tags = []
            if c + 1 == 6: tags = (["wq1"] if l == 0 else []) + ["halo"]
            if c + 1 == 12 and l == 0: tags = ["wq2"]
            for t in tags: sr_.add(WaitTag(t, "vm"), g0 + 1, g0 + 1)
            if tags:
                sr_.add("s_barrier", g0 + 1, g0 + 1)
                if c + 1 == 6: gbar = g0 + 2
            for k, r in enumerate(reads(c + 1)): sr_.add(r, g0 + 1 + 2 * k - (k > 0), g0 + 14)
    for h in range(18):
        e = max(gbar, hpos[h - 2] + 2 if h >= 2 else 0)
        for r in hreads(h): sh.add(r, e, hpos[h] - 5)
    need = {}
    for it in late: sl.add(it, 0)
    gstep = lambda c: next(i for i, m in enumerate(bb) if xf(0, c) in m.text)
    for e in sl.q:
        it = e[2]
        if it.kind == "vmem":
            if it.tag == "halo": e[1] = gstep(5) - 30
            elif it.tag == "wq2": e[1] = gstep(11) - 40
            else: e[1] = gstep((min(r[1] for r in it.dst) % 72) // 4) - 40
    if extra:
        for it in extra: sl.add(it, 0)
    weave(p, bb, [sr_, sh, sl], cap=2, vm_gap=4 if l == 0 else 5)
    stamp(p, 2)
    attn_part(p, l, S_T0, S_HP, LDS_EX, " sc1")
    stamp(p, 3)
    p(f"""s_lshl_b32 s52, s{S_AB}, 2
    s_add_u32 s52, s52, s{S_WAVE}
    s_lshl_b32 s52, s52, 4
    s_add_u32 s52, s52, s{S_HP}
    s_lshl_b32 s52, s52, 3
    s_add_u32 s52, s52, {FO(l)}""")
    signal(p, 52, 8, "ost")
    stamp(p, 4)

def wo_part(p, l, mid=None, after_poll=None):
    S_TB, S_CG, S_T = 44, 45, 46
    wo_setup(p, l)
    if l == 0:
        lane_min8(p, 10, V_LANE, 18)
        p(f"s_lshl_b32 s52, s{S_CG}, 8\ns_add_u32 s52, s52, {FWO}")
        p.add(Poll(p, 8, 10, 52, "pwo").both())
    wo_wdma(p)
    if mid: mid()
    p(f"""s_lshr_b32 s52, s{S_T}, 1
    s_lshl_b32 s52, s52, 7
    s_add_u32 s52, s52, {FO(l)}
    v_and_b32 v10, 15, v{V_LANE}
    v_lshlrev_b32 v10, 3, v10""")
    p.add(Poll(p, 8, 10, 52, "po").both()); stamp(p, 5)
    if after_poll: after_poll()
    wo_main(p, l, " sc1", " sc1")
    p(f"""s_lshl_b32 s52, s{S_T}, 3
    s_add_u32 s52, s52, s{S_CG}
    s_lshl_b32 s52, s52, 3
    s_add_u32 s52, s52, {F1B+l*0x2000}""")
    signal(p, 52, 8, "x1st")
    stamp(p, 8)

def phase0(p):
    VROW, VFR, VRAW, VX, VS, VO = 3, 4, 8, 20, 44, 52
    S_ROLE, S_U, S_STG, ST_ = 66, 67, 68, 84
    srd(p, S_X, P_X, XBYTES)
    l_n = p.label("nonce")
    p(f"""v_mov_b32 v5, 0
    s_or_b32 s44, s2, s{S_WAVE}
    s_cmp_lg_u32 s44, 0
    s_cbranch_scc1 {l_n}
    s_memrealtime s[44:45]""")
    p.drain(vm=False)
    p(f"""v_mov_b32 v6, s44
    v_mov_b32 v7, s45
    s_mov_b64 exec, 1
    global_store_dwordx2 v5, v[6:7], s[{P_DBG}:{P_DBG+1}] sc1
    s_mov_b64 exec, -1
    {l_n}:""")
    p(f"s_lshl_b32 s47, s{S_XCD}, 5\ns_add_u32 s47, s47, s{S_IDX}")
    ln_addr(p, 47, V_LANE, VROW, VFR, 6, 48)
    l1 = p.label("w3")
    p(f"s_cmp_eq_u32 s{S_WAVE}, 3\ns_cbranch_scc1 {l1}")
    for i in range(3):
        p(f"buffer_load_dwordx4 v[{VRAW+4*i}:{VRAW+4*i+3}], v{VROW}, s[{S_X}:{S_X+3}], 0 offen offset:{128*i}")
    p(f"{l1}:")
    l_q, l_w, l_u = p.label("uq"), p.label("uw"), p.label("uend")
    p(f"""s_mov_b32 s{S_ROLE}, 0
    s_and_b32 s{S_STG}, s{S_WAVE}, 1
    s_lshl_b32 s{S_STG}, s{S_STG}, 13
    s_mul_i32 s{S_U}, s{S_XCD}, 36
    s_add_u32 s{S_U}, s{S_U}, s{S_IDX}
    s_cmp_eq_u32 s{S_WAVE}, 3
    s_cbranch_scc1 {l_q}
    s_cmp_lg_u32 s{S_WAVE}, 2
    s_cbranch_scc1 {l_u}
    s_add_u32 s{S_U}, s{S_U}, 32
    s_cmp_lt_u32 s{S_IDX}, 4
    s_cbranch_scc1 {l_q}
    s_cmp_ge_u32 s{S_IDX}, 18
    s_cbranch_scc1 {l_u}
    s_mul_i32 s{S_U}, s{S_XCD}, 14
    s_add_u32 s{S_U}, s{S_U}, s{S_IDX}
    s_sub_u32 s{S_U}, s{S_U}, 4
    s_cmp_ge_u32 s{S_U}, 108
    s_cbranch_scc1 {l_u}
    s_mov_b32 s{S_ROLE}, 2""")
    wo_unit_issue(p, S_U, S_STG, V_LANE, 64, ST_)
    p(f"""s_lshl_b32 s69, s{ST_}, 5
    s_add_u32 s69, s69, s{ST_+1}
    s_lshl_b32 s69, s69, 3
    s_add_u32 s69, s69, {FWO}
    s_branch {l_u}
    {l_q}:
    s_mov_b32 s{S_ROLE}, 1
    s_lshr_b32 s69, s{S_U}, 4
    s_and_b32 s{S_U}, s{S_U}, 15
    s_mul_i32 s{S_U}, s{S_U}, 18
    s_add_u32 s{S_U}, s{S_U}, s69""")
    qkv_unit_issue(p, S_U, S_STG, V_LANE, 64, ST_)
    p(f"""s_lshl_b32 s69, s{ST_}, 5
    s_add_u32 s69, s69, s{ST_+1}
    s_lshl_b32 s69, s69, 3
    s_add_u32 s69, s69, {FWQ}
    {l_u}:""")
    gu_lane_table(p, V_LANE, VTAB, 64)
    p(f"""s_lshl_b32 s70, s{S_XCD}, 7
    s_lshl_b32 s71, s{S_IDX}, 2
    s_add_u32 s70, s70, s71
    s_add_u32 s70, s70, s{S_WAVE}""")
    gu_setup(p, 70, S_O, SB0, 92)
    pn = NoncePoll(p, 6, 5, 0, "pn")
    p.add(pn.issue())
    l2, l3 = p.label("w3"), p.label("w3")
    p(f"s_cmp_eq_u32 s{S_WAVE}, 3\ns_cbranch_scc1 {l2}")
    for i in range(3): unpack8(p, VX + 8 * i, VRAW + 4 * i)
    ln_local_stats(p, VX, VS, VS + 1, 64)
    p(f"""v_and_b32 v64, 7, v{V_LANE}
    s_mul_i32 s46, s{S_WAVE}, 64
    s_add_u32 s46, s46, {LDS_LN}
    v_lshl_add_u32 v64, v64, 3, s46
    ds_write_b64 v64, v[{VS}:{VS+1}]""")
    p.drain(vm=False)
    p(f"{l2}:\ns_barrier\ns_cmp_eq_u32 s{S_WAVE}, 3\ns_cbranch_scc1 {l3}")
    p(f"v_and_b32 v64, 7, v{V_LANE}\nv_lshlrev_b32 v64, 3, v64\nv_add_u32 v64, {LDS_LN}, v64")
    for w in range(3): p(f"ds_read_b64 v[{VS+2*w}:{VS+2*w+1}], v64 offset:{64*w}")
    ln_finish(p, VX, VS, VO, 64)
    p(f"s_mov_b32 s46, {LB(0)+XN}")
    for i in range(3):
        if i == 2: p("s_add_u32 s46, s46, 4096")
        p(f"buffer_store_dwordx4 v[{VO+4*i}:{VO+4*i+3}], v{VFR}, {WSR}, s46 offen offset:{2048*(i&1)} sc1")
    p(f"{l3}:")
    l_fw, l_fe = p.label("fw"), p.label("fe")
    p(f"s_cmp_eq_u32 s{S_ROLE}, 0\ns_cbranch_scc1 {l_fe}\ns_cmp_eq_u32 s{S_ROLE}, 2\ns_cbranch_scc1 {l_fw}")
    qkv_unit_finish(p, S_STG, V_LANE, V_L16, 72, 64, ST_, " sc1")
    p(f"s_branch {l_fe}\n{l_fw}:")
    wo_unit_finish(p, S_STG, V_LANE, V_L16, 72, 64, ST_, " sc1")
    p(f"{l_fe}:")
    p.add(pn.check())
    p(f"v_readfirstlane_b32 s{S_NONCE}, v6\nv_readfirstlane_b32 s{S_NONCE+1}, v7")
    p.drain(lg=False)
    l4, l5 = p.label("w3"), p.label("norole")
    p(f"""s_cmp_eq_u32 s{S_WAVE}, 3
    s_cbranch_scc1 {l4}
    s_lshl_b32 s46, s47, 2
    s_add_u32 s46, s46, s{S_WAVE}
    s_lshl_b32 s46, s46, 3
    s_add_u32 s46, s46, {FX(0)}""")
    p.add(signal_items(46, 6))
    p(f"{l4}:\ns_cmp_eq_u32 s{S_ROLE}, 0\ns_cbranch_scc1 {l5}")
    p.add(signal_items(69, 6))
    p(f"{l5}:")
    p(f"""s_sub_u32 s70, s{S_IDX}, 24
    s_lshl_b32 s70, s70, 1
    s_add_u32 s70, s70, s{S_WAVE}
    s_lshl_b32 s71, s{S_XCD}, 4
    s_add_u32 s70, s70, s71
    s_add_u32 s70, s70, 1024""")
    gu_setup(p, 70, S_A, SB1, 92)

def idle0(p):
    p(f"s_mul_i32 s66, s{S_WAVE}, {3*9216}\ns_add_u32 s67, s66, 9216\ns_add_u32 s68, s67, 9216")
    p(f"""s_sub_u32 s23, s{S_IDX}, 24
    s_lshl_b32 s23, s23, 2
    s_add_u32 s23, s23, s{S_WAVE}
    s_mul_i32 s69, s{S_XCD}, 72
    s_add_u32 s69, s69, s23
    s_add_u32 s69, s69, 1152""")
    p(f"s_mul_i32 s70, s{S_WAVE}, 9216\ns_add_u32 s70, s70, {LDS_STG}")
    gu_finish(p, SB0, 70, A_U0, V_LANE, V_L16, 72, 64, 71)
    l = p.label("one")
    p(f"s_cmp_ge_u32 s{S_WAVE}, 2\ns_cbranch_scc1 {l}")
    gu_finish(p, SB1, 70, A_U1, V_LANE, V_L16, 72, 64, 71)
    signal(p, SB1 + 3, 8)
    p(f"{l}:")
    signal(p, SB0 + 3, 8)
    UA, UB, ST_ = 44, 72, 90
    def setup(sb, srd_, lds, tag):
        ffn_unit_setup(p, 69, sb, srd_, ST_, donly=True)
        p(f"""s_lshl_b32 s{sb+U_CS}, s{sb+U_SL}, 6
        s_add_u32 s{sb+U_CS}, s{sb+U_CS}, s{ST_}
        s_lshl_b32 s{sb+U_CS}, s{sb+U_CS}, 3
        s_add_u32 s{sb+U_CS}, s{sb+U_CS}, {FW+36*8}""")
        shuffle_dma(p, srd_, 18, 9, sb + U_ROW, sb + U_GRS, sb + U_HRS, sb + U_RS, lds, V_LANE, 64, tag)
    def finish(sb, lds, tag):
        ffn_unit_finish(p, sb, lds, V_LANE, V_L16, 72, 64, tag, " sc1", cs=False)
    setup(UA, S_A, 66, "u0")
    p("s_add_u32 s69, s69, 32")
    setup(UB, S_O, 67, "u1")
    finish(UA, 66, "u0")
    p(f"s_mov_b32 s61, s{UA+U_CS}")
    l3, l4 = p.label("no3"), p.label("no3b")
    p(f"s_cmp_ge_u32 s23, 8\ns_cbranch_scc1 {l3}\ns_add_u32 s69, s69, 32")
    setup(UA, S_A, 68, "u2")
    p(f"{l3}:")
    finish(UB, 67, "u1")
    p(f"s_cmp_ge_u32 s23, 8\ns_cbranch_scc1 {l4}")
    finish(UA, 68, "u2")
    signal(p, UA + U_CS, 8)
    p(f"{l4}:")
    signal(p, 61, 8)
    p.add(signal_items(UB + U_CS, 8))

def gen_main(name):
    Poll.ool.clear()
    p = Prog(); end = f"{name}_end"
    OPT.setdefault("codepf", 1)
    prologue(p, end, code_pf=1, pf_reg=250, pf_end=f"{name}_last")
    p(f"s_mov_b32 s{S_LB}, {LB(0)}\ns_mov_b32 s{S_LF}, 0")
    phase0(p)
    qkv_setup(p, 0)
    l_s2 = p.label("no2")
    extra = gu_loads(S_O, SB0, VTAB, A_U0)
    extra.append([ins(f"s_cmp_lt_u32 s{S_IDX}, 24"), ins(f"s_cbranch_scc1 {l_s2}"), ins(f"s_cmp_ge_u32 s{S_WAVE}, 2"), ins(f"s_cbranch_scc1 {l_s2}")]
                 + gu_loads(S_A, SB1, VTAB, A_U1) + [Label(l_s2)])
    qkv_main(p, 0, extra)
    l_idle0, l_ffn, l_red1, l_next = p.label("idle0"), p.label("ffn"), p.label("red1"), p.label("next")
    p(f"s_cmp_ge_u32 s{S_IDX}, 24\ns_cbranch_scc1 {l_idle0}")
    def mid():
        p(f"s_mul_i32 s70, s{S_WAVE}, 9216\ns_add_u32 s70, s70, {LDS_STG}")
        gu_finish(p, SB0, 70, A_U0, V_LANE, V_L16, 72, 64, 71)
    wo_part(p, 0, mid, lambda: p.add(signal_items(SB0 + 3, 8)))
    stamp_flush(p, 0, 9, light=True)
    p(f"s_branch {l_ffn}\n{l_idle0}:")
    idle0(p)
    p(f"{l_ffn}:")
    stamp(p, 0)
    ffn_phase(p)
    stamp_flush(p, 1, 12, light=True, s_row=S_LF)
    p(f"s_cmp_lg_u32 s{S_LF}, 0\ns_cbranch_scc1 {l_red1}")
    stamp(p, 0)
    def pre():
        p("s_barrier")
        qkv_setup(p, 1)
        p.add(qkv_wdma(0)); p.add(qkv_wdma(1))
    reduce_phase(p, 0, LDS_LN, pre=pre)
    qkv_setup(p, 1)
    p.add(qkv_wdma(2))
    stamp(p, 2); stamp_flush(p, 2, 3, light=True); stamp(p, 0)
    qkv_main(p, 1)
    p(f"s_cmp_ge_u32 s{S_IDX}, 24\ns_cbranch_scc1 {l_next}")
    wo_part(p, 1)
    stamp_flush(p, 3, 9, light=True)
    p(f"{l_next}:")
    if STAMP[0]: p.drain(vm=False)
    p(f"s_mov_b32 s{S_LB}, {LB(1)}\ns_mov_b32 s{S_LF}, 0x2000\ns_branch {l_ffn}\n{l_red1}:")
    stamp(p, 0)
    reduce_phase(p, 1, LDS_LN)
    stamp(p, 2); p.drain(); stamp(p, 3); stamp_flush(p, 5, 4)
    p(f"{end}:\ns_endpgm")
    for pl in Poll.ool: pl.slow_path(p)
    p.add(Raw(f"{name}_last:\n    s_endpgm"))
    t = p.finalize()
    print(name, p.stats)
    return kernel_text(name, t, vgpr=512, accum=256), (256, 256, LDS_TOTAL)
```

```python
from common import *

def shuffle_dma(p, srd_, ppr, ndma, s_rowbase, s_grs, s_hrs, s_rs, s_lds, v_lane, vt, tag, qkv=False):
    for i in range(ndma):
        p(f"""v_add_u32 v{vt}, {64*i}, v{v_lane}
        v_mul_u32_u24 v{vt+1}, {magic(ppr, 64*ndma)}, v{vt}
        v_lshrrev_b32 v{vt+1}, 16, v{vt+1}
        v_mul_u32_u24 v{vt+2}, {ppr}, v{vt+1}
        v_sub_u32 v{vt}, v{vt}, v{vt+2}""")
        if qkv:
            p(f"""v_mul_u32_u24 v{vt+2}, {magic(5, 16)}, v{vt}
            v_lshrrev_b32 v{vt+2}, 16, v{vt+2}
            v_mul_u32_u24 v{vt+2}, {1152-80}, v{vt+2}
            v_lshl_add_u32 v{vt}, v{vt}, 4, v{vt+2}""")
        else:
            p(f"v_lshlrev_b32 v{vt}, 4, v{vt}")
        p(f"""v_lshrrev_b32 v{vt+2}, 3, v{vt+1}
        v_mul_lo_u32 v{vt+2}, v{vt+2}, s{s_grs}
        v_bfe_u32 v{vt+3}, v{vt+1}, 2, 1
        v_mul_lo_u32 v{vt+3}, v{vt+3}, s{s_hrs}
        v_and_b32 v{vt+1}, 3, v{vt+1}
        v_mul_lo_u32 v{vt+1}, v{vt+1}, s{s_rs}
        v_add3_u32 v{vt}, v{vt}, v{vt+2}, v{vt+3}
        v_add3_u32 v{vt}, v{vt}, v{vt+1}, s{s_rowbase}
        s_add_u32 m0, s{s_lds}, {1024*i}""")
        p(f"buffer_load_dwordx4 v{vt}, s[{srd_}:{srd_+3}], 0 offen lds", tag=tag)

def tr_base(p, vd, v_lane, stride, s_lds, vt):
    p(f"""v_lshrrev_b32 v{vd}, 4, v{v_lane}
    v_bfe_u32 v{vt}, v{v_lane}, 2, 2
    v_lshl_add_u32 v{vd}, v{vd}, 3, v{vt}
    v_mul_u32_u24 v{vd}, {stride}, v{vd}
    v_add_u32 v{vd}, s{s_lds}, v{vd}
    v_and_b32 v{vt}, 3, v{v_lane}""")

def tr_frag(p, vf, va, off, stride):
    p(f"ds_read_b64_tr_b16 v[{vf}:{vf+1}], v{va} offset:{off}")
    p(f"ds_read_b64_tr_b16 v[{vf+2}:{vf+3}], v{va} offset:{off+4*stride}")

U_ROW, U_GRS, U_HRS, U_RS, U_PB, U_T8, U_SL, U_CS = range(0, 8)
U_DST = 8
U_N = 17

def ffn_unit_setup(p, s_u, sb, ssrd, st, donly=False):
    L = p.label
    l_d, l_done = L("ud"), L("udone")
    if not donly:
        p(f"s_cmp_ge_u32 s{s_u}, 1152\ns_cbranch_scc1 {l_d}")
        sdiv(p, sb + U_SL, s_u, 36, 1152)
        p(f"""s_mul_i32 s{st}, s{sb+U_SL}, 36
        s_sub_u32 s{st}, s{s_u}, s{st}
        s_and_b32 s{st+1}, s{st}, 1
        s_lshr_b32 s{st+2}, s{st}, 1
        s_cmp_eq_u32 s{st+1}, 0
        s_cselect_b32 s{ssrd}, s{P_WG}, s{P_WU}
        s_cselect_b32 s{ssrd+1}, s{P_WG+1}, s{P_WU+1}
        s_mul_i32 s{sb+U_ROW}, s{st+2}, {32*9216}
        s_mul_i32 s{st+3}, s{sb+U_SL}, 288
        s_add_u32 s{sb+U_ROW}, s{sb+U_ROW}, s{st+3}
        s_mov_b32 s{sb+U_GRS}, {8*9216}
        s_mov_b32 s{sb+U_HRS}, {4*9216}
        s_mov_b32 s{sb+U_RS}, 9216
        s_mov_b32 s{sb+U_PB}, 0
        s_mov_b32 s{sb+U_T8}, 256
        s_mul_i32 s{st+3}, s{sb+U_SL}, 486
        s_add_u32 s{st+3}, s{st+3}, s{st}
        s_lshl_b32 s{st+3}, s{st+3}, 10
        s_add_u32 s{st+3}, s{st+3}, {WF}""")
        for n in range(9):
            p(f"s_add_u32 s{sb+U_DST+n}, s{st+3}, {pos_of_tile(n)*36*1024}")
        p(f"""s_lshl_b32 s{st+3}, s{sb+U_SL}, 1
        s_add_u32 s{st+3}, s{st+3}, s{st+1}
        s_mul_i32 s{st+3}, s{st+3}, 18
        s_add_u32 s{st+3}, s{st+3}, s{st+2}
        s_mul_i32 s{st+3}, s{st+3}, 576
        s_add_u32 s{sb+U_CS}, s{st+3}, {CSP}
        s_branch {l_done}""")
    p(f"{l_d}:")
    p(f"s_sub_u32 s{st}, s{s_u}, 1152")
    sdiv(p, sb + U_SL, st, 18, 576)
    p(f"""s_mul_i32 s{st+1}, s{sb+U_SL}, 18
    s_sub_u32 s{st}, s{st}, s{st+1}
    s_mov_b32 s{ssrd}, s{P_WD}
    s_mov_b32 s{ssrd+1}, s{P_WD+1}
    s_mov_b32 s{sb+U_CS}, 0
    s_mov_b32 s{sb+U_RS}, 1152
    s_and_b32 s{st+1}, s{sb+U_SL}, 3
    s_and_b32 s{st+2}, s{st+1}, 1
    s_lshl_b32 s{sb+U_PB}, s{st+2}, 5
    s_cmp_eq_u32 s{st+2}, 0
    s_cselect_b32 s{sb+U_T8}, 256, 0
    s_mov_b32 s{st+5}, {-144*1152}
    s_cselect_b32 s{st+5}, {144*1152}, s{st+5}""")
    l_sh, l_rm, l_rows = L("ush"), L("urm"), L("urows")
    p(f"""s_mov_b32 s{sb+U_GRS}, {8*1152}
    s_mov_b32 s{sb+U_HRS}, {4*1152}
    s_cmp_ge_u32 s{st}, 4
    s_cbranch_scc1 {l_sh}
    s_mov_b32 s{st+3}, s{st+1}
    s_lshl_b32 s{st+4}, s{st}, 5
    s_branch {l_rows}
    {l_sh}:
    s_cmp_ge_u32 s{st}, 6
    s_cbranch_scc1 {l_rm}
    s_sub_u32 s{st+3}, s{st}, 4
    s_lshl_b32 s{st+3}, s{st+3}, 1
    s_xor_b32 s{st+3}, s{st+3}, s{st+1}
    s_mov_b32 s{st+4}, 128
    s_mov_b32 s{sb+U_GRS}, {4*1152}
    s_mov_b32 s{sb+U_HRS}, s{st+5}
    s_branch {l_rows}
    {l_rm}:
    s_sub_u32 s{st+3}, s{st}, 6""")
    sdiv(p, st + 4, st + 3, 3, 12)
    p(f"""s_mul_i32 s{st+5}, s{st+4}, 3
    s_sub_u32 s{st+3}, s{st+3}, s{st+5}
    s_add_u32 s{st+3}, s{st+3}, 1
    s_xor_b32 s{st+3}, s{st+3}, s{st+1}
    s_lshl_b32 s{st+4}, s{st+4}, 5
    {l_rows}:
    s_mul_i32 s{st+3}, s{st+3}, 144
    s_add_u32 s{st+3}, s{st+3}, s{st+4}
    s_lshr_b32 s{st+4}, s{sb+U_SL}, 2
    s_mul_i32 s{st+4}, s{st+4}, 576
    s_add_u32 s{st+3}, s{st+3}, s{st+4}
    s_mul_i32 s{st+3}, s{st+3}, 1152
    s_mul_i32 s{st+4}, s{st+1}, 288
    s_add_u32 s{sb+U_ROW}, s{st+3}, s{st+4}
    s_mul_i32 s{st+3}, s{sb+U_SL}, 486
    s_add_u32 s{st+3}, s{st+3}, 324
    s_lshl_b32 s{st+3}, s{st+3}, 10
    s_add_u32 s{st+3}, s{st+3}, {WF}""")
    order = gemm2_order()
    idx = {k: i for i, k in enumerate(order)}
    l_b, l_c = L("ub"), L("uc")
    def dests(st0, nsteps):
        strides = sorted({idx[(st0 + 1, n)] - idx[(st0, n)] for n in range(9)})
        p(f"s_sub_u32 s{st+4}, s{st}, {st0}")
        for n in range(9):
            sd = idx[(st0 + 1, n)] - idx[(st0, n)]
            for k in range(nsteps): assert idx[(st0 + k, n)] == idx[(st0, n)] + k * sd
            p(f"""s_mul_i32 s{st+5}, s{st+4}, {sd*1024}
            s_add_u32 s{st+5}, s{st+5}, {idx[(st0, n)]*1024}
            s_add_u32 s{sb+U_DST+n}, s{st+5}, s{st+3}""")
    p(f"s_cmp_ge_u32 s{st}, 3\ns_cbranch_scc1 {l_b}")
    dests(0, 3); p(f"s_branch {l_done}\n{l_b}:")
    p(f"s_cmp_ge_u32 s{st}, 9\ns_cbranch_scc1 {l_c}")
    dests(3, 6); p(f"s_branch {l_done}\n{l_c}:")
    dests(9, 9)
    p(f"{l_done}:")
    p(f"s_mov_b32 s{ssrd+2}, {D*F*2:#x}\ns_mov_b32 s{ssrd+3}, 0x20000")

def ffn_unit_finish(p, sb, s_lds, v_lane, v_l16, vf, vt, tag, sc="", cs=True):
    va, vb = vt, vt + 1
    tr_base(p, va, v_lane, 288, s_lds, vt + 2)
    p(f"""v_lshl_add_u32 v{vb}, v{vt+2}, 3, v{va}
    v_add_u32 v{vb}, s{sb+U_T8}, v{vb}
    v_lshl_add_u32 v{va}, v{vt+2}, 4, v{va}
    v_add_u32 v{va}, s{sb+U_PB}, v{va}""")
    p.wait_vm(tag)
    for n in range(9):
        if n < 8: tr_frag(p, vf + 4 * n, va, 64 * (n >> 1) + 8 * (n & 1), 288)
        else: tr_frag(p, vf + 4 * n, vb, 0, 288)
    for n in range(9):
        p(f"buffer_store_dwordx4 v[{vf+4*n}:{vf+4*n+3}], v{v_l16}, s[{S_WS}:{S_WS+3}], s{sb+U_DST+n} offen{sc}")
    if not cs: return
    l_skip = p.label("nocs")
    p(f"s_cmp_eq_u32 s{sb+U_CS}, 0\ns_cbranch_scc1 {l_skip}")
    p.cond_begin()
    vo, vd = vt + 4, vf + 36
    for j in range(4): p(f"v_mov_b32 v{vo+j}, {BF16_ONES:#x}")
    for n in range(9):
        p(f"v_mfma_f32_16x16x32_bf16 v[{vd+4*n}:{vd+4*n+3}], v[{vf+4*n}:{vf+4*n+3}], v[{vo}:{vo+3}], 0")
    p(f"""v_and_b32 v{vt+2}, 15, v{v_lane}
    v_cmp_eq_u32 vcc, 0, v{vt+2}
    s_and_saveexec_b64 s[44:45], vcc""")
    for n in range(9):
        p(f"buffer_store_dwordx4 v[{vd+4*n}:{vd+4*n+3}], v{v_lane}, s[{S_WS}:{S_WS+3}], s{sb+U_CS} offen offset:{pos_of_tile(n)*64}{sc}")
    p("s_mov_b64 exec, s[44:45]")
    p.cond_end()
    p(f"{l_skip}:")

def qkv_unit_issue(p, s_u, s_lds, v_lane, vt, st, srd_=S_A):
    sdiv(p, st, s_u, 18, 288)
    p(f"""s_mul_i32 s{st+1}, s{st}, 18
    s_sub_u32 s{st+1}, s{s_u}, s{st+1}
    s_mul_i32 s{st+2}, s{st}, 72
    s_and_b32 s{st+3}, s{st+2}, 8
    s_and_b32 s{st+2}, s{st+2}, -16
    s_mul_i32 s{st+4}, s{st+1}, {32*3456}
    s_add_u32 s{st+2}, s{st+2}, s{st+4}
    s_mov_b32 s{st+4}, {8*3456}
    s_mov_b32 s{st+5}, {4*3456}
    s_mov_b32 s{st+6}, 3456
    s_mul_i32 s{st+7}, s{s_u}, {7*1024}""")
    srd(p, srd_, P_WQKV, D * 3 * D * 2)
    shuffle_dma(p, srd_, 15, 8, st + 2, st + 4, st + 5, st + 6, s_lds, v_lane, vt, "au", qkv=True)

def qkv_unit_finish(p, s_lds, v_lane, v_l16, vf, vt, st, sc=""):
    va, vb = vt, vt + 1
    tr_base(p, va, v_lane, 240, s_lds, vt + 2)
    p(f"""v_add_u32 v{va}, s{st+3}, v{va}
    v_and_b32 v{vt+3}, 1, v{vt+2}
    v_mul_u32_u24 v{vt+3}, 160, v{vt+3}
    v_lshrrev_b32 v{vb}, 1, v{vt+2}
    v_mul_u32_u24 v{vb}, 80, v{vb}
    v_add3_u32 v{vb}, v{vb}, v{vt+3}, v{va}
    v_cmp_eq_u32 vcc, 3, v{vt+2}
    v_cndmask_b32 v{vb}, v{vb}, v{va}, vcc
    v_lshl_add_u32 v{va}, v{vt+2}, 3, v{va}""")
    p.wait_vm("au")
    for t in range(6): tr_frag(p, vf + 4 * t, va, 80 * (t >> 1) + 40 * (t & 1), 240)
    tr_frag(p, vf + 24, vb, 32, 240)
    p(f"v_and_b32 v{vt+2}, 15, v{v_lane}\nv_cmp_gt_u32 vcc, 12, v{vt+2}")
    for j in range(4): p(f"v_cndmask_b32 v{vf+24+j}, 0, v{vf+24+j}, vcc")
    p(f"s_add_u32 s{st+7}, s{st+7}, {WQ}")
    for t in range(7):
        if t == 4: p(f"s_add_u32 s{st+7}, s{st+7}, 4096")
        p(f"buffer_store_dwordx4 v[{vf+4*t}:{vf+4*t+3}], v{v_l16}, s[{S_WS}:{S_WS+3}], s{st+7} offen offset:{(t&3)*1024}{sc}")

def qkv_unit(p, s_u, s_lds, v_lane, v_l16, vf, vt, st, sc=""):
    qkv_unit_issue(p, s_u, s_lds, v_lane, vt, st); qkv_unit_finish(p, s_lds, v_lane, v_l16, vf, vt, st, sc)

def wo_unit_issue(p, s_u, s_lds, v_lane, vt, st, srd_=S_A):
    sdiv(p, st, s_u, 18, 108)
    p(f"""s_mul_i32 s{st+1}, s{st}, 18
    s_sub_u32 s{st+1}, s{s_u}, s{st+1}
    s_mul_i32 s{st+2}, s{st+1}, {36*1152}
    s_sub_u32 s{st+3}, s{st+1}, 16
    s_mul_i32 s{st+3}, s{st+3}, {288*1152}
    s_add_u32 s{st+3}, s{st+3}, {16*1152}
    s_cmp_lt_u32 s{st+1}, 16
    s_cselect_b32 s{st+2}, s{st+2}, s{st+3}
    s_mov_b32 s{st+4}, {72*1152}
    s_mov_b32 s{st+5}, {36*1152}
    s_cselect_b32 s{st+4}, {4*1152}, s{st+4}
    s_cselect_b32 s{st+5}, {20*1152}, s{st+5}
    s_mul_i32 s{st+3}, s{st}, 192
    s_add_u32 s{st+2}, s{st+2}, s{st+3}
    s_mov_b32 s{st+6}, 1152
    s_mul_i32 s{st+7}, s{s_u}, {6*1024}""")
    srd(p, srd_, P_WO, D * D * 2)
    shuffle_dma(p, srd_, 12, 6, st + 2, st + 4, st + 5, st + 6, s_lds, v_lane, vt, "au")

def wo_unit_finish(p, s_lds, v_lane, v_l16, vf, vt, st, sc=""):
    va = vt
    tr_base(p, va, v_lane, 192, s_lds, vt + 2)
    p(f"v_lshl_add_u32 v{va}, v{vt+2}, 4, v{va}")
    p.wait_vm("au")
    for t in range(6): tr_frag(p, vf + 4 * t, va, 64 * (t >> 1) + 8 * (t & 1), 192)
    p(f"s_add_u32 s{st+7}, s{st+7}, {WOS}")
    for t in range(6):
        if t == 4: p(f"s_add_u32 s{st+7}, s{st+7}, 4096")
        p(f"buffer_store_dwordx4 v[{vf+4*t}:{vf+4*t+3}], v{v_l16}, s[{S_WS}:{S_WS+3}], s{st+7} offen offset:{(t&3)*1024}{sc}")

def wo_unit(p, s_u, s_lds, v_lane, v_l16, vf, vt, st, sc=""):
    wo_unit_issue(p, s_u, s_lds, v_lane, vt, st); wo_unit_finish(p, s_lds, v_lane, v_l16, vf, vt, st, sc)

def gu_lane_table(p, v_lane, vtab, vt):
    for i in range(9):
        p(f"""v_add_u32 v{vt}, {64*i}, v{v_lane}
        v_mul_u32_u24 v{vt+1}, {magic(18, 576)}, v{vt}
        v_lshrrev_b32 v{vt+1}, 16, v{vt+1}
        v_mul_u32_u24 v{vt+1}, {9216-288}, v{vt+1}
        v_lshl_add_u32 v{vtab+i}, v{vt}, 4, v{vt+1}""")

def gu_setup(p, s_u, srd_, sb, st):
    p(f"""s_lshr_b32 s{st}, s{s_u}, 5
    s_and_b32 s{st+1}, s{s_u}, 31
    s_and_b32 s{st+2}, s{st}, 1
    s_cmp_eq_u32 s{st+2}, 0
    s_cselect_b32 s{srd_}, s{P_WG}, s{P_WU}
    s_cselect_b32 s{srd_+1}, s{P_WG+1}, s{P_WU+1}
    s_mov_b32 s{srd_+2}, {D*F*2:#x}
    s_mov_b32 s{srd_+3}, 0x20000
    s_lshr_b32 s{st+3}, s{st}, 1
    s_mul_i32 s{sb}, s{st+3}, {32*9216}
    s_mul_i32 s{st+4}, s{st+1}, 288
    s_add_u32 s{sb}, s{sb}, s{st+4}
    s_mul_i32 s{st+4}, s{st+1}, 486
    s_add_u32 s{st+4}, s{st+4}, s{st}
    s_lshl_b32 s{st+4}, s{st+4}, 10
    s_add_u32 s{sb+1}, s{st+4}, {WF}
    s_lshl_b32 s{st+4}, s{st+1}, 1
    s_add_u32 s{st+4}, s{st+4}, s{st+2}
    s_mul_i32 s{st+4}, s{st+4}, 18
    s_add_u32 s{st+4}, s{st+4}, s{st+3}
    s_mul_i32 s{st+4}, s{st+4}, 576
    s_add_u32 s{sb+2}, s{st+4}, {CSP}
    s_lshl_b32 s{st+4}, s{st+1}, 6
    s_add_u32 s{st+4}, s{st+4}, s{st}
    s_lshl_b32 s{st+4}, s{st+4}, 3
    s_add_u32 s{sb+3}, s{st+4}, {FW}""")

def gu_loads(srd_, sb, vtab, abase):
    return [ins(f"buffer_load_dwordx4 a[{abase+4*i}:{abase+4*i+3}], v{vtab+i}, s[{srd_}:{srd_+3}], s{sb} offen") for i in range(9)]

def gu_finish(p, sb, s_lds, abase, v_lane, v_l16, vf, vt, st, sc=" sc1"):
    va, vb = vt, vt + 1
    p(f"v_add_u32 v{va}, s{s_lds}, v{v_l16}")
    for i in range(9): p(f"ds_write_b128 v{va}, a[{abase+4*i}:{abase+4*i+3}] offset:{1024*i}")
    tr_base(p, vb, v_lane, 288, s_lds, vt + 2)
    p(f"""v_lshl_add_u32 v{va}, v{vt+2}, 4, v{vb}
    v_lshl_add_u32 v{vb}, v{vt+2}, 3, v{vb}""")
    vo, vd = vt + 4, vf + 36
    for j in range(4): p(f"v_mov_b32 v{vo+j}, {BF16_ONES:#x}")
    for n in range(9):
        if n < 8: tr_frag(p, vf + 4 * n, va, 64 * (n >> 1) + 8 * (n & 1), 288)
        else: tr_frag(p, vf + 4 * n, vb, 256, 288)
    for n in range(9):
        p(f"s_add_u32 s{st}, s{sb+1}, {pos_of_tile(n)*36*1024}")
        p(f"buffer_store_dwordx4 v[{vf+4*n}:{vf+4*n+3}], v{v_l16}, s[{S_WS}:{S_WS+3}], s{st} offen{sc}")
        p(f"v_mfma_f32_16x16x32_bf16 v[{vd+4*n}:{vd+4*n+3}], v[{vf+4*n}:{vf+4*n+3}], v[{vo}:{vo+3}], 0")
    p(f"v_and_b32 v{vt+2}, 15, v{v_lane}")
    for n in range(1, 9):
        p(f"v_cmp_eq_u32 vcc, {n}, v{vt+2}")
        for j in range(4): p(f"v_cndmask_b32 v{vd+j}, v{vd+j}, v{vd+4*n+j}, vcc")
    p(f"""v_add_u32 v{vt+3}, 1, v{vt+2}
    v_cmp_gt_u32 vcc, 8, v{vt+2}
    v_cndmask_b32 v{vt+3}, 0, v{vt+3}, vcc
    v_lshlrev_b32 v{vt+3}, 6, v{vt+3}
    v_and_b32 v{va}, 48, v{v_lane}
    v_add_u32 v{vt+3}, v{vt+3}, v{va}
    s_mov_b32 exec_lo, 0x01ff01ff
    s_mov_b32 exec_hi, 0x01ff01ff
    buffer_store_dwordx4 v[{vd}:{vd+3}], v{vt+3}, s[{S_WS}:{S_WS+3}], s{sb+2} offen{sc}
    s_mov_b64 exec, -1""")

def ln_addr(p, s_tg, v_lane, v_row, v_frag, vt, st):
    p(f"""v_and_b32 v{vt}, 7, v{v_lane}
    v_lshrrev_b32 v{vt+1}, 3, v{v_lane}
    s_lshl_b32 s{st}, s{s_tg}, 3
    v_add_u32 v{v_row}, s{st}, v{vt}
    v_mul_u32_u24 v{v_row}, 1152, v{v_row}
    s_mul_i32 s{st}, s{S_WAVE}, {24*16}
    v_lshl_add_u32 v{v_row}, v{vt+1}, 4, v{v_row}
    v_add_u32 v{v_row}, s{st}, v{v_row}
    s_lshr_b32 s{st}, s{s_tg}, 1
    s_mul_i32 s{st}, s{st}, {18*1024}
    s_and_b32 s{st+1}, s{s_tg}, 1
    s_lshl_b32 s{st+1}, s{st+1}, 7
    s_add_u32 s{st}, s{st}, s{st+1}
    s_mul_i32 s{st+1}, s{S_WAVE}, {6*1024}
    s_add_u32 s{st}, s{st}, s{st+1}
    v_lshlrev_b32 v{vt}, 4, v{vt}
    v_lshl_add_u32 v{vt}, v{vt+1}, 8, v{vt}
    v_add_u32 v{v_frag}, s{st}, v{vt}""")

def ln_local_stats(p, vx, v_sum, v_m2, vt):
    p(f"v_add_f32 v{v_sum}, v{vx}, v{vx+1}\nv_add_f32 v{vt}, v{vx+2}, v{vx+3}")
    for j in range(4, 24, 2):
        p(f"v_add_f32 v{v_sum}, v{v_sum}, v{vx+j}\nv_add_f32 v{vt}, v{vt}, v{vx+j+1}")
    p(f"v_add_f32 v{v_sum}, v{v_sum}, v{vt}")
    xsum8(p, v_sum); xsum_g(p, v_sum, vt)
    p(f"v_mul_f32 v{vt+1}, {1/192!r}, v{v_sum}".replace(repr(1/192), "0x3baaaaab"))
    p(f"v_sub_f32 v{vt}, v{vx}, v{vt+1}\nv_mul_f32 v{v_m2}, v{vt}, v{vt}")
    for j in range(1, 24):
        p(f"v_sub_f32 v{vt+2+(j&1)}, v{vx+j}, v{vt+1}\nv_fmac_f32 v{v_m2}, v{vt+2+(j&1)}, v{vt+2+(j&1)}")
    xsum8(p, v_m2); xsum_g(p, v_m2, vt)

def ln_finish(p, vx, vs, vo, vt):
    mean, a, b = vt, vt + 1, vt + 2
    p(f"""v_add_f32 v{mean}, v{vs}, v{vs+2}
    v_add_f32 v{mean}, v{mean}, v{vs+4}
    v_mul_f32 v{mean}, 0x3ae38e39, v{mean}
    v_add_f32 v{a}, v{vs+1}, v{vs+3}
    v_add_f32 v{a}, v{a}, v{vs+5}""")
    for w in range(3):
        p(f"""v_mul_f32 v{b}, 0x3baaaaab, v{vs+2*w}
        v_sub_f32 v{b}, v{b}, v{mean}
        v_mul_f32 v{b}, v{b}, v{b}
        v_fmac_f32 v{a}, 0x43400000, v{b}""")
    p(f"v_mul_f32 v{a}, 0x3ae38e39, v{a}")
    round_bf16(p, a)
    p(f"v_add_f32 v{a}, 0x3727c5ac, v{a}")
    round_bf16(p, a)
    p(f"v_sqrt_f32 v{a}, v{a}")
    round_bf16(p, a)
    p(f"v_rcp_f32 v{a}, v{a}")
    round_bf16(p, mean)
    for j in range(0, 24, 2):
        p(f"""v_sub_f32 v{vx+j}, v{vx+j}, v{mean}
        v_sub_f32 v{vx+j+1}, v{vx+j+1}, v{mean}
        v_cvt_pk_bf16_f32 v{b}, v{vx+j}, v{vx+j+1}
        v_lshlrev_b32 v{vx+j}, 16, v{b}
        v_and_b32 v{vx+j+1}, 0xffff0000, v{b}
        v_mul_f32 v{vx+j}, v{vx+j}, v{a}
        v_mul_f32 v{vx+j+1}, v{vx+j+1}, v{a}
        v_cvt_pk_bf16_f32 v{vo+j//2}, v{vx+j}, v{vx+j+1}""")

def ln_exchange_write(p, v_sum, v_lane, vt, lds_off):
    p(f"""v_and_b32 v{vt}, 7, v{v_lane}
    s_mul_i32 s46, s{S_WAVE}, 64
    v_lshl_add_u32 v{vt}, v{vt}, 3, s46
    ds_write_b64 v{vt}, v[{v_sum}:{v_sum+1}] offset:{lds_off}""")

def ln_exchange_read(p, vs, v_lane, vt, lds_off):
    p(f"v_and_b32 v{vt}, 7, v{v_lane}\nv_lshlrev_b32 v{vt}, 3, v{vt}")
    for w in range(3):
        p(f"ds_read_b64 v[{vs+2*w}:{vs+2*w+1}], v{vt} offset:{lds_off+64*w}")

def gen_prep(name, kidx=0):
    p = Prog()
    end = f"{name}_end"
    V_LANE, V_L16 = 1, 2
    prologue(p, end, sbase=98, code_pf=1)
    fin = p.label('fin')
    srd(p, S_X, P_X, XBYTES)
    p(f"""s_lshl_b32 s46, s2, 10
    s_add_u32 s46, s46, {FLAGS}
    v_lshlrev_b32 v5, 2, v0
    v_mov_b32 v6, 0
    buffer_store_dword v6, v5, s[{S_WS}:{S_WS+3}], s46 offen""")
    LDS_LN = 0
    VROW, VFR, VRAW, VX, VS, VO = 3, 4, 8, 20, 44, 52
    p(f"s_lshl_b32 s47, s{S_XCD}, 5\ns_add_u32 s47, s47, s{S_IDX}")
    l_noln = p.label("noln")
    ln_addr(p, 47, V_LANE, VROW, VFR, 5, 48)
    for i in range(3):
        p(f"buffer_load_dwordx4 v[{VRAW+4*i}:{VRAW+4*i+3}], v{VROW}, s[{S_X}:{S_X+3}], 0 offen offset:{128*i}")
    SB0, SB1, ST_ = 50, 68, 86
    p(f"""s_lshl_b32 s23, s2, 2
    s_add_u32 s23, s23, s{S_WAVE}
    s_mul_i32 s94, s{S_WAVE}, {2*9216}
    s_add_u32 s94, s94, 256
    s_add_u32 s95, s94, 9216""")
    ffn_unit_setup(p, 23, SB0, S_A, ST_)
    shuffle_dma(p, S_A, 18, 9, SB0 + U_ROW, SB0 + U_GRS, SB0 + U_HRS, SB0 + U_RS, 94, V_LANE, 64, "u0")
    l_no1 = p.label("no1")
    p(f"s_add_u32 s96, s23, 1024\ns_cmp_ge_u32 s96, 1728\ns_cbranch_scc1 {l_no1}")
    p.cond_begin()
    ffn_unit_setup(p, 96, SB1, S_O, ST_)
    shuffle_dma(p, S_O, 18, 9, SB1 + U_ROW, SB1 + U_GRS, SB1 + U_HRS, SB1 + U_RS, 95, V_LANE, 64, "u1")
    p.cond_end()
    p(f"{l_no1}:")
    for i in range(3): unpack8(p, VX + 8 * i, VRAW + 4 * i)
    ln_local_stats(p, VX, VS, VS + 1, 64)
    ln_exchange_write(p, VS, V_LANE, 64, LDS_LN)
    p.drain(vm=False)
    p("s_barrier")
    ln_exchange_read(p, VS, V_LANE, 64, LDS_LN)
    ln_finish(p, VX, VS, VO, 64)
    p(f"s_cmp_eq_u32 s{S_WAVE}, 3\ns_cbranch_scc1 {l_noln}")
    p.cond_begin()
    p(f"s_mov_b32 s46, {LB(0)+XN}")
    for i in range(3):
        if i == 2: p("s_add_u32 s46, s46, 4096")
        p(f"buffer_store_dwordx4 v[{VO+4*i}:{VO+4*i+3}], v{VFR}, s[{S_WS}:{S_WS+3}], s46 offen offset:{2048*(i&1)}")
    p.cond_end()
    p(f"{l_noln}:")
    ffn_unit_finish(p, SB0, 94, V_LANE, V_L16, 72, 64, "u0")
    l_no2, l_att = p.label("no2"), p.label("att")
    p(f"s_cmp_ge_u32 s96, 1728\ns_cbranch_scc1 {l_no2}")
    p.drain()
    ffn_unit_finish(p, SB1, 95, V_LANE, V_L16, 72, 64, "u1")
    p(f"{l_no2}:")
    p.drain()
    l_wo = p.label("wo")
    p(f"""s_cmp_lt_u32 s23, 628
    s_cbranch_scc1 {fin}
    s_sub_u32 s23, s23, 628
    s_cmp_ge_u32 s23, 288
    s_cbranch_scc1 {l_wo}""")
    qkv_unit(p, 23, 94, V_LANE, V_L16, 72, 64, ST_)
    p.drain()
    p(f"s_branch {fin}\n{l_wo}:\ns_sub_u32 s23, s23, 288")
    wo_unit(p, 23, 94, V_LANE, V_L16, 72, 64, ST_)
    p.drain()
    p(f"{fin}:")
    stamp(p, 1, 98); stamp_flush(p, kidx, 2, 98)
    p(f"{end}:\ns_endpgm")
    return kernel_text(name, p.finalize(), vgpr=152, accum=152), (256, 256, 8 * 9216 + 256)
```

```python
KB = 1024
S, D, F = 2048, 576, 4608
NT, NC = 128, 18
WS_BYTES = 268435456
WQ  = 0x0
WOS = 0x200000
CSP = 0x2C0000
CSF = 0x380000
FLAGS = 0
FLAGBASE = 0x8000000
WF  = 0x400000
def LB(l): return 0x1400000 + l * 0x3000000
XN, OM, OR_, X1, ST, X2R, HB, PB = 0x0, 0x240000, 0x440000, 0x480000, 0x6C0000, 0x700000, 0x940000, 0x1C00000
XBYTES = S * D * 2

def pos_of_tile(n): return 0 if n == 8 else n + 1

def gemm2_order():
    o = []
    for st in range(3):
        for n in (0, 1, 2, 3, 8): o.append((st, n))
    for st in range(3):
        for n in range(4, 8): o.append((st, n))
    for st in range(3, 9):
        for n in range(9): o.append((st, n))
    for grp in ((0, 1), (2, 3), (4, 5), (6, 7), (8,)):
        for st in range(9, 18):
            for n in grp: o.append((st, n))
    assert len(o) == 162
    return o

def d_step_rows(q, m, step):
    Fb = lambda mm: 576 * q + 144 * mm
    if step < 4: Fa, G, H = Fb(m) + 32 * step, 8, 4
    elif step == 4: Fa, G, H = Fb(m) + 128, 4, Fb(m ^ 1) - Fb(m)
    elif step == 5: Fa, G, H = Fb(m ^ 2) + 128, 4, Fb(m ^ 3) - Fb(m ^ 2)
    else:
        i = step - 6
        Fa, G, H = Fb(m ^ (i % 3 + 1)) + 32 * (i // 3), 8, 4
    return [Fa + (r >> 3) * G + ((r >> 2) & 1) * H + (r & 3) for r in range(32)]

def tile_cols(n, pb, t8):
    if n == 8: return [t8 + i for i in range(16)]
    return [pb + 32 * (n >> 1) + 8 * (i >> 2) + 4 * (n & 1) + (i & 3) for i in range(16)]

def wo_rows(c):
    if c < 16: Fa, G, H = 36 * c, 4, 20
    else: Fa, G, H = 36 * 8 * (c - 16) + 16, 72, 36
    return [Fa + (r >> 3) * G + ((r >> 2) & 1) * H + (r & 3) for r in range(32)]

def qkv_cols(hp, tile):
    b = 36 * hp
    if tile < 6:
        return [576 * (tile >> 1) + b + 20 * (tile & 1) + i for i in range(16)]
    return [b + 16 + i for i in range(4)] + [1152 + b + 16 + i for i in range(4)] + [576 + b + 16 + i for i in range(4)] + [None] * 4

def FX(l): return FLAGS + 0x0000 + l * 0x2000
def FO(l): return FLAGS + 0x4000 + l * 0x2000
F1B = FLAGS + 0x8000
FHB = FLAGS + 0xC000
FPB = FLAGS + 0x1C000
FWQ = FLAGS + 0x20000
FWO = FLAGS + 0x21000
FW  = FLAGS + 0x22000
```

```python
from fw import *
from layout import *

S_WS = 4
S_X  = 8
S_A  = 12
S_O  = 16
S_WAVE = 20
S_XCD = 21
S_IDX = 22
S_PTR = 24
P_X, P_WQKV, P_WO, P_WG, P_WU, P_WD, P_OUT, P_DBG, P_WS = 24, 26, 28, 32, 34, 36, 38, 40, 42
BF16_ONES = 0x3F803F80

def srd(p, s, ptr, nbytes):
    p(f"""s_mov_b32 s{s}, s{ptr}
    s_mov_b32 s{s+1}, s{ptr+1}
    s_mov_b32 s{s+2}, {nbytes:#x}
    s_mov_b32 s{s+3}, 0x20000""")

OPT = {}
STAMP = [False]
STAMPS = 0xF000000
def stamp_ins(k, base=72): return ins(f"{'s_memtime' if STAMP[0] == 2 else 's_memrealtime'} s[{base+2*k}:{base+2*k+1}]")
def stamp(p, k, base=72):
    if STAMP[0]: p.add(stamp_ins(k, base))
def stamp_flush(p, kidx, n, base=72, light=False, s_row=None):
    if not STAMP[0]: return
    l = p.label("nostamp")
    p.drain(vm=not light)
    p(f"s_cmp_lg_u32 s{S_WAVE}, {OPT.get('sw', 0) if kidx not in (2, 5) else 0}\ns_cbranch_scc1 {l}\ns_lshl_b32 s23, s2, 7\ns_add_u32 s23, s23, {STAMPS+kidx*256*128}")
    if s_row is not None:
        p(f"s_cmp_lg_u32 s{s_row}, 0\ns_cselect_b32 s96, {3*256*128}, 0\ns_add_u32 s23, s23, s96")
    p("s_mov_b64 exec, 1")
    for k in range(n):
        p(f"v_mov_b32 v8, s{base+2*k}\nv_mov_b32 v9, s{base+2*k+1}\nbuffer_store_dwordx2 v[8:9], off, s[{S_WS}:{S_WS+3}], s23 offset:{8*k}")
    if OPT.get("dbgstamp") is not None:
        l2 = p.label("nodbg")
        sel = {0: ((0, 2), (1, 3), (4, 4), (8, 5)), 1: ((1, 6), (11, 7)), 2: ((2, 8),), 3: ((4, 9), (8, 10)), 5: ((3, 13),), 6: ()}[kidx]
        p(f"s_cmp_lg_u32 s2, {OPT['dbgstamp']}\ns_cbranch_scc1 {l2}")
        if s_row is not None: p(f"s_cmp_lg_u32 s{s_row}, 0\ns_cselect_b32 s96, 20, 0\nv_mov_b32 v9, s96")
        else: p("v_mov_b32 v9, 0")
        for k, slot in sel:
            p(f"s_sub_u32 s96, s{base+2*k}, s98\nv_mov_b32 v8, s96\nglobal_store_dword v9, v8, s[{P_DBG}:{P_DBG+1}] offset:{4*slot}")
        p(f"{l2}:")
    p("s_mov_b64 exec, -1")
    if not light: p.drain()
    p(f"{l}:")

def prologue(p, end_label, nwg=256, v_lane=1, v_l16=2, sbase=72, code_pf=0, pf_reg=4, pf_end=None):
    p(f"s_cmp_ge_u32 s2, {nwg}\ns_cbranch_scc1 {end_label}")
    stamp(p, 0, sbase)
    p(f"""    s_load_dwordx16 s[24:39], s[0:1], 0
    s_load_dwordx4 s[40:43], s[0:1], 64
    v_lshrrev_b32 v{v_lane}, 6, v0
    s_and_b32 s{S_XCD}, s2, 7
    v_readfirstlane_b32 s{S_WAVE}, v{v_lane}
    s_lshr_b32 s{S_IDX}, s2, 3
    v_and_b32 v{v_lane}, 63, v0
    v_lshlrev_b32 v{v_l16}, 4, v{v_lane}""")
    if OPT.get("codepf") and code_pf:
        lpc = p.label("pc")
        p(f"""s_lshl_b32 s23, s{S_IDX}, 2
        s_add_u32 s23, s23, s{S_WAVE}
        s_mul_i32 s23, s23, 5
        v_add_lshl_u32 v{pf_reg}, v{v_lane}, s23, 7
        s_getpc_b64 s[{S_O}:{S_O+1}]
        {lpc}:
        v_min_u32 v{pf_reg}, {pf_end or end_label}-{lpc}, v{pf_reg}
        s_mov_b64 exec, 31
        global_load_dword v{pf_reg}, v{pf_reg}, s[{S_O}:{S_O+1}]
        s_mov_b64 exec, -1""")
    p.drain(vm=False)
    srd(p, S_WS, P_WS, WS_BYTES)

def magic(d, n):
    m = (65536 + d - 1) // d
    assert all((x * m) >> 16 == x // d for x in range(n)), (d, n)
    return m

def sdiv(p, sq, sx, d, n):
    p(f"s_mul_i32 s{sq}, s{sx}, {magic(d, n)}\ns_lshr_b32 s{sq}, s{sq}, 16")

def unpack8(p, dst, src):
    for j in range(4):
        p(f"v_lshlrev_b32 v{dst+2*j}, 16, v{src+j}")
        p(f"v_and_b32 v{dst+2*j+1}, 0xffff0000, v{src+j}")

def round_bf16(p, v, tmp=None):
    p(f"v_cvt_pk_bf16_f32 v{v}, v{v}, v{v}\nv_lshlrev_b32 v{v}, 16, v{v}")

def xsum_g(p, v, t):
    p(f"""v_mov_b32 v{t}, v{v}
    v_permlane16_swap_b32 v{v}, v{t}
    v_add_f32 v{v}, v{v}, v{t}
    v_mov_b32 v{t}, v{v}
    v_permlane32_swap_b32 v{v}, v{t}
    v_add_f32 v{v}, v{v}, v{t}""")

def xsum8(p, v):
    p(f"v_add_f32_dpp v{v}, v{v}, v{v} row_ror:8 row_mask:0xf bank_mask:0xf")

WSR = f"s[{S_WS}:{S_WS+3}]"
S_NONCE, S_LB, S_LF, S_CNT = 98, 100, 101, 97
SPIN = 0x40000

class Poll:
    ool = []
    def __init__(self, p, v_flag, v_addr, s_off, name):
        self.v, self.va, self.so = v_flag, v_addr, s_off
        self.slow, self.back, self.lp = p.label(name + "_slow"), p.label(name + "_back"), p.label(name + "_spin")
        Poll.ool.append(self)
    def ld(self): return f"buffer_load_dwordx2 v[{self.v}:{self.v+1}], v{self.va}, {WSR}, s{self.so} offen sc1"
    def cmp(self): return f"v_cmp_eq_u64 vcc, s[{S_NONCE}:{S_NONCE+1}], v[{self.v}:{self.v+1}]"
    def issue(self): return ins(self.ld())
    def check(self):
        return [ins(self.cmp()), ins("s_cmp_eq_u64 vcc, exec"), ins(f"s_cbranch_scc0 {self.slow}", "ool"), Label(self.back)]
    def both(self): return [self.issue()] + self.check()
    def slow_path(self, p):
        p.add(Raw(f"""{self.slow}:
    s_mov_b32 s{S_CNT}, {SPIN:#x}
{self.lp}:
    {self.ld()}
    s_waitcnt vmcnt(0)
    {self.cmp()}
    s_sub_u32 s{S_CNT}, s{S_CNT}, 1
    s_cbranch_scc1 {self.back}
    s_cmp_eq_u64 vcc, exec
    s_cbranch_scc1 {self.back}
    s_branch {self.lp}"""))

class NoncePoll(Poll):
    def ld(self): return f"global_load_dwordx2 v[{self.v}:{self.v+1}], v{self.va}, s[{P_DBG}:{P_DBG+1}] sc1"
    def cmp(self): return f"v_cmp_ne_u64 vcc, 0, v[{self.v}:{self.v+1}]"

def signal_items(s_addr, vt):
    return [ins(f"v_mov_b32 v{vt}, s{S_NONCE}"), ins(f"v_mov_b32 v{vt+1}, s{S_NONCE+1}"),
            [ins("s_mov_b64 exec, 1"), ins(f"buffer_store_dwordx2 v[{vt}:{vt+1}], off, {WSR}, s{s_addr} sc1"), ins("s_mov_b64 exec, -1")]]

def signal(p, s_addr, vt, tag=None):
    it = signal_items(s_addr, vt)
    p.add(it[:2])
    if tag: p.wait_vm(tag)
    else: p.drain(lg=False)
    p.add(it[2])

def lane_min8(p, vd, v_lane, n):
    p(f"v_min_u32 v{vd}, {n-1}, v{v_lane}\nv_lshlrev_b32 v{vd}, 3, v{vd}")

def touch_items(s_base, n, va, vd, sc=" sc1"):
    r = [ins(f"v_min_u32 v{va}, {min(n, 64)-1}, v1"), ins(f"v_lshlrev_b32 v{va}, 7, v{va}"),
         ins(f"buffer_load_dword v{vd}, v{va}, {WSR}, s{s_base} offen{sc}")]
    if n > 64:
        r += [ins(f"v_add_u32 v{va}, {(n-64)*128}, v{va}"), ins(f"buffer_load_dword v{vd+1}, v{va}, {WSR}, s{s_base} offen{sc}")]
    return r
```

```python
import re

def regs_of(tok):
    tok = tok.strip()
    if tok.startswith("-"):
        tok = tok[1:]
    if tok.startswith("abs(") or tok.startswith("|"):
        tok = tok.strip("|").replace("abs(", "").rstrip(")")
    m = re.fullmatch(r"([vas])(\d+)", tok)
    if m:
        return {(m.group(1), int(m.group(2)))}
    m = re.fullmatch(r"([vas])\[(\d+):(\d+)\]", tok)
    if m:
        return {(m.group(1), i) for i in range(int(m.group(2)), int(m.group(3)) + 1)}
    if tok == "vcc":
        return {("s", "vcc")}
    if tok in ("exec", "exec_lo", "exec_hi"):
        return {("s", "exec")}
    if tok == "m0":
        return {("s", "m0")}
    return set()

TRANS = ("v_exp_f32", "v_log_f32", "v_rcp_f32", "v_rsq_f32", "v_sqrt_f32", "v_sin_f32", "v_cos_f32")

class I:
    __slots__ = ("text", "op", "kind", "dst", "src", "tag", "srcC", "srcAB", "data", "maybe", "passes")
    def __init__(self, text, tag=None):
        self.text = text.strip()
        self.tag = tag
        self.maybe = None
        body = self.text.split(";")[0].strip()
        parts = body.split(None, 1)
        op = parts[0]
        self.op = op
        rest = parts[1] if len(parts) > 1 else ""
        ops = [x.strip() for x in rest.split(",")] if rest else []
        mods = []
        if ops:
            last = ops[-1].split()
            ops[-1] = last[0] if last else ""
            mods = last[1:]
        R = [regs_of(o) for o in ops]
        U = lambda l: set().union(*l) if l else set()
        self.srcC = set(); self.srcAB = set(); self.data = set(); self.passes = 0
        if op.startswith("v_mfma"):
            self.kind = "mfma"; self.dst = R[0]; self.srcAB = R[1] | R[2]; self.srcC = R[3]; self.src = self.srcAB | self.srcC
            self.passes = {"v_mfma_f32_16x16x32_bf16": 4, "v_mfma_f32_32x32x16_bf16": 8, "v_mfma_f32_16x16x4_f32": 8}[op]
        elif op.startswith("v_cmp"):
            self.kind = "valu"; self.dst = set(R[0]); self.src = U(R[1:])
            if op.startswith("v_cmpx"): self.dst |= {("s", "exec")}
        elif op.startswith("v_permlane"):
            self.kind = "valu"; self.dst = R[0] | R[1]; self.src = R[0] | R[1]
        elif op.startswith(("v_fmac", "v_dot2c", "v_pk_fmac")):
            self.kind = "valu"; self.dst = R[0]; self.src = U(R)
        elif op.startswith(("v_add_co", "v_sub_co", "v_addc_co", "v_subb_co")):
            self.kind = "valu"; self.dst = R[0] | R[1]; self.src = U(R[2:])
        elif op.startswith("v_writelane"):
            self.kind = "valu"; self.dst = R[0]; self.src = U(R)
        elif op.startswith("v_"):
            self.kind = "valu"; self.dst = R[0] if R else set(); self.src = U(R[1:])
            if "row_" in rest or "quad_perm" in rest or "dpp" in op:
                self.src |= R[0]
        elif op.startswith(("ds_read", "ds_bpermute", "ds_permute", "ds_swizzle")):
            self.kind = "ds"; self.dst = R[0]; self.src = U(R[1:])
        elif op.startswith("ds_write"):
            self.kind = "ds"; self.dst = set(); self.src = U(R); self.data = U(R[1:])
        elif op.startswith("buffer_load") or op.startswith("global_load"):
            self.kind = "vmem"
            if "lds" in mods or "_lds_" in op:
                self.dst = set(); self.src = U(R) | {("s", "m0")}
            else:
                self.dst = R[0]; self.src = U(R[1:])
        elif op.startswith("buffer_store"):
            self.kind = "vmem"; self.dst = set(); self.src = U(R); self.data = R[0]
        elif op.startswith("global_store"):
            self.kind = "vmem"; self.dst = set(); self.src = U(R); self.data = R[1]
        elif op.startswith(("buffer_atomic", "global_atomic")):
            self.kind = "vmem"; self.src = U(R); self.dst = R[0] if "sc0" in mods else set()
        elif op.startswith(("buffer_inv", "buffer_wbl2")):
            self.kind = "vmem"; self.dst = set(); self.src = set()
        elif op.startswith(("s_load", "s_memtime", "s_memrealtime")):
            self.kind = "smem"; self.dst = R[0]; self.src = U(R[1:])
        elif op in ("s_waitcnt", "s_barrier", "s_nop", "s_endpgm", "s_setprio", "s_sleep", "s_branch") or op.startswith("s_cbranch"):
            self.kind = "ctl"; self.dst = set(); self.src = set()
            if op.startswith("s_cbranch_scc"): self.src = {("s", "scc")}
            if op.startswith("s_cbranch_vcc"): self.src = {("s", "vcc")}
            if op.startswith("s_cbranch_exec"): self.src = {("s", "exec")}
        elif op.startswith("s_cmp") or op.startswith("s_bitcmp"):
            self.kind = "salu"; self.dst = {("s", "scc")}; self.src = U(R)
        elif "saveexec" in op:
            self.kind = "salu"; self.dst = R[0] | {("s", "exec"), ("s", "scc")}; self.src = U(R[1:]) | {("s", "exec")}
        elif op.startswith("s_"):
            self.kind = "salu"; self.dst = set(R[0]); self.src = U(R[1:])
            if op.startswith(("s_addk", "s_mulk")): self.src |= R[0]
            if op.startswith(("s_addc", "s_subb", "s_cselect")): self.src |= {("s", "scc")}
            if not op.startswith(("s_mov", "s_mul", "s_cselect", "s_getreg", "s_getpc")): self.dst |= {("s", "scc")}
        else:
            raise ValueError("unknown instruction: " + text)
    def states(self):
        if self.op == "s_nop":
            return int(self.text.split()[1]) + 1
        return 1

class Label:
    def __init__(self, name): self.name = name
class Raw:
    def __init__(self, text): self.text = text
class WaitTag:
    def __init__(self, tag, cnt): self.tag = tag; self.cnt = cnt
class Drain:
    def __init__(self, vm=True, lg=True): self.vm = vm; self.lg = lg
class Forget:
    def __init__(self, vm=True, lg=True): self.vm = vm; self.lg = lg
class Cond:
    def __init__(self, begin): self.begin = begin

def hazard_need(prev, cur):
    n = 0
    pv = {r for r in prev.dst if r[0] in "va"}
    ps = {r for r in prev.dst if r[0] == "s"}
    if prev.kind == "valu":
        if cur.kind == "mfma" and (pv & cur.src): n = max(n, 2)
        if cur.kind == "mfma" and ("s", "exec") in ps: n = max(n, 4)
        if cur.kind == "vmem" and (ps & cur.src): n = max(n, 5)
        if cur.kind == "valu" and (ps & cur.src):
            n = max(n, 4 if cur.op.startswith(("v_readlane", "v_writelane")) else 2)
        if cur.kind == "valu" and ("s", "exec") in ps and cur.op.startswith(("v_readlane", "v_readfirstlane", "v_writelane", "v_permlane")): n = max(n, 4)
        if cur.kind == "valu" and (pv & cur.src):
            if cur.op.startswith(("v_readlane", "v_readfirstlane")): n = max(n, 1)
            if cur.op.startswith("v_permlane") or "row_" in cur.text or "quad_perm" in cur.text: n = max(n, 2)
            if prev.op.startswith(TRANS) and not cur.op.startswith(TRANS): n = max(n, 1)
            if prev.op.startswith("v_dot") and (prev.op != cur.op or (pv & (cur.src - cur.dst))): n = max(n, 3)
            if "op_sel" in prev.text or "sdwa" in prev.text: n = max(n, 1)
        if prev.op.startswith("v_dot") and cur.kind in ("valu", "mfma", "vmem", "ds") and prev.op != cur.op and (pv & (cur.src | cur.dst)): n = max(n, 3)
        if cur.kind == "salu" and (ps & cur.src) and prev.op.startswith(("v_readfirstlane", "v_readlane", "v_cmp")): n = max(n, 1)
        if cur.kind == "ctl" and (ps & cur.src): n = max(n, 5)
    if prev.kind == "mfma":
        sg = prev.op.endswith("x4_f32")
        p = prev.passes
        if cur.kind == "mfma":
            if pv & cur.srcAB: n = max(n, p + (2 if sg else 4))
            if pv & cur.srcC:
                if not (pv == cur.srcC and prev.op == cur.op): n = max(n, p + (0 if sg else 2))
            if (pv & cur.dst) and not (pv == cur.dst and prev.op == cur.op) : n = max(n, p + 2)
        elif cur.kind in ("valu", "vmem", "ds"):
            if pv & (cur.src | cur.dst): n = max(n, p + (2 if sg else 4))
        if cur.kind == "valu" and not sg and (prev.srcC & cur.dst): n = max(n, p - 1)
    if prev.kind == "vmem" and prev.data and ("x4" in prev.op or "x3" in prev.op):
        if prev.data & cur.dst: n = max(n, 2 if cur.kind in ("valu", "mfma") else 1)
    if prev.kind == "salu" and ("s", "m0") in prev.dst and cur.kind == "vmem" and ("s", "m0") in cur.src: n = max(n, 1)
    return n

class Prog:
    def __init__(self):
        self.items = []
        self.uid = 0
        self.stats = {"nops": 0, "waits": 0}
    def __call__(self, text, tag=None):
        for l in text.split("\n"):
            l = l.strip()
            if not l or l.startswith(";"):
                continue
            if l.endswith(":"):
                self.items.append(Label(l[:-1]))
            elif l.startswith("."):
                self.items.append(Raw(l))
            else:
                self.items.append(I(l, tag))
    def add(self, it):
        if isinstance(it, str): self(it)
        elif isinstance(it, (list, tuple)):
            for x in it: self.add(x)
        else: self.items.append(it)
    _gid = [0]
    def label(self, base):
        Prog._gid[0] += 1
        return f"L_{base}_{Prog._gid[0]}"
    def wait_vm(self, tag): self.items.append(WaitTag(tag, "vm"))
    def wait_lg(self, tag): self.items.append(WaitTag(tag, "lg"))
    def drain(self, vm=True, lg=True): self.items.append(Drain(vm, lg))
    def forget(self, vm=True, lg=True): self.items.append(Forget(vm, lg))
    def cond_begin(self): self.items.append(Cond(True))
    def cond_end(self): self.items.append(Cond(False))

    def finalize(self, verbose=False):
        out = []
        st = {"vm": [], "lg": [], "hists": [[]], "dead": False}
        labels_ahead = {}
        for it in self.items:
            if isinstance(it, Label): labels_ahead[it.name] = True
        open_lab = set()
        snaps = {}
        seq = [0]
        def emit(ins_):
            need = 0
            for hist in st["hists"]:
                dist = 0
                for q in reversed(hist):
                    h = hazard_need(q, ins_)
                    if h - dist > need: need = h - dist
                    dist += q.states()
                    if dist >= 24: break
            while need > 0:
                k = min(need, 16)
                nop = I(f"s_nop {k-1}")
                out.append("    " + nop.text)
                for hist in st["hists"]: hist.append(nop)
                need -= k
                self.stats["nops"] += 1
                if verbose: print("nop", k, "before", ins_.text)
            out.append("    " + ins_.text)
            for hist in st["hists"]:
                hist.append(ins_)
                if len(hist) > 60: del hist[:20]
            if len(st["hists"]) > 1 and all(h[-24:] == st["hists"][0][-24:] for h in st["hists"]): del st["hists"][1:]
        def count_after(q, idx):
            return sum(1 for e in q[idx + 1:] if e[1] <= open_lab)
        def do_wait(vidx, lidx):
            parts = []
            if vidx is not None:
                n = min(count_after(st["vm"], vidx), 63)
                parts.append(f"vmcnt({n})"); del st["vm"][:vidx + 1]
                if n == 0: st["vm"].clear()
            if lidx is not None:
                if any(e[2].kind == "smem" for e in st["lg"]): n = 0
                else: n = min(count_after(st["lg"], lidx), 15)
                del st["lg"][:lidx + 1]
                if n == 0: st["lg"].clear()
                parts.append(f"lgkmcnt({n})")
            if parts:
                emit(I("s_waitcnt " + " ".join(parts))); self.stats["waits"] += 1
        for it in self.items:
            if isinstance(it, Label):
                out.append(it.name + ":")
                labels_ahead.pop(it.name, None)
                open_lab.discard(it.name)
                if it.name in snaps:
                    srcs = snaps.pop(it.name)
                    if not st["dead"]: srcs = srcs + [st]
                    for k in ("vm", "lg"):
                        m = {e[0]: e for s in srcs for e in s[k]}
                        st[k] = [m[x] for x in sorted(m)]
                    st["hists"] = [list(h) for s in srcs for h in s["hists"]]
                st["dead"] = False
            elif isinstance(it, Raw):
                out.append(it.text)
            elif isinstance(it, Cond):
                pass
            elif isinstance(it, Forget):
                if it.vm: st["vm"].clear()
                if it.lg: st["lg"].clear()
            elif isinstance(it, Drain):
                parts = []
                if it.vm: parts.append("vmcnt(0)"); st["vm"].clear()
                if it.lg: parts.append("lgkmcnt(0)"); st["lg"].clear()
                emit(I("s_waitcnt " + " ".join(parts)))
            elif isinstance(it, WaitTag):
                q = st[it.cnt]
                idx = None
                for i, e in enumerate(q):
                    if e[2].tag == it.tag: idx = i
                if idx is not None:
                    do_wait(idx if it.cnt == "vm" else None, idx if it.cnt == "lg" else None)
            else:
                only_wait = isinstance(it, WaitFor)
                if only_wait: it = it.ins
                touch = it.src | it.dst
                vidx = lidx = None
                for i, e in enumerate(st["vm"]):
                    if e[2].dst & touch: vidx = i
                for i, e in enumerate(st["lg"]):
                    if e[2].dst & touch: lidx = i
                do_wait(vidx, lidx)
                if only_wait: continue
                if it.op == "s_waitcnt":
                    m = re.search(r"vmcnt\((\d+)\)", it.text)
                    if m and int(m.group(1)) == 0: st["vm"].clear()
                    m = re.search(r"lgkmcnt\((\d+)\)", it.text)
                    if m and int(m.group(1)) == 0: st["lg"].clear()
                emit(it)
                seq[0] += 1
                if it.kind == "vmem": st["vm"].append((seq[0], frozenset(open_lab), it))
                elif it.kind in ("ds", "smem"): st["lg"].append((seq[0], frozenset(open_lab), it))
                if it.op == "s_branch" or it.op.startswith("s_cbranch"):
                    tgt = it.text.split()[1]
                    if tgt in labels_ahead:
                        snaps.setdefault(tgt, []).append({"vm": list(st["vm"]), "lg": list(st["lg"]), "hists": [list(h[-30:]) for h in st["hists"]]})
                        open_lab.add(tgt)
                    elif it.tag != "ool":
                        assert not [e for e in st["vm"] if e[2].dst] and not [e for e in st["lg"] if e[2].dst], "loads pending at backward branch " + it.text
                    if it.op == "s_branch":
                        st["dead"] = True; st["vm"] = []; st["lg"] = []; st["hists"] = [[]]
                if it.op == "s_endpgm":
                    st["dead"] = True; st["vm"] = []; st["lg"] = []; st["hists"] = [[]]
        return "\n".join(out) + "\n"

def ins(text, tag=None):
    return I(text, tag)

class Stream:
    def __init__(self, name=""):
        self.q = []; self.name = name
    def add(self, item, earliest=0, deadline=10**9, tag=None, cost=1):
        if isinstance(item, str): item = I(item, tag)
        self.q.append([earliest, deadline, item, cost])

def _is_vm(item):
    if isinstance(item, (list, tuple)): return any(_is_vm(x) for x in item)
    return isinstance(item, I) and item.kind == "vmem"

class WaitFor:
    def __init__(self, ins_): self.ins = ins_

def _cls(item):
    if isinstance(item, (list, tuple)): return "grp"
    if isinstance(item, I):
        return {"valu": "v", "ds": "d", "vmem": "m"}.get(item.kind, "s")
    return "s"

def weave(p, backbone, streams, cap=2, vm_gap=4, wait_gaps=None, quiet=None):
    n = len(backbone)
    pos = [0] * len(streams)
    for s in streams:
        d = 10**9
        for e in reversed(s.q):
            d = min(d, e[1]); e[1] = d
    last_vm = -10**9
    forced = 0
    rank = {"s": 0, "grp": 0, "m": 1, "d": 1, "v": 2}
    for g in range(n + 1):
        ns = 1 if (wait_gaps and g < n and wait_gaps(g)) else 0
        nv = 0; closed = False
        chosen = []; last_rank = {}
        def fits(si, e):
            c = _cls(e[2])
            if closed: return False
            if rank[c] < last_rank.get(si, 0): return False
            if c == "m" and quiet and streams[si].name in ("ld", "dma") and quiet(g): return False
            if c == "m": return ns + nv == 0 and g - last_vm >= vm_gap
            if c == "grp": return ns + nv == 0 and (not _is_vm(e[2]) or g - last_vm >= vm_gap)
            if c == "s": return ns + nv < 3
            return nv < cap and ns + nv < 3
        while True:
            best = None
            for si, s in enumerate(streams):
                if pos[si] < len(s.q):
                    e = s.q[pos[si]]
                    if g < n:
                        if e[0] > g: continue
                        if e[1] > g and not fits(si, e): continue
                    c = _cls(e[2])
                    key = (0 if e[1] <= g + 1 else 1 if c in ("m", "grp") else 2 if c == "s" else 3, e[1])
                    if best is None or key < bkey:
                        best = si; bkey = key
            if best is None: break
            e = streams[best].q[pos[best]]
            c = _cls(e[2])
            ok = fits(best, e)
            if g < n and not ok: forced += 1
            if _is_vm(e[2]): last_vm = g
            r = max(rank[c], last_rank.get(best, 0))
            last_rank[best] = r
            chosen.append((r, len(chosen), e[2])); pos[best] += 1
            if c == "s": ns += 1
            elif c in ("m", "grp"): closed = True; nv += 1
            else: nv += 1
        chosen.sort(key=lambda x: x[:2])
        if g < n and not any(_cls(x[2]) in ("m", "grp") for x in chosen): p.add(WaitFor(backbone[g]))
        for x in chosen: p.add(x[2])
        if g < n: p.add(backbone[g])
    p.stats["forced"] = p.stats.get("forced", 0) + forced

def vr(b, n=1): return f"v{b}" if n == 1 else f"v[{b}:{b+n-1}]"
def ar(b, n=1): return f"a{b}" if n == 1 else f"a[{b}:{b+n-1}]"
def sr(b, n=1): return f"s{b}" if n == 1 else f"s[{b}:{b+n-1}]"

def kernel_text(name, body, vgpr=512, accum=256, sgpr=102):
    t = f".text\n.globl {name}\n.p2align 8\n.type {name},@function\n{name}:\n" + body
    t += f'''.section .rodata,"a"
.p2align 6
.amdhsa_kernel {name}
  .amdhsa_next_free_vgpr {vgpr}
  .amdhsa_next_free_sgpr {sgpr}
  .amdhsa_accum_offset {accum}
  .amdhsa_group_segment_fixed_size 0
  .amdhsa_kernarg_size 80
  .amdhsa_user_sgpr_count 2
  .amdhsa_user_sgpr_kernarg_segment_ptr 1
  .amdhsa_system_sgpr_workgroup_id_x 1
  .amdhsa_float_denorm_mode_32 3
.end_amdhsa_kernel
'''
    return t
```

```python
from common import *
from k_prep import ln_addr, ln_local_stats, ln_finish
MF = "v_mfma_f32_16x16x32_bf16"
RING = 36 * 1024
LDS_CS = 4 * RING
LDS_WQ = 18 * 1024

from fw import _is_vm as _isvm
DBG = set()
def ffn_phase(p, sc=" sc1", ld=" sc1"):
    if "plain" in DBG: sc = ""
    scp = sc
    rr = OPT.get("r", 2)
    V_LANE, V_L16, V_L8, V_W, V_CS, V_T0, V_T1 = 1, 2, 3, 4, 5, 6, 7
    WB, XO, ACA, ACB, NM, RS2, CS, TMP, HO, H8 = 8, 32, 64, 96, 128, 132, 136, 152, 176, 240
    ACX = 208
    S_RB, S_Q, S_M, S_SL, S_SRC, S_M0, S_XS, S_H, S_FL, S_P, S_T, S_R = 44, 45, 46, 47, 48, 49, 50, 51, 52, 53, 54, 56
    S_TMP, S_TMP2, S_LASTSRC, S_LASTM0, S_FW = 60, 61, 62, 63, 64
    p("s_barrier")
    p(f"""s_lshr_b32 s{S_RB}, s{S_IDX}, {5-rr}
    s_and_b32 s{S_TMP}, s{S_XCD}, {7 & ~((1 << rr) - 1)}
    s_add_u32 s{S_RB}, s{S_RB}, s{S_TMP}
    s_and_b32 s{S_TMP}, s{S_XCD}, {(1 << rr) - 1}
    s_lshl_b32 s{S_TMP}, s{S_TMP}, {5-rr}
    s_and_b32 s{S_SL}, s{S_IDX}, {(1 << (5-rr)) - 1}
    s_add_u32 s{S_SL}, s{S_SL}, s{S_TMP}
    s_lshl_b32 s{S_FW}, s{S_SL}, 9
    s_add_u32 s{S_FW}, s{S_FW}, {FW}""")
    lane_min8(p, 0, V_LANE, 36)
    pw = Poll(p, V_T0, 0, S_FW, "pw")
    p(f"""s_lshr_b32 s{S_Q}, s{S_SL}, 2
    s_and_b32 s{S_M}, s{S_SL}, 3
    s_mul_i32 s{S_SRC}, s{S_SL}, {486*1024}
    s_add_u32 s{S_SRC}, s{S_SRC}, {WF}
    s_mul_i32 s{S_LASTM0}, s{S_WAVE}, 9
    s_lshr_b32 s{S_LASTM0}, s{S_LASTM0}, 1
    s_lshl_b32 s{S_LASTM0}, s{S_LASTM0}, 10
    s_add_u32 s{S_LASTSRC}, s{S_SRC}, s{S_LASTM0}
    s_mul_i32 s{S_M0}, s{S_WAVE}, {9*1024}
    s_add_u32 s{S_SRC}, s{S_SRC}, s{S_M0}
    s_lshl_b32 s{S_T}, s{S_RB}, 4
    s_lshl_b32 s{S_TMP}, s{S_WAVE}, 2
    s_add_u32 s{S_T}, s{S_T}, s{S_TMP}
    s_mul_i32 s{S_XS}, s{S_T}, {18*1024}
    s_mul_i32 s{S_P}, s{S_Q}, {XBYTES}
    s_add_u32 s{S_P}, s{S_P}, s{S_XS}
    s_add_u32 s{S_XS}, s{S_XS}, {X1}
    s_add_u32 s{S_XS}, s{S_XS}, s{S_LB}
    s_lshr_b32 s{S_TMP}, s{S_M}, 1
    s_mul_i32 s{S_TMP}, s{S_TMP}, {9*1024}
    s_add_u32 s{S_P}, s{S_P}, s{S_TMP}
    s_add_u32 s{S_P}, s{S_P}, {PB}
    s_add_u32 s{S_P}, s{S_P}, s{S_LB}
    v_lshlrev_b32 v{V_L8}, 3, v{V_LANE}
    v_mov_b32 v{V_W}, v{V_L16}""")
    def slot_dma(k):
        r = []
        if k < 13:
            for g in range(3):
                r.append(ins(f"s_add_u32 m0, s{S_M0}, {(k&3)*RING+4096*g}"))
                r.append(ins(f"s_add_u32 s{S_TMP2}, s{S_SRC}, {k*RING+4096*g}"))
                for j in range(4 if g < 2 else 1):
                    r.append(ins(f"buffer_load_dwordx4 v{V_L16}, {WSR}, s{S_TMP2} offen offset:{1024*j} lds", f"slot{k}"))
        else:
            for g in range(2):
                r.append(ins(f"s_add_u32 m0, s{S_LASTM0}, {(k&3)*RING+4096*g}"))
                r.append(ins(f"s_add_u32 s{S_TMP2}, s{S_LASTSRC}, {k*RING+4096*g}"))
                for j in range(4 if g < 1 else 1):
                    r.append(ins(f"buffer_load_dwordx4 v{V_L16}, {WSR}, s{S_TMP2} offen offset:{1024*j} lds", f"slot{k}"))
        return r
    xf = lambda c, tt: ar(16 * c + 4 * tt, 4) if c < 16 else vr(XO + 16 * (c - 16) + 4 * tt, 4)
    XB = (59, 66, 68, 69)
    def xload(c):
        r = []
        for tt in range(4):
            if c % 4 == 0: r.append(ins(f"s_add_u32 s{XB[tt]}, s{S_XS}, {tt*18*1024+c*1024}"))
            r.append(ins(f"buffer_load_dwordx4 {xf(c,tt)}, v{V_L16}, {WSR}, s{XB[tt]} offen offset:{1024*(c&3)}{ld}"))
        return r
    l_nopw = p.label("nopw")
    p(f"s_cmp_lg_u32 s{S_LF}, 0\ns_cbranch_scc1 {l_nopw}")
    p.add(pw.both())
    p(f"{l_nopw}:")
    npre = OPT.get("npre", 2)
    for k in range(npre): p.add(slot_dma(k))
    l_nocs = p.label("nocs")
    p(f"""s_cmp_lg_u32 s{S_LF}, 0
    s_cbranch_scc1 {l_nocs}
    s_cmp_ge_u32 s{S_WAVE}, 2
    s_cbranch_scc1 {l_nocs}
    s_lshl_b32 s{S_TMP}, s{S_SL}, 1
    s_add_u32 s{S_TMP}, s{S_TMP}, s{S_WAVE}
    s_mul_i32 s{S_TMP}, s{S_TMP}, {18*576}
    s_add_u32 s{S_TMP}, s{S_TMP}, {CSP}
    v_lshrrev_b32 v{V_T0}, 2, v{V_LANE}
    v_lshlrev_b32 v{V_T0}, 7, v{V_T0}
    v_and_b32 v{V_T1}, 3, v{V_LANE}
    v_lshl_add_u32 v{V_T0}, v{V_T1}, 4, v{V_T0}
    s_lshl_b32 s{S_TMP2}, s{S_WAVE}, 6
    s_add_u32 s{S_TMP2}, s{S_TMP2}, {LDS_CS}
    v_add_u32 v{V_T0}, s{S_TMP2}, v{V_T0}
    s_mov_b32 exec_hi, 15""")
    for c in range(18):
        if c and c % 6 == 0: p(f"s_add_u32 s{S_TMP}, s{S_TMP}, {6*576}")
        p(f"buffer_load_dwordx4 {vr(64+4*c,4)}, v{V_L16}, {WSR}, s{S_TMP} offen offset:{(c%6)*576} sc1")
    for c in range(1, 18):
        for j in range(4): p(f"v_add_f32 v{64+j}, v{64+j}, v{64+4*c+j}")
    p(f"ds_write_b128 v{V_T0}, v[64:67]\ns_mov_b64 exec, -1")
    p.drain(vm=False)
    p(f"{l_nocs}:")
    p(f"""s_lshr_b32 s{S_TMP}, s{S_T}, 2
    s_lshl_b32 s{S_TMP}, s{S_TMP}, 8
    s_add_u32 s{S_TMP}, s{S_TMP}, s{S_LF}
    s_add_u32 s55, s{S_TMP}, {F1B}
    v_and_b32 v0, 7, v{V_LANE}
    v_min_u32 v0, 5, v0
    v_and_b32 v{V_T0}, 24, v{V_LANE}
    v_add_lshl_u32 v0, v0, v{V_T0}, 3""")
    p1 = Poll(p, V_T0, 0, 55, "p1")
    p.add(p1.issue())
    p(f"""s_lshl_b32 s{S_TMP}, s{S_RB}, 5
    s_add_u32 s{S_TMP}, s{S_TMP}, s{S_SL}
    s_mul_i32 s{S_H}, s{S_TMP}, {72*1024}
    s_add_u32 s{S_H}, s{S_H}, {HB}
    s_add_u32 s{S_H}, s{S_H}, s{S_LB}""")
    for j in range(3):
        p(f"""s_xor_b32 s{S_TMP2}, s{S_TMP}, {j+1}
        s_mul_i32 s{S_R+j}, s{S_TMP2}, {72*1024}
        s_add_u32 s{S_R+j}, s{S_R+j}, {HB}
        s_add_u32 s{S_R+j}, s{S_R+j}, s{S_LB}""")
    p(f"""s_lshr_b32 s{S_FL}, s{S_TMP}, 2
    s_lshl_b32 s{S_FL}, s{S_FL}, 2
    s_add_u32 s{S_FL}, s{S_FL}, s{S_WAVE}
    s_lshl_b32 s{S_FL}, s{S_FL}, 7
    s_lshl_b32 s{S_TMP2}, s{S_LF}, 2
    s_add_u32 s{S_FL}, s{S_FL}, s{S_TMP2}
    s_add_u32 s{S_FL}, s{S_FL}, {FHB}
    v_lshrrev_b32 v{V_CS}, 4, v{V_LANE}
    v_lshlrev_b32 v{V_CS}, 4, v{V_CS}
    v_add_u32 v{V_CS}, {LDS_CS}, v{V_CS}
    s_lshl_b32 s{S_TMP}, s{S_WAVE}, 12""")
    for r in (S_H, S_R, S_R + 1, S_R + 2):
        p(f"s_add_u32 s{r}, s{r}, s{S_TMP}")
    p(f"s_lshl_b32 s65, s{S_WAVE}, 11\ns_sub_u32 s65, {64*1024}, s65")
    p(f"s_lshl_b32 s67, s{S_M}, 3\ns_add_u32 s67, s67, s{S_FL}")
    nsh = 1 << (5 - rr)
    p(f"s_and_b32 s{S_TMP2}, s{S_IDX}, {nsh-1}\ns_mul_i32 s{S_TMP2}, s{S_TMP2}, {576//nsh*128}\ns_add_u32 s{S_TMP2}, s{S_TMP2}, s{S_XS}")
    p.add(p1.check()); stamp(p, 1)
    if OPT.get("touch", 0): p.add(touch_items(S_TMP2, min(576 // nsh, 128), 0, TMP + 20))
    for c in range(4): p.add(xload(c))
    p(f"""s_lshl_b32 s{S_TMP}, s{S_T}, 4
    v_add_u32 v{V_T0}, s{S_TMP}, v{V_LANE}
    v_lshlrev_b32 v{V_T0}, 3, v{V_T0}
    s_add_u32 s55, s{S_LB}, {ST}""")
    for cg in range(6):
        p(f"s_add_u32 s{S_TMP}, s55, {cg*16384}")
        p(f"buffer_load_dwordx2 {vr(TMP+2*cg,2)}, v{V_T0}, {WSR}, s{S_TMP} offen{ld}")

    frs = []
    tiles = [(8, ACX), (0, ACA)]
    acc1 = lambda buf, mat, tt: vr(buf + 16 * mat + 4 * tt, 4)
    def g1(tile, buf, c, mat):
        f = pos_of_tile(tile) * 36 + 2 * c + mat
        return (f, [(acc1(buf, mat, tt), xf(c, tt), c == 0) for tt in range(4)])
    marks = {}
    for c in range(18):
        for tile, buf in tiles:
            for mat in range(2): frs.append(g1(tile, buf, c, mat))
    marks["pass0_end"] = len(frs)
    bufs = {8: ACX, 0: ACA}
    for tile in range(1, 8):
        buf = ACB if tile & 1 else ACA
        bufs[tile] = buf
        marks[f"pass{tile}"] = len(frs)
        for c in range(18):
            for mat in range(2): frs.append(g1(tile, buf, c, mat))
    marks["g2"] = len(frs)
    acc2 = lambda n, tt: 32 + 32 * (n >> 1) + 8 * tt + 4 * (n & 1) if n < 8 else 160 + 4 * tt
    def hstep(st, tt):
        if st < 4: return vr(HO + 16 * st + 4 * tt, 4)
        if st == 4: return vr(H8 + 4 * tt, 4)
        return ar(16 * (st - 5) + 4 * tt, 4)
    order = gemm2_order()
    last_of = {}
    for i, (st, n) in enumerate(order):
        marks.setdefault(f"step{st}", len(frs))
        frs.append((324 + i, [(vr(acc2(n, tt), 4), hstep(st, tt), st == 0) for tt in range(4)]))
        last_of[n] = len(frs)
    NB, LOOK = 6, 4
    bb = []; s_rd = Stream("rd"); s_dma = Stream("dma"); s_ep = Stream("ep"); s_ld = Stream("ld")
    G = lambda s: 4 * s
    cur_base = [0]
    def read(s):
        f = frs[s][0]
        a = ((f // 36) & 3) * RING + (f % 36) * 1024
        r = []
        if s < marks["pass0_end"]:
            if a < 65536: va, off = V_W, a
            else: va, off = V_T1, a - 65536
        else:
            base = ((f // 36) & 3) * RING
            if base != cur_base[0]:
                r.append(f"v_add_u32 v{V_W}, {base - cur_base[0] & 0xffffffff:#x}, v{V_W}")
                cur_base[0] = base
            va, off = V_W, a - base
        r.append(f"ds_read_b128 {vr(WB+4*(s%NB),4)}, v{va} offset:{off}")
        return r
    p(f"v_add_u32 v{V_T1}, 0x10000, v{V_L16}")
    p.wait_vm("slot1"); p("s_barrier")
    for s in range(LOOK): p.add(read(s))
    seen = {0, 1}
    for k in range(npre, 4):
        for it in slot_dma(k): s_dma.add(it, 200, G(marks["pass0_end"]) + (-30 if k == 2 else 60))
    bar_gap = {}
    for s, (f, ms) in enumerate(frs):
        for d, b, first in ms:
            bb.append(ins(f"{MF} {d}, {vr(WB+4*(s%NB),4)}, {b}, {'0' if first else d}"))
        t = s + LOOK
        if t < len(frs):
            k = frs[t][0] // 36
            g = G(s) + 1
            if k not in seen:
                seen.add(k)
                s_rd.add(WaitTag(f"slot{k}", "vm"), g, g)
                if k == 2: s_rd.add(Drain(vm=False), g, g)
                s_rd.add("s_barrier", g, g); bar_gap[k] = g
                for kk in ([4, 5] if k == 2 else [k + 2] if k >= 4 else []):
                    if kk <= 13:
                        for j, it in enumerate(slot_dma(kk)): s_dma.add(it, g + 1, g + 120 + (100 if kk == 5 else 0))
            for r in read(t): s_rd.add(r, g, g + 1)
    s_dma.add(f"s_and_b32 s{S_LASTSRC}, s{S_IDX}, 15", bar_gap[11] + 60)
    s_dma.add(f"s_mul_i32 s{S_LASTSRC}, s{S_LASTSRC}, {126*1024}", bar_gap[11] + 60)
    s_dma.add(f"s_add_u32 s{S_LASTSRC}, s{S_LASTSRC}, {WQ}", bar_gap[11] + 60)
    s_dma.add([ins(f"s_cmp_lg_u32 s{S_LF}, 0"), ins(f"s_cselect_b32 s{S_LASTSRC}, {WS_BYTES:#x}, s{S_LASTSRC}")], bar_gap[11] + 60)
    for k, f0, sm, cnt in ((11, 36, S_LASTM0, 5), (12, 54, S_M0, 9), (13, 90, S_M0, 9)):
        for j in range(cnt):
            if j % 4 == 0:
                s_dma.add(f"s_add_u32 s{S_TMP2}, s{sm}, {(f0+j)*1024}", bar_gap[k] + 1)
                s_dma.add(f"s_add_u32 m0, s{S_TMP2}, {LDS_WQ}", bar_gap[k] + 1)
                s_dma.add(f"s_add_u32 s{S_TMP2}, s{S_TMP2}, s{S_LASTSRC}", bar_gap[k] + 1)
            s_dma.add(f"buffer_load_dwordx4 v{V_L16}, {WSR}, s{S_TMP2} offen offset:{1024*(j&3)} lds", bar_gap[k] + 1, tag="wq2")
    for c in range(4, 18):
        for it in xload(c): s_ld.add(it, 0, 16 * c - 40)
    ga = G(marks["pass0_end"]) - 50
    A_, B_, M_, R_ = TMP + 12, TMP + 13, TMP + 14, TMP + 15
    s = lambda cg: TMP + 2 * cg
    e = [f"v_add_f32 v{M_}, v{s(0)}, v{s(1)}", f"v_add_f32 v{R_}, v{s(0)+1}, v{s(1)+1}"]
    for cg in range(2, 6): e += [f"v_add_f32 v{M_}, v{M_}, v{s(cg)}", f"v_add_f32 v{R_}, v{R_}, v{s(cg)+1}"]
    e += [f"v_mul_f32 v{M_}, 0xbae38e39, v{M_}"]
    for cg in range(6):
        e += [f"v_fmamk_f32 v{B_}, v{s(cg)}, 0x3c2aaaab, v{M_}",
              f"v_mul_f32 v{A_}, v{B_}, v{B_}" if cg == 0 else f"v_fmac_f32 v{A_}, v{B_}, v{B_}"]
    e += [f"v_fmac_f32 v{R_}, 0x42c00000, v{A_}", f"v_mov_b32 v{B_}, 0x3727c5ac",
          f"v_fmac_f32 v{B_}, 0x3ae38e39, v{R_}", f"v_rcp_f32 v{R_}, v{B_}",
          f"v_and_b32 v{A_}, 15, v{V_LANE}", f"v_lshlrev_b32 v{A_}, 2, v{A_}"]
    for tt in range(4):
        e += [f"ds_bpermute_b32 v{NM+tt}, v{A_}, v{M_} offset:{64*tt}", f"ds_bpermute_b32 v{RS2+tt}, v{A_}, v{R_} offset:{64*tt}"]
    for x in e: s_ep.add(x, ga, G(marks["pass0_end"]))
    def cs_reads(tile, g):
        cb = CS + 8 * (pos_of_tile(tile) & 1)
        for mat in range(2):
            s_ep.add(f"ds_read_b128 {vr(cb+4*mat,4)}, v{V_CS} offset:{pos_of_tile(tile)*128+64*mat}", g)
    def epilogue(tile, g, dl):
        buf = bufs[tile]; cb = CS + 8 * (pos_of_tile(tile) & 1)
        for tt in range(4):
            gq, uq = buf + 4 * tt, buf + 16 + 4 * tt
            for r in range(4): s_ep.add(f"v_fmac_f32 v{gq+r}, v{cb+r}, v{NM+tt}", g, dl)
            for r in range(4): s_ep.add(f"v_fmac_f32 v{uq+r}, v{cb+4+r}, v{NM+tt}", g, dl)
            for r in range(4): s_ep.add(f"v_mul_f32 v{gq+r}, v{gq+r}, v{RS2+tt}", g, dl)
            for r in range(4): s_ep.add(f"v_mul_f32 v{gq+r}, v{gq+r}, v{uq+r}", g, dl)
            dst = H8 + 4 * tt if tile == 8 else HO + 16 * (tile >> 1) + 4 * tt + 2 * (tile & 1)
            for j in range(2): s_ep.add(f"v_cvt_pk_bf16_f32 v{dst+j}, v{gq+2*j}, v{gq+2*j+1}", g, dl)
            if tile == 8:
                if tt == 0: s_ep.add(f"s_add_u32 s66, s{S_H}, s65", g, dl)
                s_ep.add(f"buffer_store_dwordx2 {vr(dst,2)}, v{V_L8}, {WSR}, s66 offen offset:{512*tt}{sc}", g, dl, tag="h8")
            elif tile & 1:
                if tt == 0: s_ep.add(f"s_add_u32 s66, s{S_H}, {(tile>>1)*16*1024}", g, dl)
                s_ep.add(f"buffer_store_dwordx4 {vr(dst-2,4)}, v{V_L16}, {WSR}, s66 offen offset:{1024*tt}{sc}", g, dl, tag=f"h{tile>>1}")
    g1s = G(marks["pass1"])
    cs_reads(8, g1s - 20); cs_reads(0, g1s - 20)
    epilogue(0, g1s + 6, G(marks["pass2"])); epilogue(8, g1s + 6, G(marks["pass2"]) + 60)
    for tile in range(1, 8):
        nxt = G(marks[f"pass{tile+1}"]) if tile < 7 else G(marks["g2"])
        cs_reads(tile, nxt - 20)
        epilogue(tile, nxt + 6, nxt + (140 if tile < 7 else 60))
    s_sg = Stream("sig")
    def sig(stage, tag, g):
        it = signal_items(71, V_T0)
        s_sg.add(f"s_add_u32 s71, s67, {32*stage}", g - 2, g)
        s_sg.add(it[0], g - 2, g); s_sg.add(it[1], g - 2, g)
        s_sg.add(WaitTag(tag, "vm"), g, g)
        s_sg.add(it[2], g + 1, g + 3, cost=2)
    g7 = G(marks["pass7"]); g2 = G(marks["g2"])
    sig(0, "h1", G(marks["pass5"]) + 60)
    sig(1, "h2", g7 - 4)
    sig(2, "h3", G(marks["step3"]) + 8)
    def addpoll(pl, g_issue, g_check, st=None):
        st = st or s_ld
        st.add(pl.issue(), g_issue, g_issue + 3)
        st.add(pl.check(), g_check, g_check + 1, cost=2)
    gw = G(marks["pass3"]) + 70
    s_ld.add(f"v_min_u32 v0, 17, v{V_LANE}", gw - 4); s_ld.add(f"v_lshlrev_b32 v0, 3, v0", gw - 4)
    s_ld.add(f"s_add_u32 s55, s{S_FW}, {36*8}", gw - 4)
    addpoll(Poll(p, V_T0, 0, 55, "pd"), gw, gw + 40)
    polls = [Poll(p, V_T0, 0, 55, f"p{k}") for k in range(3)]
    s_ld.add(f"v_and_b32 v0, 3, v{V_LANE}", g7 - 80); s_ld.add(f"v_lshlrev_b32 v0, 3, v0", g7 - 80)
    s_ld.add(f"s_mov_b32 s55, s{S_FL}", g7 - 80)
    addpoll(polls[0], g7 - 60, g7 - 20)
    ldh = " sc1"
    need = lambda st: G(marks[f"step{st}"]) if st < 9 else G(marks["step9"]) + 8 * (st - 9)
    for tt in range(4):
        if tt == 0: s_ld.add(f"s_add_u32 s{S_TMP}, s{S_R}, s65", g7 - 18)
        s_ld.add(f"buffer_load_dwordx2 {vr(H8+4*tt+2,2)}, v{V_L8}, {WSR}, s{S_TMP} offen offset:{512*tt}{ldh}", g7 - 18, need(4) - 150)
    for j in range(2):
        s_ld.add(f"s_add_u32 s{S_TMP}, s{S_R+1+j}, s65", g7 + 8)
        for tt in range(4):
            s_ld.add(f"buffer_load_dwordx2 {ar(4*tt+2*j,2)}, v{V_L8}, {WSR}, s{S_TMP} offen offset:{512*tt}{ldh}", g7 + 8, need(5) - 150)
    def hload(st, g, dl):
        i = st - 6
        s_ld.add(f"s_add_u32 s{S_TMP}, s{S_R+i%3}, {(i//3)*16*1024}", g)
        for tt in range(4):
            s_ld.add(f"buffer_load_dwordx4 {hstep(st,tt)}, v{V_L16}, {WSR}, s{S_TMP} offen offset:{1024*tt}{ldh}", g, dl)
    for st in range(6, 12): hload(st, g7 + 8 * (st - 4), need(st) - 150)
    s_ld.add(f"s_add_u32 s55, s{S_FL}, 32", g2 + 50)
    addpoll(polls[1], g2 + 60, g2 + 100)
    for st in range(12, 15): hload(st, g2 + 101, need(st) - 100)
    gB = G(marks["step7"])
    s_ld.add(f"s_add_u32 s55, s{S_FL}, 64", gB - 50)
    addpoll(polls[2], gB - 40, gB)
    for st in range(15, 18): hload(st, gB + 1, need(st) - 60)
    s_o = Stream("out")
    gB += 4
    s_o.add(f"s_and_b32 s68, s{S_M}, 1", gB)
    s_o.add(f"s_mul_i32 s69, s68, {5*1024}", gB); s_o.add(f"s_add_u32 s69, s69, s{S_P}", gB)
    s_o.add(f"s_lshl_b32 s68, s68, 9", gB); s_o.add(f"s_add_u32 s68, s68, s{S_P}", gB)
    s_o.add(f"v_and_b32 v0, 15, v{V_LANE}", gB); s_o.add(f"v_lshlrev_b32 v0, 5, v0", gB)
    s_o.add(f"v_lshrrev_b32 v{V_CS}, 4, v{V_LANE}", gB); s_o.add(f"v_lshl_add_u32 v0, v{V_CS}, 3, v0", gB)
    for pr in range(4):
        g = G(last_of[2 * pr + 1]) + 4
        for tt in range(4):
            a = acc2(2 * pr, tt)
            for j in range(4): s_o.add(f"v_cvt_pk_bf16_f32 v{a+j}, v{a+2*j}, v{a+2*j+1}", g)
            s_o.add(f"s_add_u32 s70, s69, {tt*18*1024+pr*1024}", g)
            s_o.add(f"buffer_store_dwordx4 {vr(a,4)}, v{V_L16}, {WSR}, s70 offen{scp}", g, tag="pout")
    g = len(bb)
    for tt in range(4):
        a = acc2(8, tt)
        for j in range(2): s_o.add(f"v_cvt_pk_bf16_f32 v{a+j}, v{a+2*j}, v{a+2*j+1}", g)
        s_o.add(f"s_add_u32 s70, s68, {tt*18*1024+4*1024}", g)
        s_o.add(f"buffer_store_dwordx2 {vr(a,2)}, v0, {WSR}, s70 offen{scp}", g, tag="pout")
    if "nostore" in DBG: s_ep.q = [e for e in s_ep.q if not _isvm(e[2])]; s_o.q = [e for e in s_o.q if not _isvm(e[2])]
    if "nodma" in DBG: s_dma.q = []
    if "noep" in DBG: s_ep.q = [e for e in s_ep.q if getattr(e[2], "kind", "") != "valu"]
    if "nohld" in DBG: s_ld.q = [e for e in s_ld.q if not (e[0] > 500 and _isvm(e[2]) and "dwordx" in e[2].text)]
    s_st = Stream("stamp")
    if STAMP[0]:
        for k, mk in enumerate(("pass1", "pass3", "pass5", "pass7", "g2", "step3", "step6", "step9")):
            s_st.add(stamp_ins(2 + k), G(marks[mk]) + 2, G(marks[mk]) + 2)
    weave(p, bb, [s_rd, s_sg, s_ld, s_ep, s_o, s_dma, s_st], wait_gaps=lambda g: g % 4 == 0, quiet=lambda g: g2 + 4 <= g < g2 + 52)
    stamp(p, 10)
    p(f"""s_lshl_b32 s{S_TMP}, s{S_RB}, 2
    s_add_u32 s{S_TMP}, s{S_TMP}, s{S_WAVE}
    s_lshl_b32 s{S_TMP}, s{S_TMP}, 5
    s_add_u32 s{S_TMP}, s{S_TMP}, s{S_SL}
    s_lshl_b32 s{S_TMP}, s{S_TMP}, 3
    s_add_u32 s{S_TMP}, s{S_TMP}, s{S_LF}
    s_add_u32 s{S_TMP}, s{S_TMP}, {FPB}""")
    signal(p, S_TMP, V_T0, "pout")
    stamp(p, 11)

def reduce_phase(p, l, lds_off, sc=" sc1", ld=" sc1", pre=None, w3=None):
    V_LANE = 1
    lh = l
    VROW, VFR, VP, VLD, VX, VS, VO = 3, 4, 5, 16, 128, 152, 160
    if pre: pre()
    p(f"s_lshl_b32 s47, s{S_XCD}, 5\ns_add_u32 s47, s47, s{S_IDX}")
    ln_addr(p, 47, V_LANE, VROW, VFR, 8, 48)
    p(f"""v_lshrrev_b32 v8, 3, v{V_LANE}
    v_and_b32 v9, 7, v{V_LANE}
    s_and_b32 s48, s47, 1
    s_lshl_b32 s48, s48, 3
    v_add_u32 v9, s48, v9
    v_lshlrev_b32 v9, 4, v9
    v_bfe_u32 v10, v8, 1, 1
    v_and_b32 v11, 1, v8
    v_lshl_add_u32 v9, v11, 4, v9
    v_lshl_add_u32 v9, v10, 9, v9
    v_and_b32 v10, 3, v8
    v_lshlrev_b32 v10, 8, v10
    v_sub_u32 v9, v9, v10
    s_mul_i32 s48, s{S_WAVE}, 6
    v_lshrrev_b32 v8, 2, v8
    v_add_u32 v8, s48, v8""")
    for i in range(3):
        p(f"""v_add_u32 v10, {2*i}, v8
        v_cmp_eq_u32 vcc, 4, v10
        v_cmp_eq_u32 s[56:57], 13, v10
        s_or_b64 vcc, vcc, s[56:57]
        v_cndmask_b32 v10, 0, v9, vcc
        v_add3_u32 v{VP+i}, v{VFR}, v10, {0}
        v_add_u32 v{VP+i}, {2048*i}, v{VP+i}""")
    l_skip = p.label("w3a")
    p(f"s_cmp_eq_u32 s{S_WAVE}, 3\ns_cbranch_scc1 {l_skip}")
    p(f"""s_lshr_b32 s49, s47, 3
    s_lshl_b32 s49, s49, 8
    s_add_u32 s49, s49, {FPB+l*0x2000}
    v_and_b32 v10, 31, v{V_LANE}
    v_lshlrev_b32 v10, 3, v10""")
    p.add(Poll(p, 8, 10, 49, "pp").both()); stamp(p, 1)
    p(f"s_mov_b32 s48, {LB(l)+X1}")
    for i in range(3):
        if i == 2: p("s_add_u32 s48, s48, 4096")
        p(f"buffer_load_dwordx4 {vr(VLD+36*i,4)}, v{VFR}, {WSR}, s48 offen offset:{2048*(i&1)}{ld}")
    for q in range(8):
        p(f"s_mov_b32 s48, {LB(lh)+PB+q*XBYTES}")
        for i in range(3):
            p(f"buffer_load_dwordx4 {vr(VLD+36*i+4+4*q,4)}, v{VP+i}, {WSR}, s48 offen{ld}")
    for i in range(3): unpack8(p, VX + 8 * i, VLD + 36 * i)
    p(f"v_mov_b32 v12, 0x3f80\nv_mov_b32 v13, 0x3f800000")
    for q in range(8):
        for i in range(3):
            b = VLD + 36 * i + 4 + 4 * q
            for j in range(4):
                p(f"v_dot2c_f32_bf16 v{VX+8*i+2*j}, v{b+j}, v12\nv_dot2c_f32_bf16 v{VX+8*i+2*j+1}, v{b+j}, v13")
    if l == 1: srd(p, S_O, P_OUT, XBYTES)
    else: p(f"s_add_u32 s{S_O}, s{P_WS}, {LB(0)+X2R}\ns_addc_u32 s{S_O+1}, s{P_WS+1}, 0\ns_mov_b32 s{S_O+2}, {XBYTES:#x}\ns_mov_b32 s{S_O+3}, 0x20000")
    for i in range(3):
        for j in range(4): p(f"v_cvt_pk_bf16_f32 v{VO+4*i+j}, v{VX+8*i+2*j}, v{VX+8*i+2*j+1}")
        p(f"buffer_store_dwordx4 {vr(VO+4*i,4)}, v{VROW}, s[{S_O}:{S_O+3}], 0 offen offset:{128*i}{sc if l == 0 else ''}")
    if l == 1:
        p(f"{l_skip}:")
        return
    for i in range(3): unpack8(p, VX + 8 * i, VO + 4 * i)
    ln_local_stats(p, VX, VS, VS + 1, 8)
    p(f"""v_and_b32 v8, 7, v{V_LANE}
    s_mul_i32 s46, s{S_WAVE}, 64
    s_add_u32 s46, s46, {lds_off}
    v_lshl_add_u32 v8, v8, 3, s46
    ds_write_b64 v8, v[{VS}:{VS+1}]""")
    p.drain(vm=False)
    if w3:
        l_join = p.label("join")
        p(f"s_branch {l_join}\n{l_skip}:")
        w3()
        p(f"{l_join}:\ns_barrier")
    else: p(f"{l_skip}:\ns_barrier")
    l_skip2 = p.label("w3b")
    p(f"s_cmp_eq_u32 s{S_WAVE}, 3\ns_cbranch_scc1 {l_skip2}")
    p(f"v_and_b32 v8, 7, v{V_LANE}\nv_lshlrev_b32 v8, 3, v8\nv_add_u32 v8, {lds_off}, v8")
    for w in range(3): p(f"ds_read_b64 v[{VS+2*w}:{VS+2*w+1}], v8 offset:{64*w}")
    ln_finish(p, VX, VS, 16, 8)
    p(f"s_mov_b32 s46, {LB(l+1)+XN}")
    for i in range(3):
        if i == 2: p("s_add_u32 s46, s46, 4096")
        p(f"buffer_store_dwordx4 {vr(16+4*i,4)}, v{VFR}, {WSR}, s46 offen offset:{2048*(i&1)}{sc}")
    p(f"s_lshl_b32 s46, s47, 2\ns_add_u32 s46, s46, s{S_WAVE}\ns_lshl_b32 s46, s46, 3\ns_add_u32 s46, s46, {FX(l+1)}")
    signal(p, 46, 8)
    p(f"{l_skip2}:")
```

```python
from common import *
from k_prep import *
from k_attn import MF, attn_bias, attn_part, wo_setup, wo_wdma, wo_main
from k_ffn import ffn_phase, reduce_phase, LDS_CS, LDS_WQ
V_LANE, V_L16 = 1, 2
LDS_EX = LDS_CS + 1152
LDS_LN = LDS_EX + 4 * 3072
LDS_HALO = 0
LDS_STG = 108 * 1024
LDS_TOTAL = 163840
S_AB, S_HP, S_T0, S_WSRC, S_WM0, S_XS, S_HS = 44, 45, 46, 47, 48, 51, 49
VTA, VTB, VTC, VG = 229, 238, 247, 220
A_UA, A_UB, A_UC = 144, 180, 216
S_UA, S_UB, S_UC = 3, 30, 31
SB, SBT = 58, 92

def LD(): return "" if OPT.get("plainld") else " sc1"

def qkv_setup(p, l):
    p(f"""s_lshr_b32 s{S_AB}, s{S_IDX}, 4
    s_lshl_b32 s52, s{S_XCD}, 1
    s_add_u32 s{S_AB}, s{S_AB}, s52
    s_and_b32 s{S_HP}, s{S_IDX}, 15
    s_mul_i32 s{S_WM0}, s{S_WAVE}, 21
    s_lshr_b32 s{S_WM0}, s{S_WM0}, 1
    s_lshl_b32 s{S_WM0}, s{S_WM0}, 10
    s_mul_i32 s{S_WSRC}, s{S_HP}, {126*1024}
    s_add_u32 s{S_WSRC}, s{S_WSRC}, s{S_WM0}
    s_add_u32 s{S_WSRC}, s{S_WSRC}, {WQ}""")

def qkv_wdma(g):
    r = []
    for j0 in range(0, 11, 4):
        r.append(ins(f"s_add_u32 m0, s{S_WM0}, {LDS_WQ+g*42*1024+j0*1024}"))
        r.append(ins(f"s_add_u32 s53, s{S_WSRC}, {g*42*1024+j0*1024}"))
        for j in range(j0, min(j0 + 4, 11)):
            r.append(ins(f"buffer_load_dwordx4 v{V_L16}, {WSR}, s53 offen offset:{1024*(j-j0)} lds", f"wq{g}"))
    return r

def qkv_main(p, l, extra=None, pre_signal=None, post_poll=None):
    V_W, V_HT, V_HN, V_XH = 3, 4, 5, 10
    ACC, HACC, WB, HB_ = 16, 80, 88, 144
    p(f"""s_lshl_b32 s{S_T0}, s{S_AB}, 3
    s_max_u32 s52, s{S_T0}, 1
    s_sub_u32 s52, s52, 1
    s_mul_i32 s{S_HS}, s52, {18*1024}
    s_mul_i32 s50, s{S_WAVE}, 9
    s_lshr_b32 s50, s50, 1
    s_lshl_b32 s50, s50, 10
    s_add_u32 s{S_HS}, s{S_HS}, s50
    s_add_u32 s{S_HS}, s{S_HS}, {LB(l)+XN}
    s_add_u32 s50, s50, {LDS_HALO}
    s_lshl_b32 s54, s52, 6
    s_lshl_b32 s52, s{S_WAVE}, 1
    s_add_u32 s{S_T0}, s{S_T0}, s52
    s_mul_i32 s{S_XS}, s{S_T0}, {18*1024}
    s_add_u32 s{S_XS}, s{S_XS}, {LB(l)+XN}
    s_lshl_b32 s55, s{S_T0}, 6""")
    p(f"""v_and_b32 v6, 3, v{V_LANE}
    v_min_u32 v6, 2, v6
    v_and_b32 v7, 12, v{V_LANE}
    v_add_lshl_u32 v8, v6, v7, 3
    v_add_u32 v8, s55, v8
    v_and_b32 v7, 4, v{V_LANE}
    v_add_lshl_u32 v9, v6, v7, 3
    v_add_u32 v9, s54, v9
    v_and_b32 v7, 16, v{V_LANE}
    v_cmp_eq_u32 vcc, 0, v7
    v_cndmask_b32 v8, v9, v8, vcc""")
    if l == 0:
        p(f"""v_subrev_u32 v7, 32, v{V_LANE}
        v_min_u32 v7, 17, v7
        s_lshl_b32 s52, s{S_HP}, 8
        s_add_u32 s52, s52, {FWQ-FX(0)}
        v_lshl_add_u32 v7, v7, 3, s52
        v_cmp_gt_u32 vcc, 32, v{V_LANE}
        v_cndmask_b32 v8, v7, v8, vcc""")
    p(f"s_mov_b32 s52, {FX(l)}")
    px = Poll(p, 6, 8, 52, "px")
    p.add(px.issue())
    p(f"""s_min_u32 s56, s{S_WAVE}, 2
    s_add_u32 s57, s56, 2
    s_add_u32 s56, s56, 4
    s_cmp_ge_u32 s{S_WAVE}, 2
    s_cselect_b32 s57, 6, s57
    s_lshl_b32 s57, s57, 10
    s_lshl_b32 s56, s56, 10
    v_add_u32 v{V_W}, {LDS_WQ}, v{V_L16}
    v_add_u32 v{V_HT}, s57, v{V_W}
    v_add_u32 v{V_HN}, s56, v{V_W}
    v_add_u32 v{V_XH}, {LDS_HALO}, v{V_L16}""")
    p(f"s_mul_i32 s53, s{S_HP}, {18*128}\ns_add_u32 s53, s53, s{S_XS}")
    p.add(px.check()); stamp(p, 1)
    if post_poll: post_poll()
    if OPT.get("touch", 0): p.add(touch_items(53, 18, 11, 12))
    def xload(c):
        r = []
        for tt in range(2):
            if c % 4 == 0: r.append(ins(f"s_add_u32 s{54+tt}, s{S_XS}, {tt*18*1024+c*1024}"))
            r.append(ins(f"buffer_load_dwordx4 a[{72*tt+4*c}:{72*tt+4*c+3}], v{V_L16}, {WSR}, s{54+tt} offen offset:{1024*(c&3)}{LD()}"))
        return r
    def halo():
        r = []
        for g in range(2):
            r.append(ins(f"s_add_u32 m0, s50, {4096*g}")); r.append(ins(f"s_add_u32 s53, s{S_HS}, {4096*g}"))
            for j in range(4 if g == 0 else 1):
                r.append(ins(f"buffer_load_dwordx4 v{V_L16}, {WSR}, s53 offen offset:{1024*j}{LD()} lds", "halo"))
        return r
    sl = Stream("ld")
    if l == 0:
        p("s_barrier")
        p.add(qkv_wdma(0))
        for c in range(6): p.add(xload(c))
        p.add(qkv_wdma(1))
        late = halo() + sum((xload(c) for c in range(6, 12)), []) + qkv_wdma(2) + sum((xload(c) for c in range(12, 18)), [])
    else:
        for c in range(8): p.add(xload(c))
        late = halo() + sum((xload(c) for c in range(8, 18)), [])
    attn_bias(p, S_AB)
    acc = lambda tt, j: vr(ACC + 32 * tt + 4 * j, 4)
    wf = lambda c, t: vr(WB + 28 * (c & 1) + 4 * t, 4)
    hf = lambda h, j: vr(HB_ + 12 * (h & 1) + 4 * j, 4)
    xf = lambda tt, c: ar(72 * tt + 4 * c, 4)
    def reads(c):
        r = [f"v_add_u32 v{V_W}, {9*7168}, v{V_W}"] if c == 9 else []
        return r + [f"ds_read_b128 {wf(c, t)}, v{V_W} offset:{(c%9)*7168+1024*t}" for t in (0, 1, 2, 3, 6, 4, 5)]
    def hreads(h):
        r = [f"v_add_u32 v{v}, {9*7168}, v{v}" for v in (V_HT, V_HN)] if h == 9 else []
        return r + [f"ds_read_b128 {hf(h, 0)}, v{V_XH} offset:{1024*h}", f"ds_read_b128 {hf(h, 1)}, v{V_HT} offset:{(h%9)*7168}",
                    f"ds_read_b128 {hf(h, 2)}, v{V_HN} offset:{(h%9)*7168}"]
    hs = {c: [] for c in range(18)}
    for h in range(18): hs[6 + h if h < 6 else 12 + (h - 6) // 2].append(h)
    p.wait_vm("wq0" if l == 0 else "wq2"); p("s_barrier")
    p.add(reads(0))
    bb = []; sr_ = Stream("rd"); sh = Stream("hrd")
    hpos = {}
    for c in range(18):
        g0 = len(bb)
        C = lambda d: "0" if c == 0 else d
        main = []
        for j, t in enumerate((0, 1, 2, 3, 6)):
            for tt in range(2): main.append(ins(f"{MF} {acc(tt, j)}, {wf(c, t)}, {xf(tt, c)}, {C(acc(tt, j))}"))
        for j, t in ((7, 6), (5, 4), (6, 5)):
            for tt in range(2): main.append(ins(f"{MF} {acc(tt, j)}, {xf(tt, c)}, {wf(c, t)}, {C(acc(tt, j))}"))
        def hm(h):
            hpos[h] = len(bb)
            z = lambda d: "0" if h == 0 else d
            bb.append(ins(f"{MF} {vr(HACC, 4)}, {hf(h, 1)}, {hf(h, 0)}, {z(vr(HACC, 4))}"))
            bb.append(ins(f"{MF} {vr(HACC+4, 4)}, {hf(h, 0)}, {hf(h, 2)}, {z(vr(HACC+4, 4))}"))
        if len(hs[c]) == 2:
            bb += main[:8]; hm(hs[c][0]); bb += main[8:]; hm(hs[c][1])
        else:
            bb += main
            for h in hs[c]: hm(h)
        if c + 1 < 18:
            tags = []
            if c + 1 == 6: tags = (["wq1"] if l == 0 else []) + ["halo"]
            if c + 1 == 12 and l == 0: tags = ["wq2"]
            for t in tags: sr_.add(WaitTag(t, "vm"), g0 + 1, g0 + 1)
            if tags:
                sr_.add("s_barrier", g0 + 1, g0 + 1)
                if c + 1 == 6: gbar = g0 + 2
            for k, r in enumerate(reads(c + 1)): sr_.add(r, g0 + 1 + 2 * k - (k > 0), g0 + 14)
    for h in range(18):
        e = max(gbar, hpos[h - 2] + 2 if h >= 2 else 0)
        for r in hreads(h): sh.add(r, e, hpos[h] - 5)
    need = {}
    for it in late: sl.add(it, 0)
    gstep = lambda c: next(i for i, m in enumerate(bb) if xf(0, c) in m.text)
    for e in sl.q:
        it = e[2]
        if it.kind == "vmem":
            if it.tag == "halo": e[1] = gstep(5) - 30
            elif it.tag == "wq2": e[1] = gstep(11) - 40
            else: e[1] = gstep((min(r[1] for r in it.dst) % 72) // 4) - 40
    if extra:
        for it in extra: sl.add(it, 0)
    if l == 1 and OPT.get("wtouch", 1):
        rr = OPT.get("r", 2); nsl = 1 << (5 - rr); parts = 128 // nsl
        for t in (f"s_lshl_b32 s53, s{S_IDX}, 2", f"s_add_u32 s53, s53, s{S_WAVE}", f"s_mul_i32 s53, s53, {41*128}", f"s_add_u32 s53, s53, {WOS}"):
            sl.add(t, 0)
        for it in touch_items(53, 41, 11, 13, ""): sl.add(it, 0)
        for t in (f"s_and_b32 s53, s{S_XCD}, {(1 << rr) - 1}", f"s_lshl_b32 s53, s53, {5-rr}", f"s_and_b32 s54, s{S_IDX}, {nsl-1}",
                  f"s_add_u32 s53, s53, s54", f"s_mul_i32 s53, s53, {486*1024}", f"s_lshr_b32 s54, s{S_IDX}, {5-rr}", f"s_lshl_b32 s54, s54, 2",
                  f"s_add_u32 s54, s54, s{S_WAVE}", f"s_mul_i32 s54, s54, {1152//parts*128}", f"s_add_u32 s53, s53, s54", f"s_add_u32 s53, s53, {WF}"):
            sl.add(t, 0)
        for it in touch_items(53, min(1152 // parts, 128), 11, 14, ""): sl.add(it, 0)
    weave(p, bb, [sr_, sh, sl], cap=2, vm_gap=4 if l == 0 else 5)
    stamp(p, 2)
    attn_part(p, l, S_T0, S_HP, LDS_EX, " sc1")
    stamp(p, 3)
    p(f"""s_lshl_b32 s52, s{S_AB}, 2
    s_add_u32 s52, s52, s{S_WAVE}
    s_lshl_b32 s52, s52, 4
    s_add_u32 s52, s52, s{S_HP}
    s_lshl_b32 s52, s52, 3
    s_add_u32 s52, s52, {FO(l)}""")
    if pre_signal: pre_signal()
    signal(p, 52, 8, "ost")
    stamp(p, 4)

def wo_part(p, l, mid=None, after_poll=None, pwo=None):
    S_TB, S_CG, S_T = 44, 45, 46
    wo_setup(p, l)
    if pwo: p.add(pwo.check())
    wo_wdma(p)
    if mid: mid()
    p(f"""s_lshr_b32 s52, s{S_T}, 1
    s_lshl_b32 s52, s52, 7
    s_add_u32 s52, s52, {FO(l)}
    v_and_b32 v10, 15, v{V_LANE}
    v_lshlrev_b32 v10, 3, v10""")
    p(f"s_mul_i32 s53, s{S_CG}, {22*128}\ns_min_u32 s53, s53, {106*128}\ns_add_u32 s53, s53, s49")
    p.add(Poll(p, 8, 10, 52, "po").both()); stamp(p, 5)
    if OPT.get("touch", 0): p.add(touch_items(53, 22, 11, 12))
    if after_poll: after_poll()
    wo_main(p, l, " sc1", LD())
    p(f"""s_lshl_b32 s52, s{S_T}, 3
    s_add_u32 s52, s52, s{S_CG}
    s_lshl_b32 s52, s52, 3
    s_add_u32 s52, s52, {F1B+l*0x2000}""")
    signal(p, 52, 8, "x1st")
    stamp(p, 8)

def phase0(p):
    VROW, VFR, VRAW, VX, VS, VO = 3, 4, 8, 20, 44, 52
    S_ROLE, S_U, S_ST1, S_ST2, S_F1, S_F2, ST1, ST2 = 55, 67, 56, 57, 0, 1, 44, 84
    srd(p, S_X, P_X, XBYTES)
    srd(p, S_A, P_WQKV, D * 3 * D * 2)
    p(f"v_mov_b32 v{VROW}, 0\nv_mov_b32 v{VFR}, 0")
    l_n = p.label("nonce")
    p(f"""v_mov_b32 v5, 0
    s_or_b32 s44, s2, s{S_WAVE}
    s_cmp_lg_u32 s44, 0
    s_cbranch_scc1 {l_n}
    s_memrealtime s[44:45]""")
    p.drain(vm=False)
    p(f"""v_mov_b32 v6, s44
    v_mov_b32 v7, s45
    s_mov_b64 exec, 1
    global_store_dwordx2 v5, v[6:7], s[{P_DBG}:{P_DBG+1}] sc1
    s_mov_b64 exec, -1
    {l_n}:""")
    stamp(p, 1)
    l_w3, l_u = p.label("w3"), p.label("uend")
    p(f"s_cmp_eq_u32 s{S_WAVE}, 3\ns_cbranch_scc1 {l_w3}")
    p(f"s_lshl_b32 s47, s{S_XCD}, 5\ns_add_u32 s47, s47, s{S_IDX}")
    ln_addr(p, 47, V_LANE, VROW, VFR, 6, 48)
    for i in range(3):
        p(f"buffer_load_dwordx4 v[{VRAW+4*i}:{VRAW+4*i+3}], v{VROW}, s[{S_X}:{S_X+3}], 0 offen offset:{128*i}")
    p(f"s_branch {l_u}\n{l_w3}:")
    def qissue(stg, st, sf, srd_, tag):
        p(f"""s_lshr_b32 s{sf}, s{S_U}, 4
        s_and_b32 s{S_U}, s{S_U}, 15
        s_mul_i32 s{S_U}, s{S_U}, 18
        s_add_u32 s{S_U}, s{S_U}, s{sf}""")
        qkv_unit_issue(p, S_U, stg, V_LANE, 64, st, srd_, tag)
        p(f"s_lshl_b32 s{sf}, s{st}, 5\ns_add_u32 s{sf}, s{sf}, s{st+1}\ns_lshl_b32 s{sf}, s{sf}, 3\ns_add_u32 s{sf}, s{sf}, {FWQ}")
    l_w = p.label("uw")
    p(f"""s_mov_b32 s{S_ROLE}, 0
    s_mov_b32 s{S_ST1}, 0
    s_mov_b32 s{S_ST2}, 8192
    s_mul_i32 s{S_U}, s{S_XCD}, 36
    s_add_u32 s{S_U}, s{S_U}, s{S_IDX}""")
    qissue(S_ST1, ST1, S_F1, S_A, "au1")
    p(f"""s_cmp_ge_u32 s{S_IDX}, 4
    s_cbranch_scc1 {l_w}
    s_mov_b32 s{S_ROLE}, 1
    s_mul_i32 s{S_U}, s{S_XCD}, 36
    s_add_u32 s{S_U}, s{S_U}, s{S_IDX}
    s_add_u32 s{S_U}, s{S_U}, 32""")
    qissue(S_ST2, ST2, S_F2, S_A, "au2")
    p(f"""s_branch {l_u}
    {l_w}:
    s_cmp_ge_u32 s{S_IDX}, 18
    s_cbranch_scc1 {l_u}
    s_mul_i32 s{S_U}, s{S_XCD}, 14
    s_add_u32 s{S_U}, s{S_U}, s{S_IDX}
    s_sub_u32 s{S_U}, s{S_U}, 4
    s_cmp_ge_u32 s{S_U}, 108
    s_cbranch_scc1 {l_u}
    s_mov_b32 s{S_ROLE}, 2""")
    wo_unit_issue(p, S_U, S_ST2, V_LANE, 64, ST2, S_A, "au2")
    p(f"""s_lshl_b32 s{S_F2}, s{ST2}, 5
    s_add_u32 s{S_F2}, s{S_F2}, s{ST2+1}
    s_lshl_b32 s{S_F2}, s{S_F2}, 3
    s_add_u32 s{S_F2}, s{S_F2}, {FWO}
    {l_u}:""")
    stamp(p, 2)
    unit_pieces(p, V_LANE, VG, 64)
    def gu_number(s):
        p(f"s_lshr_b32 s52, s{s}, 5\ns_and_b32 s{s}, s{s}, 31\ns_mul_i32 s{s}, s{s}, 36\ns_add_u32 s{s}, s{s}, s52")
    p(f"""s_lshl_b32 s{S_UA}, s{S_XCD}, 7
    s_lshl_b32 s52, s{S_IDX}, 2
    s_add_u32 s53, s52, s{S_WAVE}
    s_add_u32 s{S_UA}, s{S_UA}, s53""")
    gu_number(S_UA)
    ffn_unit_setup(p, S_UA, SB, S_O, SBT); unit_table(p, SB, VG, VTA, 64)
    late = OPT.get("late", 0)
    if not late: p.add(unit_loads(S_O, VTA, A_UA))
    l_i, l_d, l_b, l_e = p.label("ui"), p.label("ud"), p.label("ub"), p.label("ue")
    p(f"""s_mov_b32 s{S_UB}, -1
    s_mov_b32 s{S_UC}, -1
    s_mul_i32 s54, s{S_XCD}, 72
    s_add_u32 s54, s54, 1152
    s_cmp_ge_u32 s{S_IDX}, 24
    s_cbranch_scc1 {l_i}
    s_cmp_lg_u32 s{S_WAVE}, 3
    s_cbranch_scc1 {l_e}
    s_add_u32 s{S_UB}, s54, s{S_IDX}
    s_add_u32 s{S_UB}, s{S_UB}, 48
    s_branch {l_b}
    {l_i}:
    s_sub_u32 s53, s53, 96
    s_add_u32 s{S_UC}, s54, s53
    s_add_u32 s{S_UB}, s{S_UC}, -16
    s_add_u32 s{S_UC}, s{S_UC}, 16
    s_cmp_ge_u32 s53, 16
    s_cbranch_scc1 {l_d}
    s_lshl_b32 s{S_UB}, s{S_XCD}, 4
    s_add_u32 s{S_UB}, s{S_UB}, s53
    s_add_u32 s{S_UB}, s{S_UB}, 1024""")
    gu_number(S_UB)
    p(f"{l_d}:\n{l_b}:\n{l_e}:")
    for s_u, ab, sd, vt in ((S_UB, A_UB, S_A, VTB), (S_UC, A_UC, S_X, VTC)):
        l_s = p.label("absent")
        if not late: sd, vt = S_O, VTA
        else:
            for i in range(9): p(f"v_mov_b32 v{vt+i}, 0")
        p(f"s_mov_b32 s{sd+2}, 0\ns_cmp_eq_u32 s{s_u}, -1\ns_cbranch_scc1 {l_s}")
        ffn_unit_setup(p, s_u, SB, sd, SBT); unit_table(p, SB, VG, vt, 64)
        p(f"{l_s}:")
        if not late: p.add(unit_loads(sd, vt, ab))
    pn = NoncePoll(p, 6, 5, 0, "pn")
    l2, l3, l4 = p.label("w3"), p.label("w3"), p.label("ln")
    p(f"s_cmp_eq_u32 s{S_WAVE}, 3\ns_cbranch_scc1 {l2}")
    for i in range(3): unpack8(p, VX + 8 * i, VRAW + 4 * i)
    ln_local_stats(p, VX, VS, VS + 1, 64)
    p(f"""v_and_b32 v64, 7, v{V_LANE}
    s_mul_i32 s46, s{S_WAVE}, 64
    s_add_u32 s46, s46, {LDS_LN}
    v_lshl_add_u32 v64, v64, 3, s46
    ds_write_b64 v64, v[{VS}:{VS+1}]""")
    p.drain(vm=False)
    p(f"{l2}:\ns_barrier"); stamp(p, 3)
    p.add(pn.issue())
    p(f"s_cmp_eq_u32 s{S_WAVE}, 3\ns_cbranch_scc1 {l3}")
    p(f"v_and_b32 v64, 7, v{V_LANE}\nv_lshlrev_b32 v64, 3, v64\nv_add_u32 v64, {LDS_LN}, v64")
    for w in range(3): p(f"ds_read_b64 v[{VS+2*w}:{VS+2*w+1}], v64 offset:{64*w}")
    ln_finish(p, VX, VS, VO, 64)
    p(f"s_mov_b32 s46, {LB(0)+XN}")
    for i in range(3):
        if i == 2: p("s_add_u32 s46, s46, 4096")
        p(f"buffer_store_dwordx4 v[{VO+4*i}:{VO+4*i+3}], v{VFR}, {WSR}, s46 offen offset:{2048*(i&1)} sc1")
    p(f"""s_lshl_b32 s{S_F1}, s47, 2
    s_add_u32 s{S_F1}, s{S_F1}, s{S_WAVE}
    s_lshl_b32 s{S_F1}, s{S_F1}, 3
    s_add_u32 s{S_F1}, s{S_F1}, {FX(0)}
    s_mov_b32 s{S_ROLE}, 0
    s_branch {l4}
    {l3}:""")
    qkv_unit_finish(p, S_ST1, V_LANE, V_L16, 72, 64, ST1, " sc1", "au1")
    l_fw = p.label("fw")
    p(f"s_cmp_eq_u32 s{S_ROLE}, 0\ns_cbranch_scc1 {l4}\ns_cmp_eq_u32 s{S_ROLE}, 2\ns_cbranch_scc1 {l_fw}")
    qkv_unit_finish(p, S_ST2, V_LANE, V_L16, 100, 64, ST2, " sc1", "au2")
    p(f"s_branch {l4}\n{l_fw}:")
    wo_unit_finish(p, S_ST2, V_LANE, V_L16, 100, 64, ST2, " sc1", "au2")
    p(f"{l4}:")
    stamp(p, 4)
    p.add(pn.check())
    p(f"v_readfirstlane_b32 s{S_NONCE}, v6\nv_readfirstlane_b32 s{S_NONCE+1}, v7")
    signal(p, S_F1, 6)
    stamp(p, 5)
    l5 = p.label("norole")
    p(f"s_cmp_eq_u32 s{S_ROLE}, 0\ns_cbranch_scc1 {l5}")
    p.add(signal_items(S_F2, 6)[2])
    p(f"{l5}:")

def finish_unit(p, s_u, abase):
    p(f"s_mul_i32 s55, s{S_WAVE}, 9216\ns_add_u32 s55, s55, {LDS_STG}")
    unit_finish(p, s_u, SB, SBT, 55, abase, V_LANE, V_L16, 72, 64)

def idle0(p):
    for k, (s_u, ab) in enumerate(((S_UA, A_UA), (S_UB, A_UB), (S_UC, A_UC))):
        if k == 0 and OPT.get("early", 1):
            p("s_mov_b32 s44, s0"); continue
        finish_unit(p, s_u, ab)
        p(f"s_mov_b32 s{44+k}, s{SB+U_FLAG}")
        if k == 1:
            signal(p, 44, 8); p.add(signal_items(45, 8)[2])
    signal(p, 46, 8)

def gen_main(name):
    Poll.ool.clear()
    p = Prog(); end = f"{name}_end"
    OPT.setdefault("codepf", 1)
    prologue(p, end, code_pf=1, pf_reg=219, pf_end=f"{name}_last")
    p(f"s_mov_b32 s{S_LB}, {LB(0)}\ns_mov_b32 s{S_LF}, 0")
    phase0(p)
    stamp_flush(p, 6, 6, light=True)
    qkv_setup(p, 0)
    early = OPT.get("early", 1)
    extra = None
    if OPT.get("late"):
        early = 0; OPT["early"] = 0
        extra = unit_loads(S_O, VTA, A_UA) + unit_loads(S_A, VTB, A_UB) + unit_loads(S_X, VTC, A_UC)
    if early:
        finish_unit(p, S_UA, A_UA)
        p(f"s_mov_b32 s0, s{SB+U_FLAG}")
    pwo = Poll(p, 14, 13, 23, "pwo")
    def pre_signal():
        sdiv(p, 53, S_IDX, 6, 32)
        p(f"s_mul_i32 s53, s53, 6\ns_sub_u32 s53, s{S_IDX}, s53\ns_lshl_b32 s53, s53, 8\ns_add_u32 s23, s53, {FWO}")
        lane_min8(p, 13, V_LANE, 18)
        p.add(pwo.issue())
    qkv_main(p, 0, extra, pre_signal, (lambda: p.add(signal_items(0, 6))) if early else None)
    l_idle0, l_ffn, l_red1, l_next = p.label("idle0"), p.label("ffn"), p.label("red1"), p.label("next")
    p(f"s_cmp_ge_u32 s{S_IDX}, 24\ns_cbranch_scc1 {l_idle0}")
    if early: wo_part(p, 0, pwo=pwo)
    else: wo_part(p, 0, lambda: finish_unit(p, S_UA, A_UA), lambda: p.add(signal_items(SB + U_FLAG, 8)), pwo)
    stamp_flush(p, 0, 9, light=True)
    p(f"s_cmp_lg_u32 s{S_WAVE}, 3\ns_cbranch_scc1 {l_ffn}")
    finish_unit(p, S_UB, A_UB)
    signal(p, SB + U_FLAG, 8)
    p(f"s_branch {l_ffn}\n{l_idle0}:")
    idle0(p)
    p(f"{l_ffn}:")
    stamp(p, 0)
    ffn_phase(p, ld=LD())
    stamp_flush(p, 1, 12, light=True, s_row=S_LF)
    p(f"s_cmp_lg_u32 s{S_LF}, 0\ns_cbranch_scc1 {l_red1}")
    stamp(p, 0)
    def w3():
        p(f"""s_and_b32 s44, s{S_IDX}, 15
        s_mul_i32 s44, s44, {126*1024}
        s_add_u32 s44, s44, {WQ}""")
        for j in range(36):
            if j % 4 == 0: p(f"s_mov_b32 m0, {LDS_WQ+j*1024}\ns_add_u32 s45, s44, {j*1024}")
            p(f"buffer_load_dwordx4 v{V_L16}, {WSR}, s45 offen offset:{1024*(j&3)} lds", tag="wq2")
    reduce_phase(p, 0, LDS_LN, pre=lambda: p("s_barrier"), w3=w3)
    qkv_setup(p, 1)
    stamp(p, 2); stamp_flush(p, 2, 3, light=True); stamp(p, 0)
    qkv_main(p, 1)
    p(f"s_cmp_ge_u32 s{S_IDX}, 24\ns_cbranch_scc1 {l_next}")
    wo_part(p, 1)
    stamp_flush(p, 3, 9, light=True)
    p(f"{l_next}:")
    if STAMP[0]: p.drain(vm=False)
    p(f"s_mov_b32 s{S_LB}, {LB(1)}\ns_mov_b32 s{S_LF}, 0x2000\ns_branch {l_ffn}\n{l_red1}:")
    stamp(p, 0)
    reduce_phase(p, 1, LDS_LN)
    stamp(p, 2); p.drain(); stamp(p, 3); stamp_flush(p, 5, 4)
    p(f"{end}:\ns_endpgm")
    for pl in Poll.ool: pl.slow_path(p)
    p.add(Raw(f"{name}_last:\n    s_endpgm"))
    t = p.finalize()
    print(name, p.stats)
    return kernel_text(name, t, vgpr=512, accum=256), (256, 256, LDS_TOTAL)
```

```python
from common import *
def NT(): return " nt" if OPT.get("nt", 1) else ""

def shuffle_dma(p, srd_, ppr, ndma, s_rowbase, s_grs, s_hrs, s_rs, s_lds, v_lane, vt, tag, qkv=False):
    for i in range(ndma):
        p(f"""v_add_u32 v{vt}, {64*i}, v{v_lane}
        v_mul_u32_u24 v{vt+1}, {magic(ppr, 64*ndma)}, v{vt}
        v_lshrrev_b32 v{vt+1}, 16, v{vt+1}
        v_mul_u32_u24 v{vt+2}, {ppr}, v{vt+1}
        v_sub_u32 v{vt}, v{vt}, v{vt+2}""")
        if qkv:
            p(f"""v_mul_u32_u24 v{vt+2}, {magic(5, 16)}, v{vt}
            v_lshrrev_b32 v{vt+2}, 16, v{vt+2}
            v_mul_u32_u24 v{vt+2}, {1152-80}, v{vt+2}
            v_lshl_add_u32 v{vt}, v{vt}, 4, v{vt+2}""")
        else:
            p(f"v_lshlrev_b32 v{vt}, 4, v{vt}")
        p(f"""v_lshrrev_b32 v{vt+2}, 3, v{vt+1}
        v_mul_lo_u32 v{vt+2}, v{vt+2}, s{s_grs}
        v_bfe_u32 v{vt+3}, v{vt+1}, 2, 1
        v_mul_lo_u32 v{vt+3}, v{vt+3}, s{s_hrs}
        v_and_b32 v{vt+1}, 3, v{vt+1}
        v_mul_lo_u32 v{vt+1}, v{vt+1}, s{s_rs}
        v_add3_u32 v{vt}, v{vt}, v{vt+2}, v{vt+3}
        v_add3_u32 v{vt}, v{vt}, v{vt+1}, s{s_rowbase}
        s_add_u32 m0, s{s_lds}, {1024*i}""")
        p(f"buffer_load_dwordx4 v{vt}, s[{srd_}:{srd_+3}], 0 offen{NT()} lds", tag=tag)

def tr_base(p, vd, v_lane, stride, s_lds, vt):
    p(f"""v_lshrrev_b32 v{vd}, 4, v{v_lane}
    v_bfe_u32 v{vt}, v{v_lane}, 2, 2
    v_lshl_add_u32 v{vd}, v{vd}, 3, v{vt}
    v_mul_u32_u24 v{vd}, {stride}, v{vd}
    v_add_u32 v{vd}, s{s_lds}, v{vd}
    v_and_b32 v{vt}, 3, v{v_lane}""")

def tr_frag(p, vf, va, off, stride):
    p(f"ds_read_b64_tr_b16 v[{vf}:{vf+1}], v{va} offset:{off}")
    p(f"ds_read_b64_tr_b16 v[{vf+2}:{vf+3}], v{va} offset:{off+4*stride}")

U_ROW, U_GRS, U_HRS, U_RS, U_PB, U_T8, U_SL, U_CS, U_FLAG, U_D0, U_D4, U_D8, U_S1, U_S2 = range(14)

def ffn_unit_setup(p, s_u, sb, ssrd, st):
    L = p.label
    l_d, l_done = L("ud"), L("udone")
    p(f"s_cmp_ge_u32 s{s_u}, 1152\ns_cbranch_scc1 {l_d}")
    sdiv(p, sb + U_SL, s_u, 36, 1152)
    p(f"""s_mul_i32 s{st}, s{sb+U_SL}, 36
    s_sub_u32 s{st}, s{s_u}, s{st}
    s_and_b32 s{st+1}, s{st}, 1
    s_lshr_b32 s{st+2}, s{st}, 1""")
    if ssrd is not None:
        p(f"""s_cmp_eq_u32 s{st+1}, 0
        s_cselect_b32 s{ssrd}, s{P_WG}, s{P_WU}
        s_cselect_b32 s{ssrd+1}, s{P_WG+1}, s{P_WU+1}
        s_mul_i32 s{sb+U_ROW}, s{st+2}, {32*9216}
        s_mul_i32 s{st+3}, s{sb+U_SL}, 288
        s_add_u32 s{sb+U_ROW}, s{sb+U_ROW}, s{st+3}
        s_mov_b32 s{sb+U_GRS}, {8*9216}
        s_mov_b32 s{sb+U_HRS}, {4*9216}
        s_mov_b32 s{sb+U_RS}, 9216""")
    else:
        p(f"""s_mov_b32 s{sb+U_PB}, 0
        s_mov_b32 s{sb+U_T8}, 256
        s_mul_i32 s{st+3}, s{sb+U_SL}, 486
        s_add_u32 s{st+3}, s{st+3}, s{st}
        s_lshl_b32 s{st+3}, s{st+3}, 10
        s_add_u32 s{sb+U_D8}, s{st+3}, {WF}
        s_add_u32 s{sb+U_D0}, s{sb+U_D8}, {36*1024}
        s_add_u32 s{sb+U_D4}, s{sb+U_D8}, {180*1024}
        s_mov_b32 s{sb+U_S1}, {36*1024}
        s_mov_b32 s{sb+U_S2}, {72*1024}
        s_lshl_b32 s{st+3}, s{sb+U_SL}, 1
        s_add_u32 s{st+3}, s{st+3}, s{st+1}
        s_mul_i32 s{st+3}, s{st+3}, 18
        s_add_u32 s{st+3}, s{st+3}, s{st+2}
        s_mul_i32 s{st+3}, s{st+3}, 576
        s_add_u32 s{sb+U_CS}, s{st+3}, {CSP}
        s_mov_b32 s{sb+U_FLAG}, s{st}""")
    p(f"s_branch {l_done}\n{l_d}:\ns_sub_u32 s{st}, s{s_u}, 1152")
    sdiv(p, sb + U_SL, st, 18, 576)
    p(f"""s_mul_i32 s{st+1}, s{sb+U_SL}, 18
    s_sub_u32 s{st}, s{st}, s{st+1}
    s_and_b32 s{st+1}, s{sb+U_SL}, 3
    s_and_b32 s{st+2}, s{st+1}, 1""")
    if ssrd is not None:
        l_sh, l_rm, l_rows = L("ush"), L("urm"), L("urows")
        p(f"""s_mov_b32 s{ssrd}, s{P_WD}
        s_mov_b32 s{ssrd+1}, s{P_WD+1}
        s_mov_b32 s{sb+U_RS}, 1152
        s_cmp_eq_u32 s{st+2}, 0
        s_mov_b32 s{st+5}, {-144*1152}
        s_cselect_b32 s{st+5}, {144*1152}, s{st+5}
        s_mov_b32 s{sb+U_GRS}, {8*1152}
        s_mov_b32 s{sb+U_HRS}, {4*1152}
        s_cmp_ge_u32 s{st}, 4
        s_cbranch_scc1 {l_sh}
        s_mov_b32 s{st+3}, s{st+1}
        s_lshl_b32 s{st+4}, s{st}, 5
        s_branch {l_rows}
        {l_sh}:
        s_cmp_ge_u32 s{st}, 6
        s_cbranch_scc1 {l_rm}
        s_sub_u32 s{st+3}, s{st}, 4
        s_lshl_b32 s{st+3}, s{st+3}, 1
        s_xor_b32 s{st+3}, s{st+3}, s{st+1}
        s_mov_b32 s{st+4}, 128
        s_mov_b32 s{sb+U_GRS}, {4*1152}
        s_mov_b32 s{sb+U_HRS}, s{st+5}
        s_branch {l_rows}
        {l_rm}:
        s_sub_u32 s{st+3}, s{st}, 6""")
        sdiv(p, st + 4, st + 3, 3, 12)
        p(f"""s_mul_i32 s{st+5}, s{st+4}, 3
        s_sub_u32 s{st+3}, s{st+3}, s{st+5}
        s_add_u32 s{st+3}, s{st+3}, 1
        s_xor_b32 s{st+3}, s{st+3}, s{st+1}
        s_lshl_b32 s{st+4}, s{st+4}, 5
        {l_rows}:
        s_mul_i32 s{st+3}, s{st+3}, 144
        s_add_u32 s{st+3}, s{st+3}, s{st+4}
        s_lshr_b32 s{st+4}, s{sb+U_SL}, 2
        s_mul_i32 s{st+4}, s{st+4}, 576
        s_add_u32 s{st+3}, s{st+3}, s{st+4}
        s_mul_i32 s{st+3}, s{st+3}, 1152
        s_mul_i32 s{st+4}, s{st+1}, 288
        s_add_u32 s{sb+U_ROW}, s{st+3}, s{st+4}""")
    else:
        p(f"""s_mov_b32 s{sb+U_CS}, 0
        s_lshl_b32 s{sb+U_PB}, s{st+2}, 5
        s_cmp_eq_u32 s{st+2}, 0
        s_cselect_b32 s{sb+U_T8}, 256, 0
        s_add_u32 s{sb+U_FLAG}, s{st}, 36
        s_mul_i32 s{st+3}, s{sb+U_SL}, 486
        s_add_u32 s{st+3}, s{st+3}, 324
        s_lshl_b32 s{st+3}, s{st+3}, 10
        s_add_u32 s{st+3}, s{st+3}, {WF}""")
        idx = {k: i for i, k in enumerate(gemm2_order())}
        l_b, l_c = L("ub"), L("uc")
        def dests(st0, nsteps):
            s1, s2 = idx[(st0, 1)] - idx[(st0, 0)], idx[(st0, 2)] - idx[(st0, 0)]
            p(f"s_sub_u32 s{st+4}, s{st}, {st0}\ns_mov_b32 s{sb+U_S1}, {s1*1024}\ns_mov_b32 s{sb+U_S2}, {s2*1024}")
            for n, r in ((0, U_D0), (4, U_D4), (8, U_D8)):
                sd = idx[(st0 + 1, n)] - idx[(st0, n)]
                p(f"""s_mul_i32 s{st+5}, s{st+4}, {sd*1024}
                s_add_u32 s{st+5}, s{st+5}, {idx[(st0, n)]*1024}
                s_add_u32 s{sb+r}, s{st+5}, s{st+3}""")
                for k in range(nsteps):
                    for m in range(n, min(n + 4, 9) if n < 8 else 9):
                        assert idx[(st0 + k, m)] == idx[(st0, n)] + k * sd + (m & 1) * s1 * (n < 8) + ((m >> 1) & 1) * s2 * (n < 8)
        p(f"s_cmp_ge_u32 s{st}, 3\ns_cbranch_scc1 {l_b}")
        dests(0, 3); p(f"s_branch {l_done}\n{l_b}:")
        p(f"s_cmp_ge_u32 s{st}, 9\ns_cbranch_scc1 {l_c}")
        dests(3, 6); p(f"s_branch {l_done}\n{l_c}:")
        dests(9, 9)
    p(f"{l_done}:")
    if ssrd is not None: p(f"s_mov_b32 s{ssrd+2}, {D*F*2:#x}\ns_mov_b32 s{ssrd+3}, 0x20000")
    else:
        p(f"""s_lshl_b32 s{st+3}, s{sb+U_SL}, 6
        s_add_u32 s{st+3}, s{st+3}, s{sb+U_FLAG}
        s_lshl_b32 s{st+3}, s{st+3}, 3
        s_add_u32 s{sb+U_FLAG}, s{st+3}, {FW}""")

def unit_pieces(p, v_lane, vg, vt):
    for i in range(9):
        p(f"""v_add_u32 v{vt}, {64*i}, v{v_lane}
        v_mul_u32_u24 v{vt+1}, {magic(18, 576)}, v{vt}
        v_lshrrev_b32 v{vt+1}, 16, v{vt+1}
        v_mul_u32_u24 v{vt+2}, 18, v{vt+1}
        v_sub_u32 v{vt}, v{vt}, v{vt+2}
        v_lshl_or_b32 v{vg+i}, v{vt}, 8, v{vt+1}""")

def unit_table(p, sb, vg, vtab, vt):
    for i in range(9):
        p(f"""v_bfe_u32 v{vt}, v{vg+i}, 3, 2
        v_mul_u32_u24 v{vt}, s{sb+U_GRS}, v{vt}
        v_bfe_u32 v{vt+1}, v{vg+i}, 2, 1
        v_mul_lo_u32 v{vt+1}, v{vt+1}, s{sb+U_HRS}
        v_and_b32 v{vt+2}, 3, v{vg+i}
        v_mul_u32_u24 v{vt+2}, s{sb+U_RS}, v{vt+2}
        v_add3_u32 v{vt}, v{vt}, v{vt+1}, v{vt+2}
        v_lshrrev_b32 v{vt+1}, 8, v{vg+i}
        v_lshl_add_u32 v{vt}, v{vt+1}, 4, v{vt}
        v_add_u32 v{vtab+i}, s{sb+U_ROW}, v{vt}""")

def unit_loads(srd_, vtab, abase):
    return [ins(f"buffer_load_dwordx4 a[{abase+4*i}:{abase+4*i+3}], v{vtab+i}, s[{srd_}:{srd_+3}], 0 offen{NT()}") for i in range(9)]

def unit_finish(p, s_u, sb, st, s_lds, abase, v_lane, v_l16, vf, vt, sc=" sc1"):
    va, vb = vt, vt + 1
    p(f"v_add_u32 v{va}, s{s_lds}, v{v_l16}")
    for i in range(9): p(f"ds_write_b128 v{va}, a[{abase+4*i}:{abase+4*i+3}] offset:{1024*i}")
    ffn_unit_setup(p, s_u, sb, None, st)
    tr_base(p, va, v_lane, 288, s_lds, vt + 2)
    p(f"""v_lshl_add_u32 v{vb}, v{vt+2}, 3, v{va}
    v_add_u32 v{vb}, s{sb+U_T8}, v{vb}
    v_lshl_add_u32 v{va}, v{vt+2}, 4, v{va}
    v_add_u32 v{va}, s{sb+U_PB}, v{va}""")
    for n in range(9):
        if n < 8: tr_frag(p, vf + 4 * n, va, 64 * (n >> 1) + 8 * (n & 1), 288)
        else: tr_frag(p, vf + 4 * n, vb, 0, 288)
    for n in range(9):
        base = sb + (U_D0 if n < 4 else U_D4 if n < 8 else U_D8)
        if n < 8 and n & 3:
            if (n & 3) == 1: p(f"s_add_u32 s{st}, s{base}, s{sb+U_S1}")
            elif (n & 3) == 2: p(f"s_add_u32 s{st}, s{base}, s{sb+U_S2}")
            else: p(f"s_add_u32 s{st}, s{st}, s{sb+U_S1}")
            base = st
        p(f"buffer_store_dwordx4 v[{vf+4*n}:{vf+4*n+3}], v{v_l16}, s[{S_WS}:{S_WS+3}], s{base} offen{sc}")
    l_skip = p.label("nocs")
    p(f"s_cmp_eq_u32 s{sb+U_CS}, 0\ns_cbranch_scc1 {l_skip}")
    vo, vd = vt + 4, vf + 36
    for j in range(4): p(f"v_mov_b32 v{vo+j}, {BF16_ONES:#x}")
    for n in range(9):
        p(f"v_mfma_f32_16x16x32_bf16 v[{vd+4*n}:{vd+4*n+3}], v[{vf+4*n}:{vf+4*n+3}], v[{vo}:{vo+3}], 0")
    p(f"""v_and_b32 v{vt+2}, 15, v{v_lane}
    v_add_u32 v{vt+3}, 1, v{vt+2}
    v_cmp_gt_u32 vcc, 8, v{vt+2}
    v_and_b32 v{va}, 48, v{v_lane}
    v_cndmask_b32 v{vt+3}, 0, v{vt+3}, vcc
    v_lshlrev_b32 v{vt+3}, 6, v{vt+3}
    v_add_u32 v{vt+3}, v{vt+3}, v{va}""")
    for n in range(1, 9):
        p(f"v_cmp_eq_u32 vcc, {n}, v{vt+2}")
        for j in range(4): p(f"v_cndmask_b32 v{vd+j}, v{vd+j}, v{vd+4*n+j}, vcc")
    p(f"""s_mov_b32 exec_lo, 0x01ff01ff
    s_mov_b32 exec_hi, 0x01ff01ff
    buffer_store_dwordx4 v[{vd}:{vd+3}], v{vt+3}, s[{S_WS}:{S_WS+3}], s{sb+U_CS} offen{sc}
    s_mov_b64 exec, -1
    {l_skip}:""")

def qkv_unit_issue(p, s_u, s_lds, v_lane, vt, st, srd_=S_A, tag="au"):
    sdiv(p, st, s_u, 18, 288)
    p(f"""s_mul_i32 s{st+1}, s{st}, 18
    s_sub_u32 s{st+1}, s{s_u}, s{st+1}
    s_mul_i32 s{st+2}, s{st}, 72
    s_and_b32 s{st+3}, s{st+2}, 8
    s_and_b32 s{st+2}, s{st+2}, -16
    s_mul_i32 s{st+4}, s{st+1}, {32*3456}
    s_add_u32 s{st+2}, s{st+2}, s{st+4}
    s_mov_b32 s{st+4}, {3456-240}
    s_mul_i32 s{st+7}, s{s_u}, {7*1024}""")
    srd(p, srd_, P_WQKV, D * 3 * D * 2)
    for i in range(8):
        p(f"""v_add_u32 v{vt}, {64*i}, v{v_lane}
        v_mul_u32_u24 v{vt+1}, {magic(15, 512)}, v{vt}
        v_lshrrev_b32 v{vt+1}, 16, v{vt+1}
        v_mad_i32_i24 v{vt+2}, v{vt+1}, -15, v{vt}
        v_mul_u32_u24 v{vt+2}, {magic(5, 16)}, v{vt+2}
        v_lshrrev_b32 v{vt+2}, 16, v{vt+2}
        v_mul_u32_u24 v{vt+2}, {1152-80}, v{vt+2}
        v_mad_u32_u24 v{vt+1}, v{vt+1}, s{st+4}, v{vt+2}
        v_lshl_add_u32 v{vt}, v{vt}, 4, v{vt+1}
        s_add_u32 m0, s{s_lds}, {1024*i}""")
        p(f"buffer_load_dwordx4 v{vt}, s[{srd_}:{srd_+3}], s{st+2} offen{NT()} lds", tag=tag)

def qkv_unit_finish(p, s_lds, v_lane, v_l16, vf, vt, st, sc="", tag="au"):
    va, vb = vt, vt + 1
    tr_base(p, va, v_lane, 240, s_lds, vt + 2)
    p(f"""v_add_u32 v{va}, s{st+3}, v{va}
    v_and_b32 v{vt+3}, 1, v{vt+2}
    v_mul_u32_u24 v{vt+3}, 160, v{vt+3}
    v_lshrrev_b32 v{vb}, 1, v{vt+2}
    v_mul_u32_u24 v{vb}, 80, v{vb}
    v_add3_u32 v{vb}, v{vb}, v{vt+3}, v{va}
    v_cmp_eq_u32 vcc, 3, v{vt+2}
    v_cndmask_b32 v{vb}, v{vb}, v{va}, vcc
    v_lshl_add_u32 v{va}, v{vt+2}, 3, v{va}""")
    p.wait_vm(tag)
    for t in range(6): tr_frag(p, vf + 4 * t, va, 80 * (t >> 1) + 40 * (t & 1), 240)
    tr_frag(p, vf + 24, vb, 32, 240)
    p(f"v_and_b32 v{vt+2}, 15, v{v_lane}\nv_cmp_gt_u32 vcc, 12, v{vt+2}")
    for j in range(4): p(f"v_cndmask_b32 v{vf+24+j}, 0, v{vf+24+j}, vcc")
    p(f"s_add_u32 s{st+7}, s{st+7}, {WQ}")
    for t in range(7):
        if t == 4: p(f"s_add_u32 s{st+7}, s{st+7}, 4096")
        p(f"buffer_store_dwordx4 v[{vf+4*t}:{vf+4*t+3}], v{v_l16}, s[{S_WS}:{S_WS+3}], s{st+7} offen offset:{(t&3)*1024}{sc}")

def qkv_unit(p, s_u, s_lds, v_lane, v_l16, vf, vt, st, sc=""):
    qkv_unit_issue(p, s_u, s_lds, v_lane, vt, st); qkv_unit_finish(p, s_lds, v_lane, v_l16, vf, vt, st, sc)

def wo_unit_issue(p, s_u, s_lds, v_lane, vt, st, srd_=S_A, tag="au"):
    sdiv(p, st, s_u, 18, 108)
    p(f"""s_mul_i32 s{st+1}, s{st}, 18
    s_sub_u32 s{st+1}, s{s_u}, s{st+1}
    s_mul_i32 s{st+2}, s{st+1}, {36*1152}
    s_sub_u32 s{st+3}, s{st+1}, 16
    s_mul_i32 s{st+3}, s{st+3}, {288*1152}
    s_add_u32 s{st+3}, s{st+3}, {16*1152}
    s_cmp_lt_u32 s{st+1}, 16
    s_cselect_b32 s{st+2}, s{st+2}, s{st+3}
    s_mov_b32 s{st+4}, {72*1152}
    s_mov_b32 s{st+5}, {36*1152}
    s_cselect_b32 s{st+4}, {4*1152}, s{st+4}
    s_cselect_b32 s{st+5}, {20*1152}, s{st+5}
    s_mul_i32 s{st+3}, s{st}, 192
    s_add_u32 s{st+2}, s{st+2}, s{st+3}
    s_mov_b32 s{st+6}, 1152
    s_mul_i32 s{st+7}, s{s_u}, {6*1024}""")
    srd(p, srd_, P_WO, D * D * 2)
    shuffle_dma(p, srd_, 12, 6, st + 2, st + 4, st + 5, st + 6, s_lds, v_lane, vt, tag)

def wo_unit_finish(p, s_lds, v_lane, v_l16, vf, vt, st, sc="", tag="au"):
    va = vt
    tr_base(p, va, v_lane, 192, s_lds, vt + 2)
    p(f"v_lshl_add_u32 v{va}, v{vt+2}, 4, v{va}")
    p.wait_vm(tag)
    for t in range(6): tr_frag(p, vf + 4 * t, va, 64 * (t >> 1) + 8 * (t & 1), 192)
    p(f"s_add_u32 s{st+7}, s{st+7}, {WOS}")
    for t in range(6):
        if t == 4: p(f"s_add_u32 s{st+7}, s{st+7}, 4096")
        p(f"buffer_store_dwordx4 v[{vf+4*t}:{vf+4*t+3}], v{v_l16}, s[{S_WS}:{S_WS+3}], s{st+7} offen offset:{(t&3)*1024}{sc}")

def wo_unit(p, s_u, s_lds, v_lane, v_l16, vf, vt, st, sc=""):
    wo_unit_issue(p, s_u, s_lds, v_lane, vt, st); wo_unit_finish(p, s_lds, v_lane, v_l16, vf, vt, st, sc)

def ln_addr(p, s_tg, v_lane, v_row, v_frag, vt, st):
    p(f"""v_and_b32 v{vt}, 7, v{v_lane}
    v_lshrrev_b32 v{vt+1}, 3, v{v_lane}
    s_lshl_b32 s{st}, s{s_tg}, 3
    v_add_u32 v{v_row}, s{st}, v{vt}
    v_mul_u32_u24 v{v_row}, 1152, v{v_row}
    s_mul_i32 s{st}, s{S_WAVE}, {24*16}
    v_lshl_add_u32 v{v_row}, v{vt+1}, 4, v{v_row}
    v_add_u32 v{v_row}, s{st}, v{v_row}
    s_lshr_b32 s{st}, s{s_tg}, 1
    s_mul_i32 s{st}, s{st}, {18*1024}
    s_and_b32 s{st+1}, s{s_tg}, 1
    s_lshl_b32 s{st+1}, s{st+1}, 7
    s_add_u32 s{st}, s{st}, s{st+1}
    s_mul_i32 s{st+1}, s{S_WAVE}, {6*1024}
    s_add_u32 s{st}, s{st}, s{st+1}
    v_lshlrev_b32 v{vt}, 4, v{vt}
    v_lshl_add_u32 v{vt}, v{vt+1}, 8, v{vt}
    v_add_u32 v{v_frag}, s{st}, v{vt}""")

def ln_local_stats(p, vx, v_sum, v_m2, vt):
    p(f"v_add_f32 v{v_sum}, v{vx}, v{vx+1}\nv_add_f32 v{vt}, v{vx+2}, v{vx+3}")
    for j in range(4, 24, 2):
        p(f"v_add_f32 v{v_sum}, v{v_sum}, v{vx+j}\nv_add_f32 v{vt}, v{vt}, v{vx+j+1}")
    p(f"v_add_f32 v{v_sum}, v{v_sum}, v{vt}")
    xsum8(p, v_sum); xsum_g(p, v_sum, vt)
    p(f"v_mul_f32 v{vt+1}, {1/192!r}, v{v_sum}".replace(repr(1/192), "0x3baaaaab"))
    p(f"v_sub_f32 v{vt}, v{vx}, v{vt+1}\nv_mul_f32 v{v_m2}, v{vt}, v{vt}")
    for j in range(1, 24):
        p(f"v_sub_f32 v{vt+2+(j&1)}, v{vx+j}, v{vt+1}\nv_fmac_f32 v{v_m2}, v{vt+2+(j&1)}, v{vt+2+(j&1)}")
    xsum8(p, v_m2); xsum_g(p, v_m2, vt)

def ln_finish(p, vx, vs, vo, vt):
    mean, a, b = vt, vt + 1, vt + 2
    p(f"""v_add_f32 v{mean}, v{vs}, v{vs+2}
    v_add_f32 v{mean}, v{mean}, v{vs+4}
    v_mul_f32 v{mean}, 0x3ae38e39, v{mean}
    v_add_f32 v{a}, v{vs+1}, v{vs+3}
    v_add_f32 v{a}, v{a}, v{vs+5}""")
    for w in range(3):
        p(f"""v_mul_f32 v{b}, 0x3baaaaab, v{vs+2*w}
        v_sub_f32 v{b}, v{b}, v{mean}
        v_mul_f32 v{b}, v{b}, v{b}
        v_fmac_f32 v{a}, 0x43400000, v{b}""")
    p(f"v_mul_f32 v{a}, 0x3ae38e39, v{a}")
    round_bf16(p, a)
    p(f"v_add_f32 v{a}, 0x3727c5ac, v{a}")
    round_bf16(p, a)
    p(f"v_sqrt_f32 v{a}, v{a}")
    round_bf16(p, a)
    p(f"v_rcp_f32 v{a}, v{a}")
    round_bf16(p, mean)
    for j in range(0, 24, 2):
        p(f"""v_sub_f32 v{vx+j}, v{vx+j}, v{mean}
        v_sub_f32 v{vx+j+1}, v{vx+j+1}, v{mean}
        v_cvt_pk_bf16_f32 v{b}, v{vx+j}, v{vx+j+1}
        v_lshlrev_b32 v{vx+j}, 16, v{b}
        v_and_b32 v{vx+j+1}, 0xffff0000, v{b}
        v_mul_f32 v{vx+j}, v{vx+j}, v{a}
        v_mul_f32 v{vx+j+1}, v{vx+j+1}, v{a}
        v_cvt_pk_bf16_f32 v{vo+j//2}, v{vx+j}, v{vx+j+1}""")
```

```python
from fw import *
from layout import *

S_WS = 4
S_X  = 8
S_A  = 12
S_O  = 16
S_WAVE = 20
S_XCD = 21
S_IDX = 22
S_PTR = 24
P_X, P_WQKV, P_WO, P_WG, P_WU, P_WD, P_OUT, P_DBG, P_WS = 24, 26, 28, 32, 34, 36, 38, 40, 42
BF16_ONES = 0x3F803F80

def srd(p, s, ptr, nbytes):
    p(f"""s_mov_b32 s{s}, s{ptr}
    s_mov_b32 s{s+1}, s{ptr+1}
    s_mov_b32 s{s+2}, {nbytes:#x}
    s_mov_b32 s{s+3}, 0x20000""")

OPT = {}
STAMP = [False]
STAMPS = 0xF000000
def stamp_ins(k, base=72): return ins(f"{'s_memtime' if STAMP[0] == 2 else 's_memrealtime'} s[{base+2*k}:{base+2*k+1}]")
def stamp(p, k, base=72):
    if STAMP[0]: p.add(stamp_ins(k, base))
def stamp_flush(p, kidx, n, base=72, light=False, s_row=None):
    if not STAMP[0]: return
    l = p.label("nostamp")
    p.drain(vm=not light)
    p(f"s_cmp_lg_u32 s{S_WAVE}, {OPT.get('sw', 0) if kidx not in (2, 5) else 0}\ns_cbranch_scc1 {l}\ns_lshl_b32 s23, s2, 7\ns_add_u32 s23, s23, {STAMPS+kidx*256*128}")
    if s_row is not None:
        p(f"s_cmp_lg_u32 s{s_row}, 0\ns_cselect_b32 s96, {3*256*128}, 0\ns_add_u32 s23, s23, s96")
    p("s_mov_b64 exec, 1")
    for k in range(n):
        p(f"v_mov_b32 v8, s{base+2*k}\nv_mov_b32 v9, s{base+2*k+1}\nbuffer_store_dwordx2 v[8:9], off, s[{S_WS}:{S_WS+3}], s23 offset:{8*k}")
    if OPT.get("dbgstamp") is not None:
        l2 = p.label("nodbg")
        sel = {0: ((0, 2), (1, 3), (4, 4), (8, 5)), 1: ((1, 6), (11, 7)), 2: ((2, 8),), 3: ((4, 9), (8, 10)), 5: ((3, 13),), 6: ()}[kidx]
        p(f"s_cmp_lg_u32 s2, {OPT['dbgstamp']}\ns_cbranch_scc1 {l2}")
        if s_row is not None: p(f"s_cmp_lg_u32 s{s_row}, 0\ns_cselect_b32 s96, 20, 0\nv_mov_b32 v9, s96")
        else: p("v_mov_b32 v9, 0")
        for k, slot in sel:
            p(f"s_sub_u32 s96, s{base+2*k}, s98\nv_mov_b32 v8, s96\nglobal_store_dword v9, v8, s[{P_DBG}:{P_DBG+1}] offset:{4*slot}")
        p(f"{l2}:")
    p("s_mov_b64 exec, -1")
    if not light: p.drain()
    p(f"{l}:")

def prologue(p, end_label, nwg=256, v_lane=1, v_l16=2, sbase=72, code_pf=0, pf_reg=4, pf_end=None):
    p(f"s_cmp_ge_u32 s2, {nwg}\ns_cbranch_scc1 {end_label}")
    stamp(p, 0, sbase)
    p(f"""    s_load_dwordx16 s[24:39], s[0:1], 0
    s_load_dwordx4 s[40:43], s[0:1], 64
    v_lshrrev_b32 v{v_lane}, 6, v0
    s_and_b32 s{S_XCD}, s2, 7
    v_readfirstlane_b32 s{S_WAVE}, v{v_lane}
    s_lshr_b32 s{S_IDX}, s2, 3
    v_and_b32 v{v_lane}, 63, v0
    v_lshlrev_b32 v{v_l16}, 4, v{v_lane}""")
    if OPT.get("codepf") and code_pf:
        lpc = p.label("pc")
        p(f"""s_lshl_b32 s23, s{S_IDX}, 2
        s_add_u32 s23, s23, s{S_WAVE}
        s_mul_i32 s23, s23, 5
        v_add_lshl_u32 v{pf_reg}, v{v_lane}, s23, 7
        s_getpc_b64 s[{S_O}:{S_O+1}]
        {lpc}:
        v_min_u32 v{pf_reg}, {pf_end or end_label}-{lpc}, v{pf_reg}
        s_mov_b64 exec, 31
        global_load_dword v{pf_reg}, v{pf_reg}, s[{S_O}:{S_O+1}]
        s_mov_b64 exec, -1""")
    p.drain(vm=False)
    srd(p, S_WS, P_WS, WS_BYTES)

def magic(d, n):
    m = (65536 + d - 1) // d
    assert all((x * m) >> 16 == x // d for x in range(n)), (d, n)
    return m

def sdiv(p, sq, sx, d, n):
    p(f"s_mul_i32 s{sq}, s{sx}, {magic(d, n)}\ns_lshr_b32 s{sq}, s{sq}, 16")

def unpack8(p, dst, src):
    for j in range(4):
        p(f"v_lshlrev_b32 v{dst+2*j}, 16, v{src+j}")
        p(f"v_and_b32 v{dst+2*j+1}, 0xffff0000, v{src+j}")

def round_bf16(p, v, tmp=None):
    p(f"v_cvt_pk_bf16_f32 v{v}, v{v}, v{v}\nv_lshlrev_b32 v{v}, 16, v{v}")

def xsum_g(p, v, t):
    p(f"""v_mov_b32 v{t}, v{v}
    v_permlane16_swap_b32 v{v}, v{t}
    v_add_f32 v{v}, v{v}, v{t}
    v_mov_b32 v{t}, v{v}
    v_permlane32_swap_b32 v{v}, v{t}
    v_add_f32 v{v}, v{v}, v{t}""")

def xsum8(p, v):
    p(f"v_add_f32_dpp v{v}, v{v}, v{v} row_ror:8 row_mask:0xf bank_mask:0xf")

WSR = f"s[{S_WS}:{S_WS+3}]"
S_NONCE, S_LB, S_LF, S_CNT = 98, 100, 101, 97
SPIN = 0x40000

class Poll:
    ool = []
    def __init__(self, p, v_flag, v_addr, s_off, name):
        self.v, self.va, self.so = v_flag, v_addr, s_off
        self.slow, self.back, self.lp = p.label(name + "_slow"), p.label(name + "_back"), p.label(name + "_spin")
        Poll.ool.append(self)
    def ld(self): return f"buffer_load_dwordx2 v[{self.v}:{self.v+1}], v{self.va}, {WSR}, s{self.so} offen sc1"
    def cmp(self): return f"v_cmp_eq_u64 vcc, s[{S_NONCE}:{S_NONCE+1}], v[{self.v}:{self.v+1}]"
    def issue(self): return ins(self.ld())
    def check(self):
        return [ins(self.cmp()), ins("s_cmp_eq_u64 vcc, exec"), ins(f"s_cbranch_scc0 {self.slow}", "ool"), Label(self.back)]
    def both(self): return [self.issue()] + self.check()
    def slow_path(self, p):
        p.add(Raw(f"""{self.slow}:
    s_mov_b32 s{S_CNT}, {SPIN:#x}
{self.lp}:
    {self.ld()}
    s_waitcnt vmcnt(0)
    {self.cmp()}
    s_sub_u32 s{S_CNT}, s{S_CNT}, 1
    s_cbranch_scc1 {self.back}
    s_cmp_eq_u64 vcc, exec
    s_cbranch_scc1 {self.back}
    s_branch {self.lp}"""))

class NoncePoll(Poll):
    def ld(self): return f"global_load_dwordx2 v[{self.v}:{self.v+1}], v{self.va}, s[{P_DBG}:{P_DBG+1}] sc1"
    def cmp(self): return f"v_cmp_ne_u64 vcc, 0, v[{self.v}:{self.v+1}]"

def LOC(kind):
    return "" if kind in str(OPT.get("loc", "")) else " sc1"

def signal_items(s_addr, vt, sc=" sc1"):
    return [ins(f"v_mov_b32 v{vt}, s{S_NONCE}"), ins(f"v_mov_b32 v{vt+1}, s{S_NONCE+1}"),
            [ins("s_mov_b64 exec, 1"), ins(f"buffer_store_dwordx2 v[{vt}:{vt+1}], off, {WSR}, s{s_addr}{sc}"), ins("s_mov_b64 exec, -1")]]

def signal(p, s_addr, vt, tag=None, sc=" sc1"):
    it = signal_items(s_addr, vt, sc)
    p.add(it[:2])
    if tag: p.wait_vm(tag)
    else: p.drain(lg=False)
    p.add(it[2])

def lane_min8(p, vd, v_lane, n):
    p(f"v_min_u32 v{vd}, {n-1}, v{v_lane}\nv_lshlrev_b32 v{vd}, 3, v{vd}")

def touch_items(s_base, n, va, vd, sc=" sc1"):
    r = [ins(f"v_min_u32 v{va}, {min(n, 64)-1}, v1"), ins(f"v_lshlrev_b32 v{va}, 7, v{va}"),
         ins(f"buffer_load_dword v{vd}, v{va}, {WSR}, s{s_base} offen{sc}")]
    if n > 64:
        r += [ins(f"v_add_u32 v{va}, {(n-64)*128}, v{va}"), ins(f"buffer_load_dword v{vd+1}, v{va}, {WSR}, s{s_base} offen{sc}")]
    return r
```

```python
from common import *
MF = "v_mfma_f32_16x16x32_bf16"
NEG_BIG = 0xF149F2CA

def attn_bias(p, S_AB):
    V_LANE = 1
    BO, BP, BP0 = 168, 172, 176
    p(f"""v_and_b32 v6, 15, v{V_LANE}
    v_lshrrev_b32 v7, 4, v{V_LANE}
    v_lshlrev_b32 v7, 2, v7
    v_sub_u32 v6, v6, v7
    v_mov_b32 v8, {NEG_BIG:#x}
    s_or_b32 s52, s{S_AB}, s{S_WAVE}
    s_cmp_eq_u32 s52, 0
    s_cselect_b64 s[56:57], -1, 0""")
    for r in range(4):
        p(f"""v_subrev_u32 v7, {r}, v6
        v_and_b32 v9, 0xfffffff1, v7
        v_cmp_eq_u32 vcc, 0, v9
        v_add_u32 v7, 16, v7
        v_and_b32 v9, 0xfffffff1, v7
        v_cndmask_b32_e64 v{BO+r}, v8, 0, vcc
        v_cmp_eq_u32 vcc, 0, v9
        v_cndmask_b32_e64 v{BP+r}, v8, 0, vcc
        v_cndmask_b32_e64 v{BP0+r}, v{BP+r}, v8, s[56:57]""")

def attn_part(p, l, S_T0, S_HP, EXB, sc):
    V_LANE, V_L16 = 1, 2
    ACC, HACC = 16, 80
    BO, BP, BP0 = 168, 172, 176
    KP, K0, K1 = 88, 94, 100
    VE, VO_, VR_ = 106, 112, 118
    Q = 124
    HT, HN = 140, 142
    def pack(d, s):
        p(f"v_cvt_pk_bf16_f32 v{d}, v{s}, v{s+1}\nv_cvt_pk_bf16_f32 v{d+1}, v{s+2}, v{s+3}")
    a_ = lambda tt, j: ACC + 32 * tt + 4 * j
    V_EX = 6
    p(f"""v_lshlrev_b32 v{V_EX}, 3, v{V_LANE}
    v_add_u32 v{V_EX}, {EXB}, v{V_EX}
    s_mul_i32 s52, s{S_WAVE}, 3072
    v_add_u32 v7, s52, v{V_EX}""")
    for tt, K in ((1, K1), (0, K0)):
        q = Q + 8 * tt
        pack(K, a_(tt, 2)); pack(K + 4, a_(tt, 3))
        p(f"""v_cvt_pk_bf16_f32 v{q+2}, v{a_(tt,4)}, v{a_(tt,4)+1}
        v_cvt_pk_bf16_f32 v{q+5}, v{a_(tt,4)+2}, v{a_(tt,4)+3}
        v_mov_b32 v{K+2}, 0
        v_mov_b32 v{K+3}, 0""")
        for j, V in ((5, VE), (6, VO_), (7, VR_)): pack(V + 2 + 2 * tt, a_(tt, j))
        p(f"v_permlane32_swap_b32 v{q+2}, v{K+2}\nv_permlane32_swap_b32 v{q+5}, v{K+3}")
        if tt == 1:
            lw3 = p.label("w3")
            p(f"s_cmp_eq_u32 s{S_WAVE}, 3\ns_cbranch_scc1 {lw3}")
            for f, r in enumerate((K1, K1 + 2, K1 + 4, VE + 4, VO_ + 4, VR_ + 4)):
                p(f"ds_write_b64 v7, v[{r}:{r+1}] offset:{3072+512*f}")
            p(f"{lw3}:")
            pack(HT, HACC); pack(HN, HACC + 4)
            lsk = p.label("noswap")
            p(f"""s_min_u32 s52, s{S_WAVE}, 2
            s_lshl_b32 s53, s52, 1
            s_cmp_ge_u32 s{S_WAVE}, 2
            s_cselect_b32 s53, 1, s53
            s_lshl_b32 s53, s53, 9
            s_add_u32 s52, s52, 3
            s_lshl_b32 s52, s52, 9
            v_add_u32 v8, s53, v{V_EX}
            v_add_u32 v9, s52, v{V_EX}
            s_cmp_lt_u32 s{S_WAVE}, 2
            s_cbranch_scc1 {lsk}
            v_mov_b32 v10, 0
            v_mov_b32 v11, 0
            s_nop 1
            v_permlane32_swap_b32 v{HT}, v10
            v_permlane32_swap_b32 v{HT+1}, v11
            v_mov_b32 v{HT}, v10
            v_mov_b32 v{HT+1}, v11
            {lsk}:
            ds_write_b64 v8, v[{HT}:{HT+1}]
            ds_write_b64 v9, v[{HN}:{HN+1}]""")
        pack(q, a_(tt, 0)); pack(q + 6, a_(tt, 1))
        p(f"v_mov_b32 v{q+3}, 0\nv_mov_b32 v{q+4}, 0")
    ONE = 12
    for j in range(4): p(f"v_mov_b32 v{ONE+j}, {BF16_ONES:#x}")
    SS = 16
    th = [(tt, h) for tt in (1, 0) for h in range(2)]
    sreg = lambda tt, h: SS + 16 * tt + 8 * h
    Kop = lambda K, h: vr(K + 2 * h, 4)
    Qop = lambda tt, h: vr(Q + 8 * tt + 4 * h, 4)
    for h in range(2):
        p(f"{MF} {vr(sreg(1,h),4)}, {Kop(K0,h)}, {Qop(1,h)}, {vr(BP,4)}")
        p(f"{MF} {vr(sreg(1,h)+4,4)}, {Kop(K1,h)}, {Qop(1,h)}, {vr(BO,4)}")
        p(f"{MF} {vr(sreg(0,h)+4,4)}, {Kop(K0,h)}, {Qop(0,h)}, {vr(BO,4)}")
    p.drain(vm=False)
    p("s_barrier")
    for f, r in enumerate((KP, KP + 2, KP + 4, VE, VO_, VR_)):
        p(f"ds_read_b64 v[{r}:{r+1}], v7 offset:{512*f}")
    MX, TMP, PP, OO = 48, 52, 56, 180
    p(f"s_mov_b32 s52, 0x3eae1a93")
    def softmax(group):
        for k, (tt, h) in group:
            s = sreg(tt, h)
            p(f"v_max3_f32 v{MX+k}, v{s}, v{s+1}, v{s+2}")
        for j in (3, 5):
            for k, (tt, h) in group:
                s = sreg(tt, h)
                p(f"v_max3_f32 v{MX+k}, v{MX+k}, v{s+j}, v{s+j+1}")
        for k, (tt, h) in group:
            p(f"v_max_f32 v{MX+k}, v{MX+k}, v{sreg(tt,h)+7}")
        for op in ("v_permlane16_swap_b32", "v_permlane32_swap_b32"):
            for k, _ in group: p(f"v_mov_b32 v{TMP+k}, v{MX+k}")
            for k, _ in group: p(f"{op} v{MX+k}, v{TMP+k}")
            for k, _ in group: p(f"v_max_f32 v{MX+k}, v{MX+k}, v{TMP+k}")
        for k, _ in group: p(f"v_mul_f32 v{MX+k}, s52, v{MX+k}")
        for j in range(8):
            for k, (tt, h) in group:
                s = sreg(tt, h) + j
                p(f"v_fma_f32 v{s}, v{s}, s52, -v{MX+k}")
        for j in range(8):
            for k, (tt, h) in group:
                s = sreg(tt, h) + j
                p(f"v_exp_f32 v{s}, v{s}")
        for j in range(4):
            for k, (tt, h) in group:
                s = sreg(tt, h) + 2 * j
                p(f"v_cvt_pk_bf16_f32 v{PP+4*k+j}, v{s}, v{s+1}")
        for k, (tt, h) in group:
            o = OO + 12 * k
            p(f"{MF} {vr(o+8,4)}, {vr(ONE,4)}, {vr(PP+4*k,4)}, 0")
            p(f"{MF} {vr(o,4)}, {vr((VE, VO_)[h]+2*tt,4)}, {vr(PP+4*k,4)}, 0")
            p(f"{MF} {vr(o+4,4)}, {vr(VR_+2*tt,4)}, {vr(PP+4*k,4)}, 0")
    g1 = [(0, (1, 0)), (1, (1, 1))]
    g0 = [(2, (0, 0)), (3, (0, 1))]
    for h in range(2):
        p(f"{MF} {vr(sreg(0,h),4)}, {Kop(KP,h)}, {Qop(0,h)}, {vr(BP0,4)}")
    softmax(g1 + g0)
    OP, RP = 72, 80
    p(f"""s_lshl_b32 s53, s{S_T0}, 4
    s_add_u32 s53, s53, s{S_HP}
    s_lshl_b32 s54, s53, 10
    s_add_u32 s54, s54, {LB(l)+OM}
    s_lshl_b32 s55, s53, 7
    s_add_u32 s55, s55, {LB(l)+OR_-128}
    v_lshlrev_b32 v6, 3, v{V_LANE}""")
    for k, (tt, h) in g1 + g0:
        o = OO + 12 * k
        p(f"v_rcp_f32 v{o+8}, v{o+8}")
    for k, (tt, h) in g1 + g0:
        o = OO + 12 * k
        for j in range(4): p(f"v_mul_f32 v{o+j}, v{o+j}, v{o+8}")
        for j in range(2): p(f"v_mul_f32 v{o+4+2*h+j}, v{o+4+2*h+j}, v{o+8}")
        pack(OP + 4 * tt + 2 * h, o)
        p(f"v_cvt_pk_bf16_f32 v{RP+2*tt+h}, v{o+4+2*h}, v{o+5+2*h}")
        if h == 1:
            p(f"s_add_u32 s53, s54, {tt*16*1024}")
            p(f"buffer_store_dwordx4 {vr(OP+4*tt,4)}, v{V_L16}, s[{S_WS}:{S_WS+3}], s53 offen{sc}", tag="ost")
    p("s_mov_b32 exec_lo, 0xffff0000\ns_mov_b32 exec_hi, 0")
    for tt in range(2):
        p(f"buffer_store_dwordx2 {vr(RP+2*tt,2)}, v6, s[{S_WS}:{S_WS+3}], s55 offen offset:{tt*16*128}{sc}", tag="ost")
    p("s_mov_b64 exec, -1")

def qkv_phase(p, l, sc="", ld=""):
    V_LANE, V_L16 = 1, 2
    V_W, V_HT, V_HN = 3, 4, 5
    ACC, HACC, WB, HB_ = 16, 80, 88, 144
    S_AB, S_HP, S_T0, S_SRC0, S_SRC1, S_STR1, S_M0, S_XS = 44, 45, 46, 47, 48, 49, 50, 51
    p(f"""s_lshr_b32 s{S_AB}, s{S_IDX}, 4
    s_lshl_b32 s52, s{S_XCD}, 1
    s_add_u32 s{S_AB}, s{S_AB}, s52
    s_and_b32 s{S_HP}, s{S_IDX}, 15
    s_lshl_b32 s{S_T0}, s{S_AB}, 3
    s_mul_i32 s{S_SRC0}, s{S_HP}, {126*1024}
    s_lshl_b32 s{S_M0}, s{S_WAVE}, 11
    s_add_u32 s{S_SRC0}, s{S_SRC0}, s{S_M0}
    s_add_u32 s{S_SRC0}, s{S_SRC0}, {WQ}
    s_add_u32 s{S_SRC1}, s{S_SRC0}, 1024
    s_max_u32 s52, s{S_T0}, 1
    s_sub_u32 s52, s52, 1
    s_mul_i32 s52, s52, {18*1024}
    s_add_u32 s52, s52, {LB(l)+XN}
    s_cmp_eq_u32 s{S_WAVE}, 3
    s_cselect_b32 s{S_SRC1}, s52, s{S_SRC1}
    s_mov_b32 s{S_STR1}, {7*1024}
    s_cselect_b32 s{S_STR1}, 1024, s{S_STR1}
    s_lshl_b32 s52, s{S_WAVE}, 1
    s_add_u32 s{S_T0}, s{S_T0}, s52
    s_mul_i32 s{S_XS}, s{S_T0}, {18*1024}
    s_add_u32 s{S_XS}, s{S_XS}, {LB(l)+XN}""")
    def dma(c):
        r = [ins(f"s_mov_b32 m0, s{S_M0}"),
             ins(f"buffer_load_dwordx4 v{V_L16}, s[{S_WS}:{S_WS+3}], s{S_SRC0} offen lds", f"g{c//3}"),
             ins(f"s_add_u32 m0, s{S_M0}, 1024"),
             ins(f"buffer_load_dwordx4 v{V_L16}, s[{S_WS}:{S_WS+3}], s{S_SRC1} offen{ld} lds", f"g{c//3}"),
             ins(f"s_add_u32 s{S_M0}, s{S_M0}, 8192"),
             ins(f"s_add_u32 s{S_SRC0}, s{S_SRC0}, {7*1024}"),
             ins(f"s_add_u32 s{S_SRC1}, s{S_SRC1}, s{S_STR1}")]
        return r
    def xload(c):
        r = []
        for tt in range(2):
            off = tt * 18 * 1024 + c * 1024
            r.append(ins(f"s_add_u32 s52, s{S_XS}, {off}"))
            r.append(ins(f"buffer_load_dwordx4 a[{72*tt+4*c}:{72*tt+4*c+3}], v{V_L16}, s[{S_WS}:{S_WS+3}], s52 offen{ld}"))
        return r
    for c in range(12):
        p.add(dma(c)); p.add(xload(c))
    p(f"""s_min_u32 s52, s{S_WAVE}, 2
    s_add_u32 s53, s52, 2
    s_add_u32 s54, s52, 4
    s_cmp_ge_u32 s{S_WAVE}, 2
    s_cselect_b32 s53, 6, s53
    s_lshl_b32 s53, s53, 10
    s_lshl_b32 s54, s54, 10
    v_mov_b32 v{V_W}, v{V_L16}
    v_add_u32 v{V_HT}, s53, v{V_L16}
    v_add_u32 v{V_HN}, s54, v{V_L16}""")
    BO, BP, BP0 = 168, 172, 176
    attn_bias(p, S_AB)
    acc = lambda tt, j: vr(ACC + 32 * tt + 4 * j, 4)
    wf = lambda c, t: vr(WB + 28 * (c & 1) + 4 * t, 4)
    hf = lambda c, j: vr(HB_ + 12 * (c & 1) + 4 * j, 4)
    xf = lambda tt, c: ar(72 * tt + 4 * c, 4)
    def reads(c):
        o = (c & 7) * 8192
        r = []
        if c in (8, 16):
            r += [f"v_add_u32 v{v}, 0x10000, v{v}" for v in (V_W, V_HT, V_HN)]
        r += [f"ds_read_b128 {wf(c, t)}, v{V_W} offset:{o+1024*t}" for t in (0, 1, 2, 3, 6, 4, 5)]
        r += [f"ds_read_b128 {hf(c, 0)}, v{V_W} offset:{o+7168}", f"ds_read_b128 {hf(c, 1)}, v{V_HT} offset:{o}", f"ds_read_b128 {hf(c, 2)}, v{V_HN} offset:{o}"]
        return r
    p.wait_vm("g0"); p("s_barrier"); stamp(p, 1)
    p.add(reads(0))
    bb = []; sr_ = Stream(); sl = Stream()
    for c in range(18):
        g0 = len(bb)
        C = lambda d: "0" if c == 0 else d
        for j, t in enumerate((0, 1, 2, 3, 6)):
            for tt in range(2): bb.append(ins(f"{MF} {acc(tt, j)}, {wf(c, t)}, {xf(tt, c)}, {C(acc(tt, j))}"))
        for j, t in ((7, 6), (5, 4), (6, 5)):
            for tt in range(2): bb.append(ins(f"{MF} {acc(tt, j)}, {xf(tt, c)}, {wf(c, t)}, {C(acc(tt, j))}"))
        bb.append(ins(f"{MF} {vr(HACC, 4)}, {hf(c, 1)}, {hf(c, 0)}, {C(vr(HACC, 4))}"))
        bb.append(ins(f"{MF} {vr(HACC+4, 4)}, {hf(c, 0)}, {hf(c, 2)}, {C(vr(HACC+4, 4))}"))
        if c + 1 < 18:
            if (c + 1) % 3 == 0:
                sr_.add(WaitTag(f"g{(c+1)//3}", "vm"), g0 + 1, g0 + 1)
                sr_.add("s_barrier", g0 + 1, g0 + 1)
            for k, r in enumerate(reads(c + 1)):
                sr_.add(r, g0 + 1 + k, g0 + 14)
        if c < 6:
            for it in dma(12 + c) + xload(12 + c): sl.add(it, g0)
    weave(p, bb, [sr_, sl], cap=2)
    stamp(p, 2)
    attn_part(p, l, S_T0, S_HP, 147456, sc)

def gen_qkv(name, l, kidx=0):
    p = Prog(); end = f"{name}_end"
    prologue(p, end, code_pf=1)
    qkv_phase(p, l)
    stamp(p, 3); p.drain(); stamp(p, 4); stamp_flush(p, kidx, 5)
    p(f"{end}:\ns_endpgm")
    return kernel_text(name, p.finalize(), vgpr=256 + 144, accum=256), (256, 256, 147456 + 5 * 3072)

def wo_setup(p, l):
    V_LANE, V_L16 = 1, 2
    S_TB, S_CG, S_T, S_SRC, S_M0 = 44, 45, 46, 47, 48
    sdiv(p, S_TB, S_IDX, 6, 32)
    p(f"""s_mul_i32 s52, s{S_TB}, 6
    s_sub_u32 s{S_CG}, s{S_IDX}, s52
    s_lshl_b32 s52, s{S_XCD}, 2
    s_add_u32 s{S_TB}, s{S_TB}, s52
    s_lshl_b32 s{S_T}, s{S_TB}, 2
    s_add_u32 s{S_T}, s{S_T}, s{S_WAVE}
    s_mul_i32 s{S_SRC}, s{S_CG}, {108*1024}
    s_mul_i32 s{S_M0}, s{S_WAVE}, {3*1024}
    s_add_u32 s{S_SRC}, s{S_SRC}, s{S_M0}
    s_add_u32 s{S_SRC}, s{S_SRC}, {WOS}
    s_lshl_b32 s49, s{S_T}, 14
    s_add_u32 s49, s49, {LB(l)+OM}
    s_lshl_b32 s50, s{S_T}, 11
    s_add_u32 s50, s50, {LB(l)+OR_}
    v_and_b32 v3, 15, v{V_LANE}
    v_lshrrev_b32 v4, 4, v{V_LANE}
    v_lshlrev_b32 v5, 3, v3
    v_lshl_add_u32 v5, v4, 8, v5
    s_lshl_b32 s52, s{S_T}, 4
    v_add_u32 v6, s52, v3
    v_lshlrev_b32 v7, 3, v6
    v_mul_u32_u24 v6, 1152, v6
    v_lshl_add_u32 v6, v4, 4, v6
    s_mul_i32 s51, s{S_CG}, 192""")
    if l == 0: srd(p, S_X, P_X, XBYTES)
    else:
        p(f"s_add_u32 s{S_X}, s{P_WS}, {LB(0)+X2R}\ns_addc_u32 s{S_X+1}, s{P_WS+1}, 0\ns_mov_b32 s{S_X+2}, {XBYTES:#x}\ns_mov_b32 s{S_X+3}, 0x20000")

def wo_wdma(p):
    V_L16, S_SRC, S_M0 = 2, 47, 48
    for g in range(9):
        p(f"s_mov_b32 m0, s{S_M0}")
        for j in range(3):
            p(f"buffer_load_dwordx4 v{V_L16}, s[{S_WS}:{S_WS+3}], s{S_SRC} offen offset:{1024*j} lds", tag="wo_w")
        p(f"s_add_u32 s{S_M0}, s{S_M0}, {12*1024}\ns_add_u32 s{S_SRC}, s{S_SRC}, {12*1024}")

WO_NA = [24, 24]
def wo_frag(s, l):
    return ar(4 * s, 4) if s < WO_NA[l] else vr(112 + 4 * (s % 12), 4)
def wo_read(s, l):
    r = [f"v_add_u32 v8, {60*1024}, v8"] if s == 60 else []
    return r + [f"ds_read_b128 {wo_frag(s, l)}, v8 offset:{(s%60)*1024}"]

def wo_pre(p, l, ld, poll):
    RES = 160
    for j in range(3):
        p(f"buffer_load_dwordx4 {vr(RES+4*j,4)}, v6, s[{S_X}:{S_X+3}], s51 offen offset:{64*j}{ld if l else ''}")
    p(f"v_mov_b32 v8, v2")
    p.wait_vm("wo_w"); p("s_barrier")
    p.add(poll)
    for s in range(WO_NA[l] + 10): p.add(wo_read(s, l))

def wo_main(p, l, sc, ld):
    V_LANE, V_L16 = 1, 2
    S_TB, S_CG, S_T, S_SRC, S_M0 = 44, 45, 46, 47, 48
    OF, ACC, RES = 16, 88, 160
    def oload(c):
        if c < 16:
            r = ["s_add_u32 s49, s49, 4096"] if c % 4 == 0 and c else []
            return r + [f"buffer_load_dwordx4 {vr(OF+4*c,4)}, v{V_L16}, s[{S_WS}:{S_WS+3}], s49 offen offset:{1024*(c&3)}{ld}"]
        return [f"buffer_load_dwordx2 {vr(OF+4*c+2*hh,2)}, v5, s[{S_WS}:{S_WS+3}], s50 offen offset:{1024*(c-16)+128*hh}{ld}" for hh in range(2)]
    nup = OPT.get("oup", 8)
    for c in range(nup): p.add(oload(c))
    sl = Stream("ld")
    for c in range(nup, 18):
        for x in oload(c): sl.add(x, 0, max(0, 6 * c - 30))
    stamp(p, 6)
    wf = lambda s: wo_frag(s, l)
    bb = []; sr_ = Stream()
    for s in range(108):
        c, t = divmod(s, 6)
        bb.append(ins(f"{MF} {vr(ACC+4*t,4)}, {wf(s)}, {vr(OF+4*c,4)}, {'0' if c == 0 else vr(ACC+4*t,4)}"))
        if WO_NA[l] + 10 <= s + 10 < 108:
            for r in wo_read(s + 10, l): sr_.add(r, s + 1, s + 1)
    weave(p, bb, [sr_, sl], cap=2, vm_gap=3)
    stamp(p, 7)
    X, PK = 16, 40
    for j in range(3): unpack8(p, X + 8 * j, RES + 4 * j)
    for e in range(24): p(f"v_add_f32 v{X+e}, v{X+e}, v{ACC+e}")
    p(f"""s_mul_i32 s52, s{S_T}, 18
    s_mul_i32 s53, s{S_CG}, 3
    s_add_u32 s52, s52, s53
    s_lshl_b32 s52, s52, 10
    s_add_u32 s52, s52, {LB(l)+X1}""")
    for j in range(3):
        for e in range(4): p(f"v_cvt_pk_bf16_f32 v{PK+4*j+e}, v{X+8*j+2*e}, v{X+8*j+2*e+1}")
        p(f"buffer_store_dwordx4 {vr(PK+4*j,4)}, v{V_L16}, s[{S_WS}:{S_WS+3}], s52 offen offset:{1024*j}{sc}", tag="x1st")
    for j in range(3): unpack8(p, X + 8 * j, PK + 4 * j)
    SM, M2, T = 56, 57, 58
    p(f"v_add_f32 v{SM}, v{X}, v{X+1}\nv_add_f32 v{T}, v{X+2}, v{X+3}")
    for j in range(4, 24, 2):
        p(f"v_add_f32 v{SM}, v{SM}, v{X+j}\nv_add_f32 v{T}, v{T}, v{X+j+1}")
    p(f"v_add_f32 v{SM}, v{SM}, v{T}")
    xsum_g(p, SM, T)
    p(f"v_mul_f32 v{T+1}, 0x3c2aaaab, v{SM}")
    p(f"v_sub_f32 v{T}, v{X}, v{T+1}\nv_mul_f32 v{M2}, v{T}, v{T}")
    for j in range(1, 24):
        p(f"v_sub_f32 v{T+2+(j&1)}, v{X+j}, v{T+1}\nv_fmac_f32 v{M2}, v{T+2+(j&1)}, v{T+2+(j&1)}")
    xsum_g(p, M2, T)
    p(f"""s_lshl_b32 s52, s{S_CG}, 14
    s_add_u32 s52, s52, {LB(l)+ST}
    s_mov_b32 exec_lo, 0xffff
    s_mov_b32 exec_hi, 0
    buffer_store_dwordx2 v[{SM}:{M2}], v7, s[{S_WS}:{S_WS+3}], s52 offen{sc}
    s_mov_b64 exec, -1""", tag="x1st")
```

```python
from common import *
from k_prep import ln_addr, ln_local_stats, ln_finish
MF = "v_mfma_f32_16x16x32_bf16"
RING = 36 * 1024
LDS_CS = 4 * RING
LDS_WQ = 18 * 1024

from fw import _is_vm as _isvm
DBG = set()
def ffn_phase(p, sc=" sc1", ld=" sc1"):
    if "plain" in DBG: sc = ""
    scp = LOC("p")
    ntw = " nt" if OPT.get("ntw") else ""
    lbh = str(LB(0)) if OPT.get("reuse") else f"s{S_LB}"
    rr = OPT.get("r", 2)
    V_LANE, V_L16, V_L8, V_W, V_CS, V_T0, V_T1 = 1, 2, 3, 4, 5, 6, 7
    WB, XO, ACA, ACB, NM, RS2, CS, TMP, HO, H8 = 8, 32, 64, 96, 128, 132, 136, 152, 176, 240
    ACX = 208
    S_RB, S_Q, S_M, S_SL, S_SRC, S_M0, S_XS, S_H, S_FL, S_P, S_T, S_R = 44, 45, 46, 47, 48, 49, 50, 51, 52, 53, 54, 56
    S_TMP, S_TMP2, S_LASTSRC, S_LASTM0, S_FW = 60, 61, 62, 63, 64
    p("s_barrier")
    p(f"""s_lshr_b32 s{S_RB}, s{S_IDX}, {5-rr}
    s_and_b32 s{S_TMP}, s{S_XCD}, {7 & ~((1 << rr) - 1)}
    s_add_u32 s{S_RB}, s{S_RB}, s{S_TMP}
    s_and_b32 s{S_TMP}, s{S_XCD}, {(1 << rr) - 1}
    s_lshl_b32 s{S_TMP}, s{S_TMP}, {5-rr}
    s_and_b32 s{S_SL}, s{S_IDX}, {(1 << (5-rr)) - 1}
    s_add_u32 s{S_SL}, s{S_SL}, s{S_TMP}
    s_lshl_b32 s{S_FW}, s{S_SL}, 9
    s_add_u32 s{S_FW}, s{S_FW}, {FW}""")
    lane_min8(p, 0, V_LANE, 36)
    pw = Poll(p, V_T0, 0, S_FW, "pw")
    p(f"""s_lshr_b32 s{S_Q}, s{S_SL}, 2
    s_and_b32 s{S_M}, s{S_SL}, 3
    s_mul_i32 s{S_SRC}, s{S_SL}, {486*1024}
    s_add_u32 s{S_SRC}, s{S_SRC}, {WF}
    s_mul_i32 s{S_LASTM0}, s{S_WAVE}, 9
    s_lshr_b32 s{S_LASTM0}, s{S_LASTM0}, 1
    s_lshl_b32 s{S_LASTM0}, s{S_LASTM0}, 10
    s_add_u32 s{S_LASTSRC}, s{S_SRC}, s{S_LASTM0}
    s_mul_i32 s{S_M0}, s{S_WAVE}, {9*1024}
    s_add_u32 s{S_SRC}, s{S_SRC}, s{S_M0}
    s_lshl_b32 s{S_T}, s{S_RB}, 4
    s_lshl_b32 s{S_TMP}, s{S_WAVE}, 2
    s_add_u32 s{S_T}, s{S_T}, s{S_TMP}
    s_mul_i32 s{S_XS}, s{S_T}, {18*1024}
    s_mul_i32 s{S_P}, s{S_Q}, {XBYTES}
    s_add_u32 s{S_P}, s{S_P}, s{S_XS}
    s_add_u32 s{S_XS}, s{S_XS}, {X1}
    s_add_u32 s{S_XS}, s{S_XS}, s{S_LB}
    s_lshr_b32 s{S_TMP}, s{S_M}, 1
    s_mul_i32 s{S_TMP}, s{S_TMP}, {9*1024}
    s_add_u32 s{S_P}, s{S_P}, s{S_TMP}
    s_add_u32 s{S_P}, s{S_P}, {PB}
    s_add_u32 s{S_P}, s{S_P}, {lbh}
    v_lshlrev_b32 v{V_L8}, 3, v{V_LANE}
    v_mov_b32 v{V_W}, v{V_L16}""")
    def slot_dma(k):
        r = []
        if k < 13:
            for g in range(3):
                r.append(ins(f"s_add_u32 m0, s{S_M0}, {(k&3)*RING+4096*g}"))
                r.append(ins(f"s_add_u32 s{S_TMP2}, s{S_SRC}, {k*RING+4096*g}"))
                for j in range(4 if g < 2 else 1):
                    r.append(ins(f"buffer_load_dwordx4 v{V_L16}, {WSR}, s{S_TMP2} offen offset:{1024*j}{ntw} lds", f"slot{k}"))
        else:
            for g in range(2):
                r.append(ins(f"s_add_u32 m0, s{S_LASTM0}, {(k&3)*RING+4096*g}"))
                r.append(ins(f"s_add_u32 s{S_TMP2}, s{S_LASTSRC}, {k*RING+4096*g}"))
                for j in range(4 if g < 1 else 1):
                    r.append(ins(f"buffer_load_dwordx4 v{V_L16}, {WSR}, s{S_TMP2} offen offset:{1024*j}{ntw} lds", f"slot{k}"))
        return r
    xf = lambda c, tt: ar(16 * c + 4 * tt, 4) if c < 16 else vr(XO + 16 * (c - 16) + 4 * tt, 4)
    XB = (59, 66, 68, 69)
    def xload(c):
        r = []
        for tt in range(4):
            if c % 4 == 0: r.append(ins(f"s_add_u32 s{XB[tt]}, s{S_XS}, {tt*18*1024+c*1024}"))
            r.append(ins(f"buffer_load_dwordx4 {xf(c,tt)}, v{V_L16}, {WSR}, s{XB[tt]} offen offset:{1024*(c&3)}{ld}"))
        return r
    l_nopw = p.label("nopw")
    p(f"s_cmp_lg_u32 s{S_LF}, 0\ns_cbranch_scc1 {l_nopw}")
    p.add(pw.both())
    p(f"{l_nopw}:")
    npre = OPT.get("npre", 2)
    for k in range(npre): p.add(slot_dma(k))
    l_nocs = p.label("nocs")
    p(f"""s_cmp_lg_u32 s{S_LF}, 0
    s_cbranch_scc1 {l_nocs}
    s_cmp_ge_u32 s{S_WAVE}, 2
    s_cbranch_scc1 {l_nocs}
    s_lshl_b32 s{S_TMP}, s{S_SL}, 1
    s_add_u32 s{S_TMP}, s{S_TMP}, s{S_WAVE}
    s_mul_i32 s{S_TMP}, s{S_TMP}, {18*576}
    s_add_u32 s{S_TMP}, s{S_TMP}, {CSP}
    v_lshrrev_b32 v{V_T0}, 2, v{V_LANE}
    v_lshlrev_b32 v{V_T0}, 7, v{V_T0}
    v_and_b32 v{V_T1}, 3, v{V_LANE}
    v_lshl_add_u32 v{V_T0}, v{V_T1}, 4, v{V_T0}
    s_lshl_b32 s{S_TMP2}, s{S_WAVE}, 6
    s_add_u32 s{S_TMP2}, s{S_TMP2}, {LDS_CS}
    v_add_u32 v{V_T0}, s{S_TMP2}, v{V_T0}
    s_mov_b32 exec_hi, 15""")
    for c in range(18):
        if c and c % 6 == 0: p(f"s_add_u32 s{S_TMP}, s{S_TMP}, {6*576}")
        p(f"buffer_load_dwordx4 {vr(64+4*c,4)}, v{V_L16}, {WSR}, s{S_TMP} offen offset:{(c%6)*576} sc1")
    for c in range(1, 18):
        for j in range(4): p(f"v_add_f32 v{64+j}, v{64+j}, v{64+4*c+j}")
    p(f"ds_write_b128 v{V_T0}, v[64:67]\ns_mov_b64 exec, -1")
    p.drain(vm=False)
    p(f"{l_nocs}:")
    p(f"""s_lshr_b32 s{S_TMP}, s{S_T}, 2
    s_lshl_b32 s{S_TMP}, s{S_TMP}, 8
    s_add_u32 s55, s{S_LF}, {F1B}
    v_and_b32 v{V_T1}, 7, v{V_LANE}
    v_min_u32 v{V_T1}, 5, v{V_T1}
    v_and_b32 v{V_T0}, 24, v{V_LANE}
    v_add_lshl_u32 v0, v{V_T1}, v{V_T0}, 3
    v_add_u32 v0, s{S_TMP}, v0
    s_lshl_b32 s{S_TMP}, s{S_XCD}, 4
    s_lshr_b32 s{S_TMP2}, s{S_IDX}, 1
    s_add_u32 s{S_TMP}, s{S_TMP}, s{S_TMP2}
    s_lshl_b32 s{S_TMP}, s{S_TMP}, 6
    v_lshl_add_u32 v{V_T1}, v{V_T1}, 3, s{S_TMP}
    v_cmp_gt_u32 vcc, 32, v{V_LANE}
    v_cndmask_b32 v0, v{V_T1}, v0, vcc""")
    p1 = Poll(p, V_T0, 0, 55, "p1")
    p.add(p1.issue())
    p(f"""s_lshl_b32 s{S_TMP}, s{S_RB}, 5
    s_add_u32 s{S_TMP}, s{S_TMP}, s{S_SL}
    s_mul_i32 s{S_H}, s{S_TMP}, {72*1024}
    s_add_u32 s{S_H}, s{S_H}, {HB}
    s_add_u32 s{S_H}, s{S_H}, {lbh}""")
    for j in range(3):
        p(f"""s_xor_b32 s{S_TMP2}, s{S_TMP}, {j+1}
        s_mul_i32 s{S_R+j}, s{S_TMP2}, {72*1024}
        s_add_u32 s{S_R+j}, s{S_R+j}, {HB}
        s_add_u32 s{S_R+j}, s{S_R+j}, {lbh}""")
    p(f"""s_lshr_b32 s{S_FL}, s{S_TMP}, 2
    s_lshl_b32 s{S_FL}, s{S_FL}, 2
    s_add_u32 s{S_FL}, s{S_FL}, s{S_WAVE}
    s_lshl_b32 s{S_FL}, s{S_FL}, 7
    s_lshl_b32 s{S_TMP2}, s{S_LF}, 2
    s_add_u32 s{S_FL}, s{S_FL}, s{S_TMP2}
    s_add_u32 s{S_FL}, s{S_FL}, {FHB}
    v_lshrrev_b32 v{V_CS}, 4, v{V_LANE}
    v_lshlrev_b32 v{V_CS}, 4, v{V_CS}
    v_add_u32 v{V_CS}, {LDS_CS}, v{V_CS}
    s_lshl_b32 s{S_TMP}, s{S_WAVE}, 12""")
    for r in (S_H, S_R, S_R + 1, S_R + 2):
        p(f"s_add_u32 s{r}, s{r}, s{S_TMP}")
    p(f"s_lshl_b32 s65, s{S_WAVE}, 11\ns_sub_u32 s65, {64*1024}, s65")
    p(f"s_lshl_b32 s67, s{S_M}, 3\ns_add_u32 s67, s67, s{S_FL}")
    frs = []
    tiles = [(8, ACX), (0, ACA)]
    acc1 = lambda buf, mat, tt: vr(buf + 16 * mat + 4 * tt, 4)
    def g1(tile, buf, c, mat):
        f = pos_of_tile(tile) * 36 + 2 * c + mat
        return (f, [(acc1(buf, mat, tt), xf(c, tt), c == 0) for tt in range(4)])
    marks = {}
    for c in range(18):
        for tile, buf in tiles:
            for mat in range(2): frs.append(g1(tile, buf, c, mat))
    marks["pass0_end"] = len(frs)
    bufs = {8: ACX, 0: ACA}
    for tile in range(1, 8):
        buf = ACB if tile & 1 else ACA
        bufs[tile] = buf
        marks[f"pass{tile}"] = len(frs)
        for c in range(18):
            for mat in range(2): frs.append(g1(tile, buf, c, mat))
    marks["g2"] = len(frs)
    acc2 = lambda n, tt: 32 + 32 * (n >> 1) + 8 * tt + 4 * (n & 1) if n < 8 else 160 + 4 * tt
    def hstep(st, tt):
        if st < 4: return vr(HO + 16 * st + 4 * tt, 4)
        if st == 4: return vr(H8 + 4 * tt, 4)
        return ar(16 * (st - 5) + 4 * tt, 4)
    order = gemm2_order()
    last_of = {}
    for i, (st, n) in enumerate(order):
        marks.setdefault(f"step{st}", len(frs))
        frs.append((324 + i, [(vr(acc2(n, tt), 4), hstep(st, tt), st == 0) for tt in range(4)]))
        last_of[n] = len(frs)
    NB, LOOK = 6, 4
    bb = []; s_rd = Stream("rd"); s_dma = Stream("dma"); s_ep = Stream("ep"); s_ld = Stream("ld")
    G = lambda s: 4 * s
    cur_base = [0]
    def read(s):
        f = frs[s][0]
        a = ((f // 36) & 3) * RING + (f % 36) * 1024
        r = []
        if s < marks["pass0_end"]:
            if a < 65536: va, off = V_W, a
            else: va, off = V_T1, a - 65536
        else:
            base = ((f // 36) & 3) * RING
            if base != cur_base[0]:
                r.append(f"v_add_u32 v{V_W}, {base - cur_base[0] & 0xffffffff:#x}, v{V_W}")
                cur_base[0] = base
            va, off = V_W, a - base
        r.append(f"ds_read_b128 {vr(WB+4*(s%NB),4)}, v{va} offset:{off}")
        return r
    p.wait_vm(f"slot{npre-1}"); p("s_barrier")
    for s in range(LOOK): p.add(read(s))
    nsh = 1 << (5 - rr)
    p(f"s_and_b32 s{S_TMP2}, s{S_IDX}, {nsh-1}\ns_mul_i32 s{S_TMP2}, s{S_TMP2}, {576//nsh*128}\ns_add_u32 s{S_TMP2}, s{S_TMP2}, s{S_XS}")
    p.add(p1.check()); stamp(p, 1)
    if OPT.get("touch", 0): p.add(touch_items(S_TMP2, min(576 // nsh, 128), 0, TMP + 20))
    for c in range(4): p.add(xload(c))
    p(f"""s_lshl_b32 s{S_TMP}, s{S_T}, 4
    v_add_u32 v{V_T0}, s{S_TMP}, v{V_LANE}
    v_lshlrev_b32 v{V_T0}, 3, v{V_T0}
    s_add_u32 s55, s{S_LB}, {ST}""")
    for cg in range(6):
        p(f"s_add_u32 s{S_TMP}, s55, {cg*16384}")
        p(f"buffer_load_dwordx2 {vr(TMP+2*cg,2)}, v{V_T0}, {WSR}, s{S_TMP} offen{ld}")

    p(f"v_add_u32 v{V_T1}, 0x10000, v{V_L16}")
    seen = {0, 1}
    for k in range(npre, 4):
        for it in slot_dma(k): s_dma.add(it, 200, G(marks["pass0_end"]) + (-30 if k == 2 else 60))
    bar_gap = {}
    for s, (f, ms) in enumerate(frs):
        for d, b, first in ms:
            bb.append(ins(f"{MF} {d}, {vr(WB+4*(s%NB),4)}, {b}, {'0' if first else d}"))
        t = s + LOOK
        if t < len(frs):
            k = frs[t][0] // 36
            g = G(s) + 1
            if k not in seen:
                seen.add(k)
                s_rd.add(WaitTag(f"slot{k}", "vm"), g, g)
                if k == 2: s_rd.add(Drain(vm=False), g, g)
                s_rd.add("s_barrier", g, g); bar_gap[k] = g
                for kk in ([4, 5] if k == 2 else [k + 2] if k >= 4 else []):
                    if kk <= 13:
                        for j, it in enumerate(slot_dma(kk)): s_dma.add(it, g + 1, g + 120 + (100 if kk == 5 else 0))
            for r in read(t): s_rd.add(r, g, g + 1)
    s_dma.add(f"s_and_b32 s{S_LASTSRC}, s{S_IDX}, 15", bar_gap[11] + 60)
    s_dma.add(f"s_mul_i32 s{S_LASTSRC}, s{S_LASTSRC}, {126*1024}", bar_gap[11] + 60)
    s_dma.add(f"s_add_u32 s{S_LASTSRC}, s{S_LASTSRC}, {WQ}", bar_gap[11] + 60)
    s_dma.add([ins(f"s_cmp_lg_u32 s{S_LF}, 0"), ins(f"s_cselect_b32 s{S_LASTSRC}, {WS_BYTES:#x}, s{S_LASTSRC}")], bar_gap[11] + 60)
    for k, f0, sm, cnt in ((11, 36, S_LASTM0, 5), (12, 54, S_M0, 9), (13, 90, S_M0, 9)):
        for j in range(cnt):
            if j % 4 == 0:
                s_dma.add(f"s_add_u32 s{S_TMP2}, s{sm}, {(f0+j)*1024}", bar_gap[k] + 1)
                s_dma.add(f"s_add_u32 m0, s{S_TMP2}, {LDS_WQ}", bar_gap[k] + 1)
                s_dma.add(f"s_add_u32 s{S_TMP2}, s{S_TMP2}, s{S_LASTSRC}", bar_gap[k] + 1)
            s_dma.add(f"buffer_load_dwordx4 v{V_L16}, {WSR}, s{S_TMP2} offen offset:{1024*(j&3)} lds", bar_gap[k] + 1, tag="wq2")
    for c in range(4, 18):
        for it in xload(c): s_ld.add(it, 0, 16 * c - 40)
    ga = G(marks["pass0_end"]) - 50
    A_, B_, M_, R_ = TMP + 12, TMP + 13, TMP + 14, TMP + 15
    s = lambda cg: TMP + 2 * cg
    e = [f"v_add_f32 v{M_}, v{s(0)}, v{s(1)}", f"v_add_f32 v{R_}, v{s(0)+1}, v{s(1)+1}"]
    for cg in range(2, 6): e += [f"v_add_f32 v{M_}, v{M_}, v{s(cg)}", f"v_add_f32 v{R_}, v{R_}, v{s(cg)+1}"]
    e += [f"v_mul_f32 v{M_}, 0xbae38e39, v{M_}"]
    for cg in range(6):
        e += [f"v_fmamk_f32 v{B_}, v{s(cg)}, 0x3c2aaaab, v{M_}",
              f"v_mul_f32 v{A_}, v{B_}, v{B_}" if cg == 0 else f"v_fmac_f32 v{A_}, v{B_}, v{B_}"]
    e += [f"v_fmac_f32 v{R_}, 0x42c00000, v{A_}", f"v_mov_b32 v{B_}, 0x3727c5ac",
          f"v_fmac_f32 v{B_}, 0x3ae38e39, v{R_}", f"v_rcp_f32 v{R_}, v{B_}",
          f"v_and_b32 v{A_}, 15, v{V_LANE}", f"v_lshlrev_b32 v{A_}, 2, v{A_}"]
    for tt in range(4):
        e += [f"ds_bpermute_b32 v{NM+tt}, v{A_}, v{M_} offset:{64*tt}", f"ds_bpermute_b32 v{RS2+tt}, v{A_}, v{R_} offset:{64*tt}"]
    for x in e: s_ep.add(x, ga, G(marks["pass0_end"]))
    def cs_reads(tile, g):
        cb = CS + 8 * (pos_of_tile(tile) & 1)
        for mat in range(2):
            s_ep.add(f"ds_read_b128 {vr(cb+4*mat,4)}, v{V_CS} offset:{pos_of_tile(tile)*128+64*mat}", g)
    def epilogue(tile, g, dl):
        buf = bufs[tile]; cb = CS + 8 * (pos_of_tile(tile) & 1)
        for tt in range(4):
            gq, uq = buf + 4 * tt, buf + 16 + 4 * tt
            for r in range(4): s_ep.add(f"v_fmac_f32 v{gq+r}, v{cb+r}, v{NM+tt}", g, dl)
            for r in range(4): s_ep.add(f"v_fmac_f32 v{uq+r}, v{cb+4+r}, v{NM+tt}", g, dl)
            for r in range(4): s_ep.add(f"v_mul_f32 v{gq+r}, v{gq+r}, v{RS2+tt}", g, dl)
            for r in range(4): s_ep.add(f"v_mul_f32 v{gq+r}, v{gq+r}, v{uq+r}", g, dl)
            dst = H8 + 4 * tt if tile == 8 else HO + 16 * (tile >> 1) + 4 * tt + 2 * (tile & 1)
            for j in range(2): s_ep.add(f"v_cvt_pk_bf16_f32 v{dst+j}, v{gq+2*j}, v{gq+2*j+1}", g, dl)
            if tile == 8:
                if tt == 0: s_ep.add(f"s_add_u32 s66, s{S_H}, s65", g, dl)
                s_ep.add(f"buffer_store_dwordx2 {vr(dst,2)}, v{V_L8}, {WSR}, s66 offen offset:{512*tt}{sc}", g, dl, tag="h8")
            elif tile & 1:
                if tt == 0: s_ep.add(f"s_add_u32 s66, s{S_H}, {(tile>>1)*16*1024}", g, dl)
                s_ep.add(f"buffer_store_dwordx4 {vr(dst-2,4)}, v{V_L16}, {WSR}, s66 offen offset:{1024*tt}{sc}", g, dl, tag=f"h{tile>>1}")
    g1s = G(marks["pass1"])
    cs_reads(8, g1s - 20); cs_reads(0, g1s - 20)
    epilogue(0, g1s + 6, G(marks["pass2"])); epilogue(8, g1s + 6, G(marks["pass2"]) + 60)
    for tile in range(1, 8):
        nxt = G(marks[f"pass{tile+1}"]) if tile < 7 else G(marks["g2"])
        cs_reads(tile, nxt - 20)
        epilogue(tile, nxt + 6, nxt + (140 if tile < 7 else 60))
    s_sg = Stream("sig")
    def sig(stage, tag, g):
        it = signal_items(71, V_T0, sc)
        s_sg.add(f"s_add_u32 s71, s67, {32*stage}", g - 2, g)
        s_sg.add(it[0], g - 2, g); s_sg.add(it[1], g - 2, g)
        s_sg.add(WaitTag(tag, "vm"), g, g)
        s_sg.add(it[2], g + 1, g + 3, cost=2)
    g7 = G(marks["pass7"]); g2 = G(marks["g2"])
    sig(0, "h1", G(marks["pass5"]) + 60)
    sig(1, "h2", g7 - 4)
    sig(2, "h3", G(marks["step3"]) + 8)
    def addpoll(pl, g_issue, g_check, st=None):
        st = st or s_ld
        st.add(pl.issue(), g_issue, g_issue + 3)
        st.add(pl.check(), g_check, g_check + 1, cost=2)
    gw = G(marks["pass3"]) + 70
    s_ld.add(f"v_min_u32 v0, 17, v{V_LANE}", gw - 4); s_ld.add(f"v_lshlrev_b32 v0, 3, v0", gw - 4)
    s_ld.add(f"s_add_u32 s55, s{S_FW}, {36*8}", gw - 4)
    addpoll(Poll(p, V_T0, 0, 55, "pd"), gw, gw + 40)
    polls = [Poll(p, V_T0, 0, 55, f"p{k}") for k in range(3)]
    s_ld.add(f"v_and_b32 v0, 3, v{V_LANE}", g7 - 80); s_ld.add(f"v_lshlrev_b32 v0, 3, v0", g7 - 80)
    s_ld.add(f"s_mov_b32 s55, s{S_FL}", g7 - 80)
    addpoll(polls[0], g7 - 60, g7 - 20)
    ldh = ld
    need = lambda st: G(marks[f"step{st}"]) if st < 9 else G(marks["step9"]) + 8 * (st - 9)
    for tt in range(4):
        if tt == 0: s_ld.add(f"s_add_u32 s{S_TMP}, s{S_R}, s65", g7 - 18)
        s_ld.add(f"buffer_load_dwordx2 {vr(H8+4*tt+2,2)}, v{V_L8}, {WSR}, s{S_TMP} offen offset:{512*tt}{ldh}", g7 - 18, need(4) - 150)
    for j in range(2):
        s_ld.add(f"s_add_u32 s{S_TMP}, s{S_R+1+j}, s65", g7 + 8)
        for tt in range(4):
            s_ld.add(f"buffer_load_dwordx2 {ar(4*tt+2*j,2)}, v{V_L8}, {WSR}, s{S_TMP} offen offset:{512*tt}{ldh}", g7 + 8, need(5) - 150)
    def hload(st, g, dl):
        i = st - 6
        s_ld.add(f"s_add_u32 s{S_TMP}, s{S_R+i%3}, {(i//3)*16*1024}", g)
        for tt in range(4):
            s_ld.add(f"buffer_load_dwordx4 {hstep(st,tt)}, v{V_L16}, {WSR}, s{S_TMP} offen offset:{1024*tt}{ldh}", g, dl)
    for st in range(6, 12): hload(st, g7 + 8 * (st - 4), need(st) - 150)
    s_ld.add(f"s_add_u32 s55, s{S_FL}, 32", g2 + 50)
    addpoll(polls[1], g2 + 60, g2 + 100)
    for st in range(12, 15): hload(st, g2 + 101, need(st) - 100)
    gB = G(marks["step7"])
    s_ld.add(f"s_add_u32 s55, s{S_FL}, 64", gB - 50)
    addpoll(polls[2], gB - 40, gB)
    for st in range(15, 18): hload(st, gB + 1, need(st) - 60)
    s_o = Stream("out")
    gB += 4
    s_o.add(f"s_and_b32 s68, s{S_M}, 1", gB)
    s_o.add(f"s_mul_i32 s69, s68, {5*1024}", gB); s_o.add(f"s_add_u32 s69, s69, s{S_P}", gB)
    s_o.add(f"s_lshl_b32 s68, s68, 9", gB); s_o.add(f"s_add_u32 s68, s68, s{S_P}", gB)
    s_o.add(f"v_and_b32 v0, 15, v{V_LANE}", gB); s_o.add(f"v_lshlrev_b32 v0, 5, v0", gB)
    s_o.add(f"v_lshrrev_b32 v{V_CS}, 4, v{V_LANE}", gB); s_o.add(f"v_lshl_add_u32 v0, v{V_CS}, 3, v0", gB)
    for pr in range(4):
        g = G(last_of[2 * pr + 1]) + 4
        for tt in range(4):
            a = acc2(2 * pr, tt)
            for j in range(4): s_o.add(f"v_cvt_pk_bf16_f32 v{a+j}, v{a+2*j}, v{a+2*j+1}", g)
            s_o.add(f"s_add_u32 s70, s69, {tt*18*1024+pr*1024}", g)
            s_o.add(f"buffer_store_dwordx4 {vr(a,4)}, v{V_L16}, {WSR}, s70 offen{scp}", g, tag="pout")
    g = len(bb)
    for tt in range(4):
        a = acc2(8, tt)
        for j in range(2): s_o.add(f"v_cvt_pk_bf16_f32 v{a+j}, v{a+2*j}, v{a+2*j+1}", g)
        s_o.add(f"s_add_u32 s70, s68, {tt*18*1024+4*1024}", g)
        s_o.add(f"buffer_store_dwordx2 {vr(a,2)}, v0, {WSR}, s70 offen{scp}", g, tag="pout")
    if "nostore" in DBG: s_ep.q = [e for e in s_ep.q if not _isvm(e[2])]; s_o.q = [e for e in s_o.q if not _isvm(e[2])]
    if "nodma" in DBG: s_dma.q = []
    if "noep" in DBG: s_ep.q = [e for e in s_ep.q if getattr(e[2], "kind", "") != "valu"]
    if "nohld" in DBG: s_ld.q = [e for e in s_ld.q if not (e[0] > 500 and _isvm(e[2]) and "dwordx" in e[2].text)]
    s_st = Stream("stamp")
    if STAMP[0]:
        for k, mk in enumerate(("pass1", "pass3", "pass5", "pass7", "g2", "step3", "step6", "step9")):
            s_st.add(stamp_ins(2 + k), G(marks[mk]) + 2, G(marks[mk]) + 2)
    weave(p, bb, [s_rd, s_sg, s_ld, s_ep, s_o, s_dma, s_st], wait_gaps=lambda g: g % 4 == 0, quiet=lambda g: g2 + 4 <= g < g2 + 52)
    stamp(p, 10)
    p(f"""s_lshl_b32 s{S_TMP}, s{S_RB}, 2
    s_add_u32 s{S_TMP}, s{S_TMP}, s{S_WAVE}
    s_lshl_b32 s{S_TMP}, s{S_TMP}, 5
    s_add_u32 s{S_TMP}, s{S_TMP}, s{S_SL}
    s_lshl_b32 s{S_TMP}, s{S_TMP}, 3
    s_add_u32 s{S_TMP}, s{S_TMP}, s{S_LF}
    s_add_u32 s{S_TMP}, s{S_TMP}, {FPB}""")
    signal(p, S_TMP, V_T0, "pout", scp)
    stamp(p, 11)

def reduce_phase(p, l, lds_off, sc=" sc1", ld=" sc1", pre=None, w3=None):
    V_LANE = 1
    lh = 0 if OPT.get("reuse") else l
    VROW, VFR, VP, VLD, VX, VS, VO = 3, 4, 5, 16, 128, 152, 160
    if pre: pre()
    p(f"s_lshl_b32 s47, s{S_XCD}, 5\ns_add_u32 s47, s47, s{S_IDX}")
    ln_addr(p, 47, V_LANE, VROW, VFR, 8, 48)
    p(f"""v_lshrrev_b32 v8, 3, v{V_LANE}
    v_and_b32 v9, 7, v{V_LANE}
    s_and_b32 s48, s47, 1
    s_lshl_b32 s48, s48, 3
    v_add_u32 v9, s48, v9
    v_lshlrev_b32 v9, 4, v9
    v_bfe_u32 v10, v8, 1, 1
    v_and_b32 v11, 1, v8
    v_lshl_add_u32 v9, v11, 4, v9
    v_lshl_add_u32 v9, v10, 9, v9
    v_and_b32 v10, 3, v8
    v_lshlrev_b32 v10, 8, v10
    v_sub_u32 v9, v9, v10
    s_mul_i32 s48, s{S_WAVE}, 6
    v_lshrrev_b32 v8, 2, v8
    v_add_u32 v8, s48, v8""")
    for i in range(3):
        p(f"""v_add_u32 v10, {2*i}, v8
        v_cmp_eq_u32 vcc, 4, v10
        v_cmp_eq_u32 s[56:57], 13, v10
        s_or_b64 vcc, vcc, s[56:57]
        v_cndmask_b32 v10, 0, v9, vcc
        v_add3_u32 v{VP+i}, v{VFR}, v10, {0}
        v_add_u32 v{VP+i}, {2048*i}, v{VP+i}""")
    l_skip = p.label("w3a")
    p(f"s_cmp_eq_u32 s{S_WAVE}, 3\ns_cbranch_scc1 {l_skip}")
    p(f"s_mov_b32 s48, {LB(l)+X1}")
    for i in range(3):
        if i == 2: p("s_add_u32 s48, s48, 4096")
        p(f"buffer_load_dwordx4 {vr(VLD+36*i,4)}, v{VFR}, {WSR}, s48 offen offset:{2048*(i&1)}{ld}")
    p(f"""s_lshr_b32 s49, s47, 3
    s_lshl_b32 s49, s49, 8
    s_add_u32 s49, s49, {FPB+l*0x2000}
    v_and_b32 v10, 31, v{V_LANE}
    v_lshlrev_b32 v10, 3, v10""")
    p.add(Poll(p, 8, 10, 49, "pp").both()); stamp(p, 1)
    for q in range(8):
        p(f"s_mov_b32 s48, {LB(lh)+PB+q*XBYTES}")
        for i in range(3):
            p(f"buffer_load_dwordx4 {vr(VLD+36*i+4+4*q,4)}, v{VP+i}, {WSR}, s48 offen{ld}")
    for i in range(3): unpack8(p, VX + 8 * i, VLD + 36 * i)
    p(f"v_mov_b32 v12, 0x3f80\nv_mov_b32 v13, 0x3f800000")
    for q in range(8):
        for i in range(3):
            b = VLD + 36 * i + 4 + 4 * q
            for j in range(4):
                p(f"v_dot2c_f32_bf16 v{VX+8*i+2*j}, v{b+j}, v12\nv_dot2c_f32_bf16 v{VX+8*i+2*j+1}, v{b+j}, v13")
    if l == 0: stamp(p, 3)
    if l == 1: srd(p, S_O, P_OUT, XBYTES)
    else: p(f"s_add_u32 s{S_O}, s{P_WS}, {LB(0)+X2R}\ns_addc_u32 s{S_O+1}, s{P_WS+1}, 0\ns_mov_b32 s{S_O+2}, {XBYTES:#x}\ns_mov_b32 s{S_O+3}, 0x20000")
    for i in range(3):
        for j in range(4): p(f"v_cvt_pk_bf16_f32 v{VO+4*i+j}, v{VX+8*i+2*j}, v{VX+8*i+2*j+1}")
        p(f"buffer_store_dwordx4 {vr(VO+4*i,4)}, v{VROW}, s[{S_O}:{S_O+3}], 0 offen offset:{128*i}{sc if l == 0 else ''}")
    if l == 1:
        p(f"{l_skip}:")
        return
    for i in range(3): unpack8(p, VX + 8 * i, VO + 4 * i)
    ln_local_stats(p, VX, VS, VS + 1, 8)
    p(f"""v_and_b32 v8, 7, v{V_LANE}
    s_mul_i32 s46, s{S_WAVE}, 64
    s_add_u32 s46, s46, {lds_off}
    v_lshl_add_u32 v8, v8, 3, s46
    ds_write_b64 v8, v[{VS}:{VS+1}]""")
    p.drain(vm=False)
    if w3:
        l_join = p.label("join")
        p(f"s_branch {l_join}\n{l_skip}:")
        w3()
        p(f"{l_join}:\ns_barrier")
    else: p(f"{l_skip}:\ns_barrier")
    stamp(p, 4)
    l_skip2 = p.label("w3b")
    p(f"s_cmp_eq_u32 s{S_WAVE}, 3\ns_cbranch_scc1 {l_skip2}")
    p(f"v_and_b32 v8, 7, v{V_LANE}\nv_lshlrev_b32 v8, 3, v8\nv_add_u32 v8, {lds_off}, v8")
    for w in range(3): p(f"ds_read_b64 v[{VS+2*w}:{VS+2*w+1}], v8 offset:{64*w}")
    ln_finish(p, VX, VS, 16, 8)
    p(f"s_mov_b32 s46, {LB(l+1)+XN}")
    for i in range(3):
        if i == 2: p("s_add_u32 s46, s46, 4096")
        p(f"buffer_store_dwordx4 {vr(16+4*i,4)}, v{VFR}, {WSR}, s46 offen offset:{2048*(i&1)}{sc}")
    p(f"s_lshl_b32 s46, s47, 2\ns_add_u32 s46, s46, s{S_WAVE}\ns_lshl_b32 s46, s46, 3\ns_add_u32 s46, s46, {FX(l+1)}")
    stamp(p, 5)
    signal(p, 46, 8)
    p(f"{l_skip2}:")
```

```python
from common import *
from k_prep import *
from k_attn import MF, attn_bias, attn_part, wo_setup, wo_wdma, wo_pre, wo_main
from k_ffn import ffn_phase, reduce_phase, LDS_CS, LDS_WQ
V_LANE, V_L16 = 1, 2
LDS_EX = LDS_CS + 1152
LDS_LN = LDS_EX + 4 * 3072
LDS_HALO = 0
LDS_STG = 108 * 1024
LDS_TOTAL = 163840
S_AB, S_HP, S_T0, S_WSRC, S_WM0, S_XS, S_HS = 44, 45, 46, 47, 48, 51, 49
VTA, VTB, VTC, VG = 229, 238, 247, 220
A_UA, A_UB, A_UC = 144, 180, 216
S_UA, S_UB, S_UC = 3, 30, 31
SB, SBT = 58, 92

def LD(): return "" if OPT.get("plainld") else " sc1"

def qkv_setup(p, l):
    p(f"""s_lshr_b32 s{S_AB}, s{S_IDX}, 4
    s_lshl_b32 s52, s{S_XCD}, 1
    s_add_u32 s{S_AB}, s{S_AB}, s52
    s_and_b32 s{S_HP}, s{S_IDX}, 15
    s_mul_i32 s{S_WM0}, s{S_WAVE}, 21
    s_lshr_b32 s{S_WM0}, s{S_WM0}, 1
    s_lshl_b32 s{S_WM0}, s{S_WM0}, 10
    s_mul_i32 s{S_WSRC}, s{S_HP}, {126*1024}
    s_add_u32 s{S_WSRC}, s{S_WSRC}, s{S_WM0}
    s_add_u32 s{S_WSRC}, s{S_WSRC}, {WQ}""")

def qkv_wdma(g):
    r = []
    for j0 in range(0, 11, 4):
        r.append(ins(f"s_add_u32 m0, s{S_WM0}, {LDS_WQ+g*42*1024+j0*1024}"))
        r.append(ins(f"s_add_u32 s53, s{S_WSRC}, {g*42*1024+j0*1024}"))
        for j in range(j0, min(j0 + 4, 11)):
            r.append(ins(f"buffer_load_dwordx4 v{V_L16}, {WSR}, s53 offen offset:{1024*(j-j0)} lds", f"wq{g}"))
    return r

def qkv_main(p, l, extra=None, pre_signal=None, post_poll=None):
    V_W, V_HT, V_HN, V_XH = 3, 4, 5, 10
    ACC, HACC, WB, HB_ = 16, 80, 88, 144
    p(f"""s_lshl_b32 s{S_T0}, s{S_AB}, 3
    s_max_u32 s52, s{S_T0}, 1
    s_sub_u32 s52, s52, 1
    s_mul_i32 s{S_HS}, s52, {18*1024}
    s_mul_i32 s50, s{S_WAVE}, 9
    s_lshr_b32 s50, s50, 1
    s_lshl_b32 s50, s50, 10
    s_add_u32 s{S_HS}, s{S_HS}, s50
    s_add_u32 s{S_HS}, s{S_HS}, {LB(l)+XN}
    s_add_u32 s50, s50, {LDS_HALO}
    s_lshl_b32 s54, s52, 6
    s_lshl_b32 s52, s{S_WAVE}, 1
    s_add_u32 s{S_T0}, s{S_T0}, s52
    s_mul_i32 s{S_XS}, s{S_T0}, {18*1024}
    s_add_u32 s{S_XS}, s{S_XS}, {LB(l)+XN}
    s_lshl_b32 s55, s{S_T0}, 6""")
    p(f"""v_and_b32 v6, 3, v{V_LANE}
    v_min_u32 v6, 2, v6
    v_and_b32 v7, 12, v{V_LANE}
    v_add_lshl_u32 v8, v6, v7, 3
    v_add_u32 v8, s55, v8
    v_and_b32 v7, 4, v{V_LANE}
    v_add_lshl_u32 v9, v6, v7, 3
    v_add_u32 v9, s54, v9
    v_and_b32 v7, 16, v{V_LANE}
    v_cmp_eq_u32 vcc, 0, v7
    v_cndmask_b32 v8, v9, v8, vcc""")
    if l == 0:
        p(f"""v_subrev_u32 v7, 32, v{V_LANE}
        v_min_u32 v7, 17, v7
        s_lshl_b32 s52, s{S_HP}, 8
        s_add_u32 s52, s52, {FWQ-FX(0)}
        v_lshl_add_u32 v7, v7, 3, s52
        v_cmp_gt_u32 vcc, 32, v{V_LANE}
        v_cndmask_b32 v8, v7, v8, vcc""")
    else:
        p(f"s_min_u32 s52, s{S_IDX}, 23")
        sdiv(p, 52, 52, 6, 32)
        p(f"""s_lshl_b32 s53, s{S_XCD}, 2
        s_add_u32 s52, s52, s53
        s_lshl_b32 s52, s52, 2
        s_add_u32 s52, s52, s{S_WAVE}
        s_lshl_b32 s52, s52, 6
        v_and_b32 v7, 4, v{V_LANE}
        v_add_lshl_u32 v7, v6, v7, 3
        v_add_u32 v7, s52, v7
        v_cmp_gt_u32 vcc, 32, v{V_LANE}
        v_cndmask_b32 v8, v7, v8, vcc""")
    p(f"s_mov_b32 s52, {FX(l)}")
    acc = lambda tt, j: vr(ACC + 32 * tt + 4 * j, 4)
    wf = lambda c, t: vr(WB + 28 * (c & 1) + 4 * t, 4)
    hf = lambda h, j: vr(HB_ + 12 * (h & 1) + 4 * j, 4)
    xf = lambda tt, c: ar(72 * tt + 4 * c, 4)
    def reads(c):
        r = [f"v_add_u32 v{V_W}, {9*7168}, v{V_W}"] if c == 9 else []
        return r + [f"ds_read_b128 {wf(c, t)}, v{V_W} offset:{(c%9)*7168+1024*t}" for t in (0, 1, 2, 3, 6, 4, 5)]
    def hreads(h):
        r = [f"v_add_u32 v{v}, {9*7168}, v{v}" for v in (V_HT, V_HN)] if h == 9 else []
        return r + [f"ds_read_b128 {hf(h, 0)}, v{V_XH} offset:{1024*h}", f"ds_read_b128 {hf(h, 1)}, v{V_HT} offset:{(h%9)*7168}",
                    f"ds_read_b128 {hf(h, 2)}, v{V_HN} offset:{(h%9)*7168}"]
    p(f"""s_min_u32 s56, s{S_WAVE}, 2
    s_add_u32 s57, s56, 2
    s_add_u32 s56, s56, 4
    s_cmp_ge_u32 s{S_WAVE}, 2
    s_cselect_b32 s57, 6, s57
    s_lshl_b32 s57, s57, 10
    s_lshl_b32 s56, s56, 10
    v_add_u32 v{V_W}, {LDS_WQ}, v{V_L16}
    v_add_u32 v{V_HT}, s57, v{V_W}
    v_add_u32 v{V_HN}, s56, v{V_W}
    v_add_u32 v{V_XH}, {LDS_HALO}, v{V_L16}""")
    if l == 1:
        p.wait_vm("wq2"); p.drain(lg=False); p("s_barrier")
        p.add(reads(0))
    p("v_mov_b32 v11, v8\ns_mov_b32 s23, s52")
    px = Poll(p, 12, 11, 23, "px")
    p.add(px.issue())
    attn_bias(p, S_AB)
    p(f"s_mul_i32 s53, s{S_HP}, {18*128}\ns_add_u32 s53, s53, s{S_XS}")
    p.add(px.check()); stamp(p, 1)
    if post_poll: post_poll()
    if OPT.get("touch", 0): p.add(touch_items(53, 18, 11, 12))
    def xload(c):
        r = []
        for tt in range(2):
            if c % 4 == 0: r.append(ins(f"s_add_u32 s{54+tt}, s{S_XS}, {tt*18*1024+c*1024}"))
            r.append(ins(f"buffer_load_dwordx4 a[{72*tt+4*c}:{72*tt+4*c+3}], v{V_L16}, {WSR}, s{54+tt} offen offset:{1024*(c&3)}{LD()}"))
        return r
    def halo():
        r = []
        for g in range(2):
            r.append(ins(f"s_add_u32 m0, s50, {4096*g}")); r.append(ins(f"s_add_u32 s53, s{S_HS}, {4096*g}"))
            for j in range(4 if g == 0 else 1):
                r.append(ins(f"buffer_load_dwordx4 v{V_L16}, {WSR}, s53 offen offset:{1024*j}{LD()} lds", "halo"))
        return r
    sl = Stream("ld")
    if l == 0:
        p("s_barrier")
        p.add(qkv_wdma(0))
        for c in range(6): p.add(xload(c))
        p.add(qkv_wdma(1))
        late = halo() + sum((xload(c) for c in range(6, 12)), []) + qkv_wdma(2) + sum((xload(c) for c in range(12, 18)), [])
    else:
        nup = OPT.get("qup", 3)
        if not OPT.get("qnold"):
            for c in range(nup): p.add(xload(c))
        late = halo() + sum((xload(c) for c in range(nup, 18)), [])
    hs = {c: [] for c in range(18)}
    for h in range(18): hs[6 + h if h < 6 else 12 + (h - 6) // 2].append(h)
    if l == 0:
        p.wait_vm("wq0"); p("s_barrier")
        p.add(reads(0))
    bb = []; sr_ = Stream("rd"); sh = Stream("hrd")
    hpos = {}
    for c in range(18):
        g0 = len(bb)
        C = lambda d: "0" if c == 0 else d
        main = []
        for j, t in enumerate((0, 1, 2, 3, 6)):
            for tt in range(2): main.append(ins(f"{MF} {acc(tt, j)}, {wf(c, t)}, {xf(tt, c)}, {C(acc(tt, j))}"))
        for j, t in ((7, 6), (5, 4), (6, 5)):
            for tt in range(2): main.append(ins(f"{MF} {acc(tt, j)}, {xf(tt, c)}, {wf(c, t)}, {C(acc(tt, j))}"))
        def hm(h):
            hpos[h] = len(bb)
            z = lambda d: "0" if h == 0 else d
            bb.append(ins(f"{MF} {vr(HACC, 4)}, {hf(h, 1)}, {hf(h, 0)}, {z(vr(HACC, 4))}"))
            bb.append(ins(f"{MF} {vr(HACC+4, 4)}, {hf(h, 0)}, {hf(h, 2)}, {z(vr(HACC+4, 4))}"))
        if len(hs[c]) == 2:
            bb += main[:8]; hm(hs[c][0]); bb += main[8:]; hm(hs[c][1])
        else:
            bb += main
            for h in hs[c]: hm(h)
        if c + 1 < 18:
            tags = []
            if c + 1 == 6: tags = (["wq1"] if l == 0 else []) + ["halo"]
            if c + 1 == 12 and l == 0: tags = ["wq2"]
            for t in tags: sr_.add(WaitTag(t, "vm"), g0 + 1, g0 + 1)
            if tags:
                sr_.add("s_barrier", g0 + 1, g0 + 1)
                if c + 1 == 6: gbar = g0 + 2
            for k, r in enumerate(reads(c + 1)): sr_.add(r, g0 + 1 + 2 * k - (k > 0), g0 + 14)
    for h in range(18):
        e = max(gbar, hpos[h - 2] + 2 if h >= 2 else 0)
        for r in hreads(h): sh.add(r, e, hpos[h] - 5)
    need = {}
    for it in late: sl.add(it, 0)
    gstep = lambda c: next(i for i, m in enumerate(bb) if xf(0, c) in m.text)
    for e in sl.q:
        it = e[2]
        if it.kind == "vmem":
            if it.tag == "halo": e[1] = gstep(5) - 30
            elif it.tag == "wq2": e[1] = gstep(11) - 40
            else: e[1] = gstep((min(r[1] for r in it.dst) % 72) // 4) - 40
    if extra:
        for it in extra: sl.add(it, 0)
    if l == 1 and OPT.get("wtouch", 1):
        rr = OPT.get("r", 2); nsl = 1 << (5 - rr); parts = 128 // nsl
        for t in (f"s_lshl_b32 s53, s{S_IDX}, 2", f"s_add_u32 s53, s53, s{S_WAVE}", f"s_mul_i32 s53, s53, {41*128}", f"s_add_u32 s53, s53, {WOS}"):
            sl.add(t, 0)
        for it in touch_items(53, 41, 11, 13, ""): sl.add(it, 0)
        for t in (f"s_and_b32 s53, s{S_XCD}, {(1 << rr) - 1}", f"s_lshl_b32 s53, s53, {5-rr}", f"s_and_b32 s54, s{S_IDX}, {nsl-1}",
                  f"s_add_u32 s53, s53, s54", f"s_mul_i32 s53, s53, {486*1024}", f"s_lshr_b32 s54, s{S_IDX}, {5-rr}", f"s_lshl_b32 s54, s54, 2",
                  f"s_add_u32 s54, s54, s{S_WAVE}", f"s_mul_i32 s54, s54, {1152//parts*128}", f"s_add_u32 s53, s53, s54", f"s_add_u32 s53, s53, {WF}"):
            sl.add(t, 0)
        for it in touch_items(53, min(1152 // parts, 128), 11, 14, ""): sl.add(it, 0)
    sst = Stream("st")
    if STAMP[0] and l == 1:
        for k, c in enumerate((1, 6, 12)): sst.add(stamp_ins(9 + k), gstep(c), gstep(c))
    if OPT.get("qnold") and l == 1: sl.q = [e for e in sl.q if not (e[2].kind == "vmem" and e[2].dst)]
    firsts = set(); seen_r = set()
    for g, mm in enumerate(bb):
        key = frozenset(r for r in mm.srcAB if r[0] == "v")
        prev = frozenset(r for r in bb[g-1].srcAB if r[0] == "v") if g else None
        if key != prev: firsts.add(g)
    weave(p, bb, [sr_, sh, sl, sst], cap=2, vm_gap=4 if l == 0 else OPT.get("qgap", 4), wait_gaps=lambda g: g in firsts)
    stamp(p, 2)
    attn_part(p, l, S_T0, S_HP, LDS_EX, LOC("o"))
    stamp(p, 3)
    p(f"""s_lshl_b32 s52, s{S_AB}, 2
    s_add_u32 s52, s52, s{S_WAVE}
    s_lshl_b32 s52, s52, 4
    s_add_u32 s52, s52, s{S_HP}
    s_lshl_b32 s52, s52, 3
    s_add_u32 s52, s52, {FO(l)}""")
    if pre_signal: pre_signal()
    signal(p, 52, 8, "ost", LOC("o"))
    stamp(p, 4)

def wo_part(p, l, mid=None, after_poll=None, pwo=None):
    S_TB, S_CG, S_T = 44, 45, 46
    wo_setup(p, l)
    if pwo: p.add(pwo.check())
    wo_wdma(p)
    if mid: mid()
    p(f"""s_lshr_b32 s52, s{S_T}, 1
    s_lshl_b32 s52, s52, 7
    s_add_u32 s52, s52, {FO(l)}
    v_and_b32 v10, 15, v{V_LANE}
    v_lshlrev_b32 v10, 3, v10""")
    p(f"s_mul_i32 s53, s{S_CG}, {22*128}\ns_min_u32 s53, s53, {106*128}\ns_add_u32 s53, s53, s49")
    po = Poll(p, 12, 10, 52, "po")
    wo_pre(p, l, LD(), po.issue())
    p.add(po.check()); stamp(p, 5)
    if OPT.get("touch", 0): p.add(touch_items(53, 22, 11, 12))
    if after_poll: after_poll()
    wo_main(p, l, LOC("x"), LD())
    p(f"""s_lshl_b32 s52, s{S_T}, 3
    s_add_u32 s52, s52, s{S_CG}
    s_lshl_b32 s52, s52, 3
    s_add_u32 s52, s52, {F1B+l*0x2000}""")
    signal(p, 52, 8, "x1st", LOC("x"))
    stamp(p, 8)

def phase0(p):
    VROW, VFR, VRAW, VX, VS, VO = 3, 4, 8, 20, 44, 52
    S_ROLE, S_U, S_ST1, S_ST2, S_F1, S_F2, ST1, ST2 = 55, 67, 56, 57, 0, 1, 44, 84
    srd(p, S_X, P_X, XBYTES)
    srd(p, S_A, P_WQKV, D * 3 * D * 2)
    p(f"v_mov_b32 v{VROW}, 0\nv_mov_b32 v{VFR}, 0")
    l_n = p.label("nonce")
    p(f"""v_mov_b32 v5, 0
    s_or_b32 s44, s2, s{S_WAVE}
    s_cmp_lg_u32 s44, 0
    s_cbranch_scc1 {l_n}
    s_memrealtime s[44:45]""")
    p.drain(vm=False)
    p(f"""v_mov_b32 v6, s44
    v_mov_b32 v7, s45
    s_mov_b64 exec, 1
    global_store_dwordx2 v5, v[6:7], s[{P_DBG}:{P_DBG+1}] sc1
    s_mov_b64 exec, -1
    {l_n}:""")
    stamp(p, 1)
    l_w3, l_u = p.label("w3"), p.label("uend")
    p(f"s_cmp_eq_u32 s{S_WAVE}, 3\ns_cbranch_scc1 {l_w3}")
    p(f"s_lshl_b32 s47, s{S_XCD}, 5\ns_add_u32 s47, s47, s{S_IDX}")
    ln_addr(p, 47, V_LANE, VROW, VFR, 6, 48)
    for i in range(3):
        p(f"buffer_load_dwordx4 v[{VRAW+4*i}:{VRAW+4*i+3}], v{VROW}, s[{S_X}:{S_X+3}], 0 offen offset:{128*i}")
    p(f"s_branch {l_u}\n{l_w3}:")
    def qissue(stg, st, sf, srd_, tag):
        p(f"""s_lshr_b32 s{sf}, s{S_U}, 4
        s_and_b32 s{S_U}, s{S_U}, 15
        s_mul_i32 s{S_U}, s{S_U}, 18
        s_add_u32 s{S_U}, s{S_U}, s{sf}""")
        qkv_unit_issue(p, S_U, stg, V_LANE, 64, st, srd_, tag)
        p(f"s_lshl_b32 s{sf}, s{st}, 5\ns_add_u32 s{sf}, s{sf}, s{st+1}\ns_lshl_b32 s{sf}, s{sf}, 3\ns_add_u32 s{sf}, s{sf}, {FWQ}")
    l_w = p.label("uw")
    p(f"""s_mov_b32 s{S_ROLE}, 0
    s_mov_b32 s{S_ST1}, 0
    s_mov_b32 s{S_ST2}, 8192
    s_mul_i32 s{S_U}, s{S_XCD}, 36
    s_add_u32 s{S_U}, s{S_U}, s{S_IDX}""")
    qissue(S_ST1, ST1, S_F1, S_A, "au1")
    p(f"""s_cmp_ge_u32 s{S_IDX}, 4
    s_cbranch_scc1 {l_w}
    s_mov_b32 s{S_ROLE}, 1
    s_mul_i32 s{S_U}, s{S_XCD}, 36
    s_add_u32 s{S_U}, s{S_U}, s{S_IDX}
    s_add_u32 s{S_U}, s{S_U}, 32""")
    qissue(S_ST2, ST2, S_F2, S_A, "au2")
    p(f"""s_branch {l_u}
    {l_w}:
    s_cmp_ge_u32 s{S_IDX}, 18
    s_cbranch_scc1 {l_u}
    s_mul_i32 s{S_U}, s{S_XCD}, 14
    s_add_u32 s{S_U}, s{S_U}, s{S_IDX}
    s_sub_u32 s{S_U}, s{S_U}, 4
    s_cmp_ge_u32 s{S_U}, 108
    s_cbranch_scc1 {l_u}
    s_mov_b32 s{S_ROLE}, 2""")
    wo_unit_issue(p, S_U, S_ST2, V_LANE, 64, ST2, S_A, "au2")
    p(f"""s_lshl_b32 s{S_F2}, s{ST2}, 5
    s_add_u32 s{S_F2}, s{S_F2}, s{ST2+1}
    s_lshl_b32 s{S_F2}, s{S_F2}, 3
    s_add_u32 s{S_F2}, s{S_F2}, {FWO}
    {l_u}:""")
    stamp(p, 2)
    unit_pieces(p, V_LANE, VG, 64)
    def gu_number(s):
        p(f"s_lshr_b32 s52, s{s}, 5\ns_and_b32 s{s}, s{s}, 31\ns_mul_i32 s{s}, s{s}, 36\ns_add_u32 s{s}, s{s}, s52")
    p(f"""s_lshl_b32 s{S_UA}, s{S_XCD}, 7
    s_lshl_b32 s52, s{S_IDX}, 2
    s_add_u32 s53, s52, s{S_WAVE}
    s_add_u32 s{S_UA}, s{S_UA}, s53""")
    gu_number(S_UA)
    ffn_unit_setup(p, S_UA, SB, S_O, SBT); unit_table(p, SB, VG, VTA, 64)
    late = OPT.get("late", 1)
    if not late: p.add(unit_loads(S_O, VTA, A_UA))
    l_i, l_d, l_b, l_e = p.label("ui"), p.label("ud"), p.label("ub"), p.label("ue")
    p(f"""s_mov_b32 s{S_UB}, -1
    s_mov_b32 s{S_UC}, -1
    s_mul_i32 s54, s{S_XCD}, 72
    s_add_u32 s54, s54, 1152
    s_cmp_ge_u32 s{S_IDX}, 24
    s_cbranch_scc1 {l_i}
    s_cmp_lg_u32 s{S_WAVE}, 3
    s_cbranch_scc1 {l_e}
    s_add_u32 s{S_UB}, s54, s{S_IDX}
    s_add_u32 s{S_UB}, s{S_UB}, 48
    s_branch {l_b}
    {l_i}:
    s_sub_u32 s53, s53, 96
    s_add_u32 s{S_UC}, s54, s53
    s_add_u32 s{S_UB}, s{S_UC}, -16
    s_add_u32 s{S_UC}, s{S_UC}, 16
    s_cmp_ge_u32 s53, 16
    s_cbranch_scc1 {l_d}
    s_lshl_b32 s{S_UB}, s{S_XCD}, 4
    s_add_u32 s{S_UB}, s{S_UB}, s53
    s_add_u32 s{S_UB}, s{S_UB}, 1024""")
    gu_number(S_UB)
    p(f"{l_d}:\n{l_b}:\n{l_e}:")
    for s_u, ab, sd, vt in ((S_UB, A_UB, S_A, VTB), (S_UC, A_UC, S_X, VTC)):
        l_s = p.label("absent")
        if not late: sd, vt = S_O, VTA
        else:
            for i in range(9): p(f"v_mov_b32 v{vt+i}, 0")
        p(f"s_mov_b32 s{sd+2}, 0\ns_cmp_eq_u32 s{s_u}, -1\ns_cbranch_scc1 {l_s}")
        ffn_unit_setup(p, s_u, SB, sd, SBT); unit_table(p, SB, VG, vt, 64)
        p(f"{l_s}:")
        if not late: p.add(unit_loads(sd, vt, ab))
    pn = NoncePoll(p, 6, 5, 0, "pn")
    l2, l3, l4 = p.label("w3"), p.label("w3"), p.label("ln")
    p(f"s_cmp_eq_u32 s{S_WAVE}, 3\ns_cbranch_scc1 {l2}")
    for i in range(3): unpack8(p, VX + 8 * i, VRAW + 4 * i)
    ln_local_stats(p, VX, VS, VS + 1, 64)
    p(f"""v_and_b32 v64, 7, v{V_LANE}
    s_mul_i32 s46, s{S_WAVE}, 64
    s_add_u32 s46, s46, {LDS_LN}
    v_lshl_add_u32 v64, v64, 3, s46
    ds_write_b64 v64, v[{VS}:{VS+1}]""")
    p.drain(vm=False)
    p(f"{l2}:\ns_barrier"); stamp(p, 3)
    p.add(pn.issue())
    p(f"s_cmp_eq_u32 s{S_WAVE}, 3\ns_cbranch_scc1 {l3}")
    p(f"v_and_b32 v64, 7, v{V_LANE}\nv_lshlrev_b32 v64, 3, v64\nv_add_u32 v64, {LDS_LN}, v64")
    for w in range(3): p(f"ds_read_b64 v[{VS+2*w}:{VS+2*w+1}], v64 offset:{64*w}")
    ln_finish(p, VX, VS, VO, 64)
    p(f"s_mov_b32 s46, {LB(0)+XN}")
    for i in range(3):
        if i == 2: p("s_add_u32 s46, s46, 4096")
        p(f"buffer_store_dwordx4 v[{VO+4*i}:{VO+4*i+3}], v{VFR}, {WSR}, s46 offen offset:{2048*(i&1)} sc1")
    p(f"""s_lshl_b32 s{S_F1}, s47, 2
    s_add_u32 s{S_F1}, s{S_F1}, s{S_WAVE}
    s_lshl_b32 s{S_F1}, s{S_F1}, 3
    s_add_u32 s{S_F1}, s{S_F1}, {FX(0)}
    s_mov_b32 s{S_ROLE}, 0
    s_branch {l4}
    {l3}:""")
    qkv_unit_finish(p, S_ST1, V_LANE, V_L16, 72, 64, ST1, " sc1", "au1")
    l_fw = p.label("fw")
    p(f"s_cmp_eq_u32 s{S_ROLE}, 0\ns_cbranch_scc1 {l4}\ns_cmp_eq_u32 s{S_ROLE}, 2\ns_cbranch_scc1 {l_fw}")
    qkv_unit_finish(p, S_ST2, V_LANE, V_L16, 100, 64, ST2, " sc1", "au2")
    p(f"s_branch {l4}\n{l_fw}:")
    wo_unit_finish(p, S_ST2, V_LANE, V_L16, 100, 64, ST2, " sc1", "au2")
    p(f"{l4}:")
    stamp(p, 4)
    p.add(pn.check())
    p(f"v_readfirstlane_b32 s{S_NONCE}, v6\nv_readfirstlane_b32 s{S_NONCE+1}, v7")
    signal(p, S_F1, 6)
    stamp(p, 5)
    l5 = p.label("norole")
    p(f"s_cmp_eq_u32 s{S_ROLE}, 0\ns_cbranch_scc1 {l5}")
    p.add(signal_items(S_F2, 6)[2])
    p(f"{l5}:")

def finish_unit(p, s_u, abase):
    p(f"s_mul_i32 s55, s{S_WAVE}, 9216\ns_add_u32 s55, s55, {LDS_STG}")
    unit_finish(p, s_u, SB, SBT, 55, abase, V_LANE, V_L16, 72, 64)

def idle0(p):
    for k, (s_u, ab) in enumerate(((S_UA, A_UA), (S_UB, A_UB), (S_UC, A_UC))):
        if k == 0 and OPT.get("early", 1):
            p("s_mov_b32 s44, s0"); continue
        finish_unit(p, s_u, ab)
        p(f"s_mov_b32 s{44+k}, s{SB+U_FLAG}")
        if k == 1:
            signal(p, 44, 8); p.add(signal_items(45, 8)[2])
    signal(p, 46, 8)

def gen_main(name):
    Poll.ool.clear()
    p = Prog(); end = f"{name}_end"
    OPT.setdefault("codepf", 1)
    prologue(p, end, code_pf=1, pf_reg=219, pf_end=f"{name}_last")
    p(f"s_mov_b32 s{S_LB}, {LB(0)}\ns_mov_b32 s{S_LF}, 0")
    phase0(p)
    stamp_flush(p, 6, 6, light=True)
    qkv_setup(p, 0)
    early = OPT.get("early", 1)
    extra = None
    if OPT.get("late", 1):
        early = 0; OPT["early"] = 0
        extra = unit_loads(S_O, VTA, A_UA) + unit_loads(S_A, VTB, A_UB) + unit_loads(S_X, VTC, A_UC)
    if early:
        finish_unit(p, S_UA, A_UA)
        p(f"s_mov_b32 s0, s{SB+U_FLAG}")
    pwo = Poll(p, 14, 13, 23, "pwo")
    def pre_signal():
        sdiv(p, 53, S_IDX, 6, 32)
        p(f"s_mul_i32 s53, s53, 6\ns_sub_u32 s53, s{S_IDX}, s53\ns_lshl_b32 s53, s53, 8\ns_add_u32 s23, s53, {FWO}")
        lane_min8(p, 13, V_LANE, 18)
        p.add(pwo.issue())
    qkv_main(p, 0, extra, pre_signal, (lambda: p.add(signal_items(0, 6))) if early else None)
    l_idle0, l_ffn, l_red1, l_next = p.label("idle0"), p.label("ffn"), p.label("red1"), p.label("next")
    p(f"s_cmp_ge_u32 s{S_IDX}, 24\ns_cbranch_scc1 {l_idle0}")
    if early: wo_part(p, 0, pwo=pwo)
    else: wo_part(p, 0, lambda: finish_unit(p, S_UA, A_UA), lambda: p.add(signal_items(SB + U_FLAG, 12)), pwo)
    stamp_flush(p, 0, 9, light=True)
    p(f"s_cmp_lg_u32 s{S_WAVE}, 3\ns_cbranch_scc1 {l_ffn}")
    finish_unit(p, S_UB, A_UB)
    signal(p, SB + U_FLAG, 8)
    p(f"s_branch {l_ffn}\n{l_idle0}:")
    idle0(p)
    p(f"{l_ffn}:")
    stamp(p, 0)
    ffn_phase(p, sc=LOC("h"), ld=LD())
    stamp_flush(p, 1, 12, light=True, s_row=S_LF)
    p(f"s_cmp_lg_u32 s{S_LF}, 0\ns_cbranch_scc1 {l_red1}")
    stamp(p, 0)
    def w3():
        p(f"""s_and_b32 s44, s{S_IDX}, 15
        s_mul_i32 s44, s44, {126*1024}
        s_add_u32 s44, s44, {WQ}""")
        for j in range(36):
            if j % 4 == 0: p(f"s_mov_b32 m0, {LDS_WQ+j*1024}\ns_add_u32 s45, s44, {j*1024}")
            p(f"buffer_load_dwordx4 v{V_L16}, {WSR}, s45 offen offset:{1024*(j&3)} lds", tag="wq2")
    reduce_phase(p, 0, LDS_LN, ld=LD(), pre=lambda: p("s_barrier"), w3=w3)
    qkv_setup(p, 1)
    stamp(p, 2); stamp_flush(p, 2, 6, light=True); stamp(p, 0)
    qkv_main(p, 1)
    p(f"s_cmp_ge_u32 s{S_IDX}, 24\ns_cbranch_scc1 {l_next}")
    wo_part(p, 1)
    stamp_flush(p, 3, 12, light=True)
    p(f"{l_next}:")
    if STAMP[0]: p.drain(vm=False)
    p(f"s_mov_b32 s{S_LB}, {LB(1)}\ns_mov_b32 s{S_LF}, 0x2000\ns_branch {l_ffn}\n{l_red1}:")
    stamp(p, 0)
    reduce_phase(p, 1, LDS_LN, ld=LD())
    stamp(p, 2); p.drain(); stamp(p, 3); stamp_flush(p, 5, 4)
    p(f"{end}:\ns_endpgm")
    for pl in Poll.ool: pl.slow_path(p)
    p.add(Raw(f"{name}_last:\n    s_endpgm"))
    t = p.finalize()
    print(name, p.stats)
    return kernel_text(name, t, vgpr=512, accum=256), (256, 256, LDS_TOTAL)
```

```python
from common import *
from k_prep import ln_addr, ln_local_stats, ln_finish
MF = "v_mfma_f32_16x16x32_bf16"
RING = 36 * 1024
LDS_CS = 4 * RING
LDS_WQ = 18 * 1024

from fw import _is_vm as _isvm
DBG = set()
def ffn_slice(p, sd, st):
    rr = OPT.get("r", 2)
    p(f"""s_and_b32 s{st}, s{S_XCD}, {(1 << rr) - 1}
    s_lshl_b32 s{st}, s{st}, {5-rr}
    s_and_b32 s{sd}, s{S_IDX}, {(1 << (5-rr)) - 1}
    s_add_u32 s{sd}, s{sd}, s{st}""")

def ffn_pw_issue(p, pw):
    ffn_slice(p, pw.so, 23)
    p(f"s_lshl_b32 s{pw.so}, s{pw.so}, 9\ns_add_u32 s{pw.so}, s{pw.so}, {FW}")
    lane_min8(p, pw.va, 1, 36)
    p.add(pw.issue())

def ffn_phase(p, pw, sc=" sc1", ld=" sc1"):
    if "plain" in DBG: sc = ""
    scp = LOC("p")
    ntw = " nt" if OPT.get("ntw") else ""
    lbh = str(LB(0)) if OPT.get("reuse") else f"s{S_LB}"
    rr = OPT.get("r", 2)
    V_LANE, V_L16, V_L8, V_W, V_CS, V_T0, V_T1 = 1, 2, 3, 4, 5, 6, 7
    WB, XO, ACA, ACB, NM, RS2, CS, TMP, HO, H8 = 8, 32, 64, 96, 128, 132, 136, 152, 176, 240
    ACX = 208
    S_RB, S_Q, S_M, S_SL, S_SRC, S_M0, S_XS, S_H, S_FL, S_P, S_T, S_R = 44, 45, 46, 47, 48, 49, 50, 51, 52, 53, 54, 56
    S_TMP, S_TMP2, S_LASTSRC, S_LASTM0, S_FW = 60, 61, 62, 63, 64
    p("s_barrier")
    p(f"""s_lshr_b32 s{S_RB}, s{S_IDX}, {5-rr}
    s_and_b32 s{S_TMP}, s{S_XCD}, {7 & ~((1 << rr) - 1)}
    s_add_u32 s{S_RB}, s{S_RB}, s{S_TMP}
    s_and_b32 s{S_TMP}, s{S_XCD}, {(1 << rr) - 1}
    s_lshl_b32 s{S_TMP}, s{S_TMP}, {5-rr}
    s_and_b32 s{S_SL}, s{S_IDX}, {(1 << (5-rr)) - 1}
    s_add_u32 s{S_SL}, s{S_SL}, s{S_TMP}
    s_lshl_b32 s{S_FW}, s{S_SL}, 9
    s_add_u32 s{S_FW}, s{S_FW}, {FW}""")
    p(f"""s_lshr_b32 s{S_Q}, s{S_SL}, 2
    s_and_b32 s{S_M}, s{S_SL}, 3
    s_mul_i32 s{S_SRC}, s{S_SL}, {486*1024}
    s_add_u32 s{S_SRC}, s{S_SRC}, {WF}
    s_mul_i32 s{S_LASTM0}, s{S_WAVE}, 9
    s_lshr_b32 s{S_LASTM0}, s{S_LASTM0}, 1
    s_lshl_b32 s{S_LASTM0}, s{S_LASTM0}, 10
    s_add_u32 s{S_LASTSRC}, s{S_SRC}, s{S_LASTM0}
    s_mul_i32 s{S_M0}, s{S_WAVE}, {9*1024}
    s_add_u32 s{S_SRC}, s{S_SRC}, s{S_M0}
    s_lshl_b32 s{S_T}, s{S_RB}, 4
    s_lshl_b32 s{S_TMP}, s{S_WAVE}, 2
    s_add_u32 s{S_T}, s{S_T}, s{S_TMP}
    s_mul_i32 s{S_XS}, s{S_T}, {18*1024}
    s_mul_i32 s{S_P}, s{S_Q}, {XBYTES}
    s_add_u32 s{S_P}, s{S_P}, s{S_XS}
    s_add_u32 s{S_XS}, s{S_XS}, {X1}
    s_add_u32 s{S_XS}, s{S_XS}, s{S_LB}
    s_lshr_b32 s{S_TMP}, s{S_M}, 1
    s_mul_i32 s{S_TMP}, s{S_TMP}, {9*1024}
    s_add_u32 s{S_P}, s{S_P}, s{S_TMP}
    s_add_u32 s{S_P}, s{S_P}, {PB}
    s_add_u32 s{S_P}, s{S_P}, {lbh}
    v_lshlrev_b32 v{V_L8}, 3, v{V_LANE}
    v_mov_b32 v{V_W}, v{V_L16}""")
    def slot_dma(k):
        r = []
        if k < 13:
            for g in range(3):
                r.append(ins(f"s_add_u32 m0, s{S_M0}, {(k&3)*RING+4096*g}"))
                r.append(ins(f"s_add_u32 s{S_TMP2}, s{S_SRC}, {k*RING+4096*g}"))
                for j in range(4 if g < 2 else 1):
                    r.append(ins(f"buffer_load_dwordx4 v{V_L16}, {WSR}, s{S_TMP2} offen offset:{1024*j}{ntw} lds", f"slot{k}"))
        else:
            for g in range(2):
                r.append(ins(f"s_add_u32 m0, s{S_LASTM0}, {(k&3)*RING+4096*g}"))
                r.append(ins(f"s_add_u32 s{S_TMP2}, s{S_LASTSRC}, {k*RING+4096*g}"))
                for j in range(4 if g < 1 else 1):
                    r.append(ins(f"buffer_load_dwordx4 v{V_L16}, {WSR}, s{S_TMP2} offen offset:{1024*j}{ntw} lds", f"slot{k}"))
        return r
    xf = lambda c, tt: ar(16 * c + 4 * tt, 4) if c < 16 else vr(XO + 16 * (c - 16) + 4 * tt, 4)
    XB = (59, 66, 68, 69)
    def xload(c):
        r = []
        for tt in range(4):
            if c % 4 == 0: r.append(ins(f"s_add_u32 s{XB[tt]}, s{S_XS}, {tt*18*1024+c*1024}"))
            r.append(ins(f"buffer_load_dwordx4 {xf(c,tt)}, v{V_L16}, {WSR}, s{XB[tt]} offen offset:{1024*(c&3)}{ld}"))
        return r
    l_nopw = p.label("nopw")
    p(f"s_cmp_lg_u32 s{S_LF}, 0\ns_cbranch_scc1 {l_nopw}")
    p.add(pw.check())
    p(f"{l_nopw}:")
    npre = OPT.get("npre", 3)
    for k in range(npre): p.add(slot_dma(k))
    l_nocs = p.label("nocs")
    p(f"""s_cmp_lg_u32 s{S_LF}, 0
    s_cbranch_scc1 {l_nocs}
    s_cmp_ge_u32 s{S_WAVE}, 2
    s_cbranch_scc1 {l_nocs}
    s_lshl_b32 s{S_TMP}, s{S_SL}, 1
    s_add_u32 s{S_TMP}, s{S_TMP}, s{S_WAVE}
    s_mul_i32 s{S_TMP}, s{S_TMP}, {18*576}
    s_add_u32 s{S_TMP}, s{S_TMP}, {CSP}
    v_lshrrev_b32 v{V_T0}, 2, v{V_LANE}
    v_lshlrev_b32 v{V_T0}, 7, v{V_T0}
    v_and_b32 v{V_T1}, 3, v{V_LANE}
    v_lshl_add_u32 v{V_T0}, v{V_T1}, 4, v{V_T0}
    s_lshl_b32 s{S_TMP2}, s{S_WAVE}, 6
    s_add_u32 s{S_TMP2}, s{S_TMP2}, {LDS_CS}
    v_add_u32 v{V_T0}, s{S_TMP2}, v{V_T0}
    s_mov_b32 exec_hi, 15""")
    for c in range(18):
        if c and c % 6 == 0: p(f"s_add_u32 s{S_TMP}, s{S_TMP}, {6*576}")
        p(f"buffer_load_dwordx4 {vr(64+4*c,4)}, v{V_L16}, {WSR}, s{S_TMP} offen offset:{(c%6)*576} sc1")
    for c in range(1, 18):
        for j in range(4): p(f"v_add_f32 v{64+j}, v{64+j}, v{64+4*c+j}")
    p(f"ds_write_b128 v{V_T0}, v[64:67]\ns_mov_b64 exec, -1")
    p.drain(vm=False)
    p(f"{l_nocs}:")
    p(f"""s_lshr_b32 s{S_TMP}, s{S_T}, 2
    s_lshl_b32 s{S_TMP}, s{S_TMP}, 8
    s_add_u32 s55, s{S_LF}, {F1B}
    v_and_b32 v{V_T1}, 7, v{V_LANE}
    v_min_u32 v{V_T1}, 5, v{V_T1}
    v_and_b32 v{V_T0}, 24, v{V_LANE}
    v_add_lshl_u32 v0, v{V_T1}, v{V_T0}, 3
    v_add_u32 v0, s{S_TMP}, v0
    s_lshl_b32 s{S_TMP}, s{S_XCD}, 4
    s_lshr_b32 s{S_TMP2}, s{S_IDX}, 1
    s_add_u32 s{S_TMP}, s{S_TMP}, s{S_TMP2}
    s_lshl_b32 s{S_TMP}, s{S_TMP}, 6
    v_lshl_add_u32 v{V_T1}, v{V_T1}, 3, s{S_TMP}
    v_cmp_gt_u32 vcc, 32, v{V_LANE}
    v_cndmask_b32 v0, v{V_T1}, v0, vcc""")
    p1 = Poll(p, V_T0, 0, 55, "p1")
    p.add(p1.issue())
    p(f"""s_lshl_b32 s{S_TMP}, s{S_RB}, 5
    s_add_u32 s{S_TMP}, s{S_TMP}, s{S_SL}
    s_mul_i32 s{S_H}, s{S_TMP}, {72*1024}
    s_add_u32 s{S_H}, s{S_H}, {HB}
    s_add_u32 s{S_H}, s{S_H}, {lbh}""")
    for j in range(3):
        p(f"""s_xor_b32 s{S_TMP2}, s{S_TMP}, {j+1}
        s_mul_i32 s{S_R+j}, s{S_TMP2}, {72*1024}
        s_add_u32 s{S_R+j}, s{S_R+j}, {HB}
        s_add_u32 s{S_R+j}, s{S_R+j}, {lbh}""")
    p(f"""s_lshr_b32 s{S_FL}, s{S_TMP}, 2
    s_lshl_b32 s{S_FL}, s{S_FL}, 2
    s_add_u32 s{S_FL}, s{S_FL}, s{S_WAVE}
    s_lshl_b32 s{S_FL}, s{S_FL}, 7
    s_lshl_b32 s{S_TMP2}, s{S_LF}, 2
    s_add_u32 s{S_FL}, s{S_FL}, s{S_TMP2}
    s_add_u32 s{S_FL}, s{S_FL}, {FHB}
    v_lshrrev_b32 v{V_CS}, 4, v{V_LANE}
    v_lshlrev_b32 v{V_CS}, 4, v{V_CS}
    v_add_u32 v{V_CS}, {LDS_CS}, v{V_CS}
    s_lshl_b32 s{S_TMP}, s{S_WAVE}, 12""")
    for r in (S_H, S_R, S_R + 1, S_R + 2):
        p(f"s_add_u32 s{r}, s{r}, s{S_TMP}")
    p(f"s_lshl_b32 s65, s{S_WAVE}, 11\ns_sub_u32 s65, {64*1024}, s65")
    p(f"s_lshl_b32 s67, s{S_M}, 3\ns_add_u32 s67, s67, s{S_FL}")
    frs = []
    first = (8, 0, 1)
    bufs = {8: (ACX, ACX + 16), 0: (ACA, ACA + 16), 1: (ACB, ACB + 16), 2: (HO + 16, TMP)}
    for tile in range(3, 8): bufs[tile] = (ACB, ACB + 16) if tile & 1 else (ACA, ACA + 16)
    def g1(tile, c, mat):
        f = pos_of_tile(tile) * 36 + 2 * c + mat
        return (f, [(vr(bufs[tile][mat] + 4 * tt, 4), xf(c, tt), c == 0) for tt in range(4)])
    marks = {}
    for c in range(18):
        for tile in first:
            for mat in range(2): frs.append(g1(tile, c, mat))
    marks["pass0_end"] = len(frs)
    for tile in range(2, 8):
        marks[f"pass{tile}"] = len(frs)
        for c in range(18):
            for mat in range(2): frs.append(g1(tile, c, mat))
    marks["g2"] = len(frs)
    acc2 = lambda n, tt: 32 + 32 * (n >> 1) + 8 * tt + 4 * (n & 1) if n < 8 else 160 + 4 * tt
    def hstep(st, tt):
        if st < 4: return vr(HO + 16 * st + 4 * tt, 4)
        if st == 4: return vr(H8 + 4 * tt, 4)
        return ar(16 * (st - 5) + 4 * tt, 4)
    order = gemm2_order()
    last_of = {}
    for i, (st, n) in enumerate(order):
        marks.setdefault(f"step{st}", len(frs))
        frs.append((324 + i, [(vr(acc2(n, tt), 4), hstep(st, tt), st == 0) for tt in range(4)]))
        last_of[n] = len(frs)
    NB, LOOK = 6, 4
    bb = []; s_rd = Stream("rd"); s_dma = Stream("dma"); s_ep = Stream("ep"); s_ld = Stream("ld")
    G = lambda s: 4 * s
    cur_base = [0]
    def read(s):
        f = frs[s][0]
        a = ((f // 36) & 3) * RING + (f % 36) * 1024
        r = []
        if s < marks["pass0_end"]:
            if a < 65536: va, off = V_W, a
            else: va, off = V_T1, a - 65536
        else:
            base = ((f // 36) & 3) * RING
            if base != cur_base[0]:
                r.append(f"v_add_u32 v{V_W}, {base - cur_base[0] & 0xffffffff:#x}, v{V_W}")
                cur_base[0] = base
            va, off = V_W, a - base
        r.append(f"ds_read_b128 {vr(WB+4*(s%NB),4)}, v{va} offset:{off}")
        return r
    p.wait_vm(f"slot{npre-1}"); p("s_barrier")
    for s in range(LOOK): p.add(read(s))
    nsh = 1 << (5 - rr)
    p(f"s_and_b32 s{S_TMP2}, s{S_IDX}, {nsh-1}\ns_mul_i32 s{S_TMP2}, s{S_TMP2}, {576//nsh*128}\ns_add_u32 s{S_TMP2}, s{S_TMP2}, s{S_XS}")
    p.add(p1.check()); stamp(p, 1)
    l_nop = p.label("nopend")
    p(f"s_cmp_eq_u32 s0, 0\ns_cbranch_scc1 {l_nop}")
    p.add(signal_items(0, V_T0))
    p(f"s_mov_b32 s0, 0\n{l_nop}:")
    if OPT.get("touch", 0): p.add(touch_items(S_TMP2, min(576 // nsh, 128), 0, TMP + 20))
    if "xhit" in DBG: p(f"s_mul_i32 s{S_XS}, s{S_SL}, {486*1024}\ns_add_u32 s{S_XS}, s{S_XS}, {WF}")
    for c in range(OPT.get("xup", 2)): p.add(xload(c))
    p(f"""s_lshl_b32 s{S_TMP}, s{S_T}, 4
    v_add_u32 v{V_T0}, s{S_TMP}, v{V_LANE}
    v_lshlrev_b32 v{V_T0}, 3, v{V_T0}
    s_add_u32 s55, s{S_LB}, {ST}""")
    for cg in range(6):
        p(f"s_add_u32 s{S_TMP}, s55, {cg*16384}")
        p(f"buffer_load_dwordx2 {vr(TMP+2*cg,2)}, v{V_T0}, {WSR}, s{S_TMP} offen{ld}")

    p(f"v_add_u32 v{V_T1}, 0x10000, v{V_L16}")
    seen = {0, 1, 2}
    for k in range(npre, 4):
        for it in slot_dma(k): s_dma.add(it, 200, G(marks["pass0_end"]) - 100)
    bar_gap = {}
    for s, (f, ms) in enumerate(frs):
        for d, b, first in ms:
            bb.append(ins(f"{MF} {d}, {vr(WB+4*(s%NB),4)}, {b}, {'0' if first else d}"))
        t = s + LOOK
        if t < len(frs):
            k = frs[t][0] // 36
            g = G(s) + 1
            if k not in seen:
                seen.add(k)
                s_rd.add(WaitTag(f"slot{k}", "vm"), g, g)
                if k == 3: s_rd.add(Drain(vm=False), g, g)
                s_rd.add("s_barrier", g, g); bar_gap[k] = g
                for kk in ([4, 5, 6] if k == 3 else [k + 2] if k >= 5 else []):
                    if kk <= 13:
                        for j, it in enumerate(slot_dma(kk)): s_dma.add(it, g + 1, g + {4: 50, 5: 150, 6: 260}.get(kk, 120))
            for r in read(t): s_rd.add(r, g, g + 1)
    s_dma.add(f"s_and_b32 s{S_LASTSRC}, s{S_IDX}, 15", bar_gap[11] + 60)
    s_dma.add(f"s_mul_i32 s{S_LASTSRC}, s{S_LASTSRC}, {126*1024}", bar_gap[11] + 60)
    s_dma.add(f"s_add_u32 s{S_LASTSRC}, s{S_LASTSRC}, {WQ}", bar_gap[11] + 60)
    s_dma.add([ins(f"s_cmp_lg_u32 s{S_LF}, 0"), ins(f"s_cselect_b32 s{S_LASTSRC}, {WS_BYTES:#x}, s{S_LASTSRC}")], bar_gap[11] + 60)
    for k, f0, sm, cnt in ((11, 36, S_LASTM0, 5), (12, 54, S_M0, 9), (13, 90, S_M0, 9)):
        for j in range(cnt):
            if j % 4 == 0:
                s_dma.add(f"s_add_u32 s{S_TMP2}, s{sm}, {(f0+j)*1024}", bar_gap[k] + 1)
                s_dma.add(f"s_add_u32 m0, s{S_TMP2}, {LDS_WQ}", bar_gap[k] + 1)
                s_dma.add(f"s_add_u32 s{S_TMP2}, s{S_TMP2}, s{S_LASTSRC}", bar_gap[k] + 1)
            s_dma.add(f"buffer_load_dwordx4 v{V_L16}, {WSR}, s{S_TMP2} offen offset:{1024*(j&3)} lds", bar_gap[k] + 1, tag="wq2")
    for c in range(OPT.get("xup", 2), 18):
        for it in xload(c): s_ld.add(it, 0, 24 * c - 60)
    ga = G(marks["pass0_end"]) - 50
    A_, B_, M_, R_ = TMP + 12, TMP + 13, TMP + 14, TMP + 15
    s = lambda cg: TMP + 2 * cg
    e = [f"v_add_f32 v{M_}, v{s(0)}, v{s(1)}", f"v_add_f32 v{R_}, v{s(0)+1}, v{s(1)+1}"]
    for cg in range(2, 6): e += [f"v_add_f32 v{M_}, v{M_}, v{s(cg)}", f"v_add_f32 v{R_}, v{R_}, v{s(cg)+1}"]
    e += [f"v_mul_f32 v{M_}, 0xbae38e39, v{M_}"]
    for cg in range(6):
        e += [f"v_fmamk_f32 v{B_}, v{s(cg)}, 0x3c2aaaab, v{M_}",
              f"v_mul_f32 v{A_}, v{B_}, v{B_}" if cg == 0 else f"v_fmac_f32 v{A_}, v{B_}, v{B_}"]
    e += [f"v_fmac_f32 v{R_}, 0x42c00000, v{A_}", f"v_mov_b32 v{B_}, 0x3727c5ac",
          f"v_fmac_f32 v{B_}, 0x3ae38e39, v{R_}", f"v_rcp_f32 v{R_}, v{B_}",
          f"v_and_b32 v{A_}, 15, v{V_LANE}", f"v_lshlrev_b32 v{A_}, 2, v{A_}"]
    for tt in range(4):
        e += [f"ds_bpermute_b32 v{NM+tt}, v{A_}, v{M_} offset:{64*tt}", f"ds_bpermute_b32 v{RS2+tt}, v{A_}, v{R_} offset:{64*tt}"]
    for x in e: s_ep.add(x, ga, G(marks["pass0_end"]))
    seq = [0, 1, 8, 2, 3, 4, 5, 6, 7]
    csb = lambda tile: CS + 8 * (seq.index(tile) & 1)
    def cs_reads(tile, g):
        for mat in range(2):
            s_ep.add(f"ds_read_b128 {vr(csb(tile)+4*mat,4)}, v{V_CS} offset:{pos_of_tile(tile)*128+64*mat}", g)
    def epilogue(tile, g, dl):
        cb = csb(tile)
        for tt in range(4):
            gq, uq = bufs[tile][0] + 4 * tt, bufs[tile][1] + 4 * tt
            for r in range(4): s_ep.add(f"v_fmac_f32 v{gq+r}, v{cb+r}, v{NM+tt}", g, dl)
            for r in range(4): s_ep.add(f"v_fmac_f32 v{uq+r}, v{cb+4+r}, v{NM+tt}", g, dl)
            for r in range(4): s_ep.add(f"v_mul_f32 v{gq+r}, v{gq+r}, v{RS2+tt}", g, dl)
            for r in range(4): s_ep.add(f"v_mul_f32 v{gq+r}, v{gq+r}, v{uq+r}", g, dl)
            dst = H8 + 4 * tt if tile == 8 else HO + 16 * (tile >> 1) + 4 * tt + 2 * (tile & 1)
            for j in range(2): s_ep.add(f"v_cvt_pk_bf16_f32 v{dst+j}, v{gq+2*j}, v{gq+2*j+1}", g, dl)
            if tile == 8:
                if tt == 0: s_ep.add(f"s_add_u32 s66, s{S_H}, s65", g, dl)
                s_ep.add(f"buffer_store_dwordx2 {vr(dst,2)}, v{V_L8}, {WSR}, s66 offen offset:{512*tt}{sc}", g, dl, tag="h8")
            elif tile & 1:
                if tt == 0: s_ep.add(f"s_add_u32 s66, s{S_H}, {(tile>>1)*16*1024}", g, dl)
                s_ep.add(f"buffer_store_dwordx4 {vr(dst-2,4)}, v{V_L16}, {WSR}, s66 offen offset:{1024*tt}{sc}", g, dl, tag=f"h{tile>>1}")
    gp = lambda t: G(marks[f"pass{t}"]) if t < 8 else G(marks["g2"])
    cs_reads(0, gp(2) - 20); cs_reads(1, gp(2) - 20)
    epilogue(0, gp(2) + 6, gp(3)); cs_reads(8, gp(2)); epilogue(1, gp(2) + 6, gp(3))
    cs_reads(2, gp(2)); epilogue(8, gp(2) + 6, gp(4)); cs_reads(3, gp(3)); epilogue(2, gp(3) + 6, gp(4) + 40)
    for tile in range(3, 8):
        if tile < 7: cs_reads(tile + 1, gp(tile + 1) - 100)
        epilogue(tile, gp(tile + 1) + 6, gp(tile + 1) + (140 if tile < 7 else 60))
    s_sg = Stream("sig")
    def sig(stage, tag, g):
        it = signal_items(71, V_T0, sc)
        s_sg.add(f"s_add_u32 s71, s67, {32*stage}", g - 2, g)
        s_sg.add(it[0], g - 2, g); s_sg.add(it[1], g - 2, g)
        s_sg.add(WaitTag(tag, "vm"), g, g)
        s_sg.add(it[2], g + 1, g + 3, cost=2)
    g7 = G(marks["pass7"]); g2 = G(marks["g2"])
    sig(0, "h1", G(marks["pass5"]) + 60)
    sig(1, "h2", g7 - 4)
    sig(2, "h3", G(marks["step3"]) + 8)
    def addpoll(pl, g_issue, g_check, st=None):
        st = st or s_ld
        st.add(pl.issue(), g_issue, g_issue + 3)
        st.add(pl.check(), g_check, g_check + 1, cost=2)
    gw = G(marks["pass3"]) + 70
    s_ld.add(f"v_min_u32 v0, 17, v{V_LANE}", gw - 4); s_ld.add(f"v_lshlrev_b32 v0, 3, v0", gw - 4)
    s_ld.add(f"s_add_u32 s55, s{S_FW}, {36*8}", gw - 4)
    addpoll(Poll(p, V_T0, 0, 55, "pd"), gw, gw + 40)
    polls = [Poll(p, V_T0, 0, 55, f"p{k}") for k in range(3)]
    s_ld.add(f"v_and_b32 v0, 3, v{V_LANE}", g7 - 80); s_ld.add(f"v_lshlrev_b32 v0, 3, v0", g7 - 80)
    s_ld.add(f"s_mov_b32 s55, s{S_FL}", g7 - 80)
    addpoll(polls[0], g7 - 60, g7 - 20)
    ldh = ld
    need = lambda st: G(marks[f"step{st}"]) if st < 9 else G(marks["step9"]) + 8 * (st - 9)
    for tt in range(4):
        if tt == 0: s_ld.add(f"s_add_u32 s{S_TMP}, s{S_R}, s65", g7 - 18)
        s_ld.add(f"buffer_load_dwordx2 {vr(H8+4*tt+2,2)}, v{V_L8}, {WSR}, s{S_TMP} offen offset:{512*tt}{ldh}", g7 - 18, need(4) - 150)
    for j in range(2):
        s_ld.add(f"s_add_u32 s{S_TMP}, s{S_R+1+j}, s65", g7 + 8)
        for tt in range(4):
            s_ld.add(f"buffer_load_dwordx2 {ar(4*tt+2*j,2)}, v{V_L8}, {WSR}, s{S_TMP} offen offset:{512*tt}{ldh}", g7 + 8, need(5) - 150)
    def hload(st, g, dl):
        i = st - 6
        s_ld.add(f"s_add_u32 s{S_TMP}, s{S_R+i%3}, {(i//3)*16*1024}", g)
        for tt in range(4):
            s_ld.add(f"buffer_load_dwordx4 {hstep(st,tt)}, v{V_L16}, {WSR}, s{S_TMP} offen offset:{1024*tt}{ldh}", g, dl)
    for st in range(6, 12): hload(st, g7 + 8 * (st - 4), need(st) - 150)
    s_ld.add(f"s_add_u32 s55, s{S_FL}, 32", g2 + 50)
    addpoll(polls[1], g2 + 60, g2 + 100)
    for st in range(12, 15): hload(st, g2 + 101, need(st) - 100)
    gB = G(marks["step7"])
    s_ld.add(f"s_add_u32 s55, s{S_FL}, 64", gB - 50)
    addpoll(polls[2], gB - 40, gB)
    for st in range(15, 18): hload(st, gB + 1, need(st) - 60)
    s_o = Stream("out")
    gB += 4
    s_o.add(f"s_and_b32 s68, s{S_M}, 1", gB)
    s_o.add(f"s_mul_i32 s69, s68, {5*1024}", gB); s_o.add(f"s_add_u32 s69, s69, s{S_P}", gB)
    s_o.add(f"s_lshl_b32 s68, s68, 9", gB); s_o.add(f"s_add_u32 s68, s68, s{S_P}", gB)
    s_o.add(f"v_and_b32 v0, 15, v{V_LANE}", gB); s_o.add(f"v_lshlrev_b32 v0, 5, v0", gB)
    s_o.add(f"v_lshrrev_b32 v{V_CS}, 4, v{V_LANE}", gB); s_o.add(f"v_lshl_add_u32 v0, v{V_CS}, 3, v0", gB)
    for pr in range(4):
        g = G(last_of[2 * pr + 1]) + 4
        for tt in range(4):
            a = acc2(2 * pr, tt)
            for j in range(4): s_o.add(f"v_cvt_pk_bf16_f32 v{a+j}, v{a+2*j}, v{a+2*j+1}", g)
            s_o.add(f"s_add_u32 s70, s69, {tt*18*1024+pr*1024}", g)
            s_o.add(f"buffer_store_dwordx4 {vr(a,4)}, v{V_L16}, {WSR}, s70 offen{scp}", g, tag="pout")
    g = len(bb)
    for tt in range(4):
        a = acc2(8, tt)
        for j in range(2): s_o.add(f"v_cvt_pk_bf16_f32 v{a+j}, v{a+2*j}, v{a+2*j+1}", g)
        s_o.add(f"s_add_u32 s70, s68, {tt*18*1024+4*1024}", g)
        s_o.add(f"buffer_store_dwordx2 {vr(a,2)}, v0, {WSR}, s70 offen{scp}", g, tag="pout")
    if "nostore" in DBG: s_ep.q = [e for e in s_ep.q if not _isvm(e[2])]; s_o.q = [e for e in s_o.q if not _isvm(e[2])]
    if "nodma" in DBG: s_dma.q = []
    if "noep" in DBG: s_ep.q = [e for e in s_ep.q if getattr(e[2], "kind", "") != "valu"]
    if "nohld" in DBG: s_ld.q = [e for e in s_ld.q if not (e[0] > 500 and _isvm(e[2]) and "dwordx" in e[2].text)]
    s_st = Stream("stamp")
    if STAMP[0]:
        for k, mk in enumerate(("pass2", "pass3", "pass5", "pass7", "g2", "step3", "step6", "step9")):
            s_st.add(stamp_ins(2 + k), G(marks[mk]) + 2, G(marks[mk]) + 2)
    weave(p, bb, [s_rd, s_sg, s_ld, s_ep, s_o, s_dma, s_st], wait_gaps=lambda g: g % 4 == 0, quiet=lambda g: g2 + 4 <= g < g2 + 52)
    stamp(p, 10)
    p(f"""s_lshl_b32 s{S_TMP}, s{S_RB}, 2
    s_add_u32 s{S_TMP}, s{S_TMP}, s{S_WAVE}
    s_lshl_b32 s{S_TMP}, s{S_TMP}, 5
    s_add_u32 s{S_TMP}, s{S_TMP}, s{S_SL}
    s_lshl_b32 s{S_TMP}, s{S_TMP}, 3
    s_add_u32 s{S_TMP}, s{S_TMP}, s{S_LF}
    s_add_u32 s{S_TMP}, s{S_TMP}, {FPB}""")
    signal(p, S_TMP, V_T0, "pout", scp)
    stamp(p, 11)

def reduce_phase(p, l, lds_off, sc=" sc1", ld=" sc1", pre=None, w3=None):
    V_LANE = 1
    lh = 0 if OPT.get("reuse") else l
    VROW, VFR, VP, VLD, VX, VS, VO = 3, 4, 5, 16, 128, 152, 160
    if pre: pre()
    p(f"s_lshl_b32 s47, s{S_XCD}, 5\ns_add_u32 s47, s47, s{S_IDX}")
    ln_addr(p, 47, V_LANE, VROW, VFR, 8, 48)
    p(f"""v_lshrrev_b32 v8, 3, v{V_LANE}
    v_and_b32 v9, 7, v{V_LANE}
    s_and_b32 s48, s47, 1
    s_lshl_b32 s48, s48, 3
    v_add_u32 v9, s48, v9
    v_lshlrev_b32 v9, 4, v9
    v_bfe_u32 v10, v8, 1, 1
    v_and_b32 v11, 1, v8
    v_lshl_add_u32 v9, v11, 4, v9
    v_lshl_add_u32 v9, v10, 9, v9
    v_and_b32 v10, 3, v8
    v_lshlrev_b32 v10, 8, v10
    v_sub_u32 v9, v9, v10
    s_mul_i32 s48, s{S_WAVE}, 6
    v_lshrrev_b32 v8, 2, v8
    v_add_u32 v8, s48, v8""")
    for i in range(3):
        p(f"""v_add_u32 v10, {2*i}, v8
        v_cmp_eq_u32 vcc, 4, v10
        v_cmp_eq_u32 s[56:57], 13, v10
        s_or_b64 vcc, vcc, s[56:57]
        v_cndmask_b32 v10, 0, v9, vcc
        v_add3_u32 v{VP+i}, v{VFR}, v10, {0}
        v_add_u32 v{VP+i}, {2048*i}, v{VP+i}""")
    l_skip = p.label("w3a")
    p(f"s_cmp_eq_u32 s{S_WAVE}, 3\ns_cbranch_scc1 {l_skip}")
    p(f"s_mov_b32 s48, {LB(l)+X1}")
    for i in range(3):
        if i == 2: p("s_add_u32 s48, s48, 4096")
        p(f"buffer_load_dwordx4 {vr(VLD+36*i,4)}, v{VFR}, {WSR}, s48 offen offset:{2048*(i&1)}{ld}")
    p(f"""s_lshr_b32 s49, s47, 3
    s_lshl_b32 s49, s49, 8
    s_add_u32 s49, s49, {FPB+l*0x2000}
    v_and_b32 v10, 31, v{V_LANE}
    v_lshlrev_b32 v10, 3, v10""")
    p.add(Poll(p, 8, 10, 49, "pp").both()); stamp(p, 1)
    for q in range(8):
        p(f"s_mov_b32 s48, {LB(lh)+PB+q*XBYTES}")
        for i in range(3):
            p(f"buffer_load_dwordx4 {vr(VLD+36*i+4+4*q,4)}, v{VP+i}, {WSR}, s48 offen{ld}")
    for i in range(3): unpack8(p, VX + 8 * i, VLD + 36 * i)
    p(f"v_mov_b32 v12, 0x3f80\nv_mov_b32 v13, 0x3f800000")
    for q in range(8):
        for i in range(3):
            b = VLD + 36 * i + 4 + 4 * q
            for j in range(4):
                p(f"v_dot2c_f32_bf16 v{VX+8*i+2*j}, v{b+j}, v12\nv_dot2c_f32_bf16 v{VX+8*i+2*j+1}, v{b+j}, v13")
    if l == 0: stamp(p, 3)
    if l == 1: srd(p, S_O, P_OUT, XBYTES)
    else: p(f"s_add_u32 s{S_O}, s{P_WS}, {LB(0)+X2R}\ns_addc_u32 s{S_O+1}, s{P_WS+1}, 0\ns_mov_b32 s{S_O+2}, {XBYTES:#x}\ns_mov_b32 s{S_O+3}, 0x20000")
    for i in range(3):
        for j in range(4): p(f"v_cvt_pk_bf16_f32 v{VO+4*i+j}, v{VX+8*i+2*j}, v{VX+8*i+2*j+1}")
        p(f"buffer_store_dwordx4 {vr(VO+4*i,4)}, v{VROW}, s[{S_O}:{S_O+3}], 0 offen offset:{128*i}{sc if l == 0 else ''}")
    if l == 1:
        p(f"{l_skip}:")
        return
    for i in range(3): unpack8(p, VX + 8 * i, VO + 4 * i)
    ln_local_stats(p, VX, VS, VS + 1, 8)
    p(f"""v_and_b32 v8, 7, v{V_LANE}
    s_mul_i32 s46, s{S_WAVE}, 64
    s_add_u32 s46, s46, {lds_off}
    v_lshl_add_u32 v8, v8, 3, s46
    ds_write_b64 v8, v[{VS}:{VS+1}]""")
    p.drain(vm=False)
    if w3:
        l_join = p.label("join")
        p(f"s_branch {l_join}\n{l_skip}:")
        w3()
        p(f"{l_join}:\ns_barrier")
    else: p(f"{l_skip}:\ns_barrier")
    stamp(p, 4)
    l_skip2 = p.label("w3b")
    p(f"s_cmp_eq_u32 s{S_WAVE}, 3\ns_cbranch_scc1 {l_skip2}")
    p(f"v_and_b32 v8, 7, v{V_LANE}\nv_lshlrev_b32 v8, 3, v8\nv_add_u32 v8, {lds_off}, v8")
    for w in range(3): p(f"ds_read_b64 v[{VS+2*w}:{VS+2*w+1}], v8 offset:{64*w}")
    ln_finish(p, VX, VS, 16, 8)
    p(f"s_mov_b32 s46, {LB(l+1)+XN}")
    for i in range(3):
        if i == 2: p("s_add_u32 s46, s46, 4096")
        p(f"buffer_store_dwordx4 {vr(16+4*i,4)}, v{VFR}, {WSR}, s46 offen offset:{2048*(i&1)}{sc}")
    p(f"s_lshl_b32 s46, s47, 2\ns_add_u32 s46, s46, s{S_WAVE}\ns_lshl_b32 s46, s46, 3\ns_add_u32 s46, s46, {FX(l+1)}")
    stamp(p, 5)
    signal(p, 46, 8)
    p(f"{l_skip2}:")
```

```python
from common import *
from k_prep import *
from k_attn import MF, attn_bias, attn_part, wo_setup, wo_wdma, wo_pre, wo_main
from k_ffn import ffn_phase, ffn_pw_issue, reduce_phase, LDS_CS, LDS_WQ
V_LANE, V_L16 = 1, 2
LDS_EX = LDS_CS + 1152
LDS_LN = LDS_EX + 4 * 3072
LDS_HALO = 0
LDS_STG = 108 * 1024
LDS_TOTAL = 163840
S_AB, S_HP, S_T0, S_WSRC, S_WM0, S_XS, S_HS = 44, 45, 46, 47, 48, 51, 49
VTA, VTB, VTC, VG = 229, 238, 247, 220
A_UA, A_UB, A_UC = 144, 180, 216
S_UA, S_UB, S_UC = 3, 30, 31
SB, SBT = 58, 92

def LD(): return "" if OPT.get("plainld") else " sc1"

def qkv_setup(p, l):
    p(f"""s_lshr_b32 s{S_AB}, s{S_IDX}, 4
    s_lshl_b32 s52, s{S_XCD}, 1
    s_add_u32 s{S_AB}, s{S_AB}, s52
    s_and_b32 s{S_HP}, s{S_IDX}, 15
    s_mul_i32 s{S_WM0}, s{S_WAVE}, 21
    s_lshr_b32 s{S_WM0}, s{S_WM0}, 1
    s_lshl_b32 s{S_WM0}, s{S_WM0}, 10
    s_mul_i32 s{S_WSRC}, s{S_HP}, {126*1024}
    s_add_u32 s{S_WSRC}, s{S_WSRC}, s{S_WM0}
    s_add_u32 s{S_WSRC}, s{S_WSRC}, {WQ}""")

def qkv_wdma(g):
    r = []
    for j0 in range(0, 11, 4):
        r.append(ins(f"s_add_u32 m0, s{S_WM0}, {LDS_WQ+g*42*1024+j0*1024}"))
        r.append(ins(f"s_add_u32 s53, s{S_WSRC}, {g*42*1024+j0*1024}"))
        for j in range(j0, min(j0 + 4, 11)):
            r.append(ins(f"buffer_load_dwordx4 v{V_L16}, {WSR}, s53 offen offset:{1024*(j-j0)} lds", f"wq{g}"))
    return r

def qkv_main(p, l, extra=None, pre_signal=None, post_poll=None, trickle=None):
    V_W, V_HT, V_HN, V_XH = 3, 4, 5, 10
    ACC, HACC, WB, HB_ = 16, 80, 88, 144
    p(f"""s_lshl_b32 s{S_T0}, s{S_AB}, 3
    s_max_u32 s52, s{S_T0}, 1
    s_sub_u32 s52, s52, 1
    s_mul_i32 s{S_HS}, s52, {18*1024}
    s_mul_i32 s50, s{S_WAVE}, 9
    s_lshr_b32 s50, s50, 1
    s_lshl_b32 s50, s50, 10
    s_add_u32 s{S_HS}, s{S_HS}, s50
    s_add_u32 s{S_HS}, s{S_HS}, {LB(l)+XN}
    s_add_u32 s50, s50, {LDS_HALO}
    s_lshl_b32 s54, s52, 6
    s_lshl_b32 s52, s{S_WAVE}, 1
    s_add_u32 s{S_T0}, s{S_T0}, s52
    s_mul_i32 s{S_XS}, s{S_T0}, {18*1024}
    s_add_u32 s{S_XS}, s{S_XS}, {LB(l)+XN}
    s_lshl_b32 s55, s{S_T0}, 6""")
    p(f"""v_and_b32 v6, 3, v{V_LANE}
    v_min_u32 v6, 2, v6
    v_and_b32 v7, 12, v{V_LANE}
    v_add_lshl_u32 v8, v6, v7, 3
    v_add_u32 v8, s55, v8
    v_and_b32 v7, 4, v{V_LANE}
    v_add_lshl_u32 v9, v6, v7, 3
    v_add_u32 v9, s54, v9
    v_and_b32 v7, 16, v{V_LANE}
    v_cmp_eq_u32 vcc, 0, v7
    v_cndmask_b32 v8, v9, v8, vcc""")
    if l == 0:
        p(f"""v_subrev_u32 v7, 32, v{V_LANE}
        v_min_u32 v7, 17, v7
        s_lshl_b32 s52, s{S_HP}, 8
        s_add_u32 s52, s52, {FWQ-FX(0)}
        v_lshl_add_u32 v7, v7, 3, s52
        v_cmp_gt_u32 vcc, 32, v{V_LANE}
        v_cndmask_b32 v8, v7, v8, vcc""")
    else:
        p(f"s_min_u32 s52, s{S_IDX}, 23")
        sdiv(p, 52, 52, 6, 32)
        p(f"""s_lshl_b32 s53, s{S_XCD}, 2
        s_add_u32 s52, s52, s53
        s_lshl_b32 s52, s52, 2
        s_add_u32 s52, s52, s{S_WAVE}
        s_lshl_b32 s52, s52, 6
        v_and_b32 v7, 4, v{V_LANE}
        v_add_lshl_u32 v7, v6, v7, 3
        v_add_u32 v7, s52, v7
        v_cmp_gt_u32 vcc, 32, v{V_LANE}
        v_cndmask_b32 v8, v7, v8, vcc""")
    p(f"s_mov_b32 s52, {FX(l)}")
    acc = lambda tt, j: vr(ACC + 32 * tt + 4 * j, 4)
    wf = lambda c, t: vr(WB + 28 * (c & 1) + 4 * t, 4)
    hf = lambda h, j: vr(HB_ + 12 * (h & 1) + 4 * j, 4)
    xf = lambda tt, c: ar(72 * tt + 4 * c, 4)
    def reads(c):
        r = [f"v_add_u32 v{V_W}, {9*7168}, v{V_W}"] if c == 9 else []
        return r + [f"ds_read_b128 {wf(c, t)}, v{V_W} offset:{(c%9)*7168+1024*t}" for t in (0, 1, 2, 3, 6, 4, 5)]
    def hreads(h):
        r = [f"v_add_u32 v{v}, {9*7168}, v{v}" for v in (V_HT, V_HN)] if h == 9 else []
        return r + [f"ds_read_b128 {hf(h, 0)}, v{V_XH} offset:{1024*h}", f"ds_read_b128 {hf(h, 1)}, v{V_HT} offset:{(h%9)*7168}",
                    f"ds_read_b128 {hf(h, 2)}, v{V_HN} offset:{(h%9)*7168}"]
    p(f"""s_min_u32 s56, s{S_WAVE}, 2
    s_add_u32 s57, s56, 2
    s_add_u32 s56, s56, 4
    s_cmp_ge_u32 s{S_WAVE}, 2
    s_cselect_b32 s57, 6, s57
    s_lshl_b32 s57, s57, 10
    s_lshl_b32 s56, s56, 10
    v_add_u32 v{V_W}, {LDS_WQ}, v{V_L16}
    v_add_u32 v{V_HT}, s57, v{V_W}
    v_add_u32 v{V_HN}, s56, v{V_W}
    v_add_u32 v{V_XH}, {LDS_HALO}, v{V_L16}""")
    if l == 1:
        p.wait_vm("wq2"); p.drain(lg=False); p("s_barrier")
        p.add(reads(0))
    p("v_mov_b32 v11, v8\ns_mov_b32 s23, s52")
    px = Poll(p, 12, 11, 23, "px")
    p.add(px.issue())
    attn_bias(p, S_AB)
    p(f"s_mul_i32 s53, s{S_HP}, {18*128}\ns_add_u32 s53, s53, s{S_XS}")
    p.add(px.check()); stamp(p, 1)
    if post_poll: post_poll()
    if OPT.get("touch", 0): p.add(touch_items(53, 18, 11, 12))
    def xload(c):
        r = []
        for tt in range(2):
            if c % 4 == 0: r.append(ins(f"s_add_u32 s{54+tt}, s{S_XS}, {tt*18*1024+c*1024}"))
            r.append(ins(f"buffer_load_dwordx4 a[{72*tt+4*c}:{72*tt+4*c+3}], v{V_L16}, {WSR}, s{54+tt} offen offset:{1024*(c&3)}{LD()}"))
        return r
    def halo():
        r = []
        for g in range(2):
            r.append(ins(f"s_add_u32 m0, s50, {4096*g}")); r.append(ins(f"s_add_u32 s53, s{S_HS}, {4096*g}"))
            for j in range(4 if g == 0 else 1):
                r.append(ins(f"buffer_load_dwordx4 v{V_L16}, {WSR}, s53 offen offset:{1024*j}{LD()} lds", "halo"))
        return r
    sl = Stream("ld")
    if l == 0:
        p("s_barrier")
        p.add(qkv_wdma(0))
        for c in range(6): p.add(xload(c))
        p.add(qkv_wdma(1))
        late = halo() + sum((xload(c) for c in range(6, 12)), []) + qkv_wdma(2) + sum((xload(c) for c in range(12, 18)), [])
    else:
        nup = OPT.get("qup", 3)
        if not OPT.get("qnold"):
            for c in range(nup): p.add(xload(c))
        late = halo() + sum((xload(c) for c in range(nup, 18)), [])
    hs = {c: [] for c in range(18)}
    for h in range(18): hs[6 + h if h < 6 else 12 + (h - 6) // 2].append(h)
    if l == 0:
        p.wait_vm("wq0"); p("s_barrier")
        p.add(reads(0))
    bb = []; sr_ = Stream("rd"); sh = Stream("hrd")
    hpos = {}
    for c in range(18):
        g0 = len(bb)
        C = lambda d: "0" if c == 0 else d
        main = []
        for j, t in enumerate((0, 1, 2, 3, 6)):
            for tt in range(2): main.append(ins(f"{MF} {acc(tt, j)}, {wf(c, t)}, {xf(tt, c)}, {C(acc(tt, j))}"))
        for j, t in ((7, 6), (5, 4), (6, 5)):
            for tt in range(2): main.append(ins(f"{MF} {acc(tt, j)}, {xf(tt, c)}, {wf(c, t)}, {C(acc(tt, j))}"))
        def hm(h):
            hpos[h] = len(bb)
            z = lambda d: "0" if h == 0 else d
            bb.append(ins(f"{MF} {vr(HACC, 4)}, {hf(h, 1)}, {hf(h, 0)}, {z(vr(HACC, 4))}"))
            bb.append(ins(f"{MF} {vr(HACC+4, 4)}, {hf(h, 0)}, {hf(h, 2)}, {z(vr(HACC+4, 4))}"))
        if len(hs[c]) == 2:
            bb += main[:8]; hm(hs[c][0]); bb += main[8:]; hm(hs[c][1])
        else:
            bb += main
            for h in hs[c]: hm(h)
        if c + 1 < 18:
            tags = []
            if c + 1 == 6: tags = (["wq1"] if l == 0 else []) + ["halo"]
            if c + 1 == 12 and l == 0: tags = ["wq2"]
            for t in tags: sr_.add(WaitTag(t, "vm"), g0 + 1, g0 + 1)
            if tags:
                sr_.add("s_barrier", g0 + 1, g0 + 1)
                if c + 1 == 6: gbar = g0 + 2
            for k, r in enumerate(reads(c + 1)): sr_.add(r, g0 + 1 + 2 * k - (k > 0), g0 + 14)
    for h in range(18):
        e = max(gbar, hpos[h - 2] + 2 if h >= 2 else 0)
        for r in hreads(h): sh.add(r, e, hpos[h] - 5)
    sw_ = Stream("wt")
    for it in late: sl.add(it, 0)
    gstep = lambda c: next(i for i, m in enumerate(bb) if xf(0, c) in m.text)
    for e in sl.q:
        it = e[2]
        if it.kind == "vmem":
            if it.tag == "halo": e[1] = gstep(5) - 30
            elif it.tag == "wq2": e[1] = gstep(11) - 40
            else: e[1] = gstep((min(r[1] for r in it.dst) % 72) // 4) - 40
    if extra:
        for it in extra: sl.add(it, 0)
    if l == 0 and OPT.get("wtouch0", 0):
        pt = Poll(p, 14, 13, 23, "pt")
        for t in (f"s_lshl_b32 s56, s{S_IDX}, 2", f"s_add_u32 s56, s56, s{S_WAVE}", f"s_mul_i32 s56, s56, 41", f"s_mul_i32 s23, s56, {21846}",
                  f"s_lshr_b32 s23, s23, 20", f"v_and_b32 v13, 1, v{V_LANE}", f"v_add_u32 v13, s23, v13", f"v_min_u32 v13, 107, v13",
                  f"v_mul_u32_u24 v11, {magic(18, 108)}, v13", f"v_lshrrev_b32 v11, 16, v11", f"v_mad_u32_u24 v13, v11, 14, v13", f"v_lshlrev_b32 v13, 3, v13",
                  f"s_mov_b32 s23, {FWO}", f"s_lshl_b32 s56, s56, 7", f"s_add_u32 s56, s56, {WOS}"):
            sw_.add(t, 150)
        sw_.add(pt.issue(), 180); sw_.add(pt.check(), 230)
        for it in touch_items(56, 41, 11, 13, ""): sw_.add(it, 232)
    if l == 1 and OPT.get("wtouch", 1):
        rr = OPT.get("r", 2); nsl = 1 << (5 - rr); parts = 128 // nsl
        for t in (f"s_lshl_b32 s53, s{S_IDX}, 2", f"s_add_u32 s53, s53, s{S_WAVE}", f"s_mul_i32 s53, s53, {41*128}", f"s_add_u32 s53, s53, {WOS}"):
            sl.add(t, 0)
        for it in touch_items(53, 41, 11, 13, ""): sl.add(it, 0)
        for t in (f"s_and_b32 s53, s{S_XCD}, {(1 << rr) - 1}", f"s_lshl_b32 s53, s53, {5-rr}", f"s_and_b32 s54, s{S_IDX}, {nsl-1}",
                  f"s_add_u32 s53, s53, s54", f"s_mul_i32 s53, s53, {486*1024}", f"s_lshr_b32 s54, s{S_IDX}, {5-rr}", f"s_lshl_b32 s54, s54, 2",
                  f"s_add_u32 s54, s54, s{S_WAVE}", f"s_mul_i32 s54, s54, {1152//parts*128}", f"s_add_u32 s53, s53, s54", f"s_add_u32 s53, s53, {WF}"):
            sl.add(t, 0)
        for it in touch_items(53, min(1152 // parts, 128), 11, 14, ""): sl.add(it, 0)
    str_ = Stream("tr")
    if trickle:
        k = 0
        for it in trickle:
            str_.add(it, OPT.get("tr0", 40) + OPT.get("trs", 24) * k, OPT.get("tr0", 40) + OPT.get("trs", 24) * k + 4)
            if it.kind == "vmem": k += 1
    sst = Stream("st")
    if STAMP[0] and l == 1:
        for k, c in enumerate((1, 6, 12)): sst.add(stamp_ins(9 + k), gstep(c), gstep(c))
    if OPT.get("qnold") and l == 1: sl.q = [e for e in sl.q if not (e[2].kind == "vmem" and e[2].dst)]
    firsts = set(); seen_r = set()
    for g, mm in enumerate(bb):
        key = frozenset(r for r in mm.srcAB if r[0] == "v")
        prev = frozenset(r for r in bb[g-1].srcAB if r[0] == "v") if g else None
        if key != prev: firsts.add(g)
    weave(p, bb, [sr_, sh, sl, str_, sw_, sst], cap=2, vm_gap=4 if l == 0 else OPT.get("qgap", 4), wait_gaps=lambda g: g in firsts)
    stamp(p, 2)
    attn_part(p, l, S_T0, S_HP, LDS_EX, LOC("o"))
    stamp(p, 3)
    p(f"""s_lshl_b32 s52, s{S_AB}, 2
    s_add_u32 s52, s52, s{S_WAVE}
    s_lshl_b32 s52, s52, 4
    s_add_u32 s52, s52, s{S_HP}
    s_lshl_b32 s52, s52, 3
    s_add_u32 s52, s52, {FO(l)}""")
    if pre_signal: pre_signal()
    signal(p, 52, 8, "ost", LOC("o"))
    stamp(p, 4)

def wo_part(p, l, mid=None, after_poll=None, pwo=None, pre_signal=None):
    S_TB, S_CG, S_T = 44, 45, 46
    wo_setup(p, l)
    if pwo: p.add(pwo.check())
    wo_wdma(p)
    if mid: mid()
    p(f"""s_lshr_b32 s52, s{S_T}, 1
    s_lshl_b32 s52, s52, 7
    s_add_u32 s52, s52, {FO(l)}
    v_and_b32 v10, 15, v{V_LANE}
    v_lshlrev_b32 v10, 3, v10""")
    p(f"s_mul_i32 s53, s{S_CG}, {22*128}\ns_min_u32 s53, s53, {106*128}\ns_add_u32 s53, s53, s49")
    po = Poll(p, 12, 10, 52, "po")
    wo_pre(p, l, LD(), po.issue())
    p.add(po.check()); stamp(p, 5)
    if OPT.get("touch", 0): p.add(touch_items(53, 22, 11, 12))
    if after_poll: after_poll()
    wo_main(p, l, LOC("x"), LD())
    p(f"""s_lshl_b32 s52, s{S_T}, 3
    s_add_u32 s52, s52, s{S_CG}
    s_lshl_b32 s52, s52, 3
    s_add_u32 s52, s52, {F1B+l*0x2000}""")
    if pre_signal: pre_signal()
    signal(p, 52, 8, "x1st", LOC("x"))
    stamp(p, 8)

def phase0(p):
    VROW, VFR, VRAW, VX, VS, VO = 3, 4, 8, 20, 44, 52
    S_ROLE, S_U, S_ST1, S_ST2, S_F1, S_F2, ST1, ST2 = 55, 67, 56, 57, 0, 1, 44, 84
    srd(p, S_X, P_X, XBYTES)
    srd(p, S_A, P_WQKV, D * 3 * D * 2)
    p(f"v_mov_b32 v{VROW}, 0\nv_mov_b32 v{VFR}, 0")
    l_n = p.label("nonce")
    p(f"""v_mov_b32 v5, 0
    s_or_b32 s44, s2, s{S_WAVE}
    s_cmp_lg_u32 s44, 0
    s_cbranch_scc1 {l_n}
    s_memrealtime s[44:45]""")
    p.drain(vm=False)
    p(f"""v_mov_b32 v6, s44
    v_mov_b32 v7, s45
    s_mov_b64 exec, 1
    global_store_dwordx2 v5, v[6:7], s[{P_DBG}:{P_DBG+1}] sc1
    s_mov_b64 exec, -1
    {l_n}:""")
    stamp(p, 1)
    l_w3, l_u = p.label("w3"), p.label("uend")
    p(f"s_cmp_eq_u32 s{S_WAVE}, 3\ns_cbranch_scc1 {l_w3}")
    p(f"s_lshl_b32 s47, s{S_XCD}, 5\ns_add_u32 s47, s47, s{S_IDX}")
    ln_addr(p, 47, V_LANE, VROW, VFR, 6, 48)
    for i in range(3):
        p(f"buffer_load_dwordx4 v[{VRAW+4*i}:{VRAW+4*i+3}], v{VROW}, s[{S_X}:{S_X+3}], 0 offen offset:{128*i}{NT()}")
    p(f"s_branch {l_u}\n{l_w3}:")
    def qissue(stg, st, sf, srd_, tag):
        p(f"""s_lshr_b32 s{sf}, s{S_U}, 4
        s_and_b32 s{S_U}, s{S_U}, 15
        s_mul_i32 s{S_U}, s{S_U}, 18
        s_add_u32 s{S_U}, s{S_U}, s{sf}""")
        qkv_unit_issue(p, S_U, stg, V_LANE, 64, st, srd_, tag)
        p(f"s_lshl_b32 s{sf}, s{st}, 5\ns_add_u32 s{sf}, s{sf}, s{st+1}\ns_lshl_b32 s{sf}, s{sf}, 3\ns_add_u32 s{sf}, s{sf}, {FWQ}")
    l_w = p.label("uw")
    p(f"""s_mov_b32 s{S_ROLE}, 0
    s_mov_b32 s{S_ST1}, 0
    s_mov_b32 s{S_ST2}, 8192
    s_mul_i32 s{S_U}, s{S_XCD}, 36
    s_add_u32 s{S_U}, s{S_U}, s{S_IDX}""")
    qissue(S_ST1, ST1, S_F1, S_A, "au1")
    p(f"""s_cmp_ge_u32 s{S_IDX}, 4
    s_cbranch_scc1 {l_w}
    s_mov_b32 s{S_ROLE}, 1
    s_mul_i32 s{S_U}, s{S_XCD}, 36
    s_add_u32 s{S_U}, s{S_U}, s{S_IDX}
    s_add_u32 s{S_U}, s{S_U}, 32""")
    qissue(S_ST2, ST2, S_F2, S_A, "au2")
    p(f"""s_branch {l_u}
    {l_w}:
    s_cmp_ge_u32 s{S_IDX}, 18
    s_cbranch_scc1 {l_u}
    s_mul_i32 s{S_U}, s{S_XCD}, 14
    s_add_u32 s{S_U}, s{S_U}, s{S_IDX}
    s_sub_u32 s{S_U}, s{S_U}, 4
    s_cmp_ge_u32 s{S_U}, 108
    s_cbranch_scc1 {l_u}
    s_mov_b32 s{S_ROLE}, 2""")
    wo_unit_issue(p, S_U, S_ST2, V_LANE, 64, ST2, S_A, "au2")
    p(f"""s_lshl_b32 s{S_F2}, s{ST2}, 5
    s_add_u32 s{S_F2}, s{S_F2}, s{ST2+1}
    s_lshl_b32 s{S_F2}, s{S_F2}, 3
    s_add_u32 s{S_F2}, s{S_F2}, {FWO}
    {l_u}:""")
    stamp(p, 2)
    unit_pieces(p, V_LANE, VG, 64)
    def gu_number(s):
        p(f"s_lshr_b32 s52, s{s}, 5\ns_and_b32 s{s}, s{s}, 31\ns_mul_i32 s{s}, s{s}, 36\ns_add_u32 s{s}, s{s}, s52")
    p(f"""s_lshl_b32 s{S_UA}, s{S_XCD}, 7
    s_lshl_b32 s52, s{S_IDX}, 2
    s_add_u32 s53, s52, s{S_WAVE}
    s_add_u32 s{S_UA}, s{S_UA}, s53""")
    gu_number(S_UA)
    ffn_unit_setup(p, S_UA, SB, S_O, SBT); unit_table(p, SB, VG, VTA, 64)
    late = OPT.get("late", 1)
    if not late: p.add(unit_loads(S_O, VTA, A_UA))
    l_i, l_d, l_b, l_e = p.label("ui"), p.label("ud"), p.label("ub"), p.label("ue")
    p(f"""s_mov_b32 s{S_UB}, -1
    s_mov_b32 s{S_UC}, -1
    s_mul_i32 s54, s{S_XCD}, 72
    s_add_u32 s54, s54, 1152
    s_cmp_ge_u32 s{S_IDX}, 24
    s_cbranch_scc1 {l_i}
    s_cmp_lg_u32 s{S_WAVE}, 3
    s_cbranch_scc1 {l_e}
    s_add_u32 s{S_UB}, s54, s{S_IDX}
    s_add_u32 s{S_UB}, s{S_UB}, 48
    s_branch {l_b}
    {l_i}:
    s_sub_u32 s53, s53, 96
    s_add_u32 s{S_UC}, s54, s53
    s_add_u32 s{S_UB}, s{S_UC}, -16
    s_add_u32 s{S_UC}, s{S_UC}, 16
    s_cmp_ge_u32 s53, 16
    s_cbranch_scc1 {l_d}
    s_lshl_b32 s{S_UB}, s{S_XCD}, 4
    s_add_u32 s{S_UB}, s{S_UB}, s53
    s_add_u32 s{S_UB}, s{S_UB}, 1024""")
    gu_number(S_UB)
    p(f"{l_d}:\n{l_b}:\n{l_e}:")
    for s_u, ab, sd, vt in ((S_UB, A_UB, S_A, VTB), (S_UC, A_UC, S_X, VTC)):
        l_s = p.label("absent")
        if not late: sd, vt = S_O, VTA
        else:
            for i in range(9): p(f"v_mov_b32 v{vt+i}, 0")
        p(f"s_mov_b32 s{sd+2}, 0\ns_cmp_eq_u32 s{s_u}, -1\ns_cbranch_scc1 {l_s}")
        ffn_unit_setup(p, s_u, SB, sd, SBT); unit_table(p, SB, VG, vt, 64)
        p(f"{l_s}:")
        if not late: p.add(unit_loads(sd, vt, ab))
    pn = NoncePoll(p, 6, 5, 0, "pn")
    l2, l3, l4 = p.label("w3"), p.label("w3"), p.label("ln")
    p(f"s_cmp_eq_u32 s{S_WAVE}, 3\ns_cbranch_scc1 {l2}")
    for i in range(3): unpack8(p, VX + 8 * i, VRAW + 4 * i)
    ln_local_stats(p, VX, VS, VS + 1, 64)
    p(f"""v_and_b32 v64, 7, v{V_LANE}
    s_mul_i32 s46, s{S_WAVE}, 64
    s_add_u32 s46, s46, {LDS_LN}
    v_lshl_add_u32 v64, v64, 3, s46
    ds_write_b64 v64, v[{VS}:{VS+1}]""")
    p.drain(vm=False)
    p(f"{l2}:\ns_barrier"); stamp(p, 3)
    p.add(pn.issue())
    p(f"s_cmp_eq_u32 s{S_WAVE}, 3\ns_cbranch_scc1 {l3}")
    p(f"v_and_b32 v64, 7, v{V_LANE}\nv_lshlrev_b32 v64, 3, v64\nv_add_u32 v64, {LDS_LN}, v64")
    for w in range(3): p(f"ds_read_b64 v[{VS+2*w}:{VS+2*w+1}], v64 offset:{64*w}")
    ln_finish(p, VX, VS, VO, 64)
    p(f"s_mov_b32 s46, {LB(0)+XN}")
    for i in range(3):
        if i == 2: p("s_add_u32 s46, s46, 4096")
        p(f"buffer_store_dwordx4 v[{VO+4*i}:{VO+4*i+3}], v{VFR}, {WSR}, s46 offen offset:{2048*(i&1)} sc1")
    p(f"""s_lshl_b32 s{S_F1}, s47, 2
    s_add_u32 s{S_F1}, s{S_F1}, s{S_WAVE}
    s_lshl_b32 s{S_F1}, s{S_F1}, 3
    s_add_u32 s{S_F1}, s{S_F1}, {FX(0)}
    s_mov_b32 s{S_ROLE}, 0
    s_branch {l4}
    {l3}:""")
    qkv_unit_finish(p, S_ST1, V_LANE, V_L16, 72, 64, ST1, " sc1", "au1")
    l_fw = p.label("fw")
    p(f"s_cmp_eq_u32 s{S_ROLE}, 0\ns_cbranch_scc1 {l4}\ns_cmp_eq_u32 s{S_ROLE}, 2\ns_cbranch_scc1 {l_fw}")
    qkv_unit_finish(p, S_ST2, V_LANE, V_L16, 100, 64, ST2, " sc1", "au2")
    p(f"s_branch {l4}\n{l_fw}:")
    wo_unit_finish(p, S_ST2, V_LANE, V_L16, 100, 64, ST2, " sc1", "au2")
    p(f"{l4}:")
    stamp(p, 4)
    p.add(pn.check())
    p(f"v_readfirstlane_b32 s{S_NONCE}, v6\nv_readfirstlane_b32 s{S_NONCE+1}, v7")
    signal(p, S_F1, 6)
    stamp(p, 5)
    l5 = p.label("norole")
    p(f"s_cmp_eq_u32 s{S_ROLE}, 0\ns_cbranch_scc1 {l5}")
    p.add(signal_items(S_F2, 6)[2])
    p(f"{l5}:")

def finish_unit(p, s_u, abase, defer=False):
    p(f"s_mul_i32 s55, s{S_WAVE}, 9216\ns_add_u32 s55, s55, {LDS_STG}")
    return unit_finish(p, s_u, SB, SBT, 55, abase, V_LANE, V_L16, 180 if defer else 72, 64, defer=defer)

def idle0(p, pw):
    if OPT.get("bc", 0): p.add(unit_loads(S_A, VTB, A_UB) + unit_loads(S_X, VTC, A_UC))
    finish_unit(p, S_UB, A_UB)
    p(f"s_mov_b32 s44, s{SB+U_FLAG}")
    stores = finish_unit(p, S_UC, A_UC, defer=True)
    signal(p, 44, 8)
    p.add(stores)
    p(f"s_mov_b32 s0, s{SB+U_FLAG}")
    ffn_pw_issue(p, pw)

def gen_main(name):
    Poll.ool.clear()
    p = Prog(); end = f"{name}_end"
    OPT.setdefault("codepf", 1)
    prologue(p, end, code_pf=1, pf_reg=219, pf_end=f"{name}_last")
    p(f"s_mov_b32 s{S_LB}, {LB(0)}\ns_mov_b32 s{S_LF}, 0")
    phase0(p)
    stamp_flush(p, 6, 6, light=True)
    qkv_setup(p, 0)
    early = OPT.get("early", 1)
    extra = None
    mid = OPT.get("mid", 1)
    if OPT.get("late", 1):
        early = 0; OPT["early"] = 0
        extra = unit_loads(S_A, VTB, A_UB) + unit_loads(S_X, VTC, A_UC)
        if mid:
            OPT["early"] = 1
            p.add(unit_loads(S_O, VTA, A_UA))
            if OPT.get("bc", 0):
                extra = None
                l_nb = p.label("nob")
                p(f"s_cmp_ge_u32 s{S_IDX}, 24\ns_cbranch_scc1 {l_nb}\ns_cmp_lg_u32 s{S_WAVE}, 3\ns_cbranch_scc1 {l_nb}")
                p.add(unit_loads(S_A, VTB, A_UB))
                p(f"{l_nb}:")
            trickle = finish_unit(p, S_UA, A_UA, defer=True)
            p(f"s_mov_b32 s0, s{SB+U_FLAG}")
        else: extra = unit_loads(S_O, VTA, A_UA) + extra
    if early:
        finish_unit(p, S_UA, A_UA)
        p(f"s_mov_b32 s0, s{SB+U_FLAG}")
    pwo = Poll(p, 14, 13, 23, "pwo")
    def pre_signal():
        sdiv(p, 53, S_IDX, 6, 32)
        p(f"s_mul_i32 s53, s53, 6\ns_sub_u32 s53, s{S_IDX}, s53\ns_lshl_b32 s53, s53, 8\ns_add_u32 s23, s53, {FWO}")
        lane_min8(p, 13, V_LANE, 18)
        p.add(pwo.issue())
    qkv_main(p, 0, extra, pre_signal, (lambda: p.add(signal_items(0, 6))) if early else None, trickle if mid else None)
    if mid: p.add(signal_items(0, 8)[2])
    l_idle0, l_ffn, l_red1, l_next = p.label("idle0"), p.label("ffn"), p.label("red1"), p.label("next")
    p(f"s_cmp_ge_u32 s{S_IDX}, 24\ns_cbranch_scc1 {l_idle0}")
    pw = Poll(p, 12, 14, 1, "pw")
    if early or mid: wo_part(p, 0, pwo=pwo, pre_signal=lambda: ffn_pw_issue(p, pw))
    else: wo_part(p, 0, lambda: finish_unit(p, S_UA, A_UA), lambda: p.add(signal_items(SB + U_FLAG, 12)), pwo)
    stamp_flush(p, 0, 9, light=True)
    p(f"s_mov_b32 s0, 0\ns_cmp_lg_u32 s{S_WAVE}, 3\ns_cbranch_scc1 {l_ffn}")
    finish_unit(p, S_UB, A_UB)
    p(f"s_mov_b32 s0, s{SB+U_FLAG}\ns_branch {l_ffn}\n{l_idle0}:")
    idle0(p, pw)
    p(f"{l_ffn}:")
    stamp(p, 0)
    ffn_phase(p, pw, sc=LOC("h"), ld=LD())
    stamp_flush(p, 1, 12, light=True, s_row=S_LF)
    p(f"s_cmp_lg_u32 s{S_LF}, 0\ns_cbranch_scc1 {l_red1}")
    stamp(p, 0)
    def w3():
        p(f"""s_and_b32 s44, s{S_IDX}, 15
        s_mul_i32 s44, s44, {126*1024}
        s_add_u32 s44, s44, {WQ}""")
        for j in range(36):
            if j % 4 == 0: p(f"s_mov_b32 m0, {LDS_WQ+j*1024}\ns_add_u32 s45, s44, {j*1024}")
            p(f"buffer_load_dwordx4 v{V_L16}, {WSR}, s45 offen offset:{1024*(j&3)} lds", tag="wq2")
    reduce_phase(p, 0, LDS_LN, ld=LD(), pre=lambda: p("s_barrier"), w3=w3)
    qkv_setup(p, 1)
    stamp(p, 2); stamp_flush(p, 2, 6, light=True); stamp(p, 0)
    qkv_main(p, 1)
    p(f"s_cmp_ge_u32 s{S_IDX}, 24\ns_cbranch_scc1 {l_next}")
    wo_part(p, 1)
    stamp_flush(p, 3, 12, light=True)
    p(f"{l_next}:")
    if STAMP[0]: p.drain(vm=False)
    p(f"s_mov_b32 s{S_LB}, {LB(1)}\ns_mov_b32 s{S_LF}, 0x2000\ns_branch {l_ffn}\n{l_red1}:")
    stamp(p, 0)
    reduce_phase(p, 1, LDS_LN, ld=LD())
    stamp(p, 2); p.drain(); stamp(p, 3); stamp_flush(p, 5, 4)
    p(f"{end}:\ns_endpgm")
    for pl in Poll.ool: pl.slow_path(p)
    p.add(Raw(f"{name}_last:\n    s_endpgm"))
    t = p.finalize()
    print(name, p.stats)
    return kernel_text(name, t, vgpr=512, accum=256), (256, 256, LDS_TOTAL)
```

```python
from common import *
def NT(): return " nt" if OPT.get("nt", 1) else ""

def shuffle_dma(p, srd_, ppr, ndma, s_rowbase, s_grs, s_hrs, s_rs, s_lds, v_lane, vt, tag, qkv=False):
    for i in range(ndma):
        p(f"""v_add_u32 v{vt}, {64*i}, v{v_lane}
        v_mul_u32_u24 v{vt+1}, {magic(ppr, 64*ndma)}, v{vt}
        v_lshrrev_b32 v{vt+1}, 16, v{vt+1}
        v_mul_u32_u24 v{vt+2}, {ppr}, v{vt+1}
        v_sub_u32 v{vt}, v{vt}, v{vt+2}""")
        if qkv:
            p(f"""v_mul_u32_u24 v{vt+2}, {magic(5, 16)}, v{vt}
            v_lshrrev_b32 v{vt+2}, 16, v{vt+2}
            v_mul_u32_u24 v{vt+2}, {1152-80}, v{vt+2}
            v_lshl_add_u32 v{vt}, v{vt}, 4, v{vt+2}""")
        else:
            p(f"v_lshlrev_b32 v{vt}, 4, v{vt}")
        p(f"""v_lshrrev_b32 v{vt+2}, 3, v{vt+1}
        v_mul_lo_u32 v{vt+2}, v{vt+2}, s{s_grs}
        v_bfe_u32 v{vt+3}, v{vt+1}, 2, 1
        v_mul_lo_u32 v{vt+3}, v{vt+3}, s{s_hrs}
        v_and_b32 v{vt+1}, 3, v{vt+1}
        v_mul_lo_u32 v{vt+1}, v{vt+1}, s{s_rs}
        v_add3_u32 v{vt}, v{vt}, v{vt+2}, v{vt+3}
        v_add3_u32 v{vt}, v{vt}, v{vt+1}, s{s_rowbase}
        s_add_u32 m0, s{s_lds}, {1024*i}""")
        p(f"buffer_load_dwordx4 v{vt}, s[{srd_}:{srd_+3}], 0 offen{NT()} lds", tag=tag)

def tr_base(p, vd, v_lane, stride, s_lds, vt):
    p(f"""v_lshrrev_b32 v{vd}, 4, v{v_lane}
    v_bfe_u32 v{vt}, v{v_lane}, 2, 2
    v_lshl_add_u32 v{vd}, v{vd}, 3, v{vt}
    v_mul_u32_u24 v{vd}, {stride}, v{vd}
    v_add_u32 v{vd}, s{s_lds}, v{vd}
    v_and_b32 v{vt}, 3, v{v_lane}""")

def tr_frag(p, vf, va, off, stride):
    p(f"ds_read_b64_tr_b16 v[{vf}:{vf+1}], v{va} offset:{off}")
    p(f"ds_read_b64_tr_b16 v[{vf+2}:{vf+3}], v{va} offset:{off+4*stride}")

U_ROW, U_GRS, U_HRS, U_RS, U_PB, U_T8, U_SL, U_CS, U_FLAG, U_D0, U_D4, U_D8, U_S1, U_S2 = range(14)

def ffn_unit_setup(p, s_u, sb, ssrd, st):
    L = p.label
    l_d, l_done = L("ud"), L("udone")
    p(f"s_cmp_ge_u32 s{s_u}, 1152\ns_cbranch_scc1 {l_d}")
    sdiv(p, sb + U_SL, s_u, 36, 1152)
    p(f"""s_mul_i32 s{st}, s{sb+U_SL}, 36
    s_sub_u32 s{st}, s{s_u}, s{st}
    s_and_b32 s{st+1}, s{st}, 1
    s_lshr_b32 s{st+2}, s{st}, 1""")
    if ssrd is not None:
        p(f"""s_cmp_eq_u32 s{st+1}, 0
        s_cselect_b32 s{ssrd}, s{P_WG}, s{P_WU}
        s_cselect_b32 s{ssrd+1}, s{P_WG+1}, s{P_WU+1}
        s_mul_i32 s{sb+U_ROW}, s{st+2}, {32*9216}
        s_mul_i32 s{st+3}, s{sb+U_SL}, 288
        s_add_u32 s{sb+U_ROW}, s{sb+U_ROW}, s{st+3}
        s_mov_b32 s{sb+U_GRS}, {8*9216}
        s_mov_b32 s{sb+U_HRS}, {4*9216}
        s_mov_b32 s{sb+U_RS}, 9216""")
    else:
        p(f"""s_mov_b32 s{sb+U_PB}, 0
        s_mov_b32 s{sb+U_T8}, 256
        s_mul_i32 s{st+3}, s{sb+U_SL}, 486
        s_add_u32 s{st+3}, s{st+3}, s{st}
        s_lshl_b32 s{st+3}, s{st+3}, 10
        s_add_u32 s{sb+U_D8}, s{st+3}, {WF}
        s_add_u32 s{sb+U_D0}, s{sb+U_D8}, {36*1024}
        s_add_u32 s{sb+U_D4}, s{sb+U_D8}, {180*1024}
        s_mov_b32 s{sb+U_S1}, {36*1024}
        s_mov_b32 s{sb+U_S2}, {72*1024}
        s_lshl_b32 s{st+3}, s{sb+U_SL}, 1
        s_add_u32 s{st+3}, s{st+3}, s{st+1}
        s_mul_i32 s{st+3}, s{st+3}, 18
        s_add_u32 s{st+3}, s{st+3}, s{st+2}
        s_mul_i32 s{st+3}, s{st+3}, 576
        s_add_u32 s{sb+U_CS}, s{st+3}, {CSP}
        s_mov_b32 s{sb+U_FLAG}, s{st}""")
    p(f"s_branch {l_done}\n{l_d}:\ns_sub_u32 s{st}, s{s_u}, 1152")
    sdiv(p, sb + U_SL, st, 18, 576)
    p(f"""s_mul_i32 s{st+1}, s{sb+U_SL}, 18
    s_sub_u32 s{st}, s{st}, s{st+1}
    s_and_b32 s{st+1}, s{sb+U_SL}, 3
    s_and_b32 s{st+2}, s{st+1}, 1""")
    if ssrd is not None:
        l_sh, l_rm, l_rows = L("ush"), L("urm"), L("urows")
        p(f"""s_mov_b32 s{ssrd}, s{P_WD}
        s_mov_b32 s{ssrd+1}, s{P_WD+1}
        s_mov_b32 s{sb+U_RS}, 1152
        s_cmp_eq_u32 s{st+2}, 0
        s_mov_b32 s{st+5}, {-144*1152}
        s_cselect_b32 s{st+5}, {144*1152}, s{st+5}
        s_mov_b32 s{sb+U_GRS}, {8*1152}
        s_mov_b32 s{sb+U_HRS}, {4*1152}
        s_cmp_ge_u32 s{st}, 4
        s_cbranch_scc1 {l_sh}
        s_mov_b32 s{st+3}, s{st+1}
        s_lshl_b32 s{st+4}, s{st}, 5
        s_branch {l_rows}
        {l_sh}:
        s_cmp_ge_u32 s{st}, 6
        s_cbranch_scc1 {l_rm}
        s_sub_u32 s{st+3}, s{st}, 4
        s_lshl_b32 s{st+3}, s{st+3}, 1
        s_xor_b32 s{st+3}, s{st+3}, s{st+1}
        s_mov_b32 s{st+4}, 128
        s_mov_b32 s{sb+U_GRS}, {4*1152}
        s_mov_b32 s{sb+U_HRS}, s{st+5}
        s_branch {l_rows}
        {l_rm}:
        s_sub_u32 s{st+3}, s{st}, 6""")
        sdiv(p, st + 4, st + 3, 3, 12)
        p(f"""s_mul_i32 s{st+5}, s{st+4}, 3
        s_sub_u32 s{st+3}, s{st+3}, s{st+5}
        s_add_u32 s{st+3}, s{st+3}, 1
        s_xor_b32 s{st+3}, s{st+3}, s{st+1}
        s_lshl_b32 s{st+4}, s{st+4}, 5
        {l_rows}:
        s_mul_i32 s{st+3}, s{st+3}, 144
        s_add_u32 s{st+3}, s{st+3}, s{st+4}
        s_lshr_b32 s{st+4}, s{sb+U_SL}, 2
        s_mul_i32 s{st+4}, s{st+4}, 576
        s_add_u32 s{st+3}, s{st+3}, s{st+4}
        s_mul_i32 s{st+3}, s{st+3}, 1152
        s_mul_i32 s{st+4}, s{st+1}, 288
        s_add_u32 s{sb+U_ROW}, s{st+3}, s{st+4}""")
    else:
        p(f"""s_mov_b32 s{sb+U_CS}, 0
        s_lshl_b32 s{sb+U_PB}, s{st+2}, 5
        s_cmp_eq_u32 s{st+2}, 0
        s_cselect_b32 s{sb+U_T8}, 256, 0
        s_add_u32 s{sb+U_FLAG}, s{st}, 36
        s_mul_i32 s{st+3}, s{sb+U_SL}, 486
        s_add_u32 s{st+3}, s{st+3}, 324
        s_lshl_b32 s{st+3}, s{st+3}, 10
        s_add_u32 s{st+3}, s{st+3}, {WF}""")
        idx = {k: i for i, k in enumerate(gemm2_order())}
        l_b, l_c = L("ub"), L("uc")
        def dests(st0, nsteps):
            s1, s2 = idx[(st0, 1)] - idx[(st0, 0)], idx[(st0, 2)] - idx[(st0, 0)]
            p(f"s_sub_u32 s{st+4}, s{st}, {st0}\ns_mov_b32 s{sb+U_S1}, {s1*1024}\ns_mov_b32 s{sb+U_S2}, {s2*1024}")
            for n, r in ((0, U_D0), (4, U_D4), (8, U_D8)):
                sd = idx[(st0 + 1, n)] - idx[(st0, n)]
                p(f"""s_mul_i32 s{st+5}, s{st+4}, {sd*1024}
                s_add_u32 s{st+5}, s{st+5}, {idx[(st0, n)]*1024}
                s_add_u32 s{sb+r}, s{st+5}, s{st+3}""")
                for k in range(nsteps):
                    for m in range(n, min(n + 4, 9) if n < 8 else 9):
                        assert idx[(st0 + k, m)] == idx[(st0, n)] + k * sd + (m & 1) * s1 * (n < 8) + ((m >> 1) & 1) * s2 * (n < 8)
        p(f"s_cmp_ge_u32 s{st}, 3\ns_cbranch_scc1 {l_b}")
        dests(0, 3); p(f"s_branch {l_done}\n{l_b}:")
        p(f"s_cmp_ge_u32 s{st}, 9\ns_cbranch_scc1 {l_c}")
        dests(3, 6); p(f"s_branch {l_done}\n{l_c}:")
        dests(9, 9)
    p(f"{l_done}:")
    if ssrd is not None: p(f"s_mov_b32 s{ssrd+2}, {D*F*2:#x}\ns_mov_b32 s{ssrd+3}, 0x20000")
    else:
        p(f"""s_lshl_b32 s{st+3}, s{sb+U_SL}, 6
        s_add_u32 s{st+3}, s{st+3}, s{sb+U_FLAG}
        s_lshl_b32 s{st+3}, s{st+3}, 3
        s_add_u32 s{sb+U_FLAG}, s{st+3}, {FW}""")

def unit_pieces(p, v_lane, vg, vt):
    for i in range(9):
        p(f"""v_add_u32 v{vt}, {64*i}, v{v_lane}
        v_mul_u32_u24 v{vt+1}, {magic(18, 576)}, v{vt}
        v_lshrrev_b32 v{vt+1}, 16, v{vt+1}
        v_mul_u32_u24 v{vt+2}, 18, v{vt+1}
        v_sub_u32 v{vt}, v{vt}, v{vt+2}
        v_lshl_or_b32 v{vg+i}, v{vt}, 8, v{vt+1}""")

def unit_table(p, sb, vg, vtab, vt):
    for i in range(9):
        p(f"""v_bfe_u32 v{vt}, v{vg+i}, 3, 2
        v_mul_u32_u24 v{vt}, s{sb+U_GRS}, v{vt}
        v_bfe_u32 v{vt+1}, v{vg+i}, 2, 1
        v_mul_lo_u32 v{vt+1}, v{vt+1}, s{sb+U_HRS}
        v_and_b32 v{vt+2}, 3, v{vg+i}
        v_mul_u32_u24 v{vt+2}, s{sb+U_RS}, v{vt+2}
        v_add3_u32 v{vt}, v{vt}, v{vt+1}, v{vt+2}
        v_lshrrev_b32 v{vt+1}, 8, v{vg+i}
        v_lshl_add_u32 v{vt}, v{vt+1}, 4, v{vt}
        v_add_u32 v{vtab+i}, s{sb+U_ROW}, v{vt}""")

def unit_loads(srd_, vtab, abase):
    return [ins(f"buffer_load_dwordx4 a[{abase+4*i}:{abase+4*i+3}], v{vtab+i}, s[{srd_}:{srd_+3}], 0 offen{NT()}") for i in range(9)]

def unit_finish(p, s_u, sb, st, s_lds, abase, v_lane, v_l16, vf, vt, sc=" sc1", defer=False):
    va, vb = vt, vt + 1
    p(f"v_add_u32 v{va}, s{s_lds}, v{v_l16}")
    for i in range(9): p(f"ds_write_b128 v{va}, a[{abase+4*i}:{abase+4*i+3}] offset:{1024*i}")
    ffn_unit_setup(p, s_u, sb, None, st)
    tr_base(p, va, v_lane, 288, s_lds, vt + 2)
    p(f"""v_lshl_add_u32 v{vb}, v{vt+2}, 3, v{va}
    v_add_u32 v{vb}, s{sb+U_T8}, v{vb}
    v_lshl_add_u32 v{va}, v{vt+2}, 4, v{va}
    v_add_u32 v{va}, s{sb+U_PB}, v{va}""")
    for n in range(9):
        if n < 8: tr_frag(p, vf + 4 * n, va, 64 * (n >> 1) + 8 * (n & 1), 288)
        else: tr_frag(p, vf + 4 * n, vb, 0, 288)
    stores = []
    for n in range(9):
        base = sb + (U_D0 if n < 4 else U_D4 if n < 8 else U_D8)
        if n < 8 and n & 3:
            if (n & 3) == 1: stores.append(ins(f"s_add_u32 s{st}, s{base}, s{sb+U_S1}"))
            elif (n & 3) == 2: stores.append(ins(f"s_add_u32 s{st}, s{base}, s{sb+U_S2}"))
            else: stores.append(ins(f"s_add_u32 s{st}, s{st}, s{sb+U_S1}"))
            base = st
        stores.append(ins(f"buffer_store_dwordx4 v[{vf+4*n}:{vf+4*n+3}], v{v_l16}, s[{S_WS}:{S_WS+3}], s{base} offen{sc}"))
    if not defer: p.add(stores)
    l_skip = p.label("nocs")
    p(f"s_cmp_eq_u32 s{sb+U_CS}, 0\ns_cbranch_scc1 {l_skip}")
    vo, vd = vt + 4, (vf + 36 if not defer else 72)
    for j in range(4): p(f"v_mov_b32 v{vo+j}, {BF16_ONES:#x}")
    for n in range(9):
        p(f"v_mfma_f32_16x16x32_bf16 v[{vd+4*n}:{vd+4*n+3}], v[{vf+4*n}:{vf+4*n+3}], v[{vo}:{vo+3}], 0")
    p(f"""v_and_b32 v{vt+2}, 15, v{v_lane}
    v_add_u32 v{vt+3}, 1, v{vt+2}
    v_cmp_gt_u32 vcc, 8, v{vt+2}
    v_and_b32 v{va}, 48, v{v_lane}
    v_cndmask_b32 v{vt+3}, 0, v{vt+3}, vcc
    v_lshlrev_b32 v{vt+3}, 6, v{vt+3}
    v_add_u32 v{vt+3}, v{vt+3}, v{va}""")
    for n in range(1, 9):
        p(f"v_cmp_eq_u32 vcc, {n}, v{vt+2}")
        for j in range(4): p(f"v_cndmask_b32 v{vd+j}, v{vd+j}, v{vd+4*n+j}, vcc")
    p(f"""s_mov_b32 exec_lo, 0x01ff01ff
    s_mov_b32 exec_hi, 0x01ff01ff
    buffer_store_dwordx4 v[{vd}:{vd+3}], v{vt+3}, s[{S_WS}:{S_WS+3}], s{sb+U_CS} offen{sc}
    s_mov_b64 exec, -1
    {l_skip}:""")
    return stores

def qkv_unit_issue(p, s_u, s_lds, v_lane, vt, st, srd_=S_A, tag="au"):
    sdiv(p, st, s_u, 18, 288)
    p(f"""s_mul_i32 s{st+1}, s{st}, 18
    s_sub_u32 s{st+1}, s{s_u}, s{st+1}
    s_mul_i32 s{st+2}, s{st}, 72
    s_and_b32 s{st+3}, s{st+2}, 8
    s_and_b32 s{st+2}, s{st+2}, -16
    s_mul_i32 s{st+4}, s{st+1}, {32*3456}
    s_add_u32 s{st+2}, s{st+2}, s{st+4}
    s_mov_b32 s{st+4}, {3456-240}
    s_mul_i32 s{st+7}, s{s_u}, {7*1024}""")
    srd(p, srd_, P_WQKV, D * 3 * D * 2)
    for i in range(8):
        p(f"""v_add_u32 v{vt}, {64*i}, v{v_lane}
        v_mul_u32_u24 v{vt+1}, {magic(15, 512)}, v{vt}
        v_lshrrev_b32 v{vt+1}, 16, v{vt+1}
        v_mad_i32_i24 v{vt+2}, v{vt+1}, -15, v{vt}
        v_mul_u32_u24 v{vt+2}, {magic(5, 16)}, v{vt+2}
        v_lshrrev_b32 v{vt+2}, 16, v{vt+2}
        v_mul_u32_u24 v{vt+2}, {1152-80}, v{vt+2}
        v_mad_u32_u24 v{vt+1}, v{vt+1}, s{st+4}, v{vt+2}
        v_lshl_add_u32 v{vt}, v{vt}, 4, v{vt+1}
        s_add_u32 m0, s{s_lds}, {1024*i}""")
        p(f"buffer_load_dwordx4 v{vt}, s[{srd_}:{srd_+3}], s{st+2} offen{NT()} lds", tag=tag)

def qkv_unit_finish(p, s_lds, v_lane, v_l16, vf, vt, st, sc="", tag="au"):
    va, vb = vt, vt + 1
    tr_base(p, va, v_lane, 240, s_lds, vt + 2)
    p(f"""v_add_u32 v{va}, s{st+3}, v{va}
    v_and_b32 v{vt+3}, 1, v{vt+2}
    v_mul_u32_u24 v{vt+3}, 160, v{vt+3}
    v_lshrrev_b32 v{vb}, 1, v{vt+2}
    v_mul_u32_u24 v{vb}, 80, v{vb}
    v_add3_u32 v{vb}, v{vb}, v{vt+3}, v{va}
    v_cmp_eq_u32 vcc, 3, v{vt+2}
    v_cndmask_b32 v{vb}, v{vb}, v{va}, vcc
    v_lshl_add_u32 v{va}, v{vt+2}, 3, v{va}""")
    p.wait_vm(tag)
    for t in range(6): tr_frag(p, vf + 4 * t, va, 80 * (t >> 1) + 40 * (t & 1), 240)
    tr_frag(p, vf + 24, vb, 32, 240)
    p(f"v_and_b32 v{vt+2}, 15, v{v_lane}\nv_cmp_gt_u32 vcc, 12, v{vt+2}")
    for j in range(4): p(f"v_cndmask_b32 v{vf+24+j}, 0, v{vf+24+j}, vcc")
    p(f"s_add_u32 s{st+7}, s{st+7}, {WQ}")
    for t in range(7):
        if t == 4: p(f"s_add_u32 s{st+7}, s{st+7}, 4096")
        p(f"buffer_store_dwordx4 v[{vf+4*t}:{vf+4*t+3}], v{v_l16}, s[{S_WS}:{S_WS+3}], s{st+7} offen offset:{(t&3)*1024}{sc}", tag="st0")

def qkv_unit(p, s_u, s_lds, v_lane, v_l16, vf, vt, st, sc=""):
    qkv_unit_issue(p, s_u, s_lds, v_lane, vt, st); qkv_unit_finish(p, s_lds, v_lane, v_l16, vf, vt, st, sc)

def wo_unit_issue(p, s_u, s_lds, v_lane, vt, st, srd_=S_A, tag="au"):
    sdiv(p, st, s_u, 18, 108)
    p(f"""s_mul_i32 s{st+1}, s{st}, 18
    s_sub_u32 s{st+1}, s{s_u}, s{st+1}
    s_mul_i32 s{st+2}, s{st+1}, {36*1152}
    s_sub_u32 s{st+3}, s{st+1}, 16
    s_mul_i32 s{st+3}, s{st+3}, {288*1152}
    s_add_u32 s{st+3}, s{st+3}, {16*1152}
    s_cmp_lt_u32 s{st+1}, 16
    s_cselect_b32 s{st+2}, s{st+2}, s{st+3}
    s_mov_b32 s{st+4}, {72*1152}
    s_mov_b32 s{st+5}, {36*1152}
    s_cselect_b32 s{st+4}, {4*1152}, s{st+4}
    s_cselect_b32 s{st+5}, {20*1152}, s{st+5}
    s_mul_i32 s{st+3}, s{st}, 192
    s_add_u32 s{st+2}, s{st+2}, s{st+3}
    s_mov_b32 s{st+6}, 1152
    s_mul_i32 s{st+7}, s{s_u}, {6*1024}""")
    srd(p, srd_, P_WO, D * D * 2)
    shuffle_dma(p, srd_, 12, 6, st + 2, st + 4, st + 5, st + 6, s_lds, v_lane, vt, tag)

def wo_unit_finish(p, s_lds, v_lane, v_l16, vf, vt, st, sc="", tag="au"):
    va = vt
    tr_base(p, va, v_lane, 192, s_lds, vt + 2)
    p(f"v_lshl_add_u32 v{va}, v{vt+2}, 4, v{va}")
    p.wait_vm(tag)
    for t in range(6): tr_frag(p, vf + 4 * t, va, 64 * (t >> 1) + 8 * (t & 1), 192)
    p(f"s_add_u32 s{st+7}, s{st+7}, {WOS}")
    for t in range(6):
        if t == 4: p(f"s_add_u32 s{st+7}, s{st+7}, 4096")
        p(f"buffer_store_dwordx4 v[{vf+4*t}:{vf+4*t+3}], v{v_l16}, s[{S_WS}:{S_WS+3}], s{st+7} offen offset:{(t&3)*1024}{sc}", tag="st0")

def wo_unit(p, s_u, s_lds, v_lane, v_l16, vf, vt, st, sc=""):
    wo_unit_issue(p, s_u, s_lds, v_lane, vt, st); wo_unit_finish(p, s_lds, v_lane, v_l16, vf, vt, st, sc)

def ln_addr(p, s_tg, v_lane, v_row, v_frag, vt, st):
    p(f"""v_and_b32 v{vt}, 7, v{v_lane}
    v_lshrrev_b32 v{vt+1}, 3, v{v_lane}
    s_lshl_b32 s{st}, s{s_tg}, 3
    v_add_u32 v{v_row}, s{st}, v{vt}
    v_mul_u32_u24 v{v_row}, 1152, v{v_row}
    s_mul_i32 s{st}, s{S_WAVE}, {24*16}
    v_lshl_add_u32 v{v_row}, v{vt+1}, 4, v{v_row}
    v_add_u32 v{v_row}, s{st}, v{v_row}
    s_lshr_b32 s{st}, s{s_tg}, 1
    s_mul_i32 s{st}, s{st}, {18*1024}
    s_and_b32 s{st+1}, s{s_tg}, 1
    s_lshl_b32 s{st+1}, s{st+1}, 7
    s_add_u32 s{st}, s{st}, s{st+1}
    s_mul_i32 s{st+1}, s{S_WAVE}, {6*1024}
    s_add_u32 s{st}, s{st}, s{st+1}
    v_lshlrev_b32 v{vt}, 4, v{vt}
    v_lshl_add_u32 v{vt}, v{vt+1}, 8, v{vt}
    v_add_u32 v{v_frag}, s{st}, v{vt}""")

def ln_local_stats(p, vx, v_sum, v_m2, vt):
    p(f"v_add_f32 v{v_sum}, v{vx}, v{vx+1}\nv_add_f32 v{vt}, v{vx+2}, v{vx+3}")
    for j in range(4, 24, 2):
        p(f"v_add_f32 v{v_sum}, v{v_sum}, v{vx+j}\nv_add_f32 v{vt}, v{vt}, v{vx+j+1}")
    p(f"v_add_f32 v{v_sum}, v{v_sum}, v{vt}")
    xsum8(p, v_sum); xsum_g(p, v_sum, vt)
    p(f"v_mul_f32 v{vt+1}, {1/192!r}, v{v_sum}".replace(repr(1/192), "0x3baaaaab"))
    p(f"v_sub_f32 v{vt}, v{vx}, v{vt+1}\nv_mul_f32 v{v_m2}, v{vt}, v{vt}")
    for j in range(1, 24):
        p(f"v_sub_f32 v{vt+2+(j&1)}, v{vx+j}, v{vt+1}\nv_fmac_f32 v{v_m2}, v{vt+2+(j&1)}, v{vt+2+(j&1)}")
    xsum8(p, v_m2); xsum_g(p, v_m2, vt)

def ln_finish(p, vx, vs, vo, vt):
    mean, a, b = vt, vt + 1, vt + 2
    p(f"""v_add_f32 v{mean}, v{vs}, v{vs+2}
    v_add_f32 v{mean}, v{mean}, v{vs+4}
    v_mul_f32 v{mean}, 0x3ae38e39, v{mean}
    v_add_f32 v{a}, v{vs+1}, v{vs+3}
    v_add_f32 v{a}, v{a}, v{vs+5}""")
    for w in range(3):
        p(f"""v_mul_f32 v{b}, 0x3baaaaab, v{vs+2*w}
        v_sub_f32 v{b}, v{b}, v{mean}
        v_mul_f32 v{b}, v{b}, v{b}
        v_fmac_f32 v{a}, 0x43400000, v{b}""")
    p(f"v_mul_f32 v{a}, 0x3ae38e39, v{a}")
    round_bf16(p, a)
    p(f"v_add_f32 v{a}, 0x3727c5ac, v{a}")
    round_bf16(p, a)
    p(f"v_sqrt_f32 v{a}, v{a}")
    round_bf16(p, a)
    p(f"v_rcp_f32 v{a}, v{a}")
    round_bf16(p, mean)
    for j in range(0, 24, 2):
        p(f"""v_sub_f32 v{vx+j}, v{vx+j}, v{mean}
        v_sub_f32 v{vx+j+1}, v{vx+j+1}, v{mean}
        v_cvt_pk_bf16_f32 v{b}, v{vx+j}, v{vx+j+1}
        v_lshlrev_b32 v{vx+j}, 16, v{b}
        v_and_b32 v{vx+j+1}, 0xffff0000, v{b}
        v_mul_f32 v{vx+j}, v{vx+j}, v{a}
        v_mul_f32 v{vx+j+1}, v{vx+j+1}, v{a}
        v_cvt_pk_bf16_f32 v{vo+j//2}, v{vx+j}, v{vx+j+1}""")
```

```python
from fw import *
from layout import *

S_WS = 4
S_X  = 8
S_A  = 12
S_O  = 16
S_WAVE = 20
S_XCD = 21
S_IDX = 22
S_PTR = 24
P_X, P_WQKV, P_WO, P_WG, P_WU, P_WD, P_OUT, P_DBG, P_WS = 24, 26, 28, 32, 34, 36, 38, 40, 42
BF16_ONES = 0x3F803F80

def srd(p, s, ptr, nbytes):
    p(f"""s_mov_b32 s{s}, s{ptr}
    s_mov_b32 s{s+1}, s{ptr+1}
    s_mov_b32 s{s+2}, {nbytes:#x}
    s_mov_b32 s{s+3}, 0x20000""")

OPT = {}
STAMP = [False]
STAMPS = 0xF000000
def stamp_ins(k, base=72): return ins(f"{'s_memtime' if STAMP[0] == 2 else 's_memrealtime'} s[{base+2*k}:{base+2*k+1}]")
def stamp(p, k, base=72):
    if STAMP[0]: p.add(stamp_ins(k, base))
def stamp_flush(p, kidx, n, base=72, light=False, s_row=None):
    if not STAMP[0]: return
    l = p.label("nostamp")
    p.drain(vm=not light)
    p(f"s_cmp_lg_u32 s{S_WAVE}, {OPT.get('sw', 0) if kidx not in (2, 5) else 0}\ns_cbranch_scc1 {l}\ns_lshl_b32 s23, s2, 7\ns_add_u32 s23, s23, {STAMPS+kidx*256*128}")
    if s_row is not None:
        p(f"s_cmp_lg_u32 s{s_row}, 0\ns_cselect_b32 s96, {3*256*128}, 0\ns_add_u32 s23, s23, s96")
    p("s_mov_b64 exec, 1")
    for k in range(n):
        p(f"v_mov_b32 v8, s{base+2*k}\nv_mov_b32 v9, s{base+2*k+1}\nbuffer_store_dwordx2 v[8:9], off, s[{S_WS}:{S_WS+3}], s23 offset:{8*k}")
    if OPT.get("dbgstamp") is not None:
        l2 = p.label("nodbg")
        sel = {0: ((0, 2), (1, 3), (4, 4), (8, 5)), 1: ((1, 6), (11, 7)), 2: ((2, 8),), 3: ((4, 9), (8, 10)), 5: ((3, 13),), 6: ()}[kidx]
        p(f"s_cmp_lg_u32 s2, {OPT['dbgstamp']}\ns_cbranch_scc1 {l2}")
        if s_row is not None: p(f"s_cmp_lg_u32 s{s_row}, 0\ns_cselect_b32 s96, 20, 0\nv_mov_b32 v9, s96")
        else: p("v_mov_b32 v9, 0")
        for k, slot in sel:
            p(f"s_sub_u32 s96, s{base+2*k}, s98\nv_mov_b32 v8, s96\nglobal_store_dword v9, v8, s[{P_DBG}:{P_DBG+1}] offset:{4*slot}")
        p(f"{l2}:")
    p("s_mov_b64 exec, -1")
    if not light: p.drain()
    p(f"{l}:")

def prologue(p, end_label, nwg=256, v_lane=1, v_l16=2, sbase=72, code_pf=0, pf_reg=4, pf_end=None):
    p(f"s_cmp_ge_u32 s2, {nwg}\ns_cbranch_scc1 {end_label}")
    stamp(p, 0, sbase)
    p(f"""    s_load_dwordx16 s[24:39], s[0:1], 0
    s_load_dwordx4 s[40:43], s[0:1], 64
    v_lshrrev_b32 v{v_lane}, 6, v0
    s_and_b32 s{S_XCD}, s2, 7
    v_readfirstlane_b32 s{S_WAVE}, v{v_lane}
    s_lshr_b32 s{S_IDX}, s2, 3
    v_and_b32 v{v_lane}, 63, v0
    v_lshlrev_b32 v{v_l16}, 4, v{v_lane}""")
    if OPT.get("codepf") and code_pf:
        lpc = p.label("pc")
        p(f"""s_lshl_b32 s23, s{S_IDX}, 2
        s_add_u32 s23, s23, s{S_WAVE}
        s_mul_i32 s23, s23, 5
        v_add_lshl_u32 v{pf_reg}, v{v_lane}, s23, 7
        s_getpc_b64 s[{S_O}:{S_O+1}]
        {lpc}:
        v_min_u32 v{pf_reg}, {pf_end or end_label}-{lpc}, v{pf_reg}
        s_mov_b64 exec, 31
        global_load_dword v{pf_reg}, v{pf_reg}, s[{S_O}:{S_O+1}]
        s_mov_b64 exec, -1""")
    p.drain(vm=False)
    srd(p, S_WS, P_WS, WS_BYTES)

def magic(d, n):
    m = (65536 + d - 1) // d
    assert all((x * m) >> 16 == x // d for x in range(n)), (d, n)
    return m

def sdiv(p, sq, sx, d, n):
    p(f"s_mul_i32 s{sq}, s{sx}, {magic(d, n)}\ns_lshr_b32 s{sq}, s{sq}, 16")

def unpack8(p, dst, src):
    for j in range(4):
        p(f"v_lshlrev_b32 v{dst+2*j}, 16, v{src+j}")
        p(f"v_and_b32 v{dst+2*j+1}, 0xffff0000, v{src+j}")

def round_bf16(p, v, tmp=None):
    p(f"v_cvt_pk_bf16_f32 v{v}, v{v}, v{v}\nv_lshlrev_b32 v{v}, 16, v{v}")

def xsum_g(p, v, t):
    p(f"""v_mov_b32 v{t}, v{v}
    v_permlane16_swap_b32 v{v}, v{t}
    v_add_f32 v{v}, v{v}, v{t}
    v_mov_b32 v{t}, v{v}
    v_permlane32_swap_b32 v{v}, v{t}
    v_add_f32 v{v}, v{v}, v{t}""")

def xsum8(p, v):
    p(f"v_add_f32_dpp v{v}, v{v}, v{v} row_ror:8 row_mask:0xf bank_mask:0xf")

WSR = f"s[{S_WS}:{S_WS+3}]"
S_NONCE, S_LB, S_LF, S_CNT = 98, 100, 101, 97
SPIN = 0x40000

class Poll:
    ool = []
    def __init__(self, p, v_flag, v_addr, s_off, name, alt=None):
        self.v, self.va, self.so, self.alt = v_flag, v_addr, s_off, alt
        self.slow, self.back, self.lp = p.label(name + "_slow"), p.label(name + "_back"), p.label(name + "_spin")
        Poll.ool.append(self)
    def ld(self): return f"buffer_load_dwordx2 v[{self.v}:{self.v+1}], v{self.va}, {WSR}, s{self.so} offen sc1"
    def cmp(self): return f"v_cmp_eq_u64 vcc, s[{S_NONCE}:{S_NONCE+1}], v[{self.v}:{self.v+1}]"
    def issue(self): return ins(self.ld())
    def check(self):
        r = [ins(self.cmp()), ins("s_cmp_eq_u64 vcc, exec"), ins(f"s_cbranch_scc0 {self.slow}", "ool"), Label(self.back)]
        if self.alt is not None and OPT.get("pipe", 0):
            r.append(Phantom({("v", x) for x in (self.v, self.v + 1, self.alt, self.alt + 1, self.alt + 2, self.alt + 3)}))
        return r
    def both(self): return [self.issue()] + self.check()
    def slow_path(self, p):
        if self.alt is None or not OPT.get("pipe", 0):
            p.add(Raw(f"""{self.slow}:
    s_mov_b32 s{S_CNT}, {SPIN:#x}
{self.lp}:
    s_sleep {OPT.get("bo", 16)}
    {self.ld()}
    s_waitcnt vmcnt(0)
    {self.cmp()}
    s_sub_u32 s{S_CNT}, s{S_CNT}, 1
    s_cbranch_scc1 {self.back}
    s_cmp_eq_u64 vcc, exec
    s_cbranch_scc1 {self.back}
    s_branch {self.lp}"""))
            return
        regs = [self.v, self.alt, self.alt + 2]
        def ld(r): return self.ld().replace(f"v[{self.v}:{self.v+1}]", f"v[{r}:{r+1}]")
        def cmp(r): return self.cmp().replace(f"v[{self.v}:{self.v+1}]", f"v[{r}:{r+1}]")
        t = f"{self.slow}:\n    s_mov_b32 s{S_CNT}, {SPIN:#x}\n    {ld(regs[0])}\n    s_sleep 3\n    {ld(regs[1])}\n    s_sleep 3\n{self.lp}:\n"
        for k in range(3):
            t += f"""    {ld(regs[(k+2)%3])}
    s_waitcnt vmcnt(2)
    {cmp(regs[k])}
    s_cmp_eq_u64 vcc, exec
    s_cbranch_scc1 {self.lp}_done
"""
        t += f"""    s_sub_u32 s{S_CNT}, s{S_CNT}, 1
    s_cbranch_scc0 {self.lp}
{self.lp}_done:
    s_branch {self.back}"""
        p.add(Raw(t))

class NoncePoll(Poll):
    def ld(self): return f"global_load_dwordx2 v[{self.v}:{self.v+1}], v{self.va}, s[{P_DBG}:{P_DBG+1}] sc1"
    def cmp(self): return f"v_cmp_ne_u64 vcc, 0, v[{self.v}:{self.v+1}]"

def LOC(kind):
    return "" if kind in str(OPT.get("loc", "")) else " sc1"

def signal_items(s_addr, vt, sc=" sc1"):
    return [ins(f"v_mov_b32 v{vt}, s{S_NONCE}"), ins(f"v_mov_b32 v{vt+1}, s{S_NONCE+1}"),
            [ins("s_mov_b64 exec, 1"), ins(f"buffer_store_dwordx2 v[{vt}:{vt+1}], off, {WSR}, s{s_addr}{sc}"), ins("s_mov_b64 exec, -1")]]

def signal(p, s_addr, vt, tag=None, sc=" sc1"):
    it = signal_items(s_addr, vt, sc)
    p.add(it[:2])
    if tag: p.wait_vm(tag)
    else: p.drain(lg=False)
    p.add(it[2])

def lane_min8(p, vd, v_lane, n):
    p(f"v_min_u32 v{vd}, {n-1}, v{v_lane}\nv_lshlrev_b32 v{vd}, 3, v{vd}")

def touch_items(s_base, n, va, vd, sc=" sc1"):
    r = [ins(f"v_min_u32 v{va}, {min(n, 64)-1}, v1"), ins(f"v_lshlrev_b32 v{va}, 7, v{va}"),
         ins(f"buffer_load_dword v{vd}, v{va}, {WSR}, s{s_base} offen{sc}")]
    if n > 64:
        r += [ins(f"v_add_u32 v{va}, {(n-64)*128}, v{va}"), ins(f"buffer_load_dword v{vd+1}, v{va}, {WSR}, s{s_base} offen{sc}")]
    return r
```

```python
import re

def regs_of(tok):
    tok = tok.strip()
    if tok.startswith("-"):
        tok = tok[1:]
    if tok.startswith("abs(") or tok.startswith("|"):
        tok = tok.strip("|").replace("abs(", "").rstrip(")")
    m = re.fullmatch(r"([vas])(\d+)", tok)
    if m:
        return {(m.group(1), int(m.group(2)))}
    m = re.fullmatch(r"([vas])\[(\d+):(\d+)\]", tok)
    if m:
        return {(m.group(1), i) for i in range(int(m.group(2)), int(m.group(3)) + 1)}
    if tok == "vcc":
        return {("s", "vcc")}
    if tok in ("exec", "exec_lo", "exec_hi"):
        return {("s", "exec")}
    if tok == "m0":
        return {("s", "m0")}
    return set()

TRANS = ("v_exp_f32", "v_log_f32", "v_rcp_f32", "v_rsq_f32", "v_sqrt_f32", "v_sin_f32", "v_cos_f32")

class I:
    __slots__ = ("text", "op", "kind", "dst", "src", "tag", "srcC", "srcAB", "data", "maybe", "passes")
    def __init__(self, text, tag=None):
        self.text = text.strip()
        self.tag = tag
        self.maybe = None
        body = self.text.split(";")[0].strip()
        parts = body.split(None, 1)
        op = parts[0]
        self.op = op
        rest = parts[1] if len(parts) > 1 else ""
        ops = [x.strip() for x in rest.split(",")] if rest else []
        mods = []
        if ops:
            last = ops[-1].split()
            ops[-1] = last[0] if last else ""
            mods = last[1:]
        R = [regs_of(o) for o in ops]
        U = lambda l: set().union(*l) if l else set()
        self.srcC = set(); self.srcAB = set(); self.data = set(); self.passes = 0
        if op.startswith("v_mfma"):
            self.kind = "mfma"; self.dst = R[0]; self.srcAB = R[1] | R[2]; self.srcC = R[3]; self.src = self.srcAB | self.srcC
            self.passes = {"v_mfma_f32_16x16x32_bf16": 4, "v_mfma_f32_32x32x16_bf16": 8, "v_mfma_f32_16x16x4_f32": 8}[op]
        elif op.startswith("v_cmp"):
            self.kind = "valu"; self.dst = set(R[0]); self.src = U(R[1:])
            if op.startswith("v_cmpx"): self.dst |= {("s", "exec")}
        elif op.startswith("v_permlane"):
            self.kind = "valu"; self.dst = R[0] | R[1]; self.src = R[0] | R[1]
        elif op.startswith(("v_fmac", "v_dot2c", "v_pk_fmac")):
            self.kind = "valu"; self.dst = R[0]; self.src = U(R)
        elif op.startswith(("v_add_co", "v_sub_co", "v_addc_co", "v_subb_co")):
            self.kind = "valu"; self.dst = R[0] | R[1]; self.src = U(R[2:])
        elif op.startswith("v_writelane"):
            self.kind = "valu"; self.dst = R[0]; self.src = U(R)
        elif op.startswith("v_"):
            self.kind = "valu"; self.dst = R[0] if R else set(); self.src = U(R[1:])
            if "row_" in rest or "quad_perm" in rest or "dpp" in op:
                self.src |= R[0]
        elif op.startswith(("ds_read", "ds_bpermute", "ds_permute", "ds_swizzle")):
            self.kind = "ds"; self.dst = R[0]; self.src = U(R[1:])
        elif op.startswith("ds_write"):
            self.kind = "ds"; self.dst = set(); self.src = U(R); self.data = U(R[1:])
        elif op.startswith("buffer_load") or op.startswith("global_load"):
            self.kind = "vmem"
            if "lds" in mods or "_lds_" in op:
                self.dst = set(); self.src = U(R) | {("s", "m0")}
            else:
                self.dst = R[0]; self.src = U(R[1:])
        elif op.startswith("buffer_store"):
            self.kind = "vmem"; self.dst = set(); self.src = U(R); self.data = R[0]
        elif op.startswith("global_store"):
            self.kind = "vmem"; self.dst = set(); self.src = U(R); self.data = R[1]
        elif op.startswith(("buffer_atomic", "global_atomic")):
            self.kind = "vmem"; self.src = U(R); self.dst = R[0] if "sc0" in mods else set()
        elif op.startswith(("buffer_inv", "buffer_wbl2")):
            self.kind = "vmem"; self.dst = set(); self.src = set()
        elif op.startswith(("s_load", "s_memtime", "s_memrealtime")):
            self.kind = "smem"; self.dst = R[0]; self.src = U(R[1:])
        elif op in ("s_waitcnt", "s_barrier", "s_nop", "s_endpgm", "s_setprio", "s_sleep", "s_branch") or op.startswith("s_cbranch"):
            self.kind = "ctl"; self.dst = set(); self.src = set()
            if op.startswith("s_cbranch_scc"): self.src = {("s", "scc")}
            if op.startswith("s_cbranch_vcc"): self.src = {("s", "vcc")}
            if op.startswith("s_cbranch_exec"): self.src = {("s", "exec")}
        elif op.startswith("s_cmp") or op.startswith("s_bitcmp"):
            self.kind = "salu"; self.dst = {("s", "scc")}; self.src = U(R)
        elif "saveexec" in op:
            self.kind = "salu"; self.dst = R[0] | {("s", "exec"), ("s", "scc")}; self.src = U(R[1:]) | {("s", "exec")}
        elif op.startswith("s_"):
            self.kind = "salu"; self.dst = set(R[0]); self.src = U(R[1:])
            if op.startswith(("s_addk", "s_mulk")): self.src |= R[0]
            if op.startswith(("s_addc", "s_subb", "s_cselect")): self.src |= {("s", "scc")}
            if not op.startswith(("s_mov", "s_mul", "s_cselect", "s_getreg", "s_getpc")): self.dst |= {("s", "scc")}
        else:
            raise ValueError("unknown instruction: " + text)
    def states(self):
        if self.op == "s_nop":
            return int(self.text.split()[1]) + 1
        return 1

class Label:
    def __init__(self, name): self.name = name
class Raw:
    def __init__(self, text): self.text = text
class WaitTag:
    def __init__(self, tag, cnt): self.tag = tag; self.cnt = cnt
class Drain:
    def __init__(self, vm=True, lg=True): self.vm = vm; self.lg = lg
class Forget:
    def __init__(self, vm=True, lg=True): self.vm = vm; self.lg = lg
class Phantom:
    def __init__(self, regs): self.regs = regs
class Cond:
    def __init__(self, begin): self.begin = begin

def hazard_need(prev, cur):
    n = 0
    pv = {r for r in prev.dst if r[0] in "va"}
    ps = {r for r in prev.dst if r[0] == "s"}
    if prev.kind == "valu":
        if cur.kind == "mfma" and (pv & cur.src): n = max(n, 2)
        if cur.kind == "mfma" and ("s", "exec") in ps: n = max(n, 4)
        if cur.kind == "vmem" and (ps & cur.src): n = max(n, 5)
        if cur.kind == "valu" and (ps & cur.src):
            n = max(n, 4 if cur.op.startswith(("v_readlane", "v_writelane")) else 2)
        if cur.kind == "valu" and ("s", "exec") in ps and cur.op.startswith(("v_readlane", "v_readfirstlane", "v_writelane", "v_permlane")): n = max(n, 4)
        if cur.kind == "valu" and (pv & cur.src):
            if cur.op.startswith(("v_readlane", "v_readfirstlane")): n = max(n, 1)
            if cur.op.startswith("v_permlane") or "row_" in cur.text or "quad_perm" in cur.text: n = max(n, 2)
            if prev.op.startswith(TRANS) and not cur.op.startswith(TRANS): n = max(n, 1)
            if prev.op.startswith("v_dot") and (prev.op != cur.op or (pv & (cur.src - cur.dst))): n = max(n, 3)
            if "op_sel" in prev.text or "sdwa" in prev.text: n = max(n, 1)
        if prev.op.startswith("v_dot") and cur.kind in ("valu", "mfma", "vmem", "ds") and prev.op != cur.op and (pv & (cur.src | cur.dst)): n = max(n, 3)
        if cur.kind == "salu" and (ps & cur.src) and prev.op.startswith(("v_readfirstlane", "v_readlane", "v_cmp")): n = max(n, 1)
        if cur.kind == "ctl" and (ps & cur.src): n = max(n, 5)
    if prev.kind == "mfma":
        sg = prev.op.endswith("x4_f32")
        p = prev.passes
        if cur.kind == "mfma":
            if pv & cur.srcAB: n = max(n, p + (2 if sg else 4))
            if pv & cur.srcC:
                if not (pv == cur.srcC and prev.op == cur.op): n = max(n, p + (0 if sg else 2))
            if (pv & cur.dst) and not (pv == cur.dst and prev.op == cur.op) : n = max(n, p + 2)
        elif cur.kind in ("valu", "vmem", "ds"):
            if pv & (cur.src | cur.dst): n = max(n, p + (2 if sg else 4))
        if cur.kind == "valu" and not sg and (prev.srcC & cur.dst): n = max(n, p - 1)
    if prev.kind == "vmem" and prev.data and ("x4" in prev.op or "x3" in prev.op):
        if prev.data & cur.dst: n = max(n, 2 if cur.kind in ("valu", "mfma") else 1)
    if prev.kind == "salu" and ("s", "m0") in prev.dst and cur.kind == "vmem" and ("s", "m0") in cur.src: n = max(n, 1)
    return n

class Prog:
    def __init__(self):
        self.items = []
        self.uid = 0
        self.stats = {"nops": 0, "waits": 0}
    def __call__(self, text, tag=None):
        for l in text.split("\n"):
            l = l.strip()
            if not l or l.startswith(";"):
                continue
            if l.endswith(":"):
                self.items.append(Label(l[:-1]))
            elif l.startswith("."):
                self.items.append(Raw(l))
            else:
                self.items.append(I(l, tag))
    def add(self, it):
        if isinstance(it, str): self(it)
        elif isinstance(it, (list, tuple)):
            for x in it: self.add(x)
        else: self.items.append(it)
    _gid = [0]
    def label(self, base):
        Prog._gid[0] += 1
        return f"L_{base}_{Prog._gid[0]}"
    def wait_vm(self, tag): self.items.append(WaitTag(tag, "vm"))
    def wait_lg(self, tag): self.items.append(WaitTag(tag, "lg"))
    def drain(self, vm=True, lg=True): self.items.append(Drain(vm, lg))
    def forget(self, vm=True, lg=True): self.items.append(Forget(vm, lg))
    def cond_begin(self): self.items.append(Cond(True))
    def cond_end(self): self.items.append(Cond(False))

    def finalize(self, verbose=False):
        out = []
        st = {"vm": [], "lg": [], "hists": [[]], "dead": False}
        labels_ahead = {}
        for it in self.items:
            if isinstance(it, Label): labels_ahead[it.name] = True
        open_lab = set()
        snaps = {}
        seq = [0]
        def emit(ins_):
            need = 0
            for hist in st["hists"]:
                dist = 0
                for q in reversed(hist):
                    h = hazard_need(q, ins_)
                    if h - dist > need: need = h - dist
                    dist += q.states()
                    if dist >= 24: break
            while need > 0:
                k = min(need, 16)
                nop = I(f"s_nop {k-1}")
                out.append("    " + nop.text)
                for hist in st["hists"]: hist.append(nop)
                need -= k
                self.stats["nops"] += 1
                if verbose: print("nop", k, "before", ins_.text)
            out.append("    " + ins_.text)
            for hist in st["hists"]:
                hist.append(ins_)
                if len(hist) > 60: del hist[:20]
            if len(st["hists"]) > 1 and all(h[-24:] == st["hists"][0][-24:] for h in st["hists"]): del st["hists"][1:]
        def count_after(q, idx):
            return sum(1 for e in q[idx + 1:] if e[1] <= open_lab)
        def do_wait(vidx, lidx):
            parts = []
            if vidx is not None:
                n = min(count_after(st["vm"], vidx), 63)
                parts.append(f"vmcnt({n})"); del st["vm"][:vidx + 1]
                if n == 0: st["vm"].clear()
            if lidx is not None:
                if any(e[2].kind == "smem" for e in st["lg"]): n = 0
                else: n = min(count_after(st["lg"], lidx), 15)
                del st["lg"][:lidx + 1]
                if n == 0: st["lg"].clear()
                parts.append(f"lgkmcnt({n})")
            if parts:
                emit(I("s_waitcnt " + " ".join(parts))); self.stats["waits"] += 1
        for it in self.items:
            if isinstance(it, Label):
                out.append(it.name + ":")
                labels_ahead.pop(it.name, None)
                open_lab.discard(it.name)
                if it.name in snaps:
                    srcs = snaps.pop(it.name)
                    if not st["dead"]: srcs = srcs + [st]
                    for k in ("vm", "lg"):
                        m = {e[0]: e for s in srcs for e in s[k]}
                        st[k] = [m[x] for x in sorted(m)]
                    st["hists"] = [list(h) for s in srcs for h in s["hists"]]
                st["dead"] = False
            elif isinstance(it, Raw):
                out.append(it.text)
            elif isinstance(it, Cond):
                pass
            elif isinstance(it, Phantom):
                ph = I("buffer_load_dword v0, v0, s[0:3], 0 offen"); ph.dst = set(it.regs); ph.src = set()
                seq[0] += 1
                st["vm"].append((seq[0], frozenset({"__never__"}), ph))
            elif isinstance(it, Forget):
                if it.vm: st["vm"].clear()
                if it.lg: st["lg"].clear()
            elif isinstance(it, Drain):
                parts = []
                if it.vm: parts.append("vmcnt(0)"); st["vm"].clear()
                if it.lg: parts.append("lgkmcnt(0)"); st["lg"].clear()
                emit(I("s_waitcnt " + " ".join(parts)))
            elif isinstance(it, WaitTag):
                q = st[it.cnt]
                idx = None
                for i, e in enumerate(q):
                    if e[2].tag == it.tag: idx = i
                if idx is not None:
                    do_wait(idx if it.cnt == "vm" else None, idx if it.cnt == "lg" else None)
            else:
                only_wait = isinstance(it, WaitFor)
                if only_wait: it = it.ins
                touch = it.src | it.dst
                vidx = lidx = None
                for i, e in enumerate(st["vm"]):
                    if e[2].dst & touch: vidx = i
                for i, e in enumerate(st["lg"]):
                    if e[2].dst & touch: lidx = i
                do_wait(vidx, lidx)
                if only_wait: continue
                if it.op == "s_waitcnt":
                    m = re.search(r"vmcnt\((\d+)\)", it.text)
                    if m and int(m.group(1)) == 0: st["vm"].clear()
                    m = re.search(r"lgkmcnt\((\d+)\)", it.text)
                    if m and int(m.group(1)) == 0: st["lg"].clear()
                emit(it)
                seq[0] += 1
                if it.kind == "vmem": st["vm"].append((seq[0], frozenset(open_lab), it))
                elif it.kind in ("ds", "smem"): st["lg"].append((seq[0], frozenset(open_lab), it))
                if it.op == "s_branch" or it.op.startswith("s_cbranch"):
                    tgt = it.text.split()[1]
                    if tgt in labels_ahead:
                        snaps.setdefault(tgt, []).append({"vm": list(st["vm"]), "lg": list(st["lg"]), "hists": [list(h[-30:]) for h in st["hists"]]})
                        open_lab.add(tgt)
                    elif it.tag != "ool":
                        assert not [e for e in st["vm"] if e[2].dst] and not [e for e in st["lg"] if e[2].dst], "loads pending at backward branch " + it.text
                    if it.op == "s_branch":
                        st["dead"] = True; st["vm"] = []; st["lg"] = []; st["hists"] = [[]]
                if it.op == "s_endpgm":
                    st["dead"] = True; st["vm"] = []; st["lg"] = []; st["hists"] = [[]]
        return "\n".join(out) + "\n"

def ins(text, tag=None):
    return I(text, tag)

class Stream:
    def __init__(self, name=""):
        self.q = []; self.name = name
    def add(self, item, earliest=0, deadline=10**9, tag=None, cost=1):
        if isinstance(item, str): item = I(item, tag)
        self.q.append([earliest, deadline, item, cost])

def _is_vm(item):
    if isinstance(item, (list, tuple)): return any(_is_vm(x) for x in item)
    return isinstance(item, I) and item.kind == "vmem"

class WaitFor:
    def __init__(self, ins_): self.ins = ins_

def _cls(item):
    if isinstance(item, (list, tuple)): return "grp"
    if isinstance(item, I):
        return {"valu": "v", "ds": "d", "vmem": "m"}.get(item.kind, "s")
    return "s"

def weave(p, backbone, streams, cap=2, vm_gap=4, wait_gaps=None, quiet=None):
    n = len(backbone)
    pos = [0] * len(streams)
    for s in streams:
        d = 10**9
        for e in reversed(s.q):
            d = min(d, e[1]); e[1] = d
    last_vm = -10**9
    forced = 0
    rank = {"s": 0, "grp": 0, "m": 1, "d": 1, "v": 2}
    for g in range(n + 1):
        ns = 1 if (wait_gaps and g < n and wait_gaps(g)) else 0
        nv = 0; closed = False
        chosen = []; last_rank = {}
        def fits(si, e):
            c = _cls(e[2])
            if closed: return False
            if rank[c] < last_rank.get(si, 0): return False
            if c == "m" and quiet and streams[si].name in ("ld", "dma") and quiet(g): return False
            if c == "m": return ns + nv == 0 and g - last_vm >= vm_gap
            if c == "grp": return ns + nv == 0 and (not _is_vm(e[2]) or g - last_vm >= vm_gap)
            if c == "s": return ns + nv < 3
            return nv < cap and ns + nv < 3
        while True:
            best = None
            for si, s in enumerate(streams):
                if pos[si] < len(s.q):
                    e = s.q[pos[si]]
                    if g < n:
                        if e[0] > g: continue
                        if e[1] > g and not fits(si, e): continue
                    c = _cls(e[2])
                    key = (0 if e[1] <= g + 1 else 1 if c in ("m", "grp") else 2 if c == "s" else 3, e[1])
                    if best is None or key < bkey:
                        best = si; bkey = key
            if best is None: break
            e = streams[best].q[pos[best]]
            c = _cls(e[2])
            ok = fits(best, e)
            if g < n and not ok: forced += 1
            if _is_vm(e[2]): last_vm = g
            r = max(rank[c], last_rank.get(best, 0))
            last_rank[best] = r
            chosen.append((r, len(chosen), e[2])); pos[best] += 1
            if c == "s": ns += 1
            elif c in ("m", "grp"): closed = True; nv += 1
            else: nv += 1
        chosen.sort(key=lambda x: x[:2])
        if g < n and not any(_cls(x[2]) in ("m", "grp") for x in chosen): p.add(WaitFor(backbone[g]))
        for x in chosen: p.add(x[2])
        if g < n: p.add(backbone[g])
    p.stats["forced"] = p.stats.get("forced", 0) + forced

def vr(b, n=1): return f"v{b}" if n == 1 else f"v[{b}:{b+n-1}]"
def ar(b, n=1): return f"a{b}" if n == 1 else f"a[{b}:{b+n-1}]"
def sr(b, n=1): return f"s{b}" if n == 1 else f"s[{b}:{b+n-1}]"

def kernel_text(name, body, vgpr=512, accum=256, sgpr=102):
    t = f".text\n.globl {name}\n.p2align 8\n.type {name},@function\n{name}:\n" + body
    t += f'''.section .rodata,"a"
.p2align 6
.amdhsa_kernel {name}
  .amdhsa_next_free_vgpr {vgpr}
  .amdhsa_next_free_sgpr {sgpr}
  .amdhsa_accum_offset {accum}
  .amdhsa_group_segment_fixed_size 0
  .amdhsa_kernarg_size 80
  .amdhsa_user_sgpr_count 2
  .amdhsa_user_sgpr_kernarg_segment_ptr 1
  .amdhsa_system_sgpr_workgroup_id_x 1
  .amdhsa_float_denorm_mode_32 3
.end_amdhsa_kernel
'''
    return t
```

```python
from common import *
MF = "v_mfma_f32_16x16x32_bf16"
NEG_BIG = 0xF149F2CA

def attn_bias(p, S_AB):
    V_LANE = 1
    BO, BP, BP0 = 168, 172, 176
    p(f"""v_and_b32 v6, 15, v{V_LANE}
    v_lshrrev_b32 v7, 4, v{V_LANE}
    v_lshlrev_b32 v7, 2, v7
    v_sub_u32 v6, v6, v7
    v_mov_b32 v8, {NEG_BIG:#x}
    s_or_b32 s52, s{S_AB}, s{S_WAVE}
    s_cmp_eq_u32 s52, 0
    s_cselect_b64 s[56:57], -1, 0""")
    for r in range(4):
        p(f"""v_subrev_u32 v7, {r}, v6
        v_and_b32 v9, 0xfffffff1, v7
        v_cmp_eq_u32 vcc, 0, v9
        v_add_u32 v7, 16, v7
        v_and_b32 v9, 0xfffffff1, v7
        v_cndmask_b32_e64 v{BO+r}, v8, 0, vcc
        v_cmp_eq_u32 vcc, 0, v9
        v_cndmask_b32_e64 v{BP+r}, v8, 0, vcc
        v_cndmask_b32_e64 v{BP0+r}, v{BP+r}, v8, s[56:57]""")

def attn_part(p, l, S_T0, S_HP, EXB, sc, VRM):
    V_LANE, V_L16 = 1, 2
    ACC, HACC = 16, 80
    BO, BP, BP0 = 168, 172, 176
    KP, K0, K1 = 88, 94, 100
    VE, VO_, VR_ = 106, 112, 118
    Q = 124
    HT, HN = 140, 142
    def pack(d, s):
        p(f"v_cvt_pk_bf16_f32 v{d}, v{s}, v{s+1}\nv_cvt_pk_bf16_f32 v{d+1}, v{s+2}, v{s+3}")
    a_ = lambda tt, j: ACC + 32 * tt + 4 * j
    V_EX = 6
    p(f"""v_lshlrev_b32 v{V_EX}, 3, v{V_LANE}
    v_add_u32 v{V_EX}, {EXB}, v{V_EX}
    s_mul_i32 s52, s{S_WAVE}, 3072
    v_add_u32 v7, s52, v{V_EX}
    s_lshl_b32 s52, s{S_WAVE}, 8
    s_add_u32 s52, s52, {VRM-128}
    v_lshl_add_u32 v13, v{V_LANE}, 3, s52
    v_lshrrev_b32 v14, 2, v{V_LANE}
    v_lshl_add_u32 v14, v14, 3, s52""")
    for tt, K in ((1, K1), (0, K0)):
        q = Q + 8 * tt
        pack(K, a_(tt, 2)); pack(K + 4, a_(tt, 3))
        p(f"""v_cvt_pk_bf16_f32 v{q+2}, v{a_(tt,4)}, v{a_(tt,4)+1}
        v_cvt_pk_bf16_f32 v{q+5}, v{a_(tt,4)+2}, v{a_(tt,4)+3}
        v_mov_b32 v{K+2}, 0
        v_mov_b32 v{K+3}, 0""")
        for j, V in ((5, VE), (6, VO_)): pack(V + 2 + 2 * tt, a_(tt, j))
        p(f"s_mov_b32 exec_lo, 0xffff0000\ns_mov_b32 exec_hi, 0\nds_write2_b32 v13, v{q+2}, v{q+5} offset0:{32*(tt+1)} offset1:{32*(tt+1)+1}\ns_mov_b64 exec, -1")
        p(f"v_permlane32_swap_b32 v{q+2}, v{K+2}\nv_permlane32_swap_b32 v{q+5}, v{K+3}")
        if tt == 1:
            lw3 = p.label("w3")
            p(f"s_cmp_eq_u32 s{S_WAVE}, 3\ns_cbranch_scc1 {lw3}")
            for f, r in enumerate((K1, K1 + 2, K1 + 4, VE + 4, VO_ + 4)):
                p(f"ds_write_b64 v7, v[{r}:{r+1}] offset:{3072+512*f}")
            p(f"{lw3}:")
            pack(HT, HACC); pack(HN, HACC + 4)
            lsk = p.label("noswap")
            p(f"""s_min_u32 s52, s{S_WAVE}, 2
            s_lshl_b32 s53, s52, 1
            s_cmp_ge_u32 s{S_WAVE}, 2
            s_cselect_b32 s53, 1, s53
            s_lshl_b32 s53, s53, 9
            s_and_b32 s52, s{S_WAVE}, 1
            s_add_u32 s52, s52, 3
            s_lshl_b32 s52, s52, 9
            v_add_u32 v8, s53, v{V_EX}
            v_add_u32 v9, s52, v{V_EX}
            s_cmp_lt_u32 s{S_WAVE}, 2
            s_cbranch_scc1 {lsk}
            v_lshlrev_b32 v10, 3, v{V_LANE}
            v_add_u32 v10, {VRM-128}, v10
            s_mov_b32 exec_lo, 0xffff0000
            s_mov_b32 exec_hi, 0
            ds_write_b64 v10, v[{HT}:{HT+1}]
            s_mov_b64 exec, -1
            v_mov_b32 v10, 0
            v_mov_b32 v11, 0
            s_nop 1
            v_permlane32_swap_b32 v{HT}, v10
            v_permlane32_swap_b32 v{HT+1}, v11
            v_mov_b32 v{HT}, v10
            v_mov_b32 v{HT+1}, v11
            {lsk}:
            ds_write_b64 v8, v[{HT}:{HT+1}]
            ds_write_b64 v9, v[{HN}:{HN+1}]""")
        pack(q, a_(tt, 0)); pack(q + 6, a_(tt, 1))
        p(f"v_mov_b32 v{q+3}, 0\nv_mov_b32 v{q+4}, 0")
    ONE = 144
    for j in range(4): p(f"v_mov_b32 v{ONE+j}, {BF16_ONES:#x}")
    SS = 16
    th = [(tt, h) for tt in (1, 0) for h in range(2)]
    sreg = lambda tt, h: SS + 16 * tt + 8 * h
    Kop = lambda K, h: vr(K + 2 * h, 4)
    Qop = lambda tt, h: vr(Q + 8 * tt + 4 * h, 4)
    for h in range(2):
        p(f"{MF} {vr(sreg(1,h),4)}, {Kop(K0,h)}, {Qop(1,h)}, {vr(BP,4)}")
        p(f"{MF} {vr(sreg(1,h)+4,4)}, {Kop(K1,h)}, {Qop(1,h)}, {vr(BO,4)}")
        p(f"{MF} {vr(sreg(0,h)+4,4)}, {Kop(K0,h)}, {Qop(0,h)}, {vr(BO,4)}")
    p.drain(vm=False)
    p("s_barrier")
    for f, r in enumerate((KP, KP + 2, KP + 4, VE, VO_)):
        p(f"ds_read_b64 v[{r}:{r+1}], v7 offset:{512*f}")
    for k in range(3): p(f"ds_read_b64_tr_b16 v[{VR_+2*k}:{VR_+2*k+1}], v14 offset:{128*(k+1)}")
    MX, TMP, PP, OO = 48, 52, 56, 180
    p(f"s_mov_b32 s52, 0x3eae1a93")
    def softmax(group):
        for k, (tt, h) in group:
            s = sreg(tt, h)
            p(f"v_max3_f32 v{MX+k}, v{s}, v{s+1}, v{s+2}")
        for j in (3, 5):
            for k, (tt, h) in group:
                s = sreg(tt, h)
                p(f"v_max3_f32 v{MX+k}, v{MX+k}, v{s+j}, v{s+j+1}")
        for k, (tt, h) in group:
            p(f"v_max_f32 v{MX+k}, v{MX+k}, v{sreg(tt,h)+7}")
        for op in ("v_permlane16_swap_b32", "v_permlane32_swap_b32"):
            for k, _ in group: p(f"v_mov_b32 v{TMP+k}, v{MX+k}")
            for k, _ in group: p(f"{op} v{MX+k}, v{TMP+k}")
            for k, _ in group: p(f"v_max_f32 v{MX+k}, v{MX+k}, v{TMP+k}")
        for k, _ in group: p(f"v_mul_f32 v{MX+k}, s52, v{MX+k}")
        for j in range(8):
            for k, (tt, h) in group:
                s = sreg(tt, h) + j
                p(f"v_fma_f32 v{s}, v{s}, s52, -v{MX+k}")
        for j in range(8):
            for k, (tt, h) in group:
                s = sreg(tt, h) + j
                p(f"v_exp_f32 v{s}, v{s}")
        for j in range(4):
            for k, (tt, h) in group:
                s = sreg(tt, h) + 2 * j
                p(f"v_cvt_pk_bf16_f32 v{PP+4*k+j}, v{s}, v{s+1}")
        for k, (tt, h) in group:
            o = OO + 12 * k
            p(f"{MF} {vr(o+8,4)}, {vr(ONE,4)}, {vr(PP+4*k,4)}, 0")
            p(f"{MF} {vr(o,4)}, {vr((VE, VO_)[h]+2*tt,4)}, {vr(PP+4*k,4)}, 0")
            p(f"{MF} {vr(o+4,4)}, {vr(VR_+2*tt,4)}, {vr(PP+4*k,4)}, 0")
    g1 = [(0, (1, 0)), (1, (1, 1))]
    g0 = [(2, (0, 0)), (3, (0, 1))]
    for h in range(2):
        p(f"{MF} {vr(sreg(0,h),4)}, {Kop(KP,h)}, {Qop(0,h)}, {vr(BP0,4)}")
    softmax(g1 + g0)
    OP, RP = 72, 80
    p(f"""s_lshl_b32 s53, s{S_T0}, 4
    s_add_u32 s53, s53, s{S_HP}
    s_lshl_b32 s54, s53, 10
    s_add_u32 s54, s54, {LB(l)+OM}
    s_lshl_b32 s55, s53, 7
    s_add_u32 s55, s55, {LB(l)+OR_-128}
    v_lshlrev_b32 v6, 3, v{V_LANE}""")
    for k, (tt, h) in g1 + g0:
        o = OO + 12 * k
        p(f"v_rcp_f32 v{o+8}, v{o+8}")
    for k, (tt, h) in g1 + g0:
        o = OO + 12 * k
        for j in range(4): p(f"v_mul_f32 v{o+j}, v{o+j}, v{o+8}")
        for j in range(2): p(f"v_mul_f32 v{o+4+2*h+j}, v{o+4+2*h+j}, v{o+8}")
        pack(OP + 4 * tt + 2 * h, o)
        p(f"v_cvt_pk_bf16_f32 v{RP+2*tt+h}, v{o+4+2*h}, v{o+5+2*h}")
        if h == 1:
            p(f"s_add_u32 s53, s54, {tt*16*1024}")
            p(f"buffer_store_dwordx4 {vr(OP+4*tt,4)}, v{V_L16}, s[{S_WS}:{S_WS+3}], s53 offen{sc}", tag="ost")
    p("s_mov_b32 exec_lo, 0xffff0000\ns_mov_b32 exec_hi, 0")
    for tt in range(2):
        p(f"buffer_store_dwordx2 {vr(RP+2*tt,2)}, v6, s[{S_WS}:{S_WS+3}], s55 offen offset:{tt*16*128}{sc}", tag="ost")
    p("s_mov_b64 exec, -1")

def wo_setup(p, l):
    V_LANE, V_L16 = 1, 2
    S_TB, S_CG, S_T, S_SRC, S_M0 = 44, 45, 46, 47, 48
    sdiv(p, S_TB, S_IDX, 6, 32)
    p(f"""s_mul_i32 s52, s{S_TB}, 6
    s_sub_u32 s{S_CG}, s{S_IDX}, s52
    s_lshl_b32 s52, s{S_XCD}, 2
    s_add_u32 s{S_TB}, s{S_TB}, s52
    s_lshl_b32 s{S_T}, s{S_TB}, 2
    s_add_u32 s{S_T}, s{S_T}, s{S_WAVE}
    s_mul_i32 s{S_SRC}, s{S_CG}, {108*1024}
    s_mul_i32 s{S_M0}, s{S_WAVE}, {3*1024}
    s_add_u32 s{S_SRC}, s{S_SRC}, s{S_M0}
    s_add_u32 s{S_SRC}, s{S_SRC}, {WOS}
    s_lshl_b32 s49, s{S_T}, 14
    s_add_u32 s49, s49, {LB(l)+OM}
    s_lshl_b32 s50, s{S_T}, 11
    s_add_u32 s50, s50, {LB(l)+OR_}
    v_and_b32 v3, 15, v{V_LANE}
    v_lshrrev_b32 v4, 4, v{V_LANE}
    v_lshlrev_b32 v5, 3, v3
    v_lshl_add_u32 v5, v4, 8, v5
    s_lshl_b32 s52, s{S_T}, 4
    v_add_u32 v6, s52, v3
    v_lshlrev_b32 v7, 3, v6
    v_mul_u32_u24 v6, 1152, v6
    v_lshl_add_u32 v6, v4, 4, v6
    s_mul_i32 s51, s{S_CG}, 192""")
    if l == 0: srd(p, S_X, P_X, XBYTES)
    else:
        p(f"s_add_u32 s{S_X}, s{P_WS}, {LB(0)+X2R}\ns_addc_u32 s{S_X+1}, s{P_WS+1}, 0\ns_mov_b32 s{S_X+2}, {XBYTES:#x}\ns_mov_b32 s{S_X+3}, 0x20000")

def wo_wdma(p):
    V_L16, S_SRC, S_M0 = 2, 47, 48
    for g in range(9):
        p(f"s_mov_b32 m0, s{S_M0}")
        for j in range(3):
            p(f"buffer_load_dwordx4 v{V_L16}, s[{S_WS}:{S_WS+3}], s{S_SRC} offen offset:{1024*j} lds", tag="wo_w")
        p(f"s_add_u32 s{S_M0}, s{S_M0}, {12*1024}\ns_add_u32 s{S_SRC}, s{S_SRC}, {12*1024}")

WO_NA = [24, 24]
def wo_frag(s, l):
    return ar(4 * s, 4) if s < WO_NA[l] else vr(112 + 4 * (s % 12), 4)
def wo_read(s, l):
    r = [f"v_add_u32 v8, {60*1024}, v8"] if s == 60 else []
    return r + [f"ds_read_b128 {wo_frag(s, l)}, v8 offset:{(s%60)*1024}"]

def wo_pre(p, l, ld, poll):
    RES = 160
    for j in range(3):
        p(f"buffer_load_dwordx4 {vr(RES+4*j,4)}, v6, s[{S_X}:{S_X+3}], s51 offen offset:{64*j}{ld if l else ''}")
    p(f"v_mov_b32 v8, v2")
    p.wait_vm("wo_w"); p("s_barrier")
    p.add(poll)
    for s in range(WO_NA[l] + 10): p.add(wo_read(s, l))

def wo_main(p, l, sc, ld, after_x1=None):
    V_LANE, V_L16 = 1, 2
    S_TB, S_CG, S_T, S_SRC, S_M0 = 44, 45, 46, 47, 48
    OF, ACC, RES = 16, 88, 160
    def oload(c):
        if c < 16:
            r = ["s_add_u32 s49, s49, 4096"] if c % 4 == 0 and c else []
            return r + [f"buffer_load_dwordx4 {vr(OF+4*c,4)}, v{V_L16}, s[{S_WS}:{S_WS+3}], s49 offen offset:{1024*(c&3)}{ld}"]
        return [f"buffer_load_dwordx2 {vr(OF+4*c+2*hh,2)}, v5, s[{S_WS}:{S_WS+3}], s50 offen offset:{1024*(c-16)+128*hh}{ld}" for hh in range(2)]
    nup = OPT.get("oup", 8)
    for c in range(nup): p.add(oload(c))
    sl = Stream("ld")
    for c in range(nup, 18):
        for x in oload(c): sl.add(x, 0, max(0, 6 * c - 30))
    stamp(p, 6)
    wf = lambda s: wo_frag(s, l)
    bb = []; sr_ = Stream()
    for s in range(108):
        c, t = divmod(s, 6)
        bb.append(ins(f"{MF} {vr(ACC+4*t,4)}, {wf(s)}, {vr(OF+4*c,4)}, {'0' if c == 0 else vr(ACC+4*t,4)}"))
        if WO_NA[l] + 10 <= s + 10 < 108:
            for r in wo_read(s + 10, l): sr_.add(r, s + 1, s + 1)
    weave(p, bb, [sr_, sl], cap=2, vm_gap=3)
    stamp(p, 7)
    X, PK = 16, 40
    for j in range(3): unpack8(p, X + 8 * j, RES + 4 * j)
    for e in range(24): p(f"v_add_f32 v{X+e}, v{X+e}, v{ACC+e}")
    p(f"""s_mul_i32 s52, s{S_T}, 18
    s_mul_i32 s53, s{S_CG}, 3
    s_add_u32 s52, s52, s53
    s_lshl_b32 s52, s52, 10
    s_add_u32 s52, s52, {LB(l)+X1}""")
    for j in range(3):
        for e in range(4): p(f"v_cvt_pk_bf16_f32 v{PK+4*j+e}, v{X+8*j+2*e}, v{X+8*j+2*e+1}")
        p(f"buffer_store_dwordx4 {vr(PK+4*j,4)}, v{V_L16}, s[{S_WS}:{S_WS+3}], s52 offen offset:{1024*j}{sc}", tag="x1st")
    for j in range(3): unpack8(p, X + 8 * j, PK + 4 * j)
    SM, M2, T = 56, 57, 58
    p(f"v_add_f32 v{SM}, v{X}, v{X+1}\nv_add_f32 v{T}, v{X+2}, v{X+3}")
    for j in range(4, 24, 2):
        p(f"v_add_f32 v{SM}, v{SM}, v{X+j}\nv_add_f32 v{T}, v{T}, v{X+j+1}")
    p(f"v_add_f32 v{SM}, v{SM}, v{T}")
    xsum_g(p, SM, T)
    p(f"v_mul_f32 v{T+1}, 0x3c2aaaab, v{SM}")
    p(f"v_sub_f32 v{T}, v{X}, v{T+1}\nv_mul_f32 v{M2}, v{T}, v{T}")
    for j in range(1, 24):
        p(f"v_sub_f32 v{T+2+(j&1)}, v{X+j}, v{T+1}\nv_fmac_f32 v{M2}, v{T+2+(j&1)}, v{T+2+(j&1)}")
    xsum_g(p, M2, T)
    if after_x1: after_x1()
    p(f"""s_lshl_b32 s52, s{S_CG}, 14
    s_add_u32 s52, s52, {LB(l)+ST}
    s_mov_b32 exec_lo, 0xffff
    s_mov_b32 exec_hi, 0
    buffer_store_dwordx2 v[{SM}:{M2}], v7, s[{S_WS}:{S_WS+3}], s52 offen{sc}
    s_mov_b64 exec, -1""", tag="stst" if after_x1 else "x1st")
```

```python
from common import *
from k_prep import ln_addr, ln_local_stats, ln_finish
MF = "v_mfma_f32_16x16x32_bf16"
RING = 36 * 1024
LDS_CS = 4 * RING
LDS_WQ = 18 * 1024

from fw import _is_vm as _isvm
DBG = set()
def ffn_slice(p, sd, st):
    rr = OPT.get("r", 3)
    p(f"""s_and_b32 s{st}, s{S_XCD}, {(1 << rr) - 1}
    s_lshl_b32 s{st}, s{st}, {5-rr}
    s_and_b32 s{sd}, s{S_IDX}, {(1 << (5-rr)) - 1}
    s_add_u32 s{sd}, s{sd}, s{st}""")

def ffn_pw_issue(p, pw):
    ffn_slice(p, pw.so, 23)
    p(f"s_lshl_b32 s{pw.so}, s{pw.so}, 9\ns_add_u32 s{pw.so}, s{pw.so}, {FW}")
    lane_min8(p, pw.va, 1, 36)
    p.add(pw.issue())

def ffn_phase(p, pw, sc=" sc1", ld=" sc1"):
    if "plain" in DBG: sc = ""
    scp = LOC("p")
    ntw = " nt" if OPT.get("ntw") else ""
    lbh = str(LB(0)) if OPT.get("reuse") else f"s{S_LB}"
    rr = OPT.get("r", 3)
    V_LANE, V_L16, V_L8, V_W, V_CS, V_T0, V_T1 = 1, 2, 3, 4, 5, 6, 7
    WB, XO, ACA, ACB, NM, RS2, CS, TMP, HO, H8 = 8, 32, 64, 96, 128, 132, 136, 152, 176, 240
    ACX = 208
    S_RB, S_Q, S_M, S_SL, S_SRC, S_M0, S_XS, S_H, S_FL, S_P, S_T, S_R = 44, 45, 46, 47, 48, 49, 50, 51, 52, 53, 54, 56
    S_TMP, S_TMP2, S_LASTSRC, S_LASTM0, S_FW = 60, 61, 62, 63, 64
    p("s_barrier")
    p(f"""s_lshr_b32 s{S_RB}, s{S_IDX}, {5-rr}
    s_and_b32 s{S_TMP}, s{S_XCD}, {7 & ~((1 << rr) - 1)}
    s_add_u32 s{S_RB}, s{S_RB}, s{S_TMP}
    s_and_b32 s{S_TMP}, s{S_XCD}, {(1 << rr) - 1}
    s_lshl_b32 s{S_TMP}, s{S_TMP}, {5-rr}
    s_and_b32 s{S_SL}, s{S_IDX}, {(1 << (5-rr)) - 1}
    s_add_u32 s{S_SL}, s{S_SL}, s{S_TMP}
    s_lshl_b32 s{S_FW}, s{S_SL}, 9
    s_add_u32 s{S_FW}, s{S_FW}, {FW}""")
    p(f"""s_lshr_b32 s{S_Q}, s{S_SL}, 2
    s_and_b32 s{S_M}, s{S_SL}, 3
    s_mul_i32 s{S_SRC}, s{S_SL}, {486*1024}
    s_add_u32 s{S_SRC}, s{S_SRC}, {WF}
    s_mul_i32 s{S_LASTM0}, s{S_WAVE}, 9
    s_lshr_b32 s{S_LASTM0}, s{S_LASTM0}, 1
    s_lshl_b32 s{S_LASTM0}, s{S_LASTM0}, 10
    s_add_u32 s{S_LASTSRC}, s{S_SRC}, s{S_LASTM0}
    s_mul_i32 s{S_M0}, s{S_WAVE}, {9*1024}
    s_add_u32 s{S_SRC}, s{S_SRC}, s{S_M0}
    s_lshl_b32 s{S_T}, s{S_RB}, 4
    s_lshl_b32 s{S_TMP}, s{S_WAVE}, 2
    s_add_u32 s{S_T}, s{S_T}, s{S_TMP}
    s_mul_i32 s{S_XS}, s{S_T}, {18*1024}
    s_mul_i32 s{S_P}, s{S_Q}, {XBYTES}
    s_add_u32 s{S_P}, s{S_P}, s{S_XS}
    s_add_u32 s{S_XS}, s{S_XS}, {X1}
    s_add_u32 s{S_XS}, s{S_XS}, s{S_LB}
    s_lshr_b32 s{S_TMP}, s{S_M}, 1
    s_mul_i32 s{S_TMP}, s{S_TMP}, {9*1024}
    s_add_u32 s{S_P}, s{S_P}, s{S_TMP}
    s_add_u32 s{S_P}, s{S_P}, {PB}
    s_add_u32 s{S_P}, s{S_P}, {lbh}
    v_lshlrev_b32 v{V_L8}, 3, v{V_LANE}
    v_mov_b32 v{V_W}, v{V_L16}""")
    def slot_dma(k):
        r = []
        if k < 13:
            for g in range(3):
                r.append(ins(f"s_add_u32 m0, s{S_M0}, {(k&3)*RING+4096*g}"))
                r.append(ins(f"s_add_u32 s{S_TMP2}, s{S_SRC}, {k*RING+4096*g}"))
                for j in range(4 if g < 2 else 1):
                    r.append(ins(f"buffer_load_dwordx4 v{V_L16}, {WSR}, s{S_TMP2} offen offset:{1024*j}{ntw} lds", f"slot{k}"))
        else:
            for g in range(2):
                r.append(ins(f"s_add_u32 m0, s{S_LASTM0}, {(k&3)*RING+4096*g}"))
                r.append(ins(f"s_add_u32 s{S_TMP2}, s{S_LASTSRC}, {k*RING+4096*g}"))
                for j in range(4 if g < 1 else 1):
                    r.append(ins(f"buffer_load_dwordx4 v{V_L16}, {WSR}, s{S_TMP2} offen offset:{1024*j}{ntw} lds", f"slot{k}"))
        return r
    xf = lambda c, tt: ar(16 * c + 4 * tt, 4) if c < 16 else vr(XO + 16 * (c - 16) + 4 * tt, 4)
    XB = (59, 66, 68, 69)
    def xload(c):
        r = []
        for tt in range(4):
            if c % 4 == 0: r.append(ins(f"s_add_u32 s{XB[tt]}, s{S_XS}, {tt*18*1024+c*1024}"))
            r.append(ins(f"buffer_load_dwordx4 {xf(c,tt)}, v{V_L16}, {WSR}, s{XB[tt]} offen offset:{1024*(c&3)}{ld}"))
        return r
    l_nopw = p.label("nopw")
    p(f"s_cmp_lg_u32 s{S_LF}, 0\ns_cbranch_scc1 {l_nopw}")
    p.add(pw.check())
    p(f"{l_nopw}:")
    npre = OPT.get("npre", 3)
    for k in range(npre): p.add(slot_dma(k))
    l_nocs = p.label("nocs")
    p(f"""s_cmp_lg_u32 s{S_LF}, 0
    s_cbranch_scc1 {l_nocs}
    s_cmp_ge_u32 s{S_WAVE}, 2
    s_cbranch_scc1 {l_nocs}
    s_lshl_b32 s{S_TMP}, s{S_SL}, 1
    s_add_u32 s{S_TMP}, s{S_TMP}, s{S_WAVE}
    s_mul_i32 s{S_TMP}, s{S_TMP}, {18*576}
    s_add_u32 s{S_TMP}, s{S_TMP}, {CSP}
    v_lshrrev_b32 v{V_T0}, 2, v{V_LANE}
    v_lshlrev_b32 v{V_T0}, 7, v{V_T0}
    v_and_b32 v{V_T1}, 3, v{V_LANE}
    v_lshl_add_u32 v{V_T0}, v{V_T1}, 4, v{V_T0}
    s_lshl_b32 s{S_TMP2}, s{S_WAVE}, 6
    s_add_u32 s{S_TMP2}, s{S_TMP2}, {LDS_CS}
    v_add_u32 v{V_T0}, s{S_TMP2}, v{V_T0}
    s_mov_b32 exec_hi, 15""")
    for c in range(18):
        if c and c % 6 == 0: p(f"s_add_u32 s{S_TMP}, s{S_TMP}, {6*576}")
        p(f"buffer_load_dwordx4 {vr(64+4*c,4)}, v{V_L16}, {WSR}, s{S_TMP} offen offset:{(c%6)*576} sc1")
    for c in range(1, 18):
        for j in range(4): p(f"v_add_f32 v{64+j}, v{64+j}, v{64+4*c+j}")
    p(f"ds_write_b128 v{V_T0}, v[64:67]\ns_mov_b64 exec, -1")
    p.drain(vm=False)
    p(f"{l_nocs}:")
    p(f"""s_lshr_b32 s{S_TMP}, s{S_T}, 2
    s_lshl_b32 s{S_TMP}, s{S_TMP}, 8
    s_add_u32 s55, s{S_LF}, {F1B}
    v_and_b32 v{V_T1}, 7, v{V_LANE}
    v_min_u32 v{V_T1}, 5, v{V_T1}
    v_and_b32 v{V_T0}, 24, v{V_LANE}
    v_add_lshl_u32 v0, v{V_T1}, v{V_T0}, 3
    v_add_u32 v0, s{S_TMP}, v0
    s_lshl_b32 s{S_TMP}, s{S_XCD}, 4
    s_lshr_b32 s{S_TMP2}, s{S_IDX}, 1
    s_add_u32 s{S_TMP}, s{S_TMP}, s{S_TMP2}
    s_lshl_b32 s{S_TMP}, s{S_TMP}, 6
    v_lshl_add_u32 v{V_T1}, v{V_T1}, 3, s{S_TMP}
    v_cmp_gt_u32 vcc, 32, v{V_LANE}
    v_cndmask_b32 v0, v{V_T1}, v0, vcc""")
    p1 = Poll(p, TMP + 16, 0, 55, "p1", alt=TMP + 18)
    p.add(p1.issue())
    p(f"""s_lshl_b32 s{S_TMP}, s{S_RB}, 5
    s_add_u32 s{S_TMP}, s{S_TMP}, s{S_SL}
    s_mul_i32 s{S_H}, s{S_TMP}, {72*1024}
    s_add_u32 s{S_H}, s{S_H}, {HB}
    s_add_u32 s{S_H}, s{S_H}, {lbh}""")
    for j in range(3):
        p(f"""s_xor_b32 s{S_TMP2}, s{S_TMP}, {j+1}
        s_mul_i32 s{S_R+j}, s{S_TMP2}, {72*1024}
        s_add_u32 s{S_R+j}, s{S_R+j}, {HB}
        s_add_u32 s{S_R+j}, s{S_R+j}, {lbh}""")
    p(f"""s_lshr_b32 s{S_FL}, s{S_TMP}, 2
    s_lshl_b32 s{S_FL}, s{S_FL}, 2
    s_add_u32 s{S_FL}, s{S_FL}, s{S_WAVE}
    s_lshl_b32 s{S_FL}, s{S_FL}, 7
    s_lshl_b32 s{S_TMP2}, s{S_LF}, 2
    s_add_u32 s{S_FL}, s{S_FL}, s{S_TMP2}
    s_add_u32 s{S_FL}, s{S_FL}, {FHB}
    v_lshrrev_b32 v{V_CS}, 4, v{V_LANE}
    v_lshlrev_b32 v{V_CS}, 4, v{V_CS}
    v_add_u32 v{V_CS}, {LDS_CS}, v{V_CS}
    s_lshl_b32 s{S_TMP}, s{S_WAVE}, 12""")
    for r in (S_H, S_R, S_R + 1, S_R + 2):
        p(f"s_add_u32 s{r}, s{r}, s{S_TMP}")
    p(f"s_lshl_b32 s65, s{S_WAVE}, 11\ns_sub_u32 s65, {64*1024}, s65")
    p(f"s_lshl_b32 s67, s{S_M}, 3\ns_add_u32 s67, s67, s{S_FL}")
    frs = []
    first = (8, 0, 1)
    bufs = {8: (ACX, ACX + 16), 0: (ACA, ACA + 16), 1: (ACB, ACB + 16), 2: (HO + 16, TMP)}
    for tile in range(3, 8): bufs[tile] = (ACB, ACB + 16) if tile & 1 else (ACA, ACA + 16)
    def g1(tile, c, mat):
        f = pos_of_tile(tile) * 36 + 2 * c + mat
        return (f, [(vr(bufs[tile][mat] + 4 * tt, 4), xf(c, tt), c == 0) for tt in range(4)])
    marks = {}
    for c in range(18):
        for tile in first:
            for mat in range(2): frs.append(g1(tile, c, mat))
    marks["pass0_end"] = len(frs)
    for tile in range(2, 8):
        marks[f"pass{tile}"] = len(frs)
        for c in range(18):
            for mat in range(2): frs.append(g1(tile, c, mat))
    marks["g2"] = len(frs)
    acc2 = lambda n, tt: 32 + 32 * (n >> 1) + 8 * tt + 4 * (n & 1) if n < 8 else 160 + 4 * tt
    def hstep(st, tt):
        if st < 4: return vr(HO + 16 * st + 4 * tt, 4)
        if st == 4: return vr(H8 + 4 * tt, 4)
        return ar(16 * (st - 5) + 4 * tt, 4)
    order = gemm2_order()
    last_of = {}
    for i, (st, n) in enumerate(order):
        marks.setdefault(f"step{st}", len(frs))
        frs.append((324 + i, [(vr(acc2(n, tt), 4), hstep(st, tt), st == 0) for tt in range(4)]))
        last_of[n] = len(frs)
    NB, LOOK = 6, 4
    bb = []; s_rd = Stream("rd"); s_dma = Stream("dma"); s_ep = Stream("ep"); s_ld = Stream("ld")
    G = lambda s: 4 * s
    cur_base = [0]
    def read(s):
        f = frs[s][0]
        a = ((f // 36) & 3) * RING + (f % 36) * 1024
        r = []
        if s < marks["pass0_end"]:
            if a < 65536: va, off = V_W, a
            else: va, off = V_T1, a - 65536
        else:
            base = ((f // 36) & 3) * RING
            if base != cur_base[0]:
                r.append(f"v_add_u32 v{V_W}, {base - cur_base[0] & 0xffffffff:#x}, v{V_W}")
                cur_base[0] = base
            va, off = V_W, a - base
        r.append(f"ds_read_b128 {vr(WB+4*(s%NB),4)}, v{va} offset:{off}")
        return r
    p.wait_vm(f"slot{npre-1}"); p("s_barrier")
    for s in range(LOOK): p.add(read(s))
    nsh = 1 << (5 - rr)
    p(f"s_and_b32 s{S_TMP2}, s{S_IDX}, {nsh-1}\ns_mul_i32 s{S_TMP2}, s{S_TMP2}, {576//nsh*128}\ns_add_u32 s{S_TMP2}, s{S_TMP2}, s{S_XS}")
    p.add(p1.check()); stamp(p, 1)
    l_nop = p.label("nopend")
    p(f"s_cmp_eq_u32 s0, 0\ns_cbranch_scc1 {l_nop}")
    p.add(signal_items(0, V_T0))
    p(f"s_mov_b32 s0, 0\n{l_nop}:")
    if OPT.get("touch", 0): p.add(touch_items(S_TMP2, min(576 // nsh, 128), 0, TMP + 20))
    if "xhit" in DBG: p(f"s_mul_i32 s{S_XS}, s{S_SL}, {486*1024}\ns_add_u32 s{S_XS}, s{S_XS}, {WF}")
    for c in range(OPT.get("xup", 2)): p.add(xload(c))
    p(f"""s_lshl_b32 s{S_TMP}, s{S_T}, 4
    v_add_u32 v{V_T0}, s{S_TMP}, v{V_LANE}
    v_lshlrev_b32 v{V_T0}, 3, v{V_T0}
    s_add_u32 s55, s{S_LB}, {ST}""")
    for cg in range(6):
        p(f"s_add_u32 s{S_TMP}, s55, {cg*16384}")
        p(f"buffer_load_dwordx2 {vr(TMP+2*cg,2)}, v{V_T0}, {WSR}, s{S_TMP} offen{ld}")

    p(f"v_add_u32 v{V_T1}, 0x10000, v{V_L16}")
    seen = {0, 1, 2}
    for k in range(npre, 4):
        for it in slot_dma(k): s_dma.add(it, 200, G(marks["pass0_end"]) - 100)
    bar_gap = {}
    for s, (f, ms) in enumerate(frs):
        for d, b, first in ms:
            bb.append(ins(f"{MF} {d}, {vr(WB+4*(s%NB),4)}, {b}, {'0' if first else d}"))
        t = s + LOOK
        if t < len(frs):
            k = frs[t][0] // 36
            g = G(s) + 1
            if k not in seen:
                seen.add(k)
                s_rd.add(WaitTag(f"slot{k}", "vm"), g, g)
                if k == 3: s_rd.add(Drain(vm=False), g, g)
                s_rd.add("s_barrier", g, g); bar_gap[k] = g
                for kk in ([4, 5, 6] if k == 3 else [k + 2] if k >= 5 else []):
                    if kk <= 13:
                        for j, it in enumerate(slot_dma(kk)): s_dma.add(it, g + 1, g + {4: 50, 5: 150, 6: 260}.get(kk, 120))
            for r in read(t): s_rd.add(r, g, g + 1)
    s_dma.add(f"s_and_b32 s{S_LASTSRC}, s{S_IDX}, 15", bar_gap[11] + 60)
    s_dma.add(f"s_mul_i32 s{S_LASTSRC}, s{S_LASTSRC}, {126*1024}", bar_gap[11] + 60)
    s_dma.add(f"s_add_u32 s{S_LASTSRC}, s{S_LASTSRC}, {WQ}", bar_gap[11] + 60)
    s_dma.add([ins(f"s_cmp_lg_u32 s{S_LF}, 0"), ins(f"s_cselect_b32 s{S_LASTSRC}, {WS_BYTES:#x}, s{S_LASTSRC}")], bar_gap[11] + 60)
    for k, f0, sm, cnt in ((11, 36, S_LASTM0, 5), (12, 54, S_M0, 9), (13, 90, S_M0, 9)):
        for j in range(cnt):
            if j % 4 == 0:
                s_dma.add(f"s_add_u32 s{S_TMP2}, s{sm}, {(f0+j)*1024}", bar_gap[k] + 1)
                s_dma.add(f"s_add_u32 m0, s{S_TMP2}, {LDS_WQ}", bar_gap[k] + 1)
                s_dma.add(f"s_add_u32 s{S_TMP2}, s{S_TMP2}, s{S_LASTSRC}", bar_gap[k] + 1)
            s_dma.add(f"buffer_load_dwordx4 v{V_L16}, {WSR}, s{S_TMP2} offen offset:{1024*(j&3)} lds", bar_gap[k] + 1, tag="wq2")
    for c in range(OPT.get("xup", 2), 18):
        for it in xload(c): s_ld.add(it, 0, 24 * c - 60)
    ga = G(marks["pass0_end"]) - 50
    A_, B_, M_, R_ = TMP + 12, TMP + 13, TMP + 14, TMP + 15
    s = lambda cg: TMP + 2 * cg
    e = [f"v_add_f32 v{M_}, v{s(0)}, v{s(1)}", f"v_add_f32 v{R_}, v{s(0)+1}, v{s(1)+1}"]
    for cg in range(2, 6): e += [f"v_add_f32 v{M_}, v{M_}, v{s(cg)}", f"v_add_f32 v{R_}, v{R_}, v{s(cg)+1}"]
    e += [f"v_mul_f32 v{M_}, 0xbae38e39, v{M_}"]
    for cg in range(6):
        e += [f"v_fmamk_f32 v{B_}, v{s(cg)}, 0x3c2aaaab, v{M_}",
              f"v_mul_f32 v{A_}, v{B_}, v{B_}" if cg == 0 else f"v_fmac_f32 v{A_}, v{B_}, v{B_}"]
    e += [f"v_fmac_f32 v{R_}, 0x42c00000, v{A_}", f"v_mov_b32 v{B_}, 0x3727c5ac",
          f"v_fmac_f32 v{B_}, 0x3ae38e39, v{R_}", f"v_rcp_f32 v{R_}, v{B_}",
          f"v_and_b32 v{A_}, 15, v{V_LANE}", f"v_lshlrev_b32 v{A_}, 2, v{A_}"]
    for tt in range(4):
        e += [f"ds_bpermute_b32 v{NM+tt}, v{A_}, v{M_} offset:{64*tt}", f"ds_bpermute_b32 v{RS2+tt}, v{A_}, v{R_} offset:{64*tt}"]
    for x in e: s_ep.add(x, ga, G(marks["pass0_end"]))
    seq = [0, 1, 8, 2, 3, 4, 5, 6, 7]
    csb = lambda tile: CS + 8 * (seq.index(tile) & 1)
    def cs_reads(tile, g):
        for mat in range(2):
            s_ep.add(f"ds_read_b128 {vr(csb(tile)+4*mat,4)}, v{V_CS} offset:{pos_of_tile(tile)*128+64*mat}", g)
    def epilogue(tile, g, dl):
        cb = csb(tile)
        for tt in range(4):
            gq, uq = bufs[tile][0] + 4 * tt, bufs[tile][1] + 4 * tt
            for r in range(4): s_ep.add(f"v_fmac_f32 v{gq+r}, v{cb+r}, v{NM+tt}", g, dl)
            for r in range(4): s_ep.add(f"v_fmac_f32 v{uq+r}, v{cb+4+r}, v{NM+tt}", g, dl)
            for r in range(4): s_ep.add(f"v_mul_f32 v{gq+r}, v{gq+r}, v{RS2+tt}", g, dl)
            for r in range(4): s_ep.add(f"v_mul_f32 v{gq+r}, v{gq+r}, v{uq+r}", g, dl)
            dst = H8 + 4 * tt if tile == 8 else HO + 16 * (tile >> 1) + 4 * tt + 2 * (tile & 1)
            for j in range(2): s_ep.add(f"v_cvt_pk_bf16_f32 v{dst+j}, v{gq+2*j}, v{gq+2*j+1}", g, dl)
            if tile == 8:
                if tt == 0: s_ep.add(f"s_add_u32 s66, s{S_H}, s65", g, dl)
                s_ep.add(f"buffer_store_dwordx2 {vr(dst,2)}, v{V_L8}, {WSR}, s66 offen offset:{512*tt}{sc}", g, dl, tag="h8")
            elif tile & 1:
                if tt == 0: s_ep.add(f"s_add_u32 s66, s{S_H}, {(tile>>1)*16*1024}", g, dl)
                s_ep.add(f"buffer_store_dwordx4 {vr(dst-2,4)}, v{V_L16}, {WSR}, s66 offen offset:{1024*tt}{sc}", g, dl, tag=f"h{tile>>1}")
    gp = lambda t: G(marks[f"pass{t}"]) if t < 8 else G(marks["g2"])
    cs_reads(0, gp(2) - 20); cs_reads(1, gp(2) - 20)
    epilogue(0, gp(2) + 6, gp(3)); cs_reads(8, gp(2)); epilogue(1, gp(2) + 6, gp(3))
    cs_reads(2, gp(2)); epilogue(8, gp(2) + 6, gp(4)); cs_reads(3, gp(3)); epilogue(2, gp(3) + 6, gp(4) + 40)
    for tile in range(3, 8):
        if tile < 7: cs_reads(tile + 1, gp(tile + 1) - 100)
        epilogue(tile, gp(tile + 1) + 6, gp(tile + 1) + (140 if tile < 7 else 60))
    s_sg = Stream("sig")
    def sig(stage, tag, g):
        it = signal_items(71, V_T0, sc)
        s_sg.add(f"s_add_u32 s71, s67, {32*stage}", g - 2, g)
        s_sg.add(it[0], g - 2, g); s_sg.add(it[1], g - 2, g)
        s_sg.add(WaitTag(tag, "vm"), g, g)
        s_sg.add(it[2], g + 1, g + 3, cost=2)
    g7 = G(marks["pass7"]); g2 = G(marks["g2"])
    sig(0, "h1", G(marks["pass5"]) + OPT.get("s0", -6))
    sig(1, "h2", g7 - 4)
    sig(2, "h3", G(marks["step3"]) + OPT.get("s2", 8))
    def addpoll(pl, g_issue, g_check, st=None):
        st = st or s_ld
        st.add(pl.issue(), g_issue, g_issue + 3)
        st.add(pl.check(), g_check, g_check + 1, cost=2)
    gw = G(marks["pass3"]) + 70
    s_ld.add(f"v_min_u32 v0, 17, v{V_LANE}", gw - 4); s_ld.add(f"v_lshlrev_b32 v0, 3, v0", gw - 4)
    s_ld.add(f"s_add_u32 s55, s{S_FW}, {36*8}", gw - 4)
    pd_ = OPT.get("pdist", 56)
    addpoll(Poll(p, V_T0, 0, 55, "pd"), gw, gw + pd_)
    if OPT.get("dtouch", 1):
        nw = 4 << rr; nl = -(-162 * 8 // nw)
        for t in (f"s_lshr_b32 s55, s{S_IDX}, {5-rr}", f"s_lshl_b32 s55, s55, 2", f"s_add_u32 s55, s55, s{S_WAVE}", f"s_mul_i32 s55, s55, {nl*128}",
                  f"s_mul_i32 s{S_TMP}, s{S_SL}, {486*1024}", f"s_add_u32 s55, s55, s{S_TMP}", f"s_add_u32 s55, s55, {WF+324*1024}"):
            s_ld.add(t, gw + pd_ + 2)
        for it in touch_items(55, nl, 0, V_T0, ""): s_ld.add(it, gw + pd_ + 2)
    polls = [Poll(p, V_T0, 0, 55, f"p{k}") for k in range(3)]
    s_ld.add(f"v_and_b32 v0, 3, v{V_LANE}", g7 - 40 - pd_); s_ld.add(f"v_lshlrev_b32 v0, 3, v0", g7 - 40 - pd_)
    s_ld.add(f"s_mov_b32 s55, s{S_FL}", g7 - 40 - pd_)
    addpoll(polls[0], g7 - 20 - pd_, g7 - 20)
    ldh = ld
    need = lambda st: G(marks[f"step{st}"]) if st < 9 else G(marks["step9"]) + 8 * (st - 9)
    for tt in range(4):
        if tt == 0: s_ld.add(f"s_add_u32 s{S_TMP}, s{S_R}, s65", g7 - 18)
        s_ld.add(f"buffer_load_dwordx2 {vr(H8+4*tt+2,2)}, v{V_L8}, {WSR}, s{S_TMP} offen offset:{512*tt}{ldh}", g7 - 18, need(4) - 150)
    for j in range(2):
        s_ld.add(f"s_add_u32 s{S_TMP}, s{S_R+1+j}, s65", g7 + 8)
        for tt in range(4):
            s_ld.add(f"buffer_load_dwordx2 {ar(4*tt+2*j,2)}, v{V_L8}, {WSR}, s{S_TMP} offen offset:{512*tt}{ldh}", g7 + 8, need(5) - 150)
    def hload(st, g, dl):
        i = st - 6
        s_ld.add(f"s_add_u32 s{S_TMP}, s{S_R+i%3}, {(i//3)*16*1024}", g)
        for tt in range(4):
            s_ld.add(f"buffer_load_dwordx4 {hstep(st,tt)}, v{V_L16}, {WSR}, s{S_TMP} offen offset:{1024*tt}{ldh}", g, dl)
    for st in range(6, 12): hload(st, g7 + 8 * (st - 4), need(st) - 150)
    s_ld.add(f"s_add_u32 s55, s{S_FL}, 32", g2 + 90 - pd_)
    addpoll(polls[1], g2 + 100 - pd_, g2 + 100)
    for st in range(12, 15): hload(st, g2 + 101, need(st) - 100)
    gB = G(marks["step7"])
    gB += OPT.get("pb", 12)
    s_ld.add(f"s_add_u32 s55, s{S_FL}, 64", gB - 10 - pd_)
    addpoll(polls[2], gB - pd_, gB)
    for st in range(15, 18): hload(st, gB + 1, need(st) - 60)
    s_o = Stream("out")
    gB += 4
    s_o.add(f"s_and_b32 s68, s{S_M}, 1", gB)
    s_o.add(f"s_mul_i32 s69, s68, {5*1024}", gB); s_o.add(f"s_add_u32 s69, s69, s{S_P}", gB)
    s_o.add(f"s_lshl_b32 s68, s68, 9", gB); s_o.add(f"s_add_u32 s68, s68, s{S_P}", gB)
    s_o.add(f"v_and_b32 v0, 15, v{V_LANE}", gB); s_o.add(f"v_lshlrev_b32 v0, 5, v0", gB)
    s_o.add(f"v_lshrrev_b32 v{V_CS}, 4, v{V_LANE}", gB); s_o.add(f"v_lshl_add_u32 v0, v{V_CS}, 3, v0", gB)
    for pr in range(4):
        g = G(last_of[2 * pr + 1]) + 4
        for tt in range(4):
            a = acc2(2 * pr, tt)
            for j in range(4): s_o.add(f"v_cvt_pk_bf16_f32 v{a+j}, v{a+2*j}, v{a+2*j+1}", g)
            s_o.add(f"s_add_u32 s70, s69, {tt*18*1024+pr*1024}", g)
            s_o.add(f"buffer_store_dwordx4 {vr(a,4)}, v{V_L16}, {WSR}, s70 offen{scp}", g, tag="pout")
    g = len(bb)
    for tt in range(4):
        a = acc2(8, tt)
        for j in range(2): s_o.add(f"v_cvt_pk_bf16_f32 v{a+j}, v{a+2*j}, v{a+2*j+1}", g)
        s_o.add(f"s_add_u32 s70, s68, {tt*18*1024+4*1024}", g)
        s_o.add(f"buffer_store_dwordx2 {vr(a,2)}, v0, {WSR}, s70 offen{scp}", g, tag="pout")
    if "nostore" in DBG: s_ep.q = [e for e in s_ep.q if not _isvm(e[2])]; s_o.q = [e for e in s_o.q if not _isvm(e[2])]
    if "nodma" in DBG: s_dma.q = []
    if "noep" in DBG: s_ep.q = [e for e in s_ep.q if getattr(e[2], "kind", "") != "valu"]
    if "nohld" in DBG: s_ld.q = [e for e in s_ld.q if not (e[0] > 500 and _isvm(e[2]) and "dwordx" in e[2].text)]
    s_st = Stream("stamp")
    if STAMP[0]:
        for k, mk in enumerate(("pass2", "pass3", "pass5", "pass7", "g2", "step3", "step6", "step9")):
            s_st.add(stamp_ins(2 + k), G(marks[mk]) + 2, G(marks[mk]) + 2)
    weave(p, bb, [s_rd, s_sg, s_ld, s_ep, s_o, s_dma, s_st], wait_gaps=lambda g: g % 4 == 0, quiet=lambda g: g2 + 4 <= g < g2 + 52)
    stamp(p, 10)
    p(f"""s_lshl_b32 s{S_TMP}, s{S_RB}, 2
    s_add_u32 s{S_TMP}, s{S_TMP}, s{S_WAVE}
    s_lshl_b32 s{S_TMP}, s{S_TMP}, 5
    s_add_u32 s{S_TMP}, s{S_TMP}, s{S_SL}
    s_lshl_b32 s{S_TMP}, s{S_TMP}, 3
    s_add_u32 s{S_TMP}, s{S_TMP}, s{S_LF}
    s_add_u32 s{S_TMP}, s{S_TMP}, {FPB}""")
    signal(p, S_TMP, V_T0, "pout", scp)
    stamp(p, 11)

def reduce_phase(p, l, lds_off, sc=" sc1", ld=" sc1", pre=None, w3=None):
    V_LANE = 1
    lh = 0 if OPT.get("reuse") else l
    VROW, VFR, VP, VLD, VX, VS, VO = 3, 4, 5, 16, 128, 152, 160
    if pre: pre()
    p(f"s_lshl_b32 s47, s{S_XCD}, 5\ns_add_u32 s47, s47, s{S_IDX}")
    ln_addr(p, 47, V_LANE, VROW, VFR, 8, 48)
    p(f"""v_lshrrev_b32 v8, 3, v{V_LANE}
    v_and_b32 v9, 7, v{V_LANE}
    s_and_b32 s48, s47, 1
    s_lshl_b32 s48, s48, 3
    v_add_u32 v9, s48, v9
    v_lshlrev_b32 v9, 4, v9
    v_bfe_u32 v10, v8, 1, 1
    v_and_b32 v11, 1, v8
    v_lshl_add_u32 v9, v11, 4, v9
    v_lshl_add_u32 v9, v10, 9, v9
    v_and_b32 v10, 3, v8
    v_lshlrev_b32 v10, 8, v10
    v_sub_u32 v9, v9, v10
    s_mul_i32 s48, s{S_WAVE}, 6
    v_lshrrev_b32 v8, 2, v8
    v_add_u32 v8, s48, v8""")
    for i in range(3):
        p(f"""v_add_u32 v10, {2*i}, v8
        v_cmp_eq_u32 vcc, 4, v10
        v_cmp_eq_u32 s[56:57], 13, v10
        s_or_b64 vcc, vcc, s[56:57]
        v_cndmask_b32 v10, 0, v9, vcc
        v_add3_u32 v{VP+i}, v{VFR}, v10, {0}
        v_add_u32 v{VP+i}, {2048*i}, v{VP+i}""")
    l_skip = p.label("w3a")
    p(f"s_cmp_eq_u32 s{S_WAVE}, 3\ns_cbranch_scc1 {l_skip}")
    p(f"s_mov_b32 s48, {LB(l)+X1}")
    for i in range(3):
        if i == 2: p("s_add_u32 s48, s48, 4096")
        p(f"buffer_load_dwordx4 {vr(VLD+36*i,4)}, v{VFR}, {WSR}, s48 offen offset:{2048*(i&1)}{ld}")
    p(f"""s_lshr_b32 s49, s47, 3
    s_lshl_b32 s49, s49, 8
    s_add_u32 s49, s49, {FPB+l*0x2000}
    v_and_b32 v10, 31, v{V_LANE}
    v_lshlrev_b32 v10, 3, v10""")
    p.add(Poll(p, 176, 10, 49, "pp", alt=178).both()); stamp(p, 1)
    for q in range(8):
        p(f"s_mov_b32 s48, {LB(lh)+PB+q*XBYTES}")
        for i in range(3):
            p(f"buffer_load_dwordx4 {vr(VLD+36*i+4+4*q,4)}, v{VP+i}, {WSR}, s48 offen{ld}")
    for i in range(3): unpack8(p, VX + 8 * i, VLD + 36 * i)
    p(f"v_mov_b32 v12, 0x3f80\nv_mov_b32 v13, 0x3f800000")
    for q in range(8):
        for i in range(3):
            b = VLD + 36 * i + 4 + 4 * q
            for j in range(4):
                p(f"v_dot2c_f32_bf16 v{VX+8*i+2*j}, v{b+j}, v12\nv_dot2c_f32_bf16 v{VX+8*i+2*j+1}, v{b+j}, v13")
    if l == 0: stamp(p, 3)
    if l == 1: srd(p, S_O, P_OUT, XBYTES)
    else: p(f"s_add_u32 s{S_O}, s{P_WS}, {LB(0)+X2R}\ns_addc_u32 s{S_O+1}, s{P_WS+1}, 0\ns_mov_b32 s{S_O+2}, {XBYTES:#x}\ns_mov_b32 s{S_O+3}, 0x20000")
    for i in range(3):
        for j in range(4): p(f"v_cvt_pk_bf16_f32 v{VO+4*i+j}, v{VX+8*i+2*j}, v{VX+8*i+2*j+1}")
        p(f"buffer_store_dwordx4 {vr(VO+4*i,4)}, v{VROW}, s[{S_O}:{S_O+3}], 0 offen offset:{128*i}{sc if l == 0 else ' ' + OPT.get('outsc', '')}")
    if l == 1:
        p(f"{l_skip}:")
        return
    for i in range(3): unpack8(p, VX + 8 * i, VO + 4 * i)
    ln_local_stats(p, VX, VS, VS + 1, 8)
    p(f"""v_and_b32 v8, 7, v{V_LANE}
    s_mul_i32 s46, s{S_WAVE}, 64
    s_add_u32 s46, s46, {lds_off}
    v_lshl_add_u32 v8, v8, 3, s46
    ds_write_b64 v8, v[{VS}:{VS+1}]""")
    p.drain(vm=False)
    if w3:
        l_join = p.label("join")
        p(f"s_branch {l_join}\n{l_skip}:")
        w3()
        p(f"{l_join}:\ns_barrier")
    else: p(f"{l_skip}:\ns_barrier")
    stamp(p, 4)
    l_skip2 = p.label("w3b")
    p(f"s_cmp_eq_u32 s{S_WAVE}, 3\ns_cbranch_scc1 {l_skip2}")
    p(f"v_and_b32 v8, 7, v{V_LANE}\nv_lshlrev_b32 v8, 3, v8\nv_add_u32 v8, {lds_off}, v8")
    for w in range(3): p(f"ds_read_b64 v[{VS+2*w}:{VS+2*w+1}], v8 offset:{64*w}")
    ln_finish(p, VX, VS, 16, 8)
    p(f"s_mov_b32 s46, {LB(l+1)+XN}")
    for i in range(3):
        if i == 2: p("s_add_u32 s46, s46, 4096")
        p(f"buffer_store_dwordx4 {vr(16+4*i,4)}, v{VFR}, {WSR}, s46 offen offset:{2048*(i&1)}{sc}")
    p(f"s_lshl_b32 s46, s47, 2\ns_add_u32 s46, s46, s{S_WAVE}\ns_lshl_b32 s46, s46, 3\ns_add_u32 s46, s46, {FX(l+1)}")
    stamp(p, 5)
    signal(p, 46, 8)
    p(f"{l_skip2}:")
```

```python
from common import *
from k_prep import *
from k_attn import MF, attn_bias, attn_part, wo_setup, wo_wdma, wo_pre, wo_main
from k_ffn import ffn_phase, ffn_pw_issue, reduce_phase, LDS_CS, LDS_WQ
V_LANE, V_L16 = 1, 2
LDS_EX = LDS_CS + 1152
LDS_LN = LDS_EX + 4 * 3072
LDS_HALO = 0
LDS_STG = 108 * 1024
LDS_TOTAL = 163840
S_AB, S_HP, S_T0, S_WSRC, S_WM0, S_XS, S_HS = 44, 45, 46, 47, 48, 51, 49
VTA, VTB, VTC, VG = 229, 238, 247, 220
A_UA, A_UB, A_UC = 144, 180, 216
S_UA, S_UB, S_UC = 3, 30, 31
SB, SBT = 58, 92

def LD(): return "" if OPT.get("plainld") else " sc1"

def qkv_setup(p, l):
    p(f"""s_lshr_b32 s{S_AB}, s{S_IDX}, 4
    s_lshl_b32 s52, s{S_XCD}, 1
    s_add_u32 s{S_AB}, s{S_AB}, s52
    s_and_b32 s{S_HP}, s{S_IDX}, 15
    s_mul_i32 s{S_WM0}, s{S_WAVE}, 21
    s_lshr_b32 s{S_WM0}, s{S_WM0}, 1
    s_lshl_b32 s{S_WM0}, s{S_WM0}, 10
    s_mul_i32 s{S_WSRC}, s{S_HP}, {126*1024}
    s_add_u32 s{S_WSRC}, s{S_WSRC}, s{S_WM0}
    s_add_u32 s{S_WSRC}, s{S_WSRC}, {WQ}""")

def qkv_wdma(g):
    r = []
    for j0 in range(0, 11, 4):
        r.append(ins(f"s_add_u32 m0, s{S_WM0}, {LDS_WQ+g*42*1024+j0*1024}"))
        r.append(ins(f"s_add_u32 s53, s{S_WSRC}, {g*42*1024+j0*1024}"))
        for j in range(j0, min(j0 + 4, 11)):
            r.append(ins(f"buffer_load_dwordx4 v{V_L16}, {WSR}, s53 offen offset:{1024*(j-j0)} lds", f"wq{g}"))
    return r

def qkv_main(p, l, extra=None, pre_signal=None, post_poll=None, trickle=None):
    V_W, V_HT, V_HN, V_XH = 3, 4, 5, 10
    ACC, HACC, WB, HB_ = 16, 80, 88, 144
    p(f"""s_lshl_b32 s{S_T0}, s{S_AB}, 3
    s_max_u32 s52, s{S_T0}, 1
    s_sub_u32 s52, s52, 1
    s_mul_i32 s{S_HS}, s52, {18*1024}
    s_mul_i32 s50, s{S_WAVE}, 9
    s_lshr_b32 s50, s50, 1
    s_lshl_b32 s50, s50, 10
    s_add_u32 s{S_HS}, s{S_HS}, s50
    s_add_u32 s{S_HS}, s{S_HS}, {LB(l)+XN}
    s_add_u32 s50, s50, {LDS_HALO}
    s_lshl_b32 s54, s52, 6
    s_lshl_b32 s52, s{S_WAVE}, 1
    s_add_u32 s{S_T0}, s{S_T0}, s52
    s_mul_i32 s{S_XS}, s{S_T0}, {18*1024}
    s_add_u32 s{S_XS}, s{S_XS}, {LB(l)+XN}
    s_lshl_b32 s55, s{S_T0}, 6""")
    p(f"""v_and_b32 v6, 3, v{V_LANE}
    v_min_u32 v6, 2, v6
    v_and_b32 v7, 12, v{V_LANE}
    v_add_lshl_u32 v8, v6, v7, 3
    v_add_u32 v8, s55, v8
    v_and_b32 v7, 4, v{V_LANE}
    v_add_lshl_u32 v9, v6, v7, 3
    v_add_u32 v9, s54, v9
    v_and_b32 v7, 16, v{V_LANE}
    v_cmp_eq_u32 vcc, 0, v7
    v_cndmask_b32 v8, v9, v8, vcc""")
    if l == 0:
        p(f"""v_subrev_u32 v7, 32, v{V_LANE}
        v_min_u32 v7, 17, v7
        s_lshl_b32 s52, s{S_HP}, 8
        s_add_u32 s52, s52, {FWQ-FX(0)}
        v_lshl_add_u32 v7, v7, 3, s52
        v_cmp_gt_u32 vcc, 32, v{V_LANE}
        v_cndmask_b32 v8, v7, v8, vcc""")
    else:
        p(f"s_min_u32 s52, s{S_IDX}, 23")
        sdiv(p, 52, 52, 6, 32)
        p(f"""s_lshl_b32 s53, s{S_XCD}, 2
        s_add_u32 s52, s52, s53
        s_lshl_b32 s52, s52, 2
        s_add_u32 s52, s52, s{S_WAVE}
        s_lshl_b32 s52, s52, 6
        v_and_b32 v7, 4, v{V_LANE}
        v_add_lshl_u32 v7, v6, v7, 3
        v_add_u32 v7, s52, v7
        v_cmp_gt_u32 vcc, 32, v{V_LANE}
        v_cndmask_b32 v8, v7, v8, vcc""")
    p(f"s_mov_b32 s52, {FX(l)}")
    acc = lambda tt, j: vr(ACC + 32 * tt + 4 * j, 4)
    wf = lambda c, t: vr(WB + 28 * (c & 1) + 4 * t, 4)
    hf = lambda h, j: vr(HB_ + 12 * (h & 1) + 4 * j, 4)
    xf = lambda tt, c: ar(72 * tt + 4 * c, 4)
    def reads(c):
        r = [f"v_add_u32 v{V_W}, {9*7168}, v{V_W}"] if c == 9 else []
        return r + [f"ds_read_b128 {wf(c, t)}, v{V_W} offset:{(c%9)*7168+1024*t}" for t in (0, 1, 2, 3, 6, 4, 5)]
    def hreads(h):
        r = [f"v_add_u32 v{v}, {9*7168}, v{v}" for v in (V_HT, V_HN)] if h == 9 else []
        return r + [f"ds_read_b128 {hf(h, 0)}, v{V_XH} offset:{1024*h}", f"ds_read_b128 {hf(h, 1)}, v{V_HT} offset:{(h%9)*7168}",
                    f"ds_read_b128 {hf(h, 2)}, v{V_HN} offset:{(h%9)*7168}"]
    p(f"""s_min_u32 s56, s{S_WAVE}, 2
    s_add_u32 s57, s56, 2
    s_and_b32 s56, s{S_WAVE}, 1
    s_add_u32 s56, s56, 4
    s_cmp_ge_u32 s{S_WAVE}, 2
    s_cselect_b32 s57, 6, s57
    s_lshl_b32 s57, s57, 10
    s_lshl_b32 s56, s56, 10
    v_add_u32 v{V_W}, {LDS_WQ}, v{V_L16}
    v_add_u32 v{V_HT}, s57, v{V_W}
    v_add_u32 v{V_HN}, s56, v{V_W}
    v_add_u32 v{V_XH}, {LDS_HALO}, v{V_L16}""")
    if l == 1:
        p.wait_vm("wq2"); p.drain(lg=False); p("s_barrier")
        p.add(reads(0))
    p("v_mov_b32 v11, v8\ns_mov_b32 s23, s52")
    px = Poll(p, 12, 11, 23, "px", alt=84)
    p.add(px.issue())
    attn_bias(p, S_AB)
    p(f"s_mul_i32 s53, s{S_HP}, {18*128}\ns_add_u32 s53, s53, s{S_XS}")
    p.add(px.check()); stamp(p, 1)
    if post_poll: post_poll()
    if OPT.get("touch", 0): p.add(touch_items(53, 18, 11, 12))
    def xload(c):
        r = []
        for tt in range(2):
            if c % 4 == 0: r.append(ins(f"s_add_u32 s{54+tt}, s{S_XS}, {tt*18*1024+c*1024}"))
            r.append(ins(f"buffer_load_dwordx4 a[{72*tt+4*c}:{72*tt+4*c+3}], v{V_L16}, {WSR}, s{54+tt} offen offset:{1024*(c&3)}{LD()}"))
        return r
    def halo():
        r = []
        for g in range(2):
            r.append(ins(f"s_add_u32 m0, s50, {4096*g}")); r.append(ins(f"s_add_u32 s53, s{S_HS}, {4096*g}"))
            for j in range(4 if g == 0 else 1):
                r.append(ins(f"buffer_load_dwordx4 v{V_L16}, {WSR}, s53 offen offset:{1024*j}{LD()} lds", "halo"))
        return r
    sl = Stream("ld")
    if l == 0:
        p("s_barrier")
        p.add(qkv_wdma(0))
        for c in range(6): p.add(xload(c))
        p.add(qkv_wdma(1))
        late = halo() + sum((xload(c) for c in range(6, 12)), []) + qkv_wdma(2) + sum((xload(c) for c in range(12, 18)), [])
    else:
        nup = OPT.get("qup", 3)
        if not OPT.get("qnold"):
            for c in range(nup): p.add(xload(c))
        late = halo() + sum((xload(c) for c in range(nup, 18)), [])
    hs = {c: [] for c in range(18)}
    for h in range(18): hs[6 + h if h < 6 else 12 + (h - 6) // 2].append(h)
    if l == 0:
        p.wait_vm("wq0"); p("s_barrier")
        p.add(reads(0))
    bb = []; sr_ = Stream("rd"); sh = Stream("hrd")
    hpos = {}
    for c in range(18):
        g0 = len(bb)
        C = lambda d: "0" if c == 0 else d
        main = []
        for j, t in enumerate((0, 1, 2, 3, 6)):
            for tt in range(2): main.append(ins(f"{MF} {acc(tt, j)}, {wf(c, t)}, {xf(tt, c)}, {C(acc(tt, j))}"))
        for j, t in ((5, 4), (6, 5)):
            for tt in range(2): main.append(ins(f"{MF} {acc(tt, j)}, {xf(tt, c)}, {wf(c, t)}, {C(acc(tt, j))}"))
        def hm(h):
            hpos[h] = len(bb)
            z = lambda d: "0" if h == 0 else d
            bb.append(ins(f"{MF} {vr(HACC, 4)}, {hf(h, 1)}, {hf(h, 0)}, {z(vr(HACC, 4))}"))
            bb.append(ins(f"{MF} {vr(HACC+4, 4)}, {hf(h, 0)}, {hf(h, 2)}, {z(vr(HACC+4, 4))}"))
        if len(hs[c]) == 2:
            bb += main[:6]; hm(hs[c][0]); bb += main[6:]; hm(hs[c][1])
        else:
            bb += main
            for h in hs[c]: hm(h)
        if c + 1 < 18:
            tags = []
            if c + 1 == 6: tags = (["wq1"] if l == 0 else []) + ["halo"]
            if c + 1 == 12 and l == 0: tags = ["wq2"]
            for t in tags: sr_.add(WaitTag(t, "vm"), g0 + 1, g0 + 1)
            if tags:
                sr_.add("s_barrier", g0 + 1, g0 + 1)
                if c + 1 == 6: gbar = g0 + 2
            for k, r in enumerate(reads(c + 1)): sr_.add(r, g0 + 1 + 2 * k - (k > 0) - (k > 4), g0 + 12)
    for h in range(18):
        e = max(gbar, hpos[h - 2] + 2 if h >= 2 else 0)
        for r in hreads(h): sh.add(r, e, hpos[h] - 5)
    sw_ = Stream("wt")
    for it in late: sl.add(it, 0)
    gstep = lambda c: next(i for i, m in enumerate(bb) if xf(0, c) in m.text)
    for e in sl.q:
        it = e[2]
        if it.kind == "vmem":
            if it.tag == "halo": e[1] = gstep(5) - 30
            elif it.tag == "wq2": e[1] = gstep(11) - 40
            else: e[1] = gstep((min(r[1] for r in it.dst) % 72) // 4) - 40
    if extra:
        for it in extra: sl.add(it, 0)
    if l == 0 and OPT.get("wtouch0", 0):
        pt = Poll(p, 14, 13, 23, "pt")
        for t in (f"s_lshl_b32 s56, s{S_IDX}, 2", f"s_add_u32 s56, s56, s{S_WAVE}", f"s_mul_i32 s56, s56, 41", f"s_mul_i32 s23, s56, {21846}",
                  f"s_lshr_b32 s23, s23, 20", f"v_and_b32 v13, 1, v{V_LANE}", f"v_add_u32 v13, s23, v13", f"v_min_u32 v13, 107, v13",
                  f"v_mul_u32_u24 v11, {magic(18, 108)}, v13", f"v_lshrrev_b32 v11, 16, v11", f"v_mad_u32_u24 v13, v11, 14, v13", f"v_lshlrev_b32 v13, 3, v13",
                  f"s_mov_b32 s23, {FWO}", f"s_lshl_b32 s56, s56, 7", f"s_add_u32 s56, s56, {WOS}"):
            sw_.add(t, 150)
        sw_.add(pt.issue(), 180); sw_.add(pt.check(), 230)
        for it in touch_items(56, 41, 11, 13, ""): sw_.add(it, 232)
    if l == 1 and OPT.get("wtouch", 1):
        rr = OPT.get("r", 3); nsl = 1 << (5 - rr); parts = 128 // nsl
        for t in (f"s_lshl_b32 s53, s{S_IDX}, 2", f"s_add_u32 s53, s53, s{S_WAVE}", f"s_mul_i32 s53, s53, {41*128}", f"s_add_u32 s53, s53, {WOS}"):
            sl.add(t, 0)
        for it in touch_items(53, 41, 11, 13, ""): sl.add(it, 0)
        for t in (f"s_and_b32 s53, s{S_XCD}, {(1 << rr) - 1}", f"s_lshl_b32 s53, s53, {5-rr}", f"s_and_b32 s54, s{S_IDX}, {nsl-1}",
                  f"s_add_u32 s53, s53, s54", f"s_mul_i32 s53, s53, {486*1024}", f"s_lshr_b32 s54, s{S_IDX}, {5-rr}", f"s_lshl_b32 s54, s54, 2",
                  f"s_add_u32 s54, s54, s{S_WAVE}", f"s_mul_i32 s54, s54, {1152//parts*128}", f"s_add_u32 s53, s53, s54", f"s_add_u32 s53, s53, {WF}"):
            sl.add(t, 0)
        for it in touch_items(53, min(1152 // parts, 128), 11, 14, ""): sl.add(it, 0)
    str_ = Stream("tr")
    if trickle:
        k = 0
        for it in trickle:
            str_.add(it, OPT.get("tr0", 40) + OPT.get("trs", 24) * k, OPT.get("tr0", 40) + OPT.get("trs", 24) * k + 4)
            if it.kind == "vmem": k += 1
    sst = Stream("st")
    if STAMP[0] and l == 1:
        for k, c in enumerate((1, 6, 12)): sst.add(stamp_ins(9 + k), gstep(c), gstep(c))
    if OPT.get("qnold") and l == 1: sl.q = [e for e in sl.q if not (e[2].kind == "vmem" and e[2].dst)]
    firsts = set(); seen_r = set()
    for g, mm in enumerate(bb):
        key = frozenset(r for r in mm.srcAB if r[0] == "v")
        prev = frozenset(r for r in bb[g-1].srcAB if r[0] == "v") if g else None
        if key != prev: firsts.add(g)
    weave(p, bb, [sr_, sh, sl, str_, sw_, sst], cap=2, vm_gap=4 if l == 0 else OPT.get("qgap", 4), wait_gaps=lambda g: g in firsts)
    stamp(p, 2)
    attn_part(p, l, S_T0, S_HP, LDS_EX, LOC("o"), LDS_LN + 256)
    stamp(p, 3)
    p(f"""s_lshl_b32 s52, s{S_AB}, 2
    s_add_u32 s52, s52, s{S_WAVE}
    s_lshl_b32 s52, s52, 4
    s_add_u32 s52, s52, s{S_HP}
    s_lshl_b32 s52, s52, 3
    s_add_u32 s52, s52, {FO(l)}""")
    if pre_signal: pre_signal()
    signal(p, 52, 8, "ost", LOC("o"))
    stamp(p, 4)

def wo_part(p, l, mid=None, after_poll=None, pwo=None, pre_signal=None):
    S_TB, S_CG, S_T = 44, 45, 46
    wo_setup(p, l)
    if pwo: p.add(pwo.check())
    wo_wdma(p)
    if mid: mid()
    p(f"""s_lshr_b32 s52, s{S_T}, 1
    s_lshl_b32 s52, s52, 7
    s_add_u32 s52, s52, {FO(l)}
    v_and_b32 v10, 15, v{V_LANE}
    v_lshlrev_b32 v10, 3, v10""")
    p(f"s_mul_i32 s53, s{S_CG}, {22*128}\ns_min_u32 s53, s53, {106*128}\ns_add_u32 s53, s53, s49")
    po = Poll(p, 12, 10, 52, "po", alt=176)
    wo_pre(p, l, LD(), po.issue())
    p.add(po.check()); stamp(p, 5)
    if OPT.get("touch", 0): p.add(touch_items(53, 22, 11, 12))
    if after_poll: after_poll()
    wo_main(p, l, LOC("x"), LD())
    p(f"""s_lshl_b32 s52, s{S_T}, 3
    s_add_u32 s52, s52, s{S_CG}
    s_lshl_b32 s52, s52, 3
    s_add_u32 s52, s52, {F1B+l*0x2000}""")
    if pre_signal: pre_signal()
    signal(p, 52, 8, "x1st", LOC("x"))
    stamp(p, 8)

def phase0(p):
    VROW, VFR, VRAW, VX, VS, VO = 3, 4, 8, 20, 44, 52
    S_ROLE, S_U, S_ST1, S_ST2, S_F1, S_F2, ST1, ST2 = 55, 67, 56, 57, 0, 1, 44, 84
    srd(p, S_X, P_X, XBYTES)
    srd(p, S_A, P_WQKV, D * 3 * D * 2)
    p(f"v_mov_b32 v{VROW}, 0\nv_mov_b32 v{VFR}, 0")
    l_n = p.label("nonce")
    p(f"""v_mov_b32 v5, 0
    s_or_b32 s44, s2, s{S_WAVE}
    s_cmp_lg_u32 s44, 0
    s_cbranch_scc1 {l_n}
    s_memrealtime s[44:45]""")
    p.drain(vm=False)
    p(f"""v_mov_b32 v6, s44
    v_mov_b32 v7, s45
    s_mov_b64 exec, 1
    global_store_dwordx2 v5, v[6:7], s[{P_DBG}:{P_DBG+1}] sc1
    s_mov_b64 exec, -1
    {l_n}:""")
    stamp(p, 1)
    l_w3, l_u = p.label("w3"), p.label("uend")
    p(f"s_cmp_eq_u32 s{S_WAVE}, 3\ns_cbranch_scc1 {l_w3}")
    p(f"s_lshl_b32 s47, s{S_XCD}, 5\ns_add_u32 s47, s47, s{S_IDX}")
    ln_addr(p, 47, V_LANE, VROW, VFR, 6, 48)
    for i in range(3):
        p(f"buffer_load_dwordx4 v[{VRAW+4*i}:{VRAW+4*i+3}], v{VROW}, s[{S_X}:{S_X+3}], 0 offen offset:{128*i}{NT()}")
    p(f"s_branch {l_u}\n{l_w3}:")
    def qissue(stg, st, sf, srd_, tag):
        p(f"""s_lshr_b32 s{sf}, s{S_U}, 4
        s_and_b32 s{S_U}, s{S_U}, 15
        s_mul_i32 s{S_U}, s{S_U}, 18
        s_add_u32 s{S_U}, s{S_U}, s{sf}""")
        qkv_unit_issue(p, S_U, stg, V_LANE, 64, st, srd_, tag)
        p(f"s_lshl_b32 s{sf}, s{st}, 5\ns_add_u32 s{sf}, s{sf}, s{st+1}\ns_lshl_b32 s{sf}, s{sf}, 3\ns_add_u32 s{sf}, s{sf}, {FWQ}")
    l_w = p.label("uw")
    p(f"""s_mov_b32 s{S_ROLE}, 0
    s_mov_b32 s{S_ST1}, 0
    s_mov_b32 s{S_ST2}, 8192
    s_mul_i32 s{S_U}, s{S_XCD}, 36
    s_add_u32 s{S_U}, s{S_U}, s{S_IDX}""")
    qissue(S_ST1, ST1, S_F1, S_A, "au1")
    p(f"""s_cmp_ge_u32 s{S_IDX}, 4
    s_cbranch_scc1 {l_w}
    s_mov_b32 s{S_ROLE}, 1
    s_mul_i32 s{S_U}, s{S_XCD}, 36
    s_add_u32 s{S_U}, s{S_U}, s{S_IDX}
    s_add_u32 s{S_U}, s{S_U}, 32""")
    qissue(S_ST2, ST2, S_F2, S_A, "au2")
    p(f"""s_branch {l_u}
    {l_w}:
    s_cmp_ge_u32 s{S_IDX}, 18
    s_cbranch_scc1 {l_u}
    s_mul_i32 s{S_U}, s{S_XCD}, 14
    s_add_u32 s{S_U}, s{S_U}, s{S_IDX}
    s_sub_u32 s{S_U}, s{S_U}, 4
    s_cmp_ge_u32 s{S_U}, 108
    s_cbranch_scc1 {l_u}
    s_mov_b32 s{S_ROLE}, 2""")
    wo_unit_issue(p, S_U, S_ST2, V_LANE, 64, ST2, S_A, "au2")
    p(f"""s_lshl_b32 s{S_F2}, s{ST2}, 5
    s_add_u32 s{S_F2}, s{S_F2}, s{ST2+1}
    s_lshl_b32 s{S_F2}, s{S_F2}, 3
    s_add_u32 s{S_F2}, s{S_F2}, {FWO}
    {l_u}:""")
    stamp(p, 2)
    if OPT.get("tlb"):
        n = OPT["tlb"]
        p(f"""s_lshl_b32 s52, s{S_IDX}, 2
        s_add_u32 s52, s52, s{S_WAVE}
        s_lshl_b32 s52, s52, 20
        v_min_u32 v218, {n-1}, v{V_LANE}
        v_mul_u32_u24 v218, {(1 << 20) // n}, v218
        buffer_load_dword v218, v218, {WSR}, s52 offen nt""")
    unit_pieces(p, V_LANE, VG, 64)
    def gu_number(s):
        p(f"s_lshr_b32 s52, s{s}, 5\ns_and_b32 s{s}, s{s}, 31\ns_mul_i32 s{s}, s{s}, 36\ns_add_u32 s{s}, s{s}, s52")
    p(f"""s_lshl_b32 s{S_UA}, s{S_XCD}, 7
    s_lshl_b32 s52, s{S_IDX}, 2
    s_add_u32 s53, s52, s{S_WAVE}
    s_add_u32 s{S_UA}, s{S_UA}, s53""")
    gu_number(S_UA)
    ffn_unit_setup(p, S_UA, SB, S_O, SBT); unit_table(p, SB, VG, VTA, 64)
    late = OPT.get("late", 1)
    if not late: p.add(unit_loads(S_O, VTA, A_UA))
    l_i, l_d, l_b, l_e = p.label("ui"), p.label("ud"), p.label("ub"), p.label("ue")
    p(f"""s_mov_b32 s{S_UB}, -1
    s_mov_b32 s{S_UC}, -1
    s_mul_i32 s54, s{S_XCD}, 72
    s_add_u32 s54, s54, 1152
    s_cmp_ge_u32 s{S_IDX}, 24
    s_cbranch_scc1 {l_i}
    s_cmp_lg_u32 s{S_WAVE}, 3
    s_cbranch_scc1 {l_e}
    s_add_u32 s{S_UB}, s54, s{S_IDX}
    s_add_u32 s{S_UB}, s{S_UB}, 48
    s_branch {l_b}
    {l_i}:
    s_sub_u32 s53, s53, 96
    s_add_u32 s{S_UC}, s54, s53
    s_add_u32 s{S_UB}, s{S_UC}, -16
    s_add_u32 s{S_UC}, s{S_UC}, 16
    s_cmp_ge_u32 s53, 16
    s_cbranch_scc1 {l_d}
    s_lshl_b32 s{S_UB}, s{S_XCD}, 4
    s_add_u32 s{S_UB}, s{S_UB}, s53
    s_add_u32 s{S_UB}, s{S_UB}, 1024""")
    gu_number(S_UB)
    p(f"{l_d}:\n{l_b}:\n{l_e}:")
    for s_u, ab, sd, vt in ((S_UB, A_UB, S_A, VTB), (S_UC, A_UC, S_X, VTC)):
        l_s = p.label("absent")
        if not late: sd, vt = S_O, VTA
        else:
            for i in range(9): p(f"v_mov_b32 v{vt+i}, 0")
        p(f"s_mov_b32 s{sd+2}, 0\ns_cmp_eq_u32 s{s_u}, -1\ns_cbranch_scc1 {l_s}")
        ffn_unit_setup(p, s_u, SB, sd, SBT); unit_table(p, SB, VG, vt, 64)
        p(f"{l_s}:")
        if not late: p.add(unit_loads(sd, vt, ab))
    pn = NoncePoll(p, 6, 5, 0, "pn")
    l2, l3, l4 = p.label("w3"), p.label("w3"), p.label("ln")
    p(f"s_cmp_eq_u32 s{S_WAVE}, 3\ns_cbranch_scc1 {l2}")
    for i in range(3): unpack8(p, VX + 8 * i, VRAW + 4 * i)
    ln_local_stats(p, VX, VS, VS + 1, 64)
    p(f"""v_and_b32 v64, 7, v{V_LANE}
    s_mul_i32 s46, s{S_WAVE}, 64
    s_add_u32 s46, s46, {LDS_LN}
    v_lshl_add_u32 v64, v64, 3, s46
    ds_write_b64 v64, v[{VS}:{VS+1}]""")
    p.drain(vm=False)
    p(f"{l2}:\ns_barrier"); stamp(p, 3)
    p.add(pn.issue())
    p(f"s_cmp_eq_u32 s{S_WAVE}, 3\ns_cbranch_scc1 {l3}")
    p(f"v_and_b32 v64, 7, v{V_LANE}\nv_lshlrev_b32 v64, 3, v64\nv_add_u32 v64, {LDS_LN}, v64")
    for w in range(3): p(f"ds_read_b64 v[{VS+2*w}:{VS+2*w+1}], v64 offset:{64*w}")
    ln_finish(p, VX, VS, VO, 64)
    p(f"s_mov_b32 s46, {LB(0)+XN}")
    for i in range(3):
        if i == 2: p("s_add_u32 s46, s46, 4096")
        p(f"buffer_store_dwordx4 v[{VO+4*i}:{VO+4*i+3}], v{VFR}, {WSR}, s46 offen offset:{2048*(i&1)} sc1")
    p(f"""s_lshl_b32 s{S_F1}, s47, 2
    s_add_u32 s{S_F1}, s{S_F1}, s{S_WAVE}
    s_lshl_b32 s{S_F1}, s{S_F1}, 3
    s_add_u32 s{S_F1}, s{S_F1}, {FX(0)}
    s_mov_b32 s{S_ROLE}, 0
    s_branch {l4}
    {l3}:""")
    qkv_unit_finish(p, S_ST1, V_LANE, V_L16, 72, 64, ST1, " sc1", "au1")
    l_fw = p.label("fw")
    p(f"s_cmp_eq_u32 s{S_ROLE}, 0\ns_cbranch_scc1 {l4}\ns_cmp_eq_u32 s{S_ROLE}, 2\ns_cbranch_scc1 {l_fw}")
    qkv_unit_finish(p, S_ST2, V_LANE, V_L16, 100, 64, ST2, " sc1", "au2")
    p(f"s_branch {l4}\n{l_fw}:")
    wo_unit_finish(p, S_ST2, V_LANE, V_L16, 100, 64, ST2, " sc1", "au2")
    p(f"{l4}:")
    stamp(p, 4)
    p.add(pn.check())
    p(f"v_readfirstlane_b32 s{S_NONCE}, v6\nv_readfirstlane_b32 s{S_NONCE+1}, v7")
    signal(p, S_F1, 6)
    stamp(p, 5)
    l5 = p.label("norole")
    p(f"s_cmp_eq_u32 s{S_ROLE}, 0\ns_cbranch_scc1 {l5}")
    p.add(signal_items(S_F2, 6)[2])
    p(f"{l5}:")

def finish_unit(p, s_u, abase, defer=False):
    p(f"s_mul_i32 s55, s{S_WAVE}, 9216\ns_add_u32 s55, s55, {LDS_STG}")
    return unit_finish(p, s_u, SB, SBT, 55, abase, V_LANE, V_L16, 180 if defer else 72, 64, defer=defer)

def idle0(p, pw):
    if OPT.get("bc", 0): p.add(unit_loads(S_A, VTB, A_UB) + unit_loads(S_X, VTC, A_UC))
    finish_unit(p, S_UB, A_UB)
    p(f"s_mov_b32 s44, s{SB+U_FLAG}")
    stores = finish_unit(p, S_UC, A_UC, defer=True)
    signal(p, 44, 8)
    p.add(stores)
    p(f"s_mov_b32 s0, s{SB+U_FLAG}")
    ffn_pw_issue(p, pw)

def gen_main(name):
    Poll.ool.clear()
    p = Prog(); end = f"{name}_end"
    OPT.setdefault("codepf", 1)
    prologue(p, end, code_pf=1, pf_reg=219, pf_end=f"{name}_last")
    p(f"s_mov_b32 s{S_LB}, {LB(0)}\ns_mov_b32 s{S_LF}, 0")
    phase0(p)
    stamp_flush(p, 6, 6, light=True)
    qkv_setup(p, 0)
    early = OPT.get("early", 1)
    extra = None
    mid = OPT.get("mid", 1)
    if OPT.get("late", 1):
        early = 0; OPT["early"] = 0
        extra = unit_loads(S_A, VTB, A_UB) + unit_loads(S_X, VTC, A_UC)
        if mid:
            OPT["early"] = 1
            p.add(unit_loads(S_O, VTA, A_UA))
            if OPT.get("bc", 0):
                extra = None
                l_nb = p.label("nob")
                p(f"s_cmp_ge_u32 s{S_IDX}, 24\ns_cbranch_scc1 {l_nb}\ns_cmp_lg_u32 s{S_WAVE}, 3\ns_cbranch_scc1 {l_nb}")
                p.add(unit_loads(S_A, VTB, A_UB))
                p(f"{l_nb}:")
            trickle = finish_unit(p, S_UA, A_UA, defer=True)
            p(f"s_mov_b32 s0, s{SB+U_FLAG}")
        else: extra = unit_loads(S_O, VTA, A_UA) + extra
    if early:
        finish_unit(p, S_UA, A_UA)
        p(f"s_mov_b32 s0, s{SB+U_FLAG}")
    pwo = Poll(p, 14, 13, 23, "pwo")
    def pre_signal():
        sdiv(p, 53, S_IDX, 6, 32)
        p(f"s_mul_i32 s53, s53, 6\ns_sub_u32 s53, s{S_IDX}, s53\ns_lshl_b32 s53, s53, 8\ns_add_u32 s23, s53, {FWO}")
        lane_min8(p, 13, V_LANE, 18)
        p.add(pwo.issue())
    qkv_main(p, 0, extra, pre_signal, (lambda: p.add(signal_items(0, 6))) if early else None, trickle if mid else None)
    if mid: p.add(signal_items(0, 8)[2])
    l_idle0, l_ffn, l_red1, l_next = p.label("idle0"), p.label("ffn"), p.label("red1"), p.label("next")
    p(f"s_cmp_ge_u32 s{S_IDX}, 24\ns_cbranch_scc1 {l_idle0}")
    pw = Poll(p, 12, 14, 1, "pw")
    if early or mid: wo_part(p, 0, pwo=pwo, pre_signal=lambda: ffn_pw_issue(p, pw))
    else: wo_part(p, 0, lambda: finish_unit(p, S_UA, A_UA), lambda: p.add(signal_items(SB + U_FLAG, 12)), pwo)
    stamp_flush(p, 0, 9, light=True)
    p(f"s_mov_b32 s0, 0\ns_cmp_lg_u32 s{S_WAVE}, 3\ns_cbranch_scc1 {l_ffn}")
    finish_unit(p, S_UB, A_UB)
    p(f"s_mov_b32 s0, s{SB+U_FLAG}\ns_branch {l_ffn}\n{l_idle0}:")
    idle0(p, pw)
    p(f"{l_ffn}:")
    stamp(p, 0)
    ffn_phase(p, pw, sc=LOC("h"), ld=LD())
    stamp_flush(p, 1, 12, light=True, s_row=S_LF)
    p(f"s_cmp_lg_u32 s{S_LF}, 0\ns_cbranch_scc1 {l_red1}")
    stamp(p, 0)
    def w3():
        p(f"""s_and_b32 s44, s{S_IDX}, 15
        s_mul_i32 s44, s44, {126*1024}
        s_add_u32 s44, s44, {WQ}""")
        for j in range(36):
            if j % 4 == 0: p(f"s_mov_b32 m0, {LDS_WQ+j*1024}\ns_add_u32 s45, s44, {j*1024}")
            p(f"buffer_load_dwordx4 v{V_L16}, {WSR}, s45 offen offset:{1024*(j&3)} lds", tag="wq2")
    reduce_phase(p, 0, LDS_LN, ld=LD(), pre=lambda: p("s_barrier"), w3=w3)
    qkv_setup(p, 1)
    stamp(p, 2); stamp_flush(p, 2, 6, light=True); stamp(p, 0)
    qkv_main(p, 1)
    p(f"s_cmp_ge_u32 s{S_IDX}, 24\ns_cbranch_scc1 {l_next}")
    wo_part(p, 1)
    stamp_flush(p, 3, 12, light=True)
    p(f"{l_next}:")
    if STAMP[0]: p.drain(vm=False)
    p(f"s_mov_b32 s{S_LB}, {LB(1)}\ns_mov_b32 s{S_LF}, 0x2000\ns_branch {l_ffn}\n{l_red1}:")
    stamp(p, 0)
    reduce_phase(p, 1, LDS_LN, ld=LD())
    stamp(p, 2); p.drain(); stamp(p, 3); stamp_flush(p, 5, 4)
    p(f"{end}:\ns_endpgm")
    for pl in Poll.ool: pl.slow_path(p)
    p.add(Raw(f"{name}_last:\n    s_endpgm"))
    t = p.finalize()
    print(name, p.stats)
    return kernel_text(name, t, vgpr=512, accum=256), (256, 256, LDS_TOTAL)
```

```python
from fw import *
from layout import *

S_WS = 4
S_X  = 8
S_A  = 12
S_O  = 16
S_WAVE = 20
S_XCD = 21
S_IDX = 22
S_PTR = 24
P_X, P_WQKV, P_WO, P_WG, P_WU, P_WD, P_OUT, P_DBG, P_WS = 24, 26, 28, 32, 34, 36, 38, 40, 42
BF16_ONES = 0x3F803F80

def srd(p, s, ptr, nbytes):
    p(f"""s_mov_b32 s{s}, s{ptr}
    s_mov_b32 s{s+1}, s{ptr+1}
    s_mov_b32 s{s+2}, {nbytes:#x}
    s_mov_b32 s{s+3}, 0x20000""")

OPT = {"fsh": 2}
STAMP = [False]
STAMPS = 0xF000000
def stamp_ins(k, base=72): return ins(f"{'s_memtime' if STAMP[0] == 2 else 's_memrealtime'} s[{base+2*k}:{base+2*k+1}]")
def stamp(p, k, base=72):
    if STAMP[0]: p.add(stamp_ins(k, base))
def stamp_flush(p, kidx, n, base=72, light=False, s_row=None):
    if not STAMP[0]: return
    l = p.label("nostamp")
    p.drain(vm=not light)
    p(f"s_cmp_lg_u32 s{S_WAVE}, {OPT.get('sw', 0) if kidx not in (2, 5) else 0}\ns_cbranch_scc1 {l}\ns_lshl_b32 s23, s2, 7\ns_add_u32 s23, s23, {STAMPS+kidx*256*128}")
    if s_row is not None:
        p(f"s_cmp_lg_u32 s{s_row}, 0\ns_cselect_b32 s96, {3*256*128}, 0\ns_add_u32 s23, s23, s96")
    p("s_mov_b64 exec, 1")
    for k in range(n):
        p(f"v_mov_b32 v8, s{base+2*k}\nv_mov_b32 v9, s{base+2*k+1}\nbuffer_store_dwordx2 v[8:9], off, s[{S_WS}:{S_WS+3}], s23 offset:{8*k}")
    if OPT.get("dbgstamp") is not None:
        l2 = p.label("nodbg")
        sel = {0: ((0, 2), (1, 3), (4, 4), (8, 5)), 1: ((1, 6), (11, 7)), 2: ((2, 8),), 3: ((4, 9), (8, 10)), 5: ((3, 13),), 6: ()}[kidx]
        p(f"s_cmp_lg_u32 s2, {OPT['dbgstamp']}\ns_cbranch_scc1 {l2}")
        if s_row is not None: p(f"s_cmp_lg_u32 s{s_row}, 0\ns_cselect_b32 s96, 20, 0\nv_mov_b32 v9, s96")
        else: p("v_mov_b32 v9, 0")
        for k, slot in sel:
            p(f"s_sub_u32 s96, s{base+2*k}, s98\nv_mov_b32 v8, s96\nglobal_store_dword v9, v8, s[{P_DBG}:{P_DBG+1}] offset:{4*slot}")
        p(f"{l2}:")
    p("s_mov_b64 exec, -1")
    if not light: p.drain()
    p(f"{l}:")

def prologue(p, end_label, nwg=256, v_lane=1, v_l16=2, sbase=72, code_pf=0, pf_reg=4, pf_end=None):
    p(f"s_cmp_ge_u32 s2, {nwg}\ns_cbranch_scc1 {end_label}")
    stamp(p, 0, sbase)
    p(f"""    s_load_dwordx16 s[24:39], s[0:1], 0
    s_load_dwordx4 s[40:43], s[0:1], 64
    v_lshrrev_b32 v{v_lane}, 6, v0
    s_and_b32 s{S_XCD}, s2, 7
    v_readfirstlane_b32 s{S_WAVE}, v{v_lane}
    s_lshr_b32 s{S_IDX}, s2, 3
    v_and_b32 v{v_lane}, 63, v0
    v_lshlrev_b32 v{v_l16}, 4, v{v_lane}""")
    if OPT.get("codepf") and code_pf:
        lpc = p.label("pc")
        p(f"""s_lshl_b32 s23, s{S_IDX}, 2
        s_add_u32 s23, s23, s{S_WAVE}
        s_mul_i32 s23, s23, 5
        v_add_lshl_u32 v{pf_reg}, v{v_lane}, s23, 7
        s_getpc_b64 s[{S_O}:{S_O+1}]
        {lpc}:
        v_min_u32 v{pf_reg}, {pf_end or end_label}-{lpc}, v{pf_reg}
        s_mov_b64 exec, 31
        global_load_dword v{pf_reg}, v{pf_reg}, s[{S_O}:{S_O+1}]
        s_mov_b64 exec, -1""")
    p.drain(vm=False)
    srd(p, S_WS, P_WS, WS_BYTES)

def magic(d, n):
    m = (65536 + d - 1) // d
    assert all((x * m) >> 16 == x // d for x in range(n)), (d, n)
    return m

def sdiv(p, sq, sx, d, n):
    p(f"s_mul_i32 s{sq}, s{sx}, {magic(d, n)}\ns_lshr_b32 s{sq}, s{sq}, 16")

def unpack8(p, dst, src):
    for j in range(4):
        p(f"v_lshlrev_b32 v{dst+2*j}, 16, v{src+j}")
        p(f"v_and_b32 v{dst+2*j+1}, 0xffff0000, v{src+j}")

def round_bf16(p, v, tmp=None):
    p(f"v_cvt_pk_bf16_f32 v{v}, v{v}, v{v}\nv_lshlrev_b32 v{v}, 16, v{v}")

def xsum_g(p, v, t):
    p(f"""v_mov_b32 v{t}, v{v}
    v_permlane16_swap_b32 v{v}, v{t}
    v_add_f32 v{v}, v{v}, v{t}
    v_mov_b32 v{t}, v{v}
    v_permlane32_swap_b32 v{v}, v{t}
    v_add_f32 v{v}, v{v}, v{t}""")

def xsum8(p, v):
    p(f"v_add_f32_dpp v{v}, v{v}, v{v} row_ror:8 row_mask:0xf bank_mask:0xf")

WSR = f"s[{S_WS}:{S_WS+3}]"
S_NONCE, S_LB, S_LF, S_CNT = 98, 100, 101, 97
SPIN = 0x40000

def flag_scale(s):
    r = [ins(f"s_lshl_b32 s{s}, s{s}, {OPT['fsh']}")] if OPT.get("fsh", 0) else []
    return r + [ins(f"s_add_u32 s{s}, s{s}, {FLAGBASE:#x}")]

class Poll:
    ool = []
    def __init__(self, p, v_flag, v_addr, s_off, name, alt=None):
        self.v, self.va, self.so, self.alt = v_flag, v_addr, s_off, alt
        self.slow, self.back, self.lp = p.label(name + "_slow"), p.label(name + "_back"), p.label(name + "_spin")
        Poll.ool.append(self)
    def ld(self): return f"buffer_load_dwordx2 v[{self.v}:{self.v+1}], v{self.va}, {WSR}, s{self.so} offen {OPT.get('pol', 'sc1')}"
    def cmp(self): return f"v_cmp_eq_u64 vcc, s[{S_NONCE}:{S_NONCE+1}], v[{self.v}:{self.v+1}]"
    def issue(self, scale_v=True):
        r = flag_scale(self.so)
        if scale_v and OPT.get("fsh", 0): r.append(ins(f"v_lshlrev_b32 v{self.va}, {OPT['fsh']}, v{self.va}"))
        return r + [ins(self.ld())]
    def check(self):
        r = [ins(self.cmp()), ins("s_cmp_eq_u64 vcc, exec"), ins(f"s_cbranch_scc0 {self.slow}", "ool"), Label(self.back)]
        if self.alt is not None and OPT.get("pipe", 0):
            r.append(Phantom({("v", x) for x in (self.v, self.v + 1, self.alt, self.alt + 1, self.alt + 2, self.alt + 3)}))
        return r
    def both(self): return self.issue() + self.check()
    def slow_path(self, p):
        if self.alt is None or not OPT.get("pipe", 0):
            p.add(Raw(f"""{self.slow}:
    s_mov_b32 s{S_CNT}, {SPIN:#x}
{self.lp}:
    s_sleep {OPT.get("bo", 16)}
    {self.ld()}
    s_waitcnt vmcnt(0)
    {self.cmp()}
    s_sub_u32 s{S_CNT}, s{S_CNT}, 1
    s_cbranch_scc1 {self.back}
    s_cmp_eq_u64 vcc, exec
    s_cbranch_scc1 {self.back}
    s_branch {self.lp}"""))
            return
        regs = [self.v, self.alt, self.alt + 2]
        def ld(r): return self.ld().replace(f"v[{self.v}:{self.v+1}]", f"v[{r}:{r+1}]")
        def cmp(r): return self.cmp().replace(f"v[{self.v}:{self.v+1}]", f"v[{r}:{r+1}]")
        t = f"{self.slow}:\n    s_mov_b32 s{S_CNT}, {SPIN:#x}\n    {ld(regs[0])}\n    s_sleep 3\n    {ld(regs[1])}\n    s_sleep 3\n{self.lp}:\n"
        for k in range(3):
            t += f"""    {ld(regs[(k+2)%3])}
    s_waitcnt vmcnt(2)
    {cmp(regs[k])}
    s_cmp_eq_u64 vcc, exec
    s_cbranch_scc1 {self.lp}_done
"""
        t += f"""    s_sub_u32 s{S_CNT}, s{S_CNT}, 1
    s_cbranch_scc0 {self.lp}
{self.lp}_done:
    s_branch {self.back}"""
        p.add(Raw(t))

class NoncePoll(Poll):
    def issue(self): return [ins(self.ld())]
    def ld(self): return f"global_load_dwordx2 v[{self.v}:{self.v+1}], v{self.va}, s[{P_DBG}:{P_DBG+1}] sc1"
    def cmp(self): return f"v_cmp_ne_u64 vcc, 0, v[{self.v}:{self.v+1}]"

def LOC(kind):
    return "" if kind in str(OPT.get("loc", "")) else " sc1"

def signal_items(s_addr, vt, sc=" sc1"):
    return [ins(f"v_mov_b32 v{vt}, s{S_NONCE}"), ins(f"v_mov_b32 v{vt+1}, s{S_NONCE+1}"),
            flag_scale(s_addr) + [ins("s_mov_b64 exec, 1"), ins(f"buffer_store_dwordx2 v[{vt}:{vt+1}], off, {WSR}, s{s_addr}{sc and ' ' + OPT.get('sig', 'sc1')}"), ins("s_mov_b64 exec, -1")]]

def signal(p, s_addr, vt, tag=None, sc=" sc1"):
    it = signal_items(s_addr, vt, sc)
    p.add(it[:2])
    if tag: p.wait_vm(tag)
    else: p.drain(lg=False)
    p.add(it[2])

def lane_min8(p, vd, v_lane, n):
    p(f"v_min_u32 v{vd}, {n-1}, v{v_lane}\nv_lshlrev_b32 v{vd}, 3, v{vd}")

def touch_items(s_base, n, va, vd, sc=" sc1"):
    r = [ins(f"v_min_u32 v{va}, {min(n, 64)-1}, v1"), ins(f"v_lshlrev_b32 v{va}, 7, v{va}"),
         ins(f"buffer_load_dword v{vd}, v{va}, {WSR}, s{s_base} offen{sc}")]
    if n > 64:
        r += [ins(f"v_add_u32 v{va}, {(n-64)*128}, v{va}"), ins(f"buffer_load_dword v{vd+1}, v{va}, {WSR}, s{s_base} offen{sc}")]
    return r
```

```python
from common import *
from k_prep import ln_addr, ln_local_stats, ln_finish
MF = "v_mfma_f32_16x16x32_bf16"
RING = 36 * 1024
LDS_CS = 4 * RING
LDS_WQ = 18 * 1024

from fw import _is_vm as _isvm
DBG = set()
def ffn_slice(p, sd, st):
    rr = OPT.get("r", 3)
    p(f"""s_and_b32 s{st}, s{S_XCD}, {(1 << rr) - 1}
    s_lshl_b32 s{st}, s{st}, {5-rr}
    s_and_b32 s{sd}, s{S_IDX}, {(1 << (5-rr)) - 1}
    s_add_u32 s{sd}, s{sd}, s{st}""")

def ffn_pw_issue(p, pw):
    ffn_slice(p, pw.so, 23)
    p(f"s_lshl_b32 s{pw.so}, s{pw.so}, 9\ns_add_u32 s{pw.so}, s{pw.so}, {FW}")
    lane_min8(p, pw.va, 1, 36)
    p.add(pw.issue())

def ffn_phase(p, pw, sc=" sc1", ld=" sc1"):
    if "plain" in DBG: sc = ""
    scp = LOC("p")
    ntw = " nt" if OPT.get("ntw") else ""
    lbh = str(LB(0)) if OPT.get("reuse") else f"s{S_LB}"
    rr = OPT.get("r", 3)
    V_LANE, V_L16, V_L8, V_W, V_CS, V_T0, V_T1 = 1, 2, 3, 4, 5, 6, 7
    WB, XO, ACA, ACB, NM, RS2, CS, TMP, HO, H8 = 8, 32, 64, 96, 128, 132, 136, 152, 176, 240
    ACX = 208
    S_RB, S_Q, S_M, S_SL, S_SRC, S_M0, S_XS, S_H, S_FL, S_P, S_T, S_R = 44, 45, 46, 47, 48, 49, 50, 51, 52, 53, 54, 56
    S_TMP, S_TMP2, S_LASTSRC, S_LASTM0, S_FW = 60, 61, 62, 63, 64
    p("s_barrier")
    p(f"""s_lshr_b32 s{S_RB}, s{S_IDX}, {5-rr}
    s_and_b32 s{S_TMP}, s{S_XCD}, {7 & ~((1 << rr) - 1)}
    s_add_u32 s{S_RB}, s{S_RB}, s{S_TMP}
    s_and_b32 s{S_TMP}, s{S_XCD}, {(1 << rr) - 1}
    s_lshl_b32 s{S_TMP}, s{S_TMP}, {5-rr}
    s_and_b32 s{S_SL}, s{S_IDX}, {(1 << (5-rr)) - 1}
    s_add_u32 s{S_SL}, s{S_SL}, s{S_TMP}
    s_lshl_b32 s{S_FW}, s{S_SL}, 9
    s_add_u32 s{S_FW}, s{S_FW}, {FW}""")
    p(f"""s_lshr_b32 s{S_Q}, s{S_SL}, 2
    s_and_b32 s{S_M}, s{S_SL}, 3
    s_mul_i32 s{S_SRC}, s{S_SL}, {486*1024}
    s_add_u32 s{S_SRC}, s{S_SRC}, {WF}
    s_mul_i32 s{S_LASTM0}, s{S_WAVE}, 9
    s_lshr_b32 s{S_LASTM0}, s{S_LASTM0}, 1
    s_lshl_b32 s{S_LASTM0}, s{S_LASTM0}, 10
    s_add_u32 s{S_LASTSRC}, s{S_SRC}, s{S_LASTM0}
    s_mul_i32 s{S_M0}, s{S_WAVE}, {9*1024}
    s_add_u32 s{S_SRC}, s{S_SRC}, s{S_M0}
    s_lshl_b32 s{S_T}, s{S_RB}, 4
    s_lshl_b32 s{S_TMP}, s{S_WAVE}, 2
    s_add_u32 s{S_T}, s{S_T}, s{S_TMP}
    s_mul_i32 s{S_XS}, s{S_T}, {18*1024}
    s_mul_i32 s{S_P}, s{S_Q}, {XBYTES}
    s_add_u32 s{S_P}, s{S_P}, s{S_XS}
    s_add_u32 s{S_XS}, s{S_XS}, {X1}
    s_add_u32 s{S_XS}, s{S_XS}, s{S_LB}
    s_lshr_b32 s{S_TMP}, s{S_M}, 1
    s_mul_i32 s{S_TMP}, s{S_TMP}, {9*1024}
    s_add_u32 s{S_P}, s{S_P}, s{S_TMP}
    s_add_u32 s{S_P}, s{S_P}, {PB}
    s_add_u32 s{S_P}, s{S_P}, {lbh}
    v_lshlrev_b32 v{V_L8}, 3, v{V_LANE}
    v_mov_b32 v{V_W}, v{V_L16}""")
    def slot_dma(k):
        r = []
        if k < 13:
            for g in range(3):
                r.append(ins(f"s_add_u32 m0, s{S_M0}, {(k&3)*RING+4096*g}"))
                r.append(ins(f"s_add_u32 s{S_TMP2}, s{S_SRC}, {k*RING+4096*g}"))
                for j in range(4 if g < 2 else 1):
                    r.append(ins(f"buffer_load_dwordx4 v{V_L16}, {WSR}, s{S_TMP2} offen offset:{1024*j}{ntw} lds", f"slot{k}"))
        else:
            for g in range(2):
                r.append(ins(f"s_add_u32 m0, s{S_LASTM0}, {(k&3)*RING+4096*g}"))
                r.append(ins(f"s_add_u32 s{S_TMP2}, s{S_LASTSRC}, {k*RING+4096*g}"))
                for j in range(4 if g < 1 else 1):
                    r.append(ins(f"buffer_load_dwordx4 v{V_L16}, {WSR}, s{S_TMP2} offen offset:{1024*j}{ntw} lds", f"slot{k}"))
        return r
    xf = lambda c, tt: ar(16 * c + 4 * tt, 4) if c < 16 else vr(XO + 16 * (c - 16) + 4 * tt, 4)
    XB = (59, 66, 68, 69)
    def xload(c):
        r = []
        for tt in range(4):
            if c % 4 == 0: r.append(ins(f"s_add_u32 s{XB[tt]}, s{S_XS}, {tt*18*1024+c*1024}"))
            r.append(ins(f"buffer_load_dwordx4 {xf(c,tt)}, v{V_L16}, {WSR}, s{XB[tt]} offen offset:{1024*(c&3)}{ld}"))
        return r
    l_nopw = p.label("nopw")
    p(f"s_cmp_lg_u32 s{S_LF}, 0\ns_cbranch_scc1 {l_nopw}")
    p.add(pw.check())
    p(f"{l_nopw}:")
    npre = OPT.get("npre", 3)
    for k in range(npre): p.add(slot_dma(k))
    l_nocs = p.label("nocs")
    p(f"""s_cmp_lg_u32 s{S_LF}, 0
    s_cbranch_scc1 {l_nocs}
    s_cmp_ge_u32 s{S_WAVE}, 2
    s_cbranch_scc1 {l_nocs}
    s_lshl_b32 s{S_TMP}, s{S_SL}, 1
    s_add_u32 s{S_TMP}, s{S_TMP}, s{S_WAVE}
    s_mul_i32 s{S_TMP}, s{S_TMP}, {18*640}
    s_add_u32 s{S_TMP}, s{S_TMP}, {CSP}
    v_lshrrev_b32 v{V_T0}, 2, v{V_LANE}
    v_lshlrev_b32 v{V_T0}, 7, v{V_T0}
    v_and_b32 v{V_T1}, 3, v{V_LANE}
    v_lshl_add_u32 v{V_T0}, v{V_T1}, 4, v{V_T0}
    s_lshl_b32 s{S_TMP2}, s{S_WAVE}, 6
    s_add_u32 s{S_TMP2}, s{S_TMP2}, {LDS_CS}
    v_add_u32 v{V_T0}, s{S_TMP2}, v{V_T0}
    s_mov_b32 exec_hi, 15""")
    for c in range(18):
        if c and c % 6 == 0: p(f"s_add_u32 s{S_TMP}, s{S_TMP}, {6*640}")
        p(f"buffer_load_dwordx4 {vr(64+4*c,4)}, v{V_L16}, {WSR}, s{S_TMP} offen offset:{(c%6)*640} sc1")
    for c in range(1, 18):
        for j in range(4): p(f"v_add_f32 v{64+j}, v{64+j}, v{64+4*c+j}")
    p(f"ds_write_b128 v{V_T0}, v[64:67]\ns_mov_b64 exec, -1")
    p.drain(vm=False)
    p(f"{l_nocs}:")
    p(f"""s_lshr_b32 s{S_TMP}, s{S_T}, 2
    s_lshl_b32 s{S_TMP}, s{S_TMP}, 8
    s_add_u32 s55, s{S_LF}, {F1B}
    v_and_b32 v{V_T1}, 7, v{V_LANE}
    v_min_u32 v{V_T1}, 5, v{V_T1}
    v_and_b32 v{V_T0}, 24, v{V_LANE}
    v_add_lshl_u32 v0, v{V_T1}, v{V_T0}, 3
    v_add_u32 v0, s{S_TMP}, v0
    s_lshl_b32 s{S_TMP}, s{S_XCD}, 4
    s_lshr_b32 s{S_TMP2}, s{S_IDX}, 1
    s_add_u32 s{S_TMP}, s{S_TMP}, s{S_TMP2}
    s_lshl_b32 s{S_TMP}, s{S_TMP}, 6
    v_lshl_add_u32 v{V_T1}, v{V_T1}, 3, s{S_TMP}
    v_cmp_gt_u32 vcc, 32, v{V_LANE}
    v_cndmask_b32 v0, v{V_T1}, v0, vcc""")
    p1 = Poll(p, TMP + 16, 0, 55, "p1", alt=TMP + 18)
    p.add(p1.issue())
    p(f"""s_lshl_b32 s{S_TMP}, s{S_RB}, 5
    s_add_u32 s{S_TMP}, s{S_TMP}, s{S_SL}
    s_mul_i32 s{S_H}, s{S_TMP}, {72*1024}
    s_add_u32 s{S_H}, s{S_H}, {HB}
    s_add_u32 s{S_H}, s{S_H}, {lbh}""")
    for j in range(3):
        p(f"""s_xor_b32 s{S_TMP2}, s{S_TMP}, {j+1}
        s_mul_i32 s{S_R+j}, s{S_TMP2}, {72*1024}
        s_add_u32 s{S_R+j}, s{S_R+j}, {HB}
        s_add_u32 s{S_R+j}, s{S_R+j}, {lbh}""")
    p(f"""s_lshr_b32 s{S_FL}, s{S_TMP}, 2
    s_lshl_b32 s{S_FL}, s{S_FL}, 2
    s_add_u32 s{S_FL}, s{S_FL}, s{S_WAVE}
    s_lshl_b32 s{S_FL}, s{S_FL}, 7
    s_lshl_b32 s{S_TMP2}, s{S_LF}, 2
    s_add_u32 s{S_FL}, s{S_FL}, s{S_TMP2}
    s_add_u32 s{S_FL}, s{S_FL}, {FHB}
    v_lshrrev_b32 v{V_CS}, 4, v{V_LANE}
    v_lshlrev_b32 v{V_CS}, 4, v{V_CS}
    v_add_u32 v{V_CS}, {LDS_CS}, v{V_CS}
    s_lshl_b32 s{S_TMP}, s{S_WAVE}, 12""")
    for r in (S_H, S_R, S_R + 1, S_R + 2):
        p(f"s_add_u32 s{r}, s{r}, s{S_TMP}")
    p(f"s_lshl_b32 s65, s{S_WAVE}, 11\ns_sub_u32 s65, {64*1024}, s65")
    p(f"s_lshl_b32 s67, s{S_M}, 3\ns_add_u32 s67, s67, s{S_FL}")
    frs = []
    first = (8, 0, 1)
    bufs = {8: (ACX, ACX + 16), 0: (ACA, ACA + 16), 1: (ACB, ACB + 16), 2: (HO + 16, TMP)}
    for tile in range(3, 8): bufs[tile] = (ACB, ACB + 16) if tile & 1 else (ACA, ACA + 16)
    def g1(tile, c, mat):
        f = pos_of_tile(tile) * 36 + 2 * c + mat
        return (f, [(vr(bufs[tile][mat] + 4 * tt, 4), xf(c, tt), c == 0) for tt in range(4)])
    marks = {}
    for c in range(18):
        for tile in first:
            for mat in range(2): frs.append(g1(tile, c, mat))
    marks["pass0_end"] = len(frs)
    for tile in range(2, 8):
        marks[f"pass{tile}"] = len(frs)
        for c in range(18):
            for mat in range(2): frs.append(g1(tile, c, mat))
    marks["g2"] = len(frs)
    acc2 = lambda n, tt: 32 + 32 * (n >> 1) + 8 * tt + 4 * (n & 1) if n < 8 else 160 + 4 * tt
    def hstep(st, tt):
        if st < 4: return vr(HO + 16 * st + 4 * tt, 4)
        if st == 4: return vr(H8 + 4 * tt, 4)
        return ar(16 * (st - 5) + 4 * tt, 4)
    order = gemm2_order()
    last_of = {}
    for i, (st, n) in enumerate(order):
        marks.setdefault(f"step{st}", len(frs))
        frs.append((324 + i, [(vr(acc2(n, tt), 4), hstep(st, tt), st == 0) for tt in range(4)]))
        last_of[n] = len(frs)
    NB, LOOK = 6, 4
    bb = []; s_rd = Stream("rd"); s_dma = Stream("dma"); s_ep = Stream("ep"); s_ld = Stream("ld")
    G = lambda s: 4 * s
    cur_base = [0]
    def read(s):
        f = frs[s][0]
        a = ((f // 36) & 3) * RING + (f % 36) * 1024
        r = []
        if s < marks["pass0_end"]:
            if a < 65536: va, off = V_W, a
            else: va, off = V_T1, a - 65536
        else:
            base = ((f // 36) & 3) * RING
            if base != cur_base[0]:
                r.append(f"v_add_u32 v{V_W}, {base - cur_base[0] & 0xffffffff:#x}, v{V_W}")
                cur_base[0] = base
            va, off = V_W, a - base
        r.append(f"ds_read_b128 {vr(WB+4*(s%NB),4)}, v{va} offset:{off}")
        return r
    p.wait_vm(f"slot{npre-1}"); p("s_barrier")
    for s in range(LOOK): p.add(read(s))
    nsh = 1 << (5 - rr)
    p(f"s_and_b32 s{S_TMP2}, s{S_IDX}, {nsh-1}\ns_mul_i32 s{S_TMP2}, s{S_TMP2}, {576//nsh*128}\ns_add_u32 s{S_TMP2}, s{S_TMP2}, s{S_XS}")
    p.add(p1.check()); stamp(p, 1)
    l_nop = p.label("nopend")
    p(f"s_cmp_eq_u32 s0, 0\ns_cbranch_scc1 {l_nop}")
    p.add(signal_items(0, V_T0))
    p(f"s_mov_b32 s0, 0\n{l_nop}:")
    if OPT.get("touch", 0): p.add(touch_items(S_TMP2, min(576 // nsh, 128), 0, TMP + 20))
    if "xhit" in DBG: p(f"s_mul_i32 s{S_XS}, s{S_SL}, {486*1024}\ns_add_u32 s{S_XS}, s{S_XS}, {WF}")
    for c in range(OPT.get("xup", 2)): p.add(xload(c))
    p(f"""s_lshl_b32 s{S_TMP}, s{S_T}, 4
    v_add_u32 v{V_T0}, s{S_TMP}, v{V_LANE}
    v_lshlrev_b32 v{V_T0}, 3, v{V_T0}
    s_add_u32 s55, s{S_LB}, {ST}""")
    for cg in range(6):
        p(f"s_add_u32 s{S_TMP}, s55, {cg*16384}")
        p(f"buffer_load_dwordx2 {vr(TMP+2*cg,2)}, v{V_T0}, {WSR}, s{S_TMP} offen{ld}")

    p(f"v_add_u32 v{V_T1}, 0x10000, v{V_L16}")
    seen = {0, 1, 2}
    for k in range(npre, 4):
        for it in slot_dma(k): s_dma.add(it, 200, G(marks["pass0_end"]) - 100)
    bar_gap = {}
    for s, (f, ms) in enumerate(frs):
        for d, b, first in ms:
            bb.append(ins(f"{MF} {d}, {vr(WB+4*(s%NB),4)}, {b}, {'0' if first else d}"))
        t = s + LOOK
        if t < len(frs):
            k = frs[t][0] // 36
            g = G(s) + 1
            if k not in seen:
                seen.add(k)
                s_rd.add(WaitTag(f"slot{k}", "vm"), g, g)
                if k == 3: s_rd.add(Drain(vm=False), g, g)
                s_rd.add("s_barrier", g, g); bar_gap[k] = g
                for kk in ([4, 5, 6] if k == 3 else [k + 2] if k >= 5 else []):
                    if kk <= 13:
                        for j, it in enumerate(slot_dma(kk)): s_dma.add(it, g + 1, g + {4: 50, 5: 150, 6: 260}.get(kk, 120))
            for r in read(t): s_rd.add(r, g, g + 1)
    s_dma.add(f"s_and_b32 s{S_LASTSRC}, s{S_IDX}, 15", bar_gap[11] + 60)
    s_dma.add(f"s_mul_i32 s{S_LASTSRC}, s{S_LASTSRC}, {126*1024}", bar_gap[11] + 60)
    s_dma.add(f"s_add_u32 s{S_LASTSRC}, s{S_LASTSRC}, {WQ}", bar_gap[11] + 60)
    s_dma.add([ins(f"s_cmp_lg_u32 s{S_LF}, 0"), ins(f"s_cselect_b32 s{S_LASTSRC}, {WS_BYTES:#x}, s{S_LASTSRC}")], bar_gap[11] + 60)
    for k, f0, sm, cnt in ((11, 36, S_LASTM0, 5), (12, 54, S_M0, 9), (13, 90, S_M0, 9)):
        for j in range(cnt):
            if j % 4 == 0:
                s_dma.add(f"s_add_u32 s{S_TMP2}, s{sm}, {(f0+j)*1024}", bar_gap[k] + 1)
                s_dma.add(f"s_add_u32 m0, s{S_TMP2}, {LDS_WQ}", bar_gap[k] + 1)
                s_dma.add(f"s_add_u32 s{S_TMP2}, s{S_TMP2}, s{S_LASTSRC}", bar_gap[k] + 1)
            s_dma.add(f"buffer_load_dwordx4 v{V_L16}, {WSR}, s{S_TMP2} offen offset:{1024*(j&3)} lds", bar_gap[k] + 1, tag="wq2")
    for c in range(OPT.get("xup", 2), 18):
        for it in xload(c): s_ld.add(it, 0, 24 * c - 60)
    ga = G(marks["pass0_end"]) - 50
    A_, B_, M_, R_ = TMP + 12, TMP + 13, TMP + 14, TMP + 15
    s = lambda cg: TMP + 2 * cg
    e = [f"v_add_f32 v{M_}, v{s(0)}, v{s(1)}", f"v_add_f32 v{R_}, v{s(0)+1}, v{s(1)+1}"]
    for cg in range(2, 6): e += [f"v_add_f32 v{M_}, v{M_}, v{s(cg)}", f"v_add_f32 v{R_}, v{R_}, v{s(cg)+1}"]
    e += [f"v_mul_f32 v{M_}, 0xbae38e39, v{M_}"]
    for cg in range(6):
        e += [f"v_fmamk_f32 v{B_}, v{s(cg)}, 0x3c2aaaab, v{M_}",
              f"v_mul_f32 v{A_}, v{B_}, v{B_}" if cg == 0 else f"v_fmac_f32 v{A_}, v{B_}, v{B_}"]
    e += [f"v_fmac_f32 v{R_}, 0x42c00000, v{A_}", f"v_mov_b32 v{B_}, 0x3727c5ac",
          f"v_fmac_f32 v{B_}, 0x3ae38e39, v{R_}", f"v_rcp_f32 v{R_}, v{B_}",
          f"v_and_b32 v{A_}, 15, v{V_LANE}", f"v_lshlrev_b32 v{A_}, 2, v{A_}"]
    for tt in range(4):
        e += [f"ds_bpermute_b32 v{NM+tt}, v{A_}, v{M_} offset:{64*tt}", f"ds_bpermute_b32 v{RS2+tt}, v{A_}, v{R_} offset:{64*tt}"]
    for x in e: s_ep.add(x, ga, G(marks["pass0_end"]))
    seq = [0, 1, 8, 2, 3, 4, 5, 6, 7]
    csb = lambda tile: CS + 8 * (seq.index(tile) & 1)
    def cs_reads(tile, g):
        for mat in range(2):
            s_ep.add(f"ds_read_b128 {vr(csb(tile)+4*mat,4)}, v{V_CS} offset:{pos_of_tile(tile)*128+64*mat}", g)
    def epilogue(tile, g, dl):
        cb = csb(tile)
        for tt in range(4):
            gq, uq = bufs[tile][0] + 4 * tt, bufs[tile][1] + 4 * tt
            for r in range(4): s_ep.add(f"v_fmac_f32 v{gq+r}, v{cb+r}, v{NM+tt}", g, dl)
            for r in range(4): s_ep.add(f"v_fmac_f32 v{uq+r}, v{cb+4+r}, v{NM+tt}", g, dl)
            for r in range(4): s_ep.add(f"v_mul_f32 v{gq+r}, v{gq+r}, v{RS2+tt}", g, dl)
            for r in range(4): s_ep.add(f"v_mul_f32 v{gq+r}, v{gq+r}, v{uq+r}", g, dl)
            dst = H8 + 4 * tt if tile == 8 else HO + 16 * (tile >> 1) + 4 * tt + 2 * (tile & 1)
            for j in range(2): s_ep.add(f"v_cvt_pk_bf16_f32 v{dst+j}, v{gq+2*j}, v{gq+2*j+1}", g, dl)
            if tile == 8:
                if tt == 0: s_ep.add(f"s_add_u32 s66, s{S_H}, s65", g, dl)
                s_ep.add(f"buffer_store_dwordx2 {vr(dst,2)}, v{V_L8}, {WSR}, s66 offen offset:{512*tt}{sc}", g, dl, tag="h8")
            elif tile & 1:
                if tt == 0: s_ep.add(f"s_add_u32 s66, s{S_H}, {(tile>>1)*16*1024}", g, dl)
                s_ep.add(f"buffer_store_dwordx4 {vr(dst-2,4)}, v{V_L16}, {WSR}, s66 offen offset:{1024*tt}{sc}", g, dl, tag=f"h{tile>>1}")
    gp = lambda t: G(marks[f"pass{t}"]) if t < 8 else G(marks["g2"])
    cs_reads(0, gp(2) - 20); cs_reads(1, gp(2) - 20)
    epilogue(0, gp(2) + 6, gp(3)); cs_reads(8, gp(2)); epilogue(1, gp(2) + 6, gp(3))
    cs_reads(2, gp(2)); epilogue(8, gp(2) + 6, gp(4)); cs_reads(3, gp(3)); epilogue(2, gp(3) + 6, gp(4) + 40)
    for tile in range(3, 8):
        if tile < 7: cs_reads(tile + 1, gp(tile + 1) - 100)
        epilogue(tile, gp(tile + 1) + 6, gp(tile + 1) + (140 if tile < 7 else 60))
    s_sg = Stream("sig")
    def sig(stage, tag, g):
        it = signal_items(71, V_T0, sc)
        s_sg.add(f"s_add_u32 s71, s67, {32*stage}", g - 2, g)
        s_sg.add(it[0], g - 2, g); s_sg.add(it[1], g - 2, g)
        s_sg.add(WaitTag(tag, "vm"), g, g)
        s_sg.add(it[2], g + 1, g + 3, cost=2)
    g7 = G(marks["pass7"]); g2 = G(marks["g2"])
    sig(0, "h1", G(marks["pass5"]) + OPT.get("s0", -6))
    sig(1, "h2", g7 - 4)
    sig(2, "h3", G(marks["step3"]) + OPT.get("s2", 8))
    def addpoll(pl, g_issue, g_check, st=None, sv=True):
        st = st or s_ld
        for it in pl.issue(sv): st.add(it, g_issue - (0 if it.kind == "vmem" else 4), g_issue + 3)
        st.add(pl.check(), g_check, g_check + 1, cost=2)
    gw = G(marks["pass2"]) + OPT.get("gw", 214)
    s_ld.add(f"v_min_u32 v0, 17, v{V_LANE}", gw - 4); s_ld.add(f"v_lshlrev_b32 v0, 3, v0", gw - 4)
    s_ld.add(f"s_add_u32 s55, s{S_FW}, {36*8}", gw - 4)
    pd_ = OPT.get("pdist", 56)
    addpoll(Poll(p, V_T0, 0, 55, "pd"), gw, gw + pd_)
    if OPT.get("dtouch", 1):
        nw = 4 << rr; nl = -(-162 * 8 // nw)
        for t in (f"s_lshr_b32 s55, s{S_IDX}, {5-rr}", f"s_lshl_b32 s55, s55, 2", f"s_add_u32 s55, s55, s{S_WAVE}", f"s_mul_i32 s55, s55, {nl*128}",
                  f"s_mul_i32 s{S_TMP}, s{S_SL}, {486*1024}", f"s_add_u32 s55, s55, s{S_TMP}", f"s_add_u32 s55, s55, {WF+324*1024}"):
            s_ld.add(t, gw + pd_ + 2)
        for it in touch_items(55, nl, 0, V_T0, ""): s_ld.add(it, gw + pd_ + 2)
    polls = [Poll(p, V_T0, 0, 55, f"p{k}") for k in range(3)]
    s_ld.add(f"v_and_b32 v0, 3, v{V_LANE}", g7 - 40 - pd_); s_ld.add(f"v_lshlrev_b32 v0, 3, v0", g7 - 40 - pd_)
    s_ld.add(f"s_mov_b32 s55, s{S_FL}", g7 - 40 - pd_)
    addpoll(polls[0], g7 - 20 - pd_, g7 - 20)
    ldh = ld
    need = lambda st: G(marks[f"step{st}"]) if st < 9 else G(marks["step9"]) + 8 * (st - 9)
    for tt in range(4):
        if tt == 0: s_ld.add(f"s_add_u32 s{S_TMP}, s{S_R}, s65", g7 - 18)
        s_ld.add(f"buffer_load_dwordx2 {vr(H8+4*tt+2,2)}, v{V_L8}, {WSR}, s{S_TMP} offen offset:{512*tt}{ldh}", g7 - 18, need(4) - 150)
    for j in range(2):
        s_ld.add(f"s_add_u32 s{S_TMP}, s{S_R+1+j}, s65", g7 + 8)
        for tt in range(4):
            s_ld.add(f"buffer_load_dwordx2 {ar(4*tt+2*j,2)}, v{V_L8}, {WSR}, s{S_TMP} offen offset:{512*tt}{ldh}", g7 + 8, need(5) - 150)
    def hload(st, g, dl):
        i = st - 6
        s_ld.add(f"s_add_u32 s{S_TMP}, s{S_R+i%3}, {(i//3)*16*1024}", g)
        for tt in range(4):
            s_ld.add(f"buffer_load_dwordx4 {hstep(st,tt)}, v{V_L16}, {WSR}, s{S_TMP} offen offset:{1024*tt}{ldh}", g, dl)
    for st in range(6, 12): hload(st, g7 + 8 * (st - 4), need(st) - 150)
    s_ld.add(f"s_add_u32 s55, s{S_FL}, 32", g2 + 90 - pd_)
    addpoll(polls[1], g2 + 100 - pd_, g2 + 100, sv=False)
    for st in range(12, 15): hload(st, g2 + 101, need(st) - 100)
    gB = G(marks["step7"])
    gB += OPT.get("pb", 12)
    s_ld.add(f"s_add_u32 s55, s{S_FL}, 64", gB - 10 - pd_)
    addpoll(polls[2], gB - pd_, gB, sv=False)
    for st in range(15, 18): hload(st, gB + 1, need(st) - 60)
    s_o = Stream("out")
    gB += 4
    s_o.add(f"s_and_b32 s68, s{S_M}, 1", gB)
    s_o.add(f"s_mul_i32 s69, s68, {5*1024}", gB); s_o.add(f"s_add_u32 s69, s69, s{S_P}", gB)
    s_o.add(f"s_lshl_b32 s68, s68, 9", gB); s_o.add(f"s_add_u32 s68, s68, s{S_P}", gB)
    s_o.add(f"v_and_b32 v0, 15, v{V_LANE}", gB); s_o.add(f"v_lshlrev_b32 v0, 5, v0", gB)
    s_o.add(f"v_lshrrev_b32 v{V_CS}, 4, v{V_LANE}", gB); s_o.add(f"v_lshl_add_u32 v0, v{V_CS}, 3, v0", gB)
    for pr in range(4):
        g = G(last_of[2 * pr + 1]) + 4
        for tt in range(4):
            a = acc2(2 * pr, tt)
            for j in range(4): s_o.add(f"v_cvt_pk_bf16_f32 v{a+j}, v{a+2*j}, v{a+2*j+1}", g)
            s_o.add(f"s_add_u32 s70, s69, {tt*18*1024+pr*1024}", g)
            s_o.add(f"buffer_store_dwordx4 {vr(a,4)}, v{V_L16}, {WSR}, s70 offen{scp}", g, tag="pout")
    g = len(bb)
    for tt in range(4):
        a = acc2(8, tt)
        for j in range(2): s_o.add(f"v_cvt_pk_bf16_f32 v{a+j}, v{a+2*j}, v{a+2*j+1}", g)
        s_o.add(f"s_add_u32 s70, s68, {tt*18*1024+4*1024}", g)
        s_o.add(f"buffer_store_dwordx2 {vr(a,2)}, v0, {WSR}, s70 offen{scp}", g, tag="pout")
    if "nostore" in DBG: s_ep.q = [e for e in s_ep.q if not _isvm(e[2])]; s_o.q = [e for e in s_o.q if not _isvm(e[2])]
    if "nodma" in DBG: s_dma.q = []
    if "noep" in DBG: s_ep.q = [e for e in s_ep.q if getattr(e[2], "kind", "") != "valu"]
    if "nohld" in DBG: s_ld.q = [e for e in s_ld.q if not (e[0] > 500 and _isvm(e[2]) and "dwordx" in e[2].text)]
    s_st = Stream("stamp")
    if STAMP[0]:
        for k, mk in enumerate(("pass2", "pass3", "pass5", "pass7", "g2", "step3", "step6", "step9")):
            s_st.add(stamp_ins(2 + k), G(marks[mk]) + 2, G(marks[mk]) + 2)
    weave(p, bb, [s_rd, s_sg, s_ld, s_ep, s_o, s_dma, s_st], wait_gaps=lambda g: g % 4 == 0, quiet=lambda g: g2 + 4 <= g < g2 + 52)
    stamp(p, 10)
    p(f"""s_lshl_b32 s{S_TMP}, s{S_RB}, 2
    s_add_u32 s{S_TMP}, s{S_TMP}, s{S_WAVE}
    s_lshl_b32 s{S_TMP}, s{S_TMP}, 5
    s_add_u32 s{S_TMP}, s{S_TMP}, s{S_SL}
    s_lshl_b32 s{S_TMP}, s{S_TMP}, 3
    s_add_u32 s{S_TMP}, s{S_TMP}, s{S_LF}
    s_add_u32 s{S_TMP}, s{S_TMP}, {FPB}""")
    signal(p, S_TMP, V_T0, "pout", scp)
    stamp(p, 11)

def reduce_phase(p, l, lds_off, sc=" sc1", ld=" sc1", pre=None, w3=None):
    V_LANE = 1
    lh = 0 if OPT.get("reuse") else l
    VROW, VFR, VP, VLD, VX, VS, VO = 3, 4, 5, 16, 128, 152, 160
    if pre: pre()
    p(f"s_lshl_b32 s47, s{S_XCD}, 5\ns_add_u32 s47, s47, s{S_IDX}")
    ln_addr(p, 47, V_LANE, VROW, VFR, 8, 48)
    p(f"""v_lshrrev_b32 v8, 3, v{V_LANE}
    v_and_b32 v9, 7, v{V_LANE}
    s_and_b32 s48, s47, 1
    s_lshl_b32 s48, s48, 3
    v_add_u32 v9, s48, v9
    v_lshlrev_b32 v9, 4, v9
    v_bfe_u32 v10, v8, 1, 1
    v_and_b32 v11, 1, v8
    v_lshl_add_u32 v9, v11, 4, v9
    v_lshl_add_u32 v9, v10, 9, v9
    v_and_b32 v10, 3, v8
    v_lshlrev_b32 v10, 8, v10
    v_sub_u32 v9, v9, v10
    s_mul_i32 s48, s{S_WAVE}, 6
    v_lshrrev_b32 v8, 2, v8
    v_add_u32 v8, s48, v8""")
    for i in range(3):
        p(f"""v_add_u32 v10, {2*i}, v8
        v_cmp_eq_u32 vcc, 4, v10
        v_cmp_eq_u32 s[56:57], 13, v10
        s_or_b64 vcc, vcc, s[56:57]
        v_cndmask_b32 v10, 0, v9, vcc
        v_add3_u32 v{VP+i}, v{VFR}, v10, {0}
        v_add_u32 v{VP+i}, {2048*i}, v{VP+i}""")
    l_skip = p.label("w3a")
    p(f"s_cmp_eq_u32 s{S_WAVE}, 3\ns_cbranch_scc1 {l_skip}")
    p(f"s_mov_b32 s48, {LB(l)+X1}")
    for i in range(3):
        if i == 2: p("s_add_u32 s48, s48, 4096")
        p(f"buffer_load_dwordx4 {vr(VLD+36*i,4)}, v{VFR}, {WSR}, s48 offen offset:{2048*(i&1)}{ld}")
    p(f"""s_lshr_b32 s49, s47, 3
    s_lshl_b32 s49, s49, 8
    s_add_u32 s49, s49, {FPB+l*0x2000}
    v_and_b32 v10, 31, v{V_LANE}
    v_lshlrev_b32 v10, 3, v10""")
    p.add(Poll(p, 176, 10, 49, "pp", alt=178).both()); stamp(p, 1)
    for q in range(8):
        p(f"s_mov_b32 s48, {LB(lh)+PB+q*XBYTES}")
        for i in range(3):
            p(f"buffer_load_dwordx4 {vr(VLD+36*i+4+4*q,4)}, v{VP+i}, {WSR}, s48 offen{ld}")
    for i in range(3): unpack8(p, VX + 8 * i, VLD + 36 * i)
    p(f"v_mov_b32 v12, 0x3f80\nv_mov_b32 v13, 0x3f800000")
    for q in range(8):
        for i in range(3):
            b = VLD + 36 * i + 4 + 4 * q
            for j in range(4):
                p(f"v_dot2c_f32_bf16 v{VX+8*i+2*j}, v{b+j}, v12\nv_dot2c_f32_bf16 v{VX+8*i+2*j+1}, v{b+j}, v13")
    if l == 0: stamp(p, 3)
    if l == 1: srd(p, S_O, P_OUT, XBYTES)
    else: p(f"s_add_u32 s{S_O}, s{P_WS}, {LB(0)+X2R}\ns_addc_u32 s{S_O+1}, s{P_WS+1}, 0\ns_mov_b32 s{S_O+2}, {XBYTES:#x}\ns_mov_b32 s{S_O+3}, 0x20000")
    for i in range(3):
        for j in range(4): p(f"v_cvt_pk_bf16_f32 v{VO+4*i+j}, v{VX+8*i+2*j}, v{VX+8*i+2*j+1}")
        p(f"buffer_store_dwordx4 {vr(VO+4*i,4)}, v{VROW}, s[{S_O}:{S_O+3}], 0 offen offset:{128*i}{sc if l == 0 else ' ' + OPT.get('outsc', 'sc1')}")
    if l == 1:
        p(f"{l_skip}:")
        return
    for i in range(3): unpack8(p, VX + 8 * i, VO + 4 * i)
    ln_local_stats(p, VX, VS, VS + 1, 8)
    p(f"""v_and_b32 v8, 7, v{V_LANE}
    s_mul_i32 s46, s{S_WAVE}, 64
    s_add_u32 s46, s46, {lds_off}
    v_lshl_add_u32 v8, v8, 3, s46
    ds_write_b64 v8, v[{VS}:{VS+1}]""")
    p.drain(vm=False)
    if w3:
        l_join = p.label("join")
        p(f"s_branch {l_join}\n{l_skip}:")
        w3()
        p(f"{l_join}:\ns_barrier")
    else: p(f"{l_skip}:\ns_barrier")
    stamp(p, 4)
    l_skip2 = p.label("w3b")
    p(f"s_cmp_eq_u32 s{S_WAVE}, 3\ns_cbranch_scc1 {l_skip2}")
    p(f"v_and_b32 v8, 7, v{V_LANE}\nv_lshlrev_b32 v8, 3, v8\nv_add_u32 v8, {lds_off}, v8")
    for w in range(3): p(f"ds_read_b64 v[{VS+2*w}:{VS+2*w+1}], v8 offset:{64*w}")
    ln_finish(p, VX, VS, 16, 8)
    p(f"s_mov_b32 s46, {LB(l+1)+XN}")
    for i in range(3):
        if i == 2: p("s_add_u32 s46, s46, 4096")
        p(f"buffer_store_dwordx4 {vr(16+4*i,4)}, v{VFR}, {WSR}, s46 offen offset:{2048*(i&1)}{sc}")
    p(f"s_lshl_b32 s46, s47, 2\ns_add_u32 s46, s46, s{S_WAVE}\ns_lshl_b32 s46, s46, 3\ns_add_u32 s46, s46, {FX(l+1)}")
    stamp(p, 5)
    signal(p, 46, 8)
    p(f"{l_skip2}:")
```

```python
from common import *
from k_prep import *
from k_attn import MF, attn_bias, attn_part, wo_setup, wo_wdma, wo_pre, wo_main
from k_ffn import ffn_phase, ffn_pw_issue, reduce_phase, LDS_CS, LDS_WQ
V_LANE, V_L16 = 1, 2
LDS_EX = LDS_CS + 1152
LDS_LN = LDS_EX + 4 * 3072
LDS_HALO = 0
LDS_STG = 108 * 1024
LDS_TOTAL = 163840
S_AB, S_HP, S_T0, S_WSRC, S_WM0, S_XS, S_HS = 44, 45, 46, 47, 48, 51, 49
VTA, VTB, VTC, VG = 229, 238, 247, 220
A_UA, A_UB, A_UC = 144, 180, 216
S_UA, S_UB, S_UC = 3, 30, 31
SB, SBT = 58, 92

def LD(): return "" if OPT.get("plainld") else " sc1"

def qkv_setup(p, l):
    p(f"""s_lshr_b32 s{S_AB}, s{S_IDX}, 4
    s_lshl_b32 s52, s{S_XCD}, 1
    s_add_u32 s{S_AB}, s{S_AB}, s52
    s_and_b32 s{S_HP}, s{S_IDX}, 15
    s_mul_i32 s{S_WM0}, s{S_WAVE}, 21
    s_lshr_b32 s{S_WM0}, s{S_WM0}, 1
    s_lshl_b32 s{S_WM0}, s{S_WM0}, 10
    s_mul_i32 s{S_WSRC}, s{S_HP}, {126*1024}
    s_add_u32 s{S_WSRC}, s{S_WSRC}, s{S_WM0}
    s_add_u32 s{S_WSRC}, s{S_WSRC}, {WQ}""")

def qkv_wdma(g):
    r = []
    for j0 in range(0, 11, 4):
        r.append(ins(f"s_add_u32 m0, s{S_WM0}, {LDS_WQ+g*42*1024+j0*1024}"))
        r.append(ins(f"s_add_u32 s53, s{S_WSRC}, {g*42*1024+j0*1024}"))
        for j in range(j0, min(j0 + 4, 11)):
            r.append(ins(f"buffer_load_dwordx4 v{V_L16}, {WSR}, s53 offen offset:{1024*(j-j0)} lds", f"wq{g}"))
    return r

def qkv_main(p, l, extra=None, pre_signal=None, turn=None):
    V_W, V_HT, V_HN, V_XH = 3, 4, 5, 10
    ACC, HACC, WB, HB_ = 16, 80, 88, 144
    p(f"""s_lshl_b32 s{S_T0}, s{S_AB}, 3
    s_max_u32 s52, s{S_T0}, 1
    s_sub_u32 s52, s52, 1
    s_mul_i32 s{S_HS}, s52, {18*1024}
    s_mul_i32 s50, s{S_WAVE}, 9
    s_lshr_b32 s50, s50, 1
    s_lshl_b32 s50, s50, 10
    s_add_u32 s{S_HS}, s{S_HS}, s50
    s_add_u32 s{S_HS}, s{S_HS}, {LB(l)+XN}
    s_add_u32 s50, s50, {LDS_HALO}
    s_lshl_b32 s54, s52, 6
    s_lshl_b32 s52, s{S_WAVE}, 1
    s_add_u32 s{S_T0}, s{S_T0}, s52
    s_mul_i32 s{S_XS}, s{S_T0}, {18*1024}
    s_add_u32 s{S_XS}, s{S_XS}, {LB(l)+XN}
    s_lshl_b32 s55, s{S_T0}, 6""")
    p(f"""v_and_b32 v6, 3, v{V_LANE}
    v_min_u32 v6, 2, v6
    v_and_b32 v7, 12, v{V_LANE}
    v_add_lshl_u32 v8, v6, v7, 3
    v_add_u32 v8, s55, v8
    v_and_b32 v7, 4, v{V_LANE}
    v_add_lshl_u32 v9, v6, v7, 3
    v_add_u32 v9, s54, v9
    v_and_b32 v7, 16, v{V_LANE}
    v_cmp_eq_u32 vcc, 0, v7
    v_cndmask_b32 v8, v9, v8, vcc""")
    if l == 0 and OPT.get("wtouch0", 0):
        p(f"""s_lshl_b32 s56, s{S_IDX}, 2
        s_add_u32 s56, s56, s{S_WAVE}
        s_mul_i32 s56, s56, 41
        s_mul_i32 s57, s56, 21846
        s_lshr_b32 s57, s57, 20
        v_and_b32 v7, 1, v{V_LANE}
        v_add_u32 v7, s57, v7
        v_min_u32 v7, 107, v7
        v_mul_u32_u24 v9, {magic(18, 108)}, v7
        v_lshrrev_b32 v9, 16, v9
        v_mad_u32_u24 v7, v9, 14, v7
        v_lshlrev_b32 v7, 3, v7
        v_add_u32 v7, {FWO-FX(0)}, v7
        v_cmp_gt_u32 vcc, 24, v{V_LANE}
        v_cndmask_b32 v8, v7, v8, vcc""")
    if l == 0:
        p(f"""v_subrev_u32 v7, 32, v{V_LANE}
        v_min_u32 v7, 17, v7
        s_lshl_b32 s52, s{S_HP}, 8
        s_add_u32 s52, s52, {FWQ-FX(0)}
        v_lshl_add_u32 v7, v7, 3, s52
        v_cmp_gt_u32 vcc, 32, v{V_LANE}
        v_cndmask_b32 v8, v7, v8, vcc""")
    else:
        p(f"s_min_u32 s52, s{S_IDX}, 23")
        sdiv(p, 52, 52, 6, 32)
        p(f"""s_lshl_b32 s53, s{S_XCD}, 2
        s_add_u32 s52, s52, s53
        s_lshl_b32 s52, s52, 2
        s_add_u32 s52, s52, s{S_WAVE}
        s_lshl_b32 s52, s52, 6
        v_and_b32 v7, 4, v{V_LANE}
        v_add_lshl_u32 v7, v6, v7, 3
        v_add_u32 v7, s52, v7
        v_cmp_gt_u32 vcc, 32, v{V_LANE}
        v_cndmask_b32 v8, v7, v8, vcc""")
    p(f"s_mov_b32 s52, {FX(l)}")
    acc = lambda tt, j: vr(ACC + 32 * tt + 4 * j, 4)
    wf = lambda c, t: vr(WB + 28 * (c & 1) + 4 * t, 4)
    hf = lambda h, j: vr(HB_ + 12 * (h & 1) + 4 * j, 4)
    xf = lambda tt, c: ar(72 * tt + 4 * c, 4)
    def reads(c):
        r = [f"v_add_u32 v{V_W}, {9*7168}, v{V_W}"] if c == 9 else []
        return r + [f"ds_read_b128 {wf(c, t)}, v{V_W} offset:{(c%9)*7168+1024*t}" for t in (0, 1, 2, 3, 6, 4, 5)]
    def hreads(h):
        r = [f"v_add_u32 v{v}, {9*7168}, v{v}" for v in (V_HT, V_HN)] if h == 9 else []
        return r + [f"ds_read_b128 {hf(h, 0)}, v{V_XH} offset:{1024*h}", f"ds_read_b128 {hf(h, 1)}, v{V_HT} offset:{(h%9)*7168}",
                    f"ds_read_b128 {hf(h, 2)}, v{V_HN} offset:{(h%9)*7168}"]
    p(f"""s_min_u32 s56, s{S_WAVE}, 2
    s_add_u32 s57, s56, 2
    s_and_b32 s56, s{S_WAVE}, 1
    s_add_u32 s56, s56, 4
    s_cmp_ge_u32 s{S_WAVE}, 2
    s_cselect_b32 s57, 6, s57
    s_lshl_b32 s57, s57, 10
    s_lshl_b32 s56, s56, 10
    v_add_u32 v{V_W}, {LDS_WQ}, v{V_L16}
    v_add_u32 v{V_HT}, s57, v{V_W}
    v_add_u32 v{V_HN}, s56, v{V_W}
    v_add_u32 v{V_XH}, {LDS_HALO}, v{V_L16}""")
    if l == 1:
        p.wait_vm("wq2"); p.drain(lg=False); p("s_barrier")
        p.add(reads(0))
    trickle = None
    if l == 0 and OPT.get("turn0", 1): trickle = turn()
    p("v_mov_b32 v11, v8\ns_mov_b32 s23, s52")
    px = Poll(p, 12, 11, 23, "px", alt=84)
    p.add(px.issue())
    attn_bias(p, S_AB)
    p(f"s_mul_i32 s53, s{S_HP}, {18*128}\ns_add_u32 s53, s53, s{S_XS}")
    p.add(px.check()); stamp(p, 1)
    if OPT.get("touch", 0): p.add(touch_items(53, 18, 11, 12))
    def xload(c):
        r = []
        for tt in range(2):
            if c % 4 == 0: r.append(ins(f"s_add_u32 s{54+tt}, s{S_XS}, {tt*18*1024+c*1024}"))
            r.append(ins(f"buffer_load_dwordx4 a[{72*tt+4*c}:{72*tt+4*c+3}], v{V_L16}, {WSR}, s{54+tt} offen offset:{1024*(c&3)}{LD()}"))
        return r
    def halo():
        r = []
        for g in range(2):
            r.append(ins(f"s_add_u32 m0, s50, {4096*g}")); r.append(ins(f"s_add_u32 s53, s{S_HS}, {4096*g}"))
            for j in range(4 if g == 0 else 1):
                r.append(ins(f"buffer_load_dwordx4 v{V_L16}, {WSR}, s53 offen offset:{1024*j}{LD()} lds", "halo"))
        return r
    sl = Stream("ld")
    if l == 0:
        p("s_barrier")
        p.add(qkv_wdma(0))
        for c in range(6): p.add(xload(c))
        p.add(qkv_wdma(1))
        if not OPT.get("turn0", 1): trickle = turn()
        late = halo() + sum((xload(c) for c in range(6, 12)), []) + qkv_wdma(2) + sum((xload(c) for c in range(12, 18)), [])
    else:
        nup = OPT.get("qup", 3)
        if not OPT.get("qnold"):
            for c in range(nup): p.add(xload(c))
        late = halo() + sum((xload(c) for c in range(nup, 18)), [])
    hs = {c: [] for c in range(18)}
    for h in range(18): hs[6 + h if h < 6 else 12 + (h - 6) // 2].append(h)
    if l == 0:
        p.wait_vm("wq0"); p.drain(vm=False); p("s_barrier")
        p.add(reads(0))
    bb = []; sr_ = Stream("rd"); sh = Stream("hrd")
    hpos = {}
    for c in range(18):
        g0 = len(bb)
        C = lambda d: "0" if c == 0 else d
        main = []
        for j, t in enumerate((0, 1, 2, 3, 6)):
            for tt in range(2): main.append(ins(f"{MF} {acc(tt, j)}, {wf(c, t)}, {xf(tt, c)}, {C(acc(tt, j))}"))
        for j, t in ((5, 4), (6, 5)):
            for tt in range(2): main.append(ins(f"{MF} {acc(tt, j)}, {xf(tt, c)}, {wf(c, t)}, {C(acc(tt, j))}"))
        def hm(h):
            hpos[h] = len(bb)
            z = lambda d: "0" if h == 0 else d
            bb.append(ins(f"{MF} {vr(HACC, 4)}, {hf(h, 1)}, {hf(h, 0)}, {z(vr(HACC, 4))}"))
            bb.append(ins(f"{MF} {vr(HACC+4, 4)}, {hf(h, 0)}, {hf(h, 2)}, {z(vr(HACC+4, 4))}"))
        if len(hs[c]) == 2:
            bb += main[:6]; hm(hs[c][0]); bb += main[6:]; hm(hs[c][1])
        else:
            bb += main
            for h in hs[c]: hm(h)
        if c + 1 < 18:
            tags = []
            if c + 1 == 6: tags = (["wq1"] if l == 0 else []) + ["halo"]
            if c + 1 == 12 and l == 0: tags = ["wq2"]
            for t in tags: sr_.add(WaitTag(t, "vm"), g0 + 1, g0 + 1)
            if tags:
                sr_.add("s_barrier", g0 + 1, g0 + 1)
                if c + 1 == 6: gbar = g0 + 2
            for k, r in enumerate(reads(c + 1)): sr_.add(r, g0 + 1 + 2 * k - (k > 0) - (k > 4), g0 + 12)
    for h in range(18):
        e = max(gbar, hpos[h - 2] + 2 if h >= 2 else 0)
        for r in hreads(h): sh.add(r, e, hpos[h] - 5)
    sw_ = Stream("wt")
    for it in late: sl.add(it, 0)
    gstep = lambda c: next(i for i, m in enumerate(bb) if xf(0, c) in m.text)
    for e in sl.q:
        it = e[2]
        if it.kind == "vmem":
            if it.tag == "halo": e[1] = gstep(5) - 30
            elif it.tag == "wq2": e[1] = gstep(11) - 40
            else: e[1] = gstep((min(r[1] for r in it.dst) % 72) // 4) - 40
    if extra:
        for it in extra: sl.add(it, 0)
    if l == 0 and OPT.get("wtouch0", 0):
        for t in (f"s_lshl_b32 s56, s{S_IDX}, 2", f"s_add_u32 s56, s56, s{S_WAVE}", f"s_mul_i32 s56, s56, {41*128}", f"s_add_u32 s56, s56, {WOS}"):
            sw_.add(t, 200)
        for it in touch_items(56, 41, 11, 13, ""): sw_.add(it, 230)
    if l == 1 and OPT.get("wtouch", 1):
        rr = OPT.get("r", 3); nsl = 1 << (5 - rr); parts = 128 // nsl
        for t in (f"s_lshl_b32 s53, s{S_IDX}, 2", f"s_add_u32 s53, s53, s{S_WAVE}", f"s_mul_i32 s53, s53, {41*128}", f"s_add_u32 s53, s53, {WOS}"):
            sl.add(t, 0)
        for it in touch_items(53, 41, 11, 13, ""): sl.add(it, 0)
        for t in (f"s_and_b32 s53, s{S_XCD}, {(1 << rr) - 1}", f"s_lshl_b32 s53, s53, {5-rr}", f"s_and_b32 s54, s{S_IDX}, {nsl-1}",
                  f"s_add_u32 s53, s53, s54", f"s_mul_i32 s53, s53, {486*1024}", f"s_lshr_b32 s54, s{S_IDX}, {5-rr}", f"s_lshl_b32 s54, s54, 2",
                  f"s_add_u32 s54, s54, s{S_WAVE}", f"s_mul_i32 s54, s54, {1152//parts*128}", f"s_add_u32 s53, s53, s54", f"s_add_u32 s53, s53, {WF}"):
            sl.add(t, 0)
        for it in touch_items(53, min(1152 // parts, 128), 11, 14, ""): sl.add(it, 0)
    str_ = Stream("tr")
    if trickle:
        k = 0
        for it in trickle:
            str_.add(it, OPT.get("tr0", 40) + OPT.get("trs", 24) * k, OPT.get("tr0", 40) + OPT.get("trs", 24) * k + 4)
            if it.kind == "vmem": k += 1
    sst = Stream("st")
    if STAMP[0] and l == 1:
        for k, c in enumerate((1, 6, 12)): sst.add(stamp_ins(9 + k), gstep(c), gstep(c))
    if OPT.get("qnold") and l == 1: sl.q = [e for e in sl.q if not (e[2].kind == "vmem" and e[2].dst)]
    firsts = set(); seen_r = set()
    for g, mm in enumerate(bb):
        key = frozenset(r for r in mm.srcAB if r[0] == "v")
        prev = frozenset(r for r in bb[g-1].srcAB if r[0] == "v") if g else None
        if key != prev: firsts.add(g)
    weave(p, bb, [sr_, sh, sl, str_, sw_, sst], cap=2, vm_gap=4 if l == 0 else OPT.get("qgap", 4), wait_gaps=lambda g: g in firsts)
    stamp(p, 2)
    attn_part(p, l, S_T0, S_HP, LDS_EX, LOC("o"), LDS_LN + 256)
    stamp(p, 3)
    p(f"""s_lshl_b32 s52, s{S_AB}, 2
    s_add_u32 s52, s52, s{S_WAVE}
    s_lshl_b32 s52, s52, 4
    s_add_u32 s52, s52, s{S_HP}
    s_lshl_b32 s52, s52, 3
    s_add_u32 s52, s52, {FO(l)}""")
    if pre_signal: pre_signal()
    signal(p, 52, 8, "ost", LOC("o"))
    stamp(p, 4)

def wo_part(p, l, mid=None, after_poll=None, pwo=None, pre_signal=None):
    S_TB, S_CG, S_T = 44, 45, 46
    wo_setup(p, l)
    if pwo: p.add(pwo.check())
    wo_wdma(p)
    if mid: mid()
    p(f"""s_lshr_b32 s52, s{S_T}, 1
    s_lshl_b32 s52, s52, 7
    s_add_u32 s52, s52, {FO(l)}
    v_and_b32 v10, 15, v{V_LANE}
    v_lshlrev_b32 v10, 3, v10""")
    p(f"s_mul_i32 s53, s{S_CG}, {22*128}\ns_min_u32 s53, s53, {106*128}\ns_add_u32 s53, s53, s49")
    po = Poll(p, 12, 10, 52, "po", alt=176)
    wo_pre(p, l, LD(), po.issue())
    p.add(po.check()); stamp(p, 5)
    if OPT.get("touch", 0): p.add(touch_items(53, 22, 11, 12))
    if after_poll: after_poll()
    wo_main(p, l, LOC("x"), LD())
    p(f"""s_lshl_b32 s52, s{S_T}, 3
    s_add_u32 s52, s52, s{S_CG}
    s_lshl_b32 s52, s52, 3
    s_add_u32 s52, s52, {F1B+l*0x2000}""")
    if pre_signal: pre_signal()
    signal(p, 52, 8, "x1st", LOC("x"))
    stamp(p, 8)

def phase0(p):
    VROW, VFR, VRAW, VX, VS, VO = 3, 4, 8, 20, 44, 52
    S_ROLE, S_U, S_ST1, S_ST2, S_F1, S_F2, ST1, ST2 = 55, 67, 56, 57, 0, 1, 44, 84
    srd(p, S_X, P_X, XBYTES)
    srd(p, S_A, P_WQKV, D * 3 * D * 2)
    p(f"v_mov_b32 v{VROW}, 0\nv_mov_b32 v{VFR}, 0")
    l_n = p.label("nonce")
    p(f"""v_mov_b32 v5, 0
    s_or_b32 s44, s2, s{S_WAVE}
    s_cmp_lg_u32 s44, 0
    s_cbranch_scc1 {l_n}
    s_memrealtime s[44:45]""")
    p.drain(vm=False)
    p(f"""v_mov_b32 v6, s44
    v_mov_b32 v7, s45
    s_mov_b64 exec, 1
    global_store_dwordx2 v5, v[6:7], s[{P_DBG}:{P_DBG+1}] sc1
    s_mov_b64 exec, -1
    {l_n}:""")
    stamp(p, 1)
    if OPT.get("fwarm", 1):
        n = -(-(0x26000 << OPT.get("fsh", 0)) // (128 * 1024))
        p(f"s_lshl_b32 s52, s2, 2\ns_add_u32 s52, s52, s{S_WAVE}\ns_mul_i32 s52, s52, {n*128}\ns_add_u32 s52, s52, {FLAGBASE:#x}")
        p.add(touch_items(52, n, 217, 218, {1: " sc1", 2: "", 3: " sc0 sc1"}[OPT.get("fwarm", 1)]))
    l_w3, l_u = p.label("w3"), p.label("uend")
    p(f"s_cmp_eq_u32 s{S_WAVE}, 3\ns_cbranch_scc1 {l_w3}")
    p(f"s_lshl_b32 s47, s{S_XCD}, 5\ns_add_u32 s47, s47, s{S_IDX}")
    ln_addr(p, 47, V_LANE, VROW, VFR, 6, 48)
    for i in range(3):
        p(f"buffer_load_dwordx4 v[{VRAW+4*i}:{VRAW+4*i+3}], v{VROW}, s[{S_X}:{S_X+3}], 0 offen offset:{128*i}{NT()}")
    p(f"s_branch {l_u}\n{l_w3}:")
    def qissue(stg, st, sf, srd_, tag):
        p(f"""s_lshr_b32 s{sf}, s{S_U}, 4
        s_and_b32 s{S_U}, s{S_U}, 15
        s_mul_i32 s{S_U}, s{S_U}, 18
        s_add_u32 s{S_U}, s{S_U}, s{sf}""")
        qkv_unit_issue(p, S_U, stg, V_LANE, 64, st, srd_, tag)
        p(f"s_lshl_b32 s{sf}, s{st}, 5\ns_add_u32 s{sf}, s{sf}, s{st+1}\ns_lshl_b32 s{sf}, s{sf}, 3\ns_add_u32 s{sf}, s{sf}, {FWQ}")
    l_w = p.label("uw")
    p(f"""s_mov_b32 s{S_ROLE}, 0
    s_mov_b32 s{S_ST1}, 0
    s_mov_b32 s{S_ST2}, 8192
    s_mul_i32 s{S_U}, s{S_XCD}, 36
    s_add_u32 s{S_U}, s{S_U}, s{S_IDX}""")
    qissue(S_ST1, ST1, S_F1, S_A, "au1")
    p(f"""s_cmp_ge_u32 s{S_IDX}, 4
    s_cbranch_scc1 {l_w}
    s_mov_b32 s{S_ROLE}, 1
    s_mul_i32 s{S_U}, s{S_XCD}, 36
    s_add_u32 s{S_U}, s{S_U}, s{S_IDX}
    s_add_u32 s{S_U}, s{S_U}, 32""")
    qissue(S_ST2, ST2, S_F2, S_A, "au2")
    p(f"""s_branch {l_u}
    {l_w}:
    s_cmp_ge_u32 s{S_IDX}, 18
    s_cbranch_scc1 {l_u}
    s_mul_i32 s{S_U}, s{S_XCD}, 14
    s_add_u32 s{S_U}, s{S_U}, s{S_IDX}
    s_sub_u32 s{S_U}, s{S_U}, 4
    s_cmp_ge_u32 s{S_U}, 108
    s_cbranch_scc1 {l_u}
    s_mov_b32 s{S_ROLE}, 2""")
    wo_unit_issue(p, S_U, S_ST2, V_LANE, 64, ST2, S_A, "au2")
    p(f"""s_lshl_b32 s{S_F2}, s{ST2}, 5
    s_add_u32 s{S_F2}, s{S_F2}, s{ST2+1}
    s_lshl_b32 s{S_F2}, s{S_F2}, 3
    s_add_u32 s{S_F2}, s{S_F2}, {FWO}
    {l_u}:""")
    stamp(p, 2)
    if OPT.get("tlb"):
        n = OPT["tlb"]
        p(f"""s_lshl_b32 s52, s{S_IDX}, 2
        s_add_u32 s52, s52, s{S_WAVE}
        s_lshl_b32 s52, s52, 20
        v_min_u32 v218, {n-1}, v{V_LANE}
        v_mul_u32_u24 v218, {(1 << 20) // n}, v218
        buffer_load_dword v218, v218, {WSR}, s52 offen nt""")
    unit_pieces(p, V_LANE, VG, 64)
    def gu_number(s):
        p(f"s_lshr_b32 s52, s{s}, 5\ns_and_b32 s{s}, s{s}, 31\ns_mul_i32 s{s}, s{s}, 36\ns_add_u32 s{s}, s{s}, s52")
    p(f"""s_lshl_b32 s{S_UA}, s{S_XCD}, 7
    s_lshl_b32 s52, s{S_IDX}, 2
    s_add_u32 s53, s52, s{S_WAVE}
    s_add_u32 s{S_UA}, s{S_UA}, s53""")
    gu_number(S_UA)
    ffn_unit_setup(p, S_UA, SB, S_O, SBT); unit_table(p, SB, VG, VTA, 64)

    l_i, l_d, l_b, l_e = p.label("ui"), p.label("ud"), p.label("ub"), p.label("ue")
    p(f"""s_mov_b32 s{S_UB}, -1
    s_mov_b32 s{S_UC}, -1
    s_mul_i32 s54, s{S_XCD}, 72
    s_add_u32 s54, s54, 1152
    s_cmp_ge_u32 s{S_IDX}, 24
    s_cbranch_scc1 {l_i}
    s_cmp_lg_u32 s{S_WAVE}, 3
    s_cbranch_scc1 {l_e}
    s_add_u32 s{S_UB}, s54, s{S_IDX}
    s_add_u32 s{S_UB}, s{S_UB}, 48
    s_branch {l_b}
    {l_i}:
    s_sub_u32 s53, s53, 96
    s_add_u32 s{S_UC}, s54, s53
    s_add_u32 s{S_UB}, s{S_UC}, -16
    s_add_u32 s{S_UC}, s{S_UC}, 16
    s_cmp_ge_u32 s53, 16
    s_cbranch_scc1 {l_d}
    s_lshl_b32 s{S_UB}, s{S_XCD}, 4
    s_add_u32 s{S_UB}, s{S_UB}, s53
    s_add_u32 s{S_UB}, s{S_UB}, 1024""")
    gu_number(S_UB)
    p(f"{l_d}:\n{l_b}:\n{l_e}:")
    for s_u, ab, sd, vt in ((S_UB, A_UB, S_A, VTB), (S_UC, A_UC, S_X, VTC)):
        l_s = p.label("absent")
        for i in range(9): p(f"v_mov_b32 v{vt+i}, 0")
        p(f"s_mov_b32 s{sd+2}, 0\ns_cmp_eq_u32 s{s_u}, -1\ns_cbranch_scc1 {l_s}")
        ffn_unit_setup(p, s_u, SB, sd, SBT); unit_table(p, SB, VG, vt, 64)
        p(f"{l_s}:")
    pn = NoncePoll(p, 6, 5, 0, "pn")
    l2, l3, l4 = p.label("w3"), p.label("w3"), p.label("ln")
    p(f"s_cmp_eq_u32 s{S_WAVE}, 3\ns_cbranch_scc1 {l2}")
    for i in range(3): unpack8(p, VX + 8 * i, VRAW + 4 * i)
    ln_local_stats(p, VX, VS, VS + 1, 64)
    p(f"""v_and_b32 v64, 7, v{V_LANE}
    s_mul_i32 s46, s{S_WAVE}, 64
    s_add_u32 s46, s46, {LDS_LN}
    v_lshl_add_u32 v64, v64, 3, s46
    ds_write_b64 v64, v[{VS}:{VS+1}]""")
    p.drain(vm=False)
    p(f"{l2}:\ns_barrier"); stamp(p, 3)
    p.add(pn.issue())
    p(f"s_cmp_eq_u32 s{S_WAVE}, 3\ns_cbranch_scc1 {l3}")
    p(f"v_and_b32 v64, 7, v{V_LANE}\nv_lshlrev_b32 v64, 3, v64\nv_add_u32 v64, {LDS_LN}, v64")
    for w in range(3): p(f"ds_read_b64 v[{VS+2*w}:{VS+2*w+1}], v64 offset:{64*w}")
    ln_finish(p, VX, VS, VO, 64)
    p(f"s_mov_b32 s46, {LB(0)+XN}")
    for i in range(3):
        if i == 2: p("s_add_u32 s46, s46, 4096")
        p(f"buffer_store_dwordx4 v[{VO+4*i}:{VO+4*i+3}], v{VFR}, {WSR}, s46 offen offset:{2048*(i&1)} sc1", tag="st0")
    p(f"""s_lshl_b32 s{S_F1}, s47, 2
    s_add_u32 s{S_F1}, s{S_F1}, s{S_WAVE}
    s_lshl_b32 s{S_F1}, s{S_F1}, 3
    s_add_u32 s{S_F1}, s{S_F1}, {FX(0)}
    s_mov_b32 s{S_ROLE}, 0
    s_branch {l4}
    {l3}:""")
    qkv_unit_finish(p, S_ST1, V_LANE, V_L16, 72, 64, ST1, " sc1", "au1")
    l_fw = p.label("fw")
    p(f"s_cmp_eq_u32 s{S_ROLE}, 0\ns_cbranch_scc1 {l4}\ns_cmp_eq_u32 s{S_ROLE}, 2\ns_cbranch_scc1 {l_fw}")
    qkv_unit_finish(p, S_ST2, V_LANE, V_L16, 100, 64, ST2, " sc1", "au2")
    p(f"s_branch {l4}\n{l_fw}:")
    wo_unit_finish(p, S_ST2, V_LANE, V_L16, 100, 64, ST2, " sc1", "au2")
    p(f"{l4}:")
    stamp(p, 4)
    p.add(pn.check())
    p(f"v_readfirstlane_b32 s{S_NONCE}, v6\nv_readfirstlane_b32 s{S_NONCE+1}, v7")
    signal(p, S_F1, 6, "st0")
    stamp(p, 5)
    l5 = p.label("norole")
    p(f"s_cmp_eq_u32 s{S_ROLE}, 0\ns_cbranch_scc1 {l5}")
    p.add(signal_items(S_F2, 6)[2])
    p(f"{l5}:")
    p.add(unit_loads(S_O, VTA, A_UA))

def finish_unit(p, s_u, abase, defer=False, s_lds=55):
    p(f"s_mul_i32 s{s_lds}, s{S_WAVE}, 9216\ns_add_u32 s{s_lds}, s{s_lds}, {LDS_STG}")
    return unit_finish(p, s_u, SB, SBT, s_lds, abase, V_LANE, V_L16, 180 if defer else 72, 64, defer=defer)

def idle0(p, pw):
    finish_unit(p, S_UB, A_UB)
    p(f"s_mov_b32 s44, s{SB+U_FLAG}")
    stores = finish_unit(p, S_UC, A_UC, defer=True)
    signal(p, 44, 8)
    p.add(stores)
    p(f"s_mov_b32 s0, s{SB+U_FLAG}")
    ffn_pw_issue(p, pw)

def gen_main(name):
    Poll.ool.clear()
    p = Prog(); end = f"{name}_end"
    OPT.setdefault("codepf", 1)
    prologue(p, end, code_pf=1, pf_reg=219, pf_end=f"{name}_last")
    p(f"s_mov_b32 s{S_LB}, {LB(0)}\ns_mov_b32 s{S_LF}, 0")
    phase0(p)
    stamp_flush(p, 6, 6, light=True)
    qkv_setup(p, 0)
    extra = unit_loads(S_A, VTB, A_UB) + unit_loads(S_X, VTC, A_UC)
    def turn_a():
        st = finish_unit(p, S_UA, A_UA, defer=True, s_lds=57)
        p(f"s_mov_b32 s0, s{SB+U_FLAG}")
        return st
    pwo = Poll(p, 14, 13, 23, "pwo")
    def pre_signal():
        sdiv(p, 53, S_IDX, 6, 32)
        p(f"s_mul_i32 s53, s53, 6\ns_sub_u32 s53, s{S_IDX}, s53\ns_lshl_b32 s53, s53, 8\ns_add_u32 s23, s53, {FWO}")
        lane_min8(p, 13, V_LANE, 18)
        p.add(pwo.issue())
    qkv_main(p, 0, extra, pre_signal, turn_a)
    p.add(signal_items(0, 8)[2])
    l_idle0, l_ffn, l_red1, l_next = p.label("idle0"), p.label("ffn"), p.label("red1"), p.label("next")
    p(f"s_cmp_ge_u32 s{S_IDX}, 24\ns_cbranch_scc1 {l_idle0}")
    pw = Poll(p, 12, 14, 1, "pw")
    wo_part(p, 0, pwo=pwo, pre_signal=lambda: ffn_pw_issue(p, pw))
    stamp_flush(p, 0, 9, light=True)
    p(f"s_mov_b32 s0, 0\ns_cmp_lg_u32 s{S_WAVE}, 3\ns_cbranch_scc1 {l_ffn}")
    finish_unit(p, S_UB, A_UB)
    p(f"s_mov_b32 s0, s{SB+U_FLAG}\ns_branch {l_ffn}\n{l_idle0}:")
    idle0(p, pw)
    p(f"{l_ffn}:")
    stamp(p, 0)
    ffn_phase(p, pw, sc=LOC("h"), ld=LD())
    stamp_flush(p, 1, 12, light=True, s_row=S_LF)
    p(f"s_cmp_lg_u32 s{S_LF}, 0\ns_cbranch_scc1 {l_red1}")
    stamp(p, 0)
    def w3():
        p(f"""s_and_b32 s44, s{S_IDX}, 15
        s_mul_i32 s44, s44, {126*1024}
        s_add_u32 s44, s44, {WQ}""")
        for j in range(36):
            if j % 4 == 0: p(f"s_mov_b32 m0, {LDS_WQ+j*1024}\ns_add_u32 s45, s44, {j*1024}")
            p(f"buffer_load_dwordx4 v{V_L16}, {WSR}, s45 offen offset:{1024*(j&3)} lds", tag="wq2")
    reduce_phase(p, 0, LDS_LN, ld=LD(), pre=lambda: p("s_barrier"), w3=w3)
    qkv_setup(p, 1)
    stamp(p, 2); stamp_flush(p, 2, 6, light=True); stamp(p, 0)
    qkv_main(p, 1)
    p(f"s_cmp_ge_u32 s{S_IDX}, 24\ns_cbranch_scc1 {l_next}")
    wo_part(p, 1)
    stamp_flush(p, 3, 12, light=True)
    p(f"{l_next}:")
    if STAMP[0]: p.drain(vm=False)
    p(f"s_mov_b32 s{S_LB}, {LB(1)}\ns_mov_b32 s{S_LF}, 0x2000\ns_branch {l_ffn}\n{l_red1}:")
    stamp(p, 0)
    reduce_phase(p, 1, LDS_LN, ld=LD())
    stamp(p, 2); p.drain(); stamp(p, 3); stamp_flush(p, 5, 4)
    p(f"{end}:\ns_endpgm")
    for pl in Poll.ool: pl.slow_path(p)
    p.add(Raw(f"{name}_last:\n    s_endpgm"))
    t = p.finalize()
    print(name, p.stats)
    return kernel_text(name, t, vgpr=512, accum=256), (256, 256, LDS_TOTAL)
```

```python
from common import *
def NT(): return " nt" if OPT.get("nt", 1) else ""

def shuffle_dma(p, srd_, ppr, ndma, s_rowbase, s_grs, s_hrs, s_rs, s_lds, v_lane, vt, tag, qkv=False):
    for i in range(ndma):
        p(f"""v_add_u32 v{vt}, {64*i}, v{v_lane}
        v_mul_u32_u24 v{vt+1}, {magic(ppr, 64*ndma)}, v{vt}
        v_lshrrev_b32 v{vt+1}, 16, v{vt+1}
        v_mul_u32_u24 v{vt+2}, {ppr}, v{vt+1}
        v_sub_u32 v{vt}, v{vt}, v{vt+2}""")
        if qkv:
            p(f"""v_mul_u32_u24 v{vt+2}, {magic(5, 16)}, v{vt}
            v_lshrrev_b32 v{vt+2}, 16, v{vt+2}
            v_mul_u32_u24 v{vt+2}, {1152-80}, v{vt+2}
            v_lshl_add_u32 v{vt}, v{vt}, 4, v{vt+2}""")
        else:
            p(f"v_lshlrev_b32 v{vt}, 4, v{vt}")
        p(f"""v_lshrrev_b32 v{vt+2}, 3, v{vt+1}
        v_mul_lo_u32 v{vt+2}, v{vt+2}, s{s_grs}
        v_bfe_u32 v{vt+3}, v{vt+1}, 2, 1
        v_mul_lo_u32 v{vt+3}, v{vt+3}, s{s_hrs}
        v_and_b32 v{vt+1}, 3, v{vt+1}
        v_mul_lo_u32 v{vt+1}, v{vt+1}, s{s_rs}
        v_add3_u32 v{vt}, v{vt}, v{vt+2}, v{vt+3}
        v_add3_u32 v{vt}, v{vt}, v{vt+1}, s{s_rowbase}
        s_add_u32 m0, s{s_lds}, {1024*i}""")
        p(f"buffer_load_dwordx4 v{vt}, s[{srd_}:{srd_+3}], 0 offen{NT()} lds", tag=tag)

def tr_base(p, vd, v_lane, stride, s_lds, vt):
    p(f"""v_lshrrev_b32 v{vd}, 4, v{v_lane}
    v_bfe_u32 v{vt}, v{v_lane}, 2, 2
    v_lshl_add_u32 v{vd}, v{vd}, 3, v{vt}
    v_mul_u32_u24 v{vd}, {stride}, v{vd}
    v_add_u32 v{vd}, s{s_lds}, v{vd}
    v_and_b32 v{vt}, 3, v{v_lane}""")

def tr_frag(p, vf, va, off, stride):
    p(f"ds_read_b64_tr_b16 v[{vf}:{vf+1}], v{va} offset:{off}")
    p(f"ds_read_b64_tr_b16 v[{vf+2}:{vf+3}], v{va} offset:{off+4*stride}")

U_ROW, U_GRS, U_HRS, U_RS, U_PB, U_T8, U_SL, U_CS, U_FLAG, U_D0, U_D4, U_D8, U_S1, U_S2 = range(14)

def ffn_unit_setup(p, s_u, sb, ssrd, st):
    L = p.label
    l_d, l_done = L("ud"), L("udone")
    p(f"s_cmp_ge_u32 s{s_u}, 1152\ns_cbranch_scc1 {l_d}")
    sdiv(p, sb + U_SL, s_u, 36, 1152)
    p(f"""s_mul_i32 s{st}, s{sb+U_SL}, 36
    s_sub_u32 s{st}, s{s_u}, s{st}
    s_and_b32 s{st+1}, s{st}, 1
    s_lshr_b32 s{st+2}, s{st}, 1""")
    if ssrd is not None:
        p(f"""s_cmp_eq_u32 s{st+1}, 0
        s_cselect_b32 s{ssrd}, s{P_WG}, s{P_WU}
        s_cselect_b32 s{ssrd+1}, s{P_WG+1}, s{P_WU+1}
        s_mul_i32 s{sb+U_ROW}, s{st+2}, {32*9216}
        s_mul_i32 s{st+3}, s{sb+U_SL}, 288
        s_add_u32 s{sb+U_ROW}, s{sb+U_ROW}, s{st+3}
        s_mov_b32 s{sb+U_GRS}, {8*9216}
        s_mov_b32 s{sb+U_HRS}, {4*9216}
        s_mov_b32 s{sb+U_RS}, 9216""")
    else:
        p(f"""s_mov_b32 s{sb+U_PB}, 0
        s_mov_b32 s{sb+U_T8}, 256
        s_mul_i32 s{st+3}, s{sb+U_SL}, 486
        s_add_u32 s{st+3}, s{st+3}, s{st}
        s_lshl_b32 s{st+3}, s{st+3}, 10
        s_add_u32 s{sb+U_D8}, s{st+3}, {WF}
        s_add_u32 s{sb+U_D0}, s{sb+U_D8}, {36*1024}
        s_add_u32 s{sb+U_D4}, s{sb+U_D8}, {180*1024}
        s_mov_b32 s{sb+U_S1}, {36*1024}
        s_mov_b32 s{sb+U_S2}, {72*1024}
        s_lshl_b32 s{st+3}, s{sb+U_SL}, 1
        s_add_u32 s{st+3}, s{st+3}, s{st+1}
        s_mul_i32 s{st+3}, s{st+3}, 18
        s_add_u32 s{st+3}, s{st+3}, s{st+2}
        s_mul_i32 s{st+3}, s{st+3}, 640
        s_add_u32 s{sb+U_CS}, s{st+3}, {CSP}
        s_mov_b32 s{sb+U_FLAG}, s{st}""")
    p(f"s_branch {l_done}\n{l_d}:\ns_sub_u32 s{st}, s{s_u}, 1152")
    sdiv(p, sb + U_SL, st, 18, 576)
    p(f"""s_mul_i32 s{st+1}, s{sb+U_SL}, 18
    s_sub_u32 s{st}, s{st}, s{st+1}
    s_and_b32 s{st+1}, s{sb+U_SL}, 3
    s_and_b32 s{st+2}, s{st+1}, 1""")
    if ssrd is not None:
        l_sh, l_rm, l_rows = L("ush"), L("urm"), L("urows")
        p(f"""s_mov_b32 s{ssrd}, s{P_WD}
        s_mov_b32 s{ssrd+1}, s{P_WD+1}
        s_mov_b32 s{sb+U_RS}, 1152
        s_cmp_eq_u32 s{st+2}, 0
        s_mov_b32 s{st+5}, {-144*1152}
        s_cselect_b32 s{st+5}, {144*1152}, s{st+5}
        s_mov_b32 s{sb+U_GRS}, {8*1152}
        s_mov_b32 s{sb+U_HRS}, {4*1152}
        s_cmp_ge_u32 s{st}, 4
        s_cbranch_scc1 {l_sh}
        s_mov_b32 s{st+3}, s{st+1}
        s_lshl_b32 s{st+4}, s{st}, 5
        s_branch {l_rows}
        {l_sh}:
        s_cmp_ge_u32 s{st}, 6
        s_cbranch_scc1 {l_rm}
        s_sub_u32 s{st+3}, s{st}, 4
        s_lshl_b32 s{st+3}, s{st+3}, 1
        s_xor_b32 s{st+3}, s{st+3}, s{st+1}
        s_mov_b32 s{st+4}, 128
        s_mov_b32 s{sb+U_GRS}, {4*1152}
        s_mov_b32 s{sb+U_HRS}, s{st+5}
        s_branch {l_rows}
        {l_rm}:
        s_sub_u32 s{st+3}, s{st}, 6""")
        sdiv(p, st + 4, st + 3, 3, 12)
        p(f"""s_mul_i32 s{st+5}, s{st+4}, 3
        s_sub_u32 s{st+3}, s{st+3}, s{st+5}
        s_add_u32 s{st+3}, s{st+3}, 1
        s_xor_b32 s{st+3}, s{st+3}, s{st+1}
        s_lshl_b32 s{st+4}, s{st+4}, 5
        {l_rows}:
        s_mul_i32 s{st+3}, s{st+3}, 144
        s_add_u32 s{st+3}, s{st+3}, s{st+4}
        s_lshr_b32 s{st+4}, s{sb+U_SL}, 2
        s_mul_i32 s{st+4}, s{st+4}, 576
        s_add_u32 s{st+3}, s{st+3}, s{st+4}
        s_mul_i32 s{st+3}, s{st+3}, 1152
        s_mul_i32 s{st+4}, s{st+1}, 288
        s_add_u32 s{sb+U_ROW}, s{st+3}, s{st+4}""")
    else:
        p(f"""s_mov_b32 s{sb+U_CS}, 0
        s_lshl_b32 s{sb+U_PB}, s{st+2}, 5
        s_cmp_eq_u32 s{st+2}, 0
        s_cselect_b32 s{sb+U_T8}, 256, 0
        s_add_u32 s{sb+U_FLAG}, s{st}, 36
        s_mul_i32 s{st+3}, s{sb+U_SL}, 486
        s_add_u32 s{st+3}, s{st+3}, 324
        s_lshl_b32 s{st+3}, s{st+3}, 10
        s_add_u32 s{st+3}, s{st+3}, {WF}""")
        idx = {k: i for i, k in enumerate(gemm2_order())}
        l_b, l_c = L("ub"), L("uc")
        def dests(st0, nsteps):
            s1, s2 = idx[(st0, 1)] - idx[(st0, 0)], idx[(st0, 2)] - idx[(st0, 0)]
            p(f"s_sub_u32 s{st+4}, s{st}, {st0}\ns_mov_b32 s{sb+U_S1}, {s1*1024}\ns_mov_b32 s{sb+U_S2}, {s2*1024}")
            for n, r in ((0, U_D0), (4, U_D4), (8, U_D8)):
                sd = idx[(st0 + 1, n)] - idx[(st0, n)]
                p(f"""s_mul_i32 s{st+5}, s{st+4}, {sd*1024}
                s_add_u32 s{st+5}, s{st+5}, {idx[(st0, n)]*1024}
                s_add_u32 s{sb+r}, s{st+5}, s{st+3}""")
                for k in range(nsteps):
                    for m in range(n, min(n + 4, 9) if n < 8 else 9):
                        assert idx[(st0 + k, m)] == idx[(st0, n)] + k * sd + (m & 1) * s1 * (n < 8) + ((m >> 1) & 1) * s2 * (n < 8)
        p(f"s_cmp_ge_u32 s{st}, 3\ns_cbranch_scc1 {l_b}")
        dests(0, 3); p(f"s_branch {l_done}\n{l_b}:")
        p(f"s_cmp_ge_u32 s{st}, 9\ns_cbranch_scc1 {l_c}")
        dests(3, 6); p(f"s_branch {l_done}\n{l_c}:")
        dests(9, 9)
    p(f"{l_done}:")
    if ssrd is not None: p(f"s_mov_b32 s{ssrd+2}, {D*F*2:#x}\ns_mov_b32 s{ssrd+3}, 0x20000")
    else:
        p(f"""s_lshl_b32 s{st+3}, s{sb+U_SL}, 6
        s_add_u32 s{st+3}, s{st+3}, s{sb+U_FLAG}
        s_lshl_b32 s{st+3}, s{st+3}, 3
        s_add_u32 s{sb+U_FLAG}, s{st+3}, {FW}""")

def unit_pieces(p, v_lane, vg, vt):
    for i in range(9):
        p(f"""v_add_u32 v{vt}, {64*i}, v{v_lane}
        v_mul_u32_u24 v{vt+1}, {magic(18, 576)}, v{vt}
        v_lshrrev_b32 v{vt+1}, 16, v{vt+1}
        v_mul_u32_u24 v{vt+2}, 18, v{vt+1}
        v_sub_u32 v{vt}, v{vt}, v{vt+2}
        v_lshl_or_b32 v{vg+i}, v{vt}, 8, v{vt+1}""")

def unit_table(p, sb, vg, vtab, vt):
    for i in range(9):
        p(f"""v_bfe_u32 v{vt}, v{vg+i}, 3, 2
        v_mul_u32_u24 v{vt}, s{sb+U_GRS}, v{vt}
        v_bfe_u32 v{vt+1}, v{vg+i}, 2, 1
        v_mul_lo_u32 v{vt+1}, v{vt+1}, s{sb+U_HRS}
        v_and_b32 v{vt+2}, 3, v{vg+i}
        v_mul_u32_u24 v{vt+2}, s{sb+U_RS}, v{vt+2}
        v_add3_u32 v{vt}, v{vt}, v{vt+1}, v{vt+2}
        v_lshrrev_b32 v{vt+1}, 8, v{vg+i}
        v_lshl_add_u32 v{vt}, v{vt+1}, 4, v{vt}
        v_add_u32 v{vtab+i}, s{sb+U_ROW}, v{vt}""")

def unit_loads(srd_, vtab, abase):
    return [ins(f"buffer_load_dwordx4 a[{abase+4*i}:{abase+4*i+3}], v{vtab+i}, s[{srd_}:{srd_+3}], 0 offen{NT()}") for i in range(9)]

def unit_finish(p, s_u, sb, st, s_lds, abase, v_lane, v_l16, vf, vt, sc=" sc1", defer=False):
    va, vb = vt, vt + 1
    p(f"v_add_u32 v{va}, s{s_lds}, v{v_l16}")
    for i in range(9): p(f"ds_write_b128 v{va}, a[{abase+4*i}:{abase+4*i+3}] offset:{1024*i}")
    ffn_unit_setup(p, s_u, sb, None, st)
    tr_base(p, va, v_lane, 288, s_lds, vt + 2)
    p(f"""v_lshl_add_u32 v{vb}, v{vt+2}, 3, v{va}
    v_add_u32 v{vb}, s{sb+U_T8}, v{vb}
    v_lshl_add_u32 v{va}, v{vt+2}, 4, v{va}
    v_add_u32 v{va}, s{sb+U_PB}, v{va}""")
    for n in range(9):
        if n < 8: tr_frag(p, vf + 4 * n, va, 64 * (n >> 1) + 8 * (n & 1), 288)
        else: tr_frag(p, vf + 4 * n, vb, 0, 288)
    stores = []
    for n in range(9):
        base = sb + (U_D0 if n < 4 else U_D4 if n < 8 else U_D8)
        if n < 8 and n & 3:
            if (n & 3) == 1: stores.append(ins(f"s_add_u32 s{st}, s{base}, s{sb+U_S1}"))
            elif (n & 3) == 2: stores.append(ins(f"s_add_u32 s{st}, s{base}, s{sb+U_S2}"))
            else: stores.append(ins(f"s_add_u32 s{st}, s{st}, s{sb+U_S1}"))
            base = st
        stores.append(ins(f"buffer_store_dwordx4 v[{vf+4*n}:{vf+4*n+3}], v{v_l16}, s[{S_WS}:{S_WS+3}], s{base} offen{sc}"))
    if not defer: p.add(stores)
    l_skip = p.label("nocs")
    p(f"s_cmp_eq_u32 s{sb+U_CS}, 0\ns_cbranch_scc1 {l_skip}")
    vo, vd = vt + 4, (vf + 36 if not defer else 72)
    for j in range(4): p(f"v_mov_b32 v{vo+j}, {BF16_ONES:#x}")
    for n in range(9):
        p(f"v_mfma_f32_16x16x32_bf16 v[{vd+4*n}:{vd+4*n+3}], v[{vf+4*n}:{vf+4*n+3}], v[{vo}:{vo+3}], 0")
    p(f"""v_and_b32 v{vt+2}, 15, v{v_lane}
    v_add_u32 v{vt+3}, 1, v{vt+2}
    v_cmp_gt_u32 vcc, 8, v{vt+2}
    v_and_b32 v{va}, 48, v{v_lane}
    v_cndmask_b32 v{vt+3}, 0, v{vt+3}, vcc
    v_cmp_eq_u32 vcc, 9, v{vt+2}
    v_cndmask_b32 v{vt+3}, v{vt+3}, v{vt+2}, vcc
    v_lshlrev_b32 v{vt+3}, 6, v{vt+3}
    v_add_u32 v{vt+3}, v{vt+3}, v{va}""")
    for n in range(1, 9):
        p(f"v_cmp_eq_u32 vcc, {n}, v{vt+2}")
        for j in range(4): p(f"v_cndmask_b32 v{vd+j}, v{vd+j}, v{vd+4*n+j}, vcc")
    p(f"""s_mov_b32 exec_lo, 0x03ff03ff
    s_mov_b32 exec_hi, 0x03ff03ff
    buffer_store_dwordx4 v[{vd}:{vd+3}], v{vt+3}, s[{S_WS}:{S_WS+3}], s{sb+U_CS} offen{sc}
    s_mov_b64 exec, -1
    {l_skip}:""")
    return stores

def qkv_unit_issue(p, s_u, s_lds, v_lane, vt, st, srd_=S_A, tag="au"):
    sdiv(p, st, s_u, 18, 288)
    p(f"""s_mul_i32 s{st+1}, s{st}, 18
    s_sub_u32 s{st+1}, s{s_u}, s{st+1}
    s_mul_i32 s{st+2}, s{st}, 72
    s_and_b32 s{st+3}, s{st+2}, 8
    s_and_b32 s{st+2}, s{st+2}, -16
    s_mul_i32 s{st+4}, s{st+1}, {32*3456}
    s_add_u32 s{st+2}, s{st+2}, s{st+4}
    s_mov_b32 s{st+4}, {3456-240}
    s_mul_i32 s{st+7}, s{s_u}, {7*1024}""")
    srd(p, srd_, P_WQKV, D * 3 * D * 2)
    for i in range(8):
        p(f"""v_add_u32 v{vt}, {64*i}, v{v_lane}
        v_mul_u32_u24 v{vt+1}, {magic(15, 512)}, v{vt}
        v_lshrrev_b32 v{vt+1}, 16, v{vt+1}
        v_mad_i32_i24 v{vt+2}, v{vt+1}, -15, v{vt}
        v_mul_u32_u24 v{vt+2}, {magic(5, 16)}, v{vt+2}
        v_lshrrev_b32 v{vt+2}, 16, v{vt+2}
        v_mul_u32_u24 v{vt+2}, {1152-80}, v{vt+2}
        v_mad_u32_u24 v{vt+1}, v{vt+1}, s{st+4}, v{vt+2}
        v_lshl_add_u32 v{vt}, v{vt}, 4, v{vt+1}
        s_add_u32 m0, s{s_lds}, {1024*i}""")
        p(f"buffer_load_dwordx4 v{vt}, s[{srd_}:{srd_+3}], s{st+2} offen{NT()} lds", tag=tag)

def qkv_unit_finish(p, s_lds, v_lane, v_l16, vf, vt, st, sc="", tag="au"):
    va, vb = vt, vt + 1
    tr_base(p, va, v_lane, 240, s_lds, vt + 2)
    p(f"""v_add_u32 v{va}, s{st+3}, v{va}
    v_and_b32 v{vt+3}, 1, v{vt+2}
    v_mul_u32_u24 v{vt+3}, 160, v{vt+3}
    v_lshrrev_b32 v{vb}, 1, v{vt+2}
    v_mul_u32_u24 v{vb}, 80, v{vb}
    v_add3_u32 v{vb}, v{vb}, v{vt+3}, v{va}
    v_cmp_eq_u32 vcc, 3, v{vt+2}
    v_cndmask_b32 v{vb}, v{vb}, v{va}, vcc
    v_lshl_add_u32 v{va}, v{vt+2}, 3, v{va}""")
    p.wait_vm(tag)
    for t in range(6): tr_frag(p, vf + 4 * t, va, 80 * (t >> 1) + 40 * (t & 1), 240)
    tr_frag(p, vf + 24, vb, 32, 240)
    p(f"v_and_b32 v{vt+2}, 15, v{v_lane}\nv_cmp_gt_u32 vcc, 12, v{vt+2}")
    for j in range(4): p(f"v_cndmask_b32 v{vf+24+j}, 0, v{vf+24+j}, vcc")
    p(f"s_add_u32 s{st+7}, s{st+7}, {WQ}")
    for t in range(7):
        if t == 4: p(f"s_add_u32 s{st+7}, s{st+7}, 4096")
        p(f"buffer_store_dwordx4 v[{vf+4*t}:{vf+4*t+3}], v{v_l16}, s[{S_WS}:{S_WS+3}], s{st+7} offen offset:{(t&3)*1024}{sc}", tag="st0")

def qkv_unit(p, s_u, s_lds, v_lane, v_l16, vf, vt, st, sc=""):
    qkv_unit_issue(p, s_u, s_lds, v_lane, vt, st); qkv_unit_finish(p, s_lds, v_lane, v_l16, vf, vt, st, sc)

def wo_unit_issue(p, s_u, s_lds, v_lane, vt, st, srd_=S_A, tag="au"):
    sdiv(p, st, s_u, 18, 108)
    p(f"""s_mul_i32 s{st+1}, s{st}, 18
    s_sub_u32 s{st+1}, s{s_u}, s{st+1}
    s_mul_i32 s{st+2}, s{st+1}, {36*1152}
    s_sub_u32 s{st+3}, s{st+1}, 16
    s_mul_i32 s{st+3}, s{st+3}, {288*1152}
    s_add_u32 s{st+3}, s{st+3}, {16*1152}
    s_cmp_lt_u32 s{st+1}, 16
    s_cselect_b32 s{st+2}, s{st+2}, s{st+3}
    s_mov_b32 s{st+4}, {72*1152}
    s_mov_b32 s{st+5}, {36*1152}
    s_cselect_b32 s{st+4}, {4*1152}, s{st+4}
    s_cselect_b32 s{st+5}, {20*1152}, s{st+5}
    s_mul_i32 s{st+3}, s{st}, 192
    s_add_u32 s{st+2}, s{st+2}, s{st+3}
    s_mov_b32 s{st+6}, 1152
    s_mul_i32 s{st+7}, s{s_u}, {6*1024}""")
    srd(p, srd_, P_WO, D * D * 2)
    shuffle_dma(p, srd_, 12, 6, st + 2, st + 4, st + 5, st + 6, s_lds, v_lane, vt, tag)

def wo_unit_finish(p, s_lds, v_lane, v_l16, vf, vt, st, sc="", tag="au"):
    va = vt
    tr_base(p, va, v_lane, 192, s_lds, vt + 2)
    p(f"v_lshl_add_u32 v{va}, v{vt+2}, 4, v{va}")
    p.wait_vm(tag)
    for t in range(6): tr_frag(p, vf + 4 * t, va, 64 * (t >> 1) + 8 * (t & 1), 192)
    p(f"s_add_u32 s{st+7}, s{st+7}, {WOS}")
    for t in range(6):
        if t == 4: p(f"s_add_u32 s{st+7}, s{st+7}, 4096")
        p(f"buffer_store_dwordx4 v[{vf+4*t}:{vf+4*t+3}], v{v_l16}, s[{S_WS}:{S_WS+3}], s{st+7} offen offset:{(t&3)*1024}{sc}", tag="st0")

def wo_unit(p, s_u, s_lds, v_lane, v_l16, vf, vt, st, sc=""):
    wo_unit_issue(p, s_u, s_lds, v_lane, vt, st); wo_unit_finish(p, s_lds, v_lane, v_l16, vf, vt, st, sc)

def ln_addr(p, s_tg, v_lane, v_row, v_frag, vt, st):
    p(f"""v_and_b32 v{vt}, 7, v{v_lane}
    v_lshrrev_b32 v{vt+1}, 3, v{v_lane}
    s_lshl_b32 s{st}, s{s_tg}, 3
    v_add_u32 v{v_row}, s{st}, v{vt}
    v_mul_u32_u24 v{v_row}, 1152, v{v_row}
    s_mul_i32 s{st}, s{S_WAVE}, {24*16}
    v_lshl_add_u32 v{v_row}, v{vt+1}, 4, v{v_row}
    v_add_u32 v{v_row}, s{st}, v{v_row}
    s_lshr_b32 s{st}, s{s_tg}, 1
    s_mul_i32 s{st}, s{st}, {18*1024}
    s_and_b32 s{st+1}, s{s_tg}, 1
    s_lshl_b32 s{st+1}, s{st+1}, 7
    s_add_u32 s{st}, s{st}, s{st+1}
    s_mul_i32 s{st+1}, s{S_WAVE}, {6*1024}
    s_add_u32 s{st}, s{st}, s{st+1}
    v_lshlrev_b32 v{vt}, 4, v{vt}
    v_lshl_add_u32 v{vt}, v{vt+1}, 8, v{vt}
    v_add_u32 v{v_frag}, s{st}, v{vt}""")

def ln_local_stats(p, vx, v_sum, v_m2, vt):
    p(f"v_add_f32 v{v_sum}, v{vx}, v{vx+1}\nv_add_f32 v{vt}, v{vx+2}, v{vx+3}")
    for j in range(4, 24, 2):
        p(f"v_add_f32 v{v_sum}, v{v_sum}, v{vx+j}\nv_add_f32 v{vt}, v{vt}, v{vx+j+1}")
    p(f"v_add_f32 v{v_sum}, v{v_sum}, v{vt}")
    xsum8(p, v_sum); xsum_g(p, v_sum, vt)
    p(f"v_mul_f32 v{vt+1}, {1/192!r}, v{v_sum}".replace(repr(1/192), "0x3baaaaab"))
    p(f"v_sub_f32 v{vt}, v{vx}, v{vt+1}\nv_mul_f32 v{v_m2}, v{vt}, v{vt}")
    for j in range(1, 24):
        p(f"v_sub_f32 v{vt+2+(j&1)}, v{vx+j}, v{vt+1}\nv_fmac_f32 v{v_m2}, v{vt+2+(j&1)}, v{vt+2+(j&1)}")
    xsum8(p, v_m2); xsum_g(p, v_m2, vt)

def ln_finish(p, vx, vs, vo, vt):
    mean, a, b = vt, vt + 1, vt + 2
    p(f"""v_add_f32 v{mean}, v{vs}, v{vs+2}
    v_add_f32 v{mean}, v{mean}, v{vs+4}
    v_mul_f32 v{mean}, 0x3ae38e39, v{mean}
    v_add_f32 v{a}, v{vs+1}, v{vs+3}
    v_add_f32 v{a}, v{a}, v{vs+5}""")
    for w in range(3):
        p(f"""v_mul_f32 v{b}, 0x3baaaaab, v{vs+2*w}
        v_sub_f32 v{b}, v{b}, v{mean}
        v_mul_f32 v{b}, v{b}, v{b}
        v_fmac_f32 v{a}, 0x43400000, v{b}""")
    p(f"v_mul_f32 v{a}, 0x3ae38e39, v{a}")
    round_bf16(p, a)
    p(f"v_add_f32 v{a}, 0x3727c5ac, v{a}")
    round_bf16(p, a)
    p(f"v_sqrt_f32 v{a}, v{a}")
    round_bf16(p, a)
    p(f"v_rcp_f32 v{a}, v{a}")
    round_bf16(p, mean)
    for j in range(0, 24, 2):
        p(f"""v_sub_f32 v{vx+j}, v{vx+j}, v{mean}
        v_sub_f32 v{vx+j+1}, v{vx+j+1}, v{mean}
        v_cvt_pk_bf16_f32 v{b}, v{vx+j}, v{vx+j+1}
        v_lshlrev_b32 v{vx+j}, 16, v{b}
        v_and_b32 v{vx+j+1}, 0xffff0000, v{b}
        v_mul_f32 v{vx+j}, v{vx+j}, v{a}
        v_mul_f32 v{vx+j+1}, v{vx+j+1}, v{a}
        v_cvt_pk_bf16_f32 v{vo+j//2}, v{vx+j}, v{vx+j+1}""")
```

```python
from fw import *
from layout import *

S_WS = 4
S_X  = 8
S_A  = 12
S_O  = 16
S_WAVE = 20
S_XCD = 21
S_IDX = 22
S_PTR = 24
P_X, P_WQKV, P_WO, P_WG, P_WU, P_WD, P_OUT, P_DBG, P_WS = 24, 26, 28, 32, 34, 36, 38, 40, 42
BF16_ONES = 0x3F803F80

def srd(p, s, ptr, nbytes):
    p(f"""s_mov_b32 s{s}, s{ptr}
    s_mov_b32 s{s+1}, s{ptr+1}
    s_mov_b32 s{s+2}, {nbytes:#x}
    s_mov_b32 s{s+3}, 0x20000""")

OPT = {"fsh": 2, "bo": 4, "reuse": 2, "qmap": 3}
STAMP = [False]
STAMPS = 0xF000000
def stamp_ins(k, base=72): return ins(f"{'s_memtime' if STAMP[0] == 2 else 's_memrealtime'} s[{base+2*k}:{base+2*k+1}]")
def stamp(p, k, base=72):
    if STAMP[0]: p.add(stamp_ins(k, base))
def stamp_flush(p, kidx, n, base=72, light=False, s_row=None):
    if not STAMP[0]: return
    l = p.label("nostamp")
    p.drain(vm=not light)
    p(f"s_cmp_lg_u32 s{S_WAVE}, {OPT.get('sw', 0) if kidx not in (2, 5) else 0}\ns_cbranch_scc1 {l}\ns_lshl_b32 s23, s2, 7\ns_add_u32 s23, s23, {STAMPS+kidx*256*128}")
    if s_row is not None:
        p(f"s_cmp_lg_u32 s{s_row}, 0\ns_cselect_b32 s96, {3*256*128}, 0\ns_add_u32 s23, s23, s96")
    p("s_mov_b64 exec, 1")
    for k in range(n):
        p(f"v_mov_b32 v8, s{base+2*k}\nv_mov_b32 v9, s{base+2*k+1}\nbuffer_store_dwordx2 v[8:9], off, s[{S_WS}:{S_WS+3}], s23 offset:{8*k}")
    if OPT.get("dbgstamp") is not None:
        l2 = p.label("nodbg")
        sel = {0: ((0, 2), (1, 3), (4, 4), (8, 5)), 1: ((1, 6), (11, 7)), 2: ((2, 8),), 3: ((4, 9), (8, 10)), 5: ((3, 13),), 6: ()}[kidx]
        p(f"s_cmp_lg_u32 s2, {OPT['dbgstamp']}\ns_cbranch_scc1 {l2}")
        if s_row is not None: p(f"s_cmp_lg_u32 s{s_row}, 0\ns_cselect_b32 s96, 20, 0\nv_mov_b32 v9, s96")
        else: p("v_mov_b32 v9, 0")
        for k, slot in sel:
            p(f"s_sub_u32 s96, s{base+2*k}, s98\nv_mov_b32 v8, s96\nglobal_store_dword v9, v8, s[{P_DBG}:{P_DBG+1}] offset:{4*slot}")
        p(f"{l2}:")
    p("s_mov_b64 exec, -1")
    if not light: p.drain()
    p(f"{l}:")

def prologue(p, end_label, nwg=256, v_lane=1, v_l16=2, sbase=72, code_pf=0, pf_reg=4, pf_end=None):
    p(f"s_cmp_ge_u32 s2, {nwg}\ns_cbranch_scc1 {end_label}")
    stamp(p, 0, sbase)
    p(f"""    s_load_dwordx16 s[24:39], s[0:1], 0
    s_load_dwordx4 s[40:43], s[0:1], 64
    v_lshrrev_b32 v{v_lane}, 6, v0
    s_and_b32 s{S_XCD}, s2, 7
    v_readfirstlane_b32 s{S_WAVE}, v{v_lane}
    s_lshr_b32 s{S_IDX}, s2, 3
    v_and_b32 v{v_lane}, 63, v0
    v_lshlrev_b32 v{v_l16}, 4, v{v_lane}""")
    if OPT.get("codepf") and code_pf:
        lpc = p.label("pc")
        p(f"""s_lshl_b32 s23, s{S_IDX}, 2
        s_add_u32 s23, s23, s{S_WAVE}
        s_mul_i32 s23, s23, 5
        v_add_lshl_u32 v{pf_reg}, v{v_lane}, s23, 7
        s_getpc_b64 s[{S_O}:{S_O+1}]
        {lpc}:
        v_min_u32 v{pf_reg}, {pf_end or end_label}-{lpc}, v{pf_reg}
        s_mov_b64 exec, 31
        global_load_dword v{pf_reg}, v{pf_reg}, s[{S_O}:{S_O+1}]
        s_mov_b64 exec, -1""")
    p.drain(vm=False)
    srd(p, S_WS, P_WS, WS_BYTES)

def magic(d, n):
    m = (65536 + d - 1) // d
    assert all((x * m) >> 16 == x // d for x in range(n)), (d, n)
    return m

def sdiv(p, sq, sx, d, n):
    p(f"s_mul_i32 s{sq}, s{sx}, {magic(d, n)}\ns_lshr_b32 s{sq}, s{sq}, 16")

def unpack8(p, dst, src):
    for j in range(4):
        p(f"v_lshlrev_b32 v{dst+2*j}, 16, v{src+j}")
        p(f"v_and_b32 v{dst+2*j+1}, 0xffff0000, v{src+j}")

def round_bf16(p, v, tmp=None):
    p(f"v_cvt_pk_bf16_f32 v{v}, v{v}, v{v}\nv_lshlrev_b32 v{v}, 16, v{v}")

def xsum_g(p, v, t):
    p(f"""v_mov_b32 v{t}, v{v}
    v_permlane16_swap_b32 v{v}, v{t}
    v_add_f32 v{v}, v{v}, v{t}
    v_mov_b32 v{t}, v{v}
    v_permlane32_swap_b32 v{v}, v{t}
    v_add_f32 v{v}, v{v}, v{t}""")

def xsum8(p, v):
    p(f"v_add_f32_dpp v{v}, v{v}, v{v} row_ror:8 row_mask:0xf bank_mask:0xf")

WSR = f"s[{S_WS}:{S_WS+3}]"
S_NONCE, S_LB, S_LF, S_CNT = 98, 100, 101, 97
SPIN = 0x40000

def flag_scale(s):
    r = [ins(f"s_lshl_b32 s{s}, s{s}, {OPT['fsh']}")] if OPT.get("fsh", 0) else []
    return r + [ins(f"s_add_u32 s{s}, s{s}, {FLAGBASE:#x}")]

class Poll:
    ool = []
    def __init__(self, p, v_flag, v_addr, s_off, name, alt=None):
        self.v, self.va, self.so, self.alt = v_flag, v_addr, s_off, alt
        self.slow, self.back, self.lp = p.label(name + "_slow"), p.label(name + "_back"), p.label(name + "_spin")
        Poll.ool.append(self)
    def ld(self): return f"buffer_load_dwordx2 v[{self.v}:{self.v+1}], v{self.va}, {WSR}, s{self.so} offen {OPT.get('pol', 'sc1')}"
    def cmp(self): return f"v_cmp_eq_u64 vcc, s[{S_NONCE}:{S_NONCE+1}], v[{self.v}:{self.v+1}]"
    def issue(self, scale_v=True):
        r = flag_scale(self.so)
        if scale_v and OPT.get("fsh", 0): r.append(ins(f"v_lshlrev_b32 v{self.va}, {OPT['fsh']}, v{self.va}"))
        return r + [ins(self.ld())]
    def check(self):
        r = [ins(self.cmp()), ins("s_cmp_eq_u64 vcc, exec"), ins(f"s_cbranch_scc0 {self.slow}", "ool"), Label(self.back)]
        if self.alt is not None and OPT.get("pipe", 0):
            r.append(Phantom({("v", x) for x in (self.v, self.v + 1, self.alt, self.alt + 1, self.alt + 2, self.alt + 3)}))
        return r
    def both(self): return self.issue() + self.check()
    def slow_path(self, p):
        if self.alt is None or not OPT.get("pipe", 0):
            p.add(Raw(f"""{self.slow}:
    s_mov_b32 s{S_CNT}, {SPIN:#x}
{self.lp}:
    s_sleep {OPT.get("bo", 16)}
    {self.ld()}
    s_waitcnt vmcnt(0)
    {self.cmp()}
    s_sub_u32 s{S_CNT}, s{S_CNT}, 1
    s_cbranch_scc1 {self.back}
    s_cmp_eq_u64 vcc, exec
    s_cbranch_scc1 {self.back}
    s_branch {self.lp}"""))
            return
        regs = [self.v, self.alt, self.alt + 2]
        def ld(r): return self.ld().replace(f"v[{self.v}:{self.v+1}]", f"v[{r}:{r+1}]")
        def cmp(r): return self.cmp().replace(f"v[{self.v}:{self.v+1}]", f"v[{r}:{r+1}]")
        t = f"{self.slow}:\n    s_mov_b32 s{S_CNT}, {SPIN:#x}\n    {ld(regs[0])}\n    s_sleep 3\n    {ld(regs[1])}\n    s_sleep 3\n{self.lp}:\n"
        for k in range(3):
            t += f"""    {ld(regs[(k+2)%3])}
    s_waitcnt vmcnt(2)
    {cmp(regs[k])}
    s_cmp_eq_u64 vcc, exec
    s_cbranch_scc1 {self.lp}_done
"""
        t += f"""    s_sub_u32 s{S_CNT}, s{S_CNT}, 1
    s_cbranch_scc0 {self.lp}
{self.lp}_done:
    s_branch {self.back}"""
        p.add(Raw(t))

class NoncePoll(Poll):
    def issue(self): return [ins(self.ld())]
    def ld(self): return f"global_load_dwordx2 v[{self.v}:{self.v+1}], v{self.va}, s[{P_DBG}:{P_DBG+1}] sc1"
    def cmp(self): return f"v_cmp_ne_u64 vcc, 0, v[{self.v}:{self.v+1}]"

def LOC(kind):
    return "" if kind in str(OPT.get("loc", "")) else " sc1"

def signal_items(s_addr, vt, sc=" sc1"):
    return [ins(f"v_mov_b32 v{vt}, s{S_NONCE}"), ins(f"v_mov_b32 v{vt+1}, s{S_NONCE+1}"),
            flag_scale(s_addr) + [ins("s_mov_b64 exec, 1"), ins(f"buffer_store_dwordx2 v[{vt}:{vt+1}], off, {WSR}, s{s_addr}{sc and ' ' + OPT.get('sig', 'sc1')}"), ins("s_mov_b64 exec, -1")]]

def signal(p, s_addr, vt, tag=None, sc=" sc1"):
    it = signal_items(s_addr, vt, sc)
    p.add(it[:2])
    if tag: p.wait_vm(tag)
    else: p.drain(lg=False)
    p.add(it[2])

def lane_min8(p, vd, v_lane, n):
    p(f"v_min_u32 v{vd}, {n-1}, v{v_lane}\nv_lshlrev_b32 v{vd}, 3, v{vd}")

def touch_items(s_base, n, va, vd, sc=" sc1"):
    r = [ins(f"v_min_u32 v{va}, {min(n, 64)-1}, v1"), ins(f"v_lshlrev_b32 v{va}, 7, v{va}"),
         ins(f"buffer_load_dword v{vd}, v{va}, {WSR}, s{s_base} offen{sc}")]
    if n > 64:
        r += [ins(f"v_add_u32 v{va}, {(n-64)*128}, v{va}"), ins(f"buffer_load_dword v{vd+1}, v{va}, {WSR}, s{s_base} offen{sc}")]
    return r

def hp_of(sd, st, l):
    if OPT.get("qmap", 0) >> l & 1:
        return [f"s_and_b32 s{st}, s{S_XCD}, 1", f"s_lshl_b32 s{st}, s{st}, 3", f"s_and_b32 s{sd}, s{S_IDX}, 7", f"s_add_u32 s{sd}, s{sd}, s{st}"]
    return [f"s_and_b32 s{sd}, s{S_IDX}, 15"]

def ab_of(sd, st, l):
    if OPT.get("qmap", 0) >> l & 1:
        return [f"s_and_b32 s{st}, s{S_XCD}, 6", f"s_lshl_b32 s{st}, s{st}, 1", f"s_lshr_b32 s{sd}, s{S_IDX}, 3", f"s_add_u32 s{sd}, s{sd}, s{st}"]
    return [f"s_lshl_b32 s{st}, s{S_XCD}, 1", f"s_lshr_b32 s{sd}, s{S_IDX}, 4", f"s_add_u32 s{sd}, s{sd}, s{st}"]
```

```python
import re

def regs_of(tok):
    tok = tok.strip()
    if tok.startswith("-"):
        tok = tok[1:]
    if tok.startswith("abs(") or tok.startswith("|"):
        tok = tok.strip("|").replace("abs(", "").rstrip(")")
    m = re.fullmatch(r"([vas])(\d+)", tok)
    if m:
        return {(m.group(1), int(m.group(2)))}
    m = re.fullmatch(r"([vas])\[(\d+):(\d+)\]", tok)
    if m:
        return {(m.group(1), i) for i in range(int(m.group(2)), int(m.group(3)) + 1)}
    if tok == "vcc":
        return {("s", "vcc")}
    if tok in ("exec", "exec_lo", "exec_hi"):
        return {("s", "exec")}
    if tok == "m0":
        return {("s", "m0")}
    return set()

TRANS = ("v_exp_f32", "v_log_f32", "v_rcp_f32", "v_rsq_f32", "v_sqrt_f32", "v_sin_f32", "v_cos_f32")

class I:
    __slots__ = ("text", "op", "kind", "dst", "src", "tag", "srcC", "srcAB", "data", "maybe", "passes")
    def __init__(self, text, tag=None):
        self.text = text.strip()
        self.tag = tag
        self.maybe = None
        body = self.text.split(";")[0].strip()
        parts = body.split(None, 1)
        op = parts[0]
        self.op = op
        rest = parts[1] if len(parts) > 1 else ""
        ops = [x.strip() for x in rest.split(",")] if rest else []
        mods = []
        if ops:
            last = ops[-1].split()
            ops[-1] = last[0] if last else ""
            mods = last[1:]
        R = [regs_of(o) for o in ops]
        U = lambda l: set().union(*l) if l else set()
        self.srcC = set(); self.srcAB = set(); self.data = set(); self.passes = 0
        if op.startswith("v_mfma"):
            self.kind = "mfma"; self.dst = R[0]; self.srcAB = R[1] | R[2]; self.srcC = R[3]; self.src = self.srcAB | self.srcC
            self.passes = {"v_mfma_f32_16x16x32_bf16": 4, "v_mfma_f32_32x32x16_bf16": 8, "v_mfma_f32_16x16x4_f32": 8}[op]
        elif op.startswith("v_cmp"):
            self.kind = "valu"; self.dst = set(R[0]); self.src = U(R[1:])
            if op.startswith("v_cmpx"): self.dst |= {("s", "exec")}
        elif op.startswith("v_permlane"):
            self.kind = "valu"; self.dst = R[0] | R[1]; self.src = R[0] | R[1]
        elif op.startswith(("v_fmac", "v_dot2c", "v_pk_fmac")):
            self.kind = "valu"; self.dst = R[0]; self.src = U(R)
        elif op.startswith(("v_add_co", "v_sub_co", "v_addc_co", "v_subb_co")):
            self.kind = "valu"; self.dst = R[0] | R[1]; self.src = U(R[2:])
        elif op.startswith("v_writelane"):
            self.kind = "valu"; self.dst = R[0]; self.src = U(R)
        elif op.startswith("v_"):
            self.kind = "valu"; self.dst = R[0] if R else set(); self.src = U(R[1:])
            if "row_" in rest or "quad_perm" in rest or "dpp" in op:
                self.src |= R[0]
        elif op.startswith(("ds_read", "ds_bpermute", "ds_permute", "ds_swizzle")):
            self.kind = "ds"; self.dst = R[0]; self.src = U(R[1:])
        elif op.startswith("ds_write"):
            self.kind = "ds"; self.dst = set(); self.src = U(R); self.data = U(R[1:])
        elif op.startswith("buffer_load") or op.startswith("global_load"):
            self.kind = "vmem"
            if "lds" in mods or "_lds_" in op:
                self.dst = set(); self.src = U(R) | {("s", "m0")}
            else:
                self.dst = R[0]; self.src = U(R[1:])
        elif op.startswith("buffer_store"):
            self.kind = "vmem"; self.dst = set(); self.src = U(R); self.data = R[0]
        elif op.startswith("global_store"):
            self.kind = "vmem"; self.dst = set(); self.src = U(R); self.data = R[1]
        elif op.startswith(("buffer_atomic", "global_atomic")):
            self.kind = "vmem"; self.src = U(R); self.dst = R[0] if "sc0" in mods else set()
        elif op.startswith(("buffer_inv", "buffer_wbl2")):
            self.kind = "vmem"; self.dst = set(); self.src = set()
        elif op.startswith(("s_load", "s_memtime", "s_memrealtime")):
            self.kind = "smem"; self.dst = R[0]; self.src = U(R[1:])
        elif op in ("s_waitcnt", "s_barrier", "s_nop", "s_endpgm", "s_setprio", "s_sleep", "s_branch") or op.startswith("s_cbranch"):
            self.kind = "ctl"; self.dst = set(); self.src = set()
            if op.startswith("s_cbranch_scc"): self.src = {("s", "scc")}
            if op.startswith("s_cbranch_vcc"): self.src = {("s", "vcc")}
            if op.startswith("s_cbranch_exec"): self.src = {("s", "exec")}
        elif op.startswith("s_cmp") or op.startswith("s_bitcmp"):
            self.kind = "salu"; self.dst = {("s", "scc")}; self.src = U(R)
        elif "saveexec" in op:
            self.kind = "salu"; self.dst = R[0] | {("s", "exec"), ("s", "scc")}; self.src = U(R[1:]) | {("s", "exec")}
        elif op.startswith("s_"):
            self.kind = "salu"; self.dst = set(R[0]); self.src = U(R[1:])
            if op.startswith(("s_addk", "s_mulk")): self.src |= R[0]
            if op.startswith(("s_addc", "s_subb", "s_cselect")): self.src |= {("s", "scc")}
            if not op.startswith(("s_mov", "s_mul", "s_cselect", "s_getreg", "s_getpc")): self.dst |= {("s", "scc")}
        else:
            raise ValueError("unknown instruction: " + text)
    def states(self):
        if self.op == "s_nop":
            return int(self.text.split()[1]) + 1
        return 1

class Label:
    def __init__(self, name): self.name = name
class Raw:
    def __init__(self, text): self.text = text
class WaitTag:
    def __init__(self, tag, cnt): self.tag = tag; self.cnt = cnt
class Drain:
    def __init__(self, vm=True, lg=True): self.vm = vm; self.lg = lg
class Forget:
    def __init__(self, vm=True, lg=True): self.vm = vm; self.lg = lg
class Phantom:
    def __init__(self, regs): self.regs = regs
class Cond:
    def __init__(self, begin): self.begin = begin

def hazard_need(prev, cur):
    n = 0
    pv = {r for r in prev.dst if r[0] in "va"}
    ps = {r for r in prev.dst if r[0] == "s"}
    if prev.kind == "valu":
        if cur.kind == "mfma" and (pv & cur.src): n = max(n, 2)
        if cur.kind == "mfma" and ("s", "exec") in ps: n = max(n, 4)
        if cur.kind == "vmem" and (ps & cur.src): n = max(n, 5)
        if cur.kind == "valu" and (ps & cur.src):
            n = max(n, 4 if cur.op.startswith(("v_readlane", "v_writelane")) else 2)
        if cur.kind == "valu" and ("s", "exec") in ps and cur.op.startswith(("v_readlane", "v_readfirstlane", "v_writelane", "v_permlane")): n = max(n, 4)
        if cur.kind == "valu" and (pv & cur.src):
            if cur.op.startswith(("v_readlane", "v_readfirstlane")): n = max(n, 1)
            if cur.op.startswith("v_permlane") or "row_" in cur.text or "quad_perm" in cur.text: n = max(n, 2)
            if prev.op.startswith(TRANS) and not cur.op.startswith(TRANS): n = max(n, 1)
            if prev.op.startswith("v_dot") and (prev.op != cur.op or (pv & (cur.src - cur.dst))): n = max(n, 3)
            if "op_sel" in prev.text or "sdwa" in prev.text: n = max(n, 1)
        if prev.op.startswith("v_dot") and cur.kind in ("valu", "mfma", "vmem", "ds") and prev.op != cur.op and (pv & (cur.src | cur.dst)): n = max(n, 3)
        if cur.kind == "salu" and (ps & cur.src) and prev.op.startswith(("v_readfirstlane", "v_readlane", "v_cmp")): n = max(n, 1)
        if cur.kind == "ctl" and (ps & cur.src): n = max(n, 5)
    if prev.kind == "mfma":
        sg = prev.op.endswith("x4_f32")
        p = prev.passes
        if cur.kind == "mfma":
            if pv & cur.srcAB: n = max(n, p + (2 if sg else 4))
            if pv & cur.srcC:
                if not (pv == cur.srcC and prev.op == cur.op): n = max(n, p + (0 if sg else 2))
            if (pv & cur.dst) and not (pv == cur.dst and prev.op == cur.op) : n = max(n, p + 2)
        elif cur.kind in ("valu", "vmem", "ds"):
            if pv & (cur.src | cur.dst): n = max(n, p + (2 if sg else 4))
        if cur.kind == "valu" and not sg and (prev.srcC & cur.dst): n = max(n, p - 1)
    if prev.kind == "vmem" and prev.data and ("x4" in prev.op or "x3" in prev.op):
        if prev.data & cur.dst: n = max(n, 2 if cur.kind in ("valu", "mfma") else 1)
    if prev.kind == "salu" and ("s", "m0") in prev.dst and cur.kind == "vmem" and ("s", "m0") in cur.src: n = max(n, 1)
    return n

class Prog:
    def __init__(self):
        self.items = []
        self.uid = 0
        self.stats = {"nops": 0, "waits": 0}
    def __call__(self, text, tag=None):
        for l in text.split("\n"):
            l = l.strip()
            if not l or l.startswith(";"):
                continue
            if l.endswith(":"):
                self.items.append(Label(l[:-1]))
            elif l.startswith("."):
                self.items.append(Raw(l))
            else:
                self.items.append(I(l, tag))
    def add(self, it):
        if isinstance(it, str): self(it)
        elif isinstance(it, (list, tuple)):
            for x in it: self.add(x)
        else: self.items.append(it)
    _gid = [0]
    def label(self, base):
        Prog._gid[0] += 1
        return f"L_{base}_{Prog._gid[0]}"
    def wait_vm(self, tag): self.items.append(WaitTag(tag, "vm"))
    def wait_lg(self, tag): self.items.append(WaitTag(tag, "lg"))
    def drain(self, vm=True, lg=True): self.items.append(Drain(vm, lg))
    def forget(self, vm=True, lg=True): self.items.append(Forget(vm, lg))
    def cond_begin(self): self.items.append(Cond(True))
    def cond_end(self): self.items.append(Cond(False))

    def finalize(self, verbose=False):
        out = []
        st = {"vm": [], "lg": [], "hists": [[]], "dead": False}
        labels_ahead = {}
        for it in self.items:
            if isinstance(it, Label): labels_ahead[it.name] = True
        open_lab = set()
        snaps = {}
        seq = [0]
        def emit(ins_):
            need = 0
            for hist in st["hists"]:
                dist = 0
                for q in reversed(hist):
                    h = hazard_need(q, ins_)
                    if h - dist > need: need = h - dist
                    dist += q.states()
                    if dist >= 24: break
            while need > 0:
                k = min(need, 16)
                nop = I(f"s_nop {k-1}")
                out.append("    " + nop.text)
                for hist in st["hists"]: hist.append(nop)
                need -= k
                self.stats["nops"] += 1
                if verbose: print("nop", k, "before", ins_.text)
            out.append("    " + ins_.text)
            for hist in st["hists"]:
                hist.append(ins_)
                if len(hist) > 60: del hist[:20]
            if len(st["hists"]) > 1 and all(h[-24:] == st["hists"][0][-24:] for h in st["hists"]): del st["hists"][1:]
        def count_after(q, idx):
            return sum(1 for e in q[idx + 1:] if e[1] <= open_lab)
        def do_wait(vidx, lidx):
            parts = []
            if vidx is not None:
                n = min(count_after(st["vm"], vidx), 63)
                parts.append(f"vmcnt({n})"); del st["vm"][:vidx + 1]
                if n == 0: st["vm"].clear()
            if lidx is not None:
                if any(e[2].kind == "smem" for e in st["lg"]): n = 0
                else: n = min(count_after(st["lg"], lidx), 15)
                del st["lg"][:lidx + 1]
                if n == 0: st["lg"].clear()
                parts.append(f"lgkmcnt({n})")
            if parts:
                emit(I("s_waitcnt " + " ".join(parts))); self.stats["waits"] += 1
        for it in self.items:
            if isinstance(it, Label):
                out.append(it.name + ":")
                labels_ahead.pop(it.name, None)
                open_lab.discard(it.name)
                if it.name in snaps:
                    srcs = snaps.pop(it.name)
                    if not st["dead"]: srcs = srcs + [st]
                    for k in ("vm", "lg"):
                        m = {e[0]: e for s in srcs for e in s[k]}
                        st[k] = [m[x] for x in sorted(m)]
                    st["hists"] = [list(h) for s in srcs for h in s["hists"]]
                st["dead"] = False
            elif isinstance(it, Raw):
                out.append(it.text)
            elif isinstance(it, Cond):
                pass
            elif isinstance(it, Phantom):
                ph = I("buffer_load_dword v0, v0, s[0:3], 0 offen"); ph.dst = set(it.regs); ph.src = set()
                seq[0] += 1
                st["vm"].append((seq[0], frozenset({"__never__"}), ph))
            elif isinstance(it, Forget):
                if it.vm: st["vm"].clear()
                if it.lg: st["lg"].clear()
            elif isinstance(it, Drain):
                parts = []
                if it.vm: parts.append("vmcnt(0)"); st["vm"].clear()
                if it.lg: parts.append("lgkmcnt(0)"); st["lg"].clear()
                emit(I("s_waitcnt " + " ".join(parts)))
            elif isinstance(it, WaitTag):
                q = st[it.cnt]
                idx = None
                for i, e in enumerate(q):
                    if e[2].tag == it.tag: idx = i
                if idx is not None:
                    do_wait(idx if it.cnt == "vm" else None, idx if it.cnt == "lg" else None)
            else:
                only_wait = isinstance(it, WaitFor)
                if only_wait: it = it.ins
                touch = it.src | it.dst
                vidx = lidx = None
                for i, e in enumerate(st["vm"]):
                    if e[2].dst & touch: vidx = i
                for i, e in enumerate(st["lg"]):
                    if e[2].dst & touch: lidx = i
                do_wait(vidx, lidx)
                if only_wait: continue
                if it.op == "s_waitcnt":
                    m = re.search(r"vmcnt\((\d+)\)", it.text)
                    if m and int(m.group(1)) == 0: st["vm"].clear()
                    m = re.search(r"lgkmcnt\((\d+)\)", it.text)
                    if m and int(m.group(1)) == 0: st["lg"].clear()
                emit(it)
                seq[0] += 1
                if it.kind == "vmem": st["vm"].append((seq[0], frozenset(open_lab), it))
                elif it.kind in ("ds", "smem"): st["lg"].append((seq[0], frozenset(open_lab), it))
                if it.op == "s_branch" or it.op.startswith("s_cbranch"):
                    tgt = it.text.split()[1]
                    if tgt in labels_ahead:
                        snaps.setdefault(tgt, []).append({"vm": list(st["vm"]), "lg": list(st["lg"]), "hists": [list(h[-30:]) for h in st["hists"]]})
                        open_lab.add(tgt)
                    elif it.tag != "ool":
                        assert not [e for e in st["vm"] if e[2].dst] and not [e for e in st["lg"] if e[2].dst], "loads pending at backward branch " + it.text
                    if it.op == "s_branch":
                        st["dead"] = True; st["vm"] = []; st["lg"] = []; st["hists"] = [[]]
                if it.op == "s_endpgm":
                    st["dead"] = True; st["vm"] = []; st["lg"] = []; st["hists"] = [[]]
        return "\n".join(out) + "\n"

def ins(text, tag=None):
    return I(text, tag)

class Stream:
    def __init__(self, name=""):
        self.q = []; self.name = name
    def add(self, item, earliest=0, deadline=10**9, tag=None, cost=1):
        if isinstance(item, str): item = I(item, tag)
        self.q.append([earliest, deadline, item, cost])

def _is_vm(item):
    if isinstance(item, (list, tuple)): return any(_is_vm(x) for x in item)
    return isinstance(item, I) and item.kind == "vmem"

class WaitFor:
    def __init__(self, ins_): self.ins = ins_

def _cls(item):
    if isinstance(item, (list, tuple)):
        return "s" if all(isinstance(x, I) and x.kind == "salu" for x in item) and len(item) <= 3 else "grp"
    if isinstance(item, I):
        return {"valu": "v", "ds": "d", "vmem": "m"}.get(item.kind, "s")
    return "s"

def weave(p, backbone, streams, cap=2, vm_gap=4, wait_gaps=None, quiet=None):
    n = len(backbone)
    pos = [0] * len(streams)
    for s in streams:
        d = 10**9
        for e in reversed(s.q):
            d = min(d, e[1]); e[1] = d
    last_vm = -10**9
    forced = 0
    rank = {"s": 0, "grp": 0, "m": 1, "d": 1, "v": 2}
    for g in range(n + 1):
        ns = 1 if (wait_gaps and g < n and wait_gaps(g)) else 0
        nv = 0; closed = False
        chosen = []; last_rank = {}
        def fits(si, e):
            c = _cls(e[2])
            if closed: return False
            if rank[c] < last_rank.get(si, 0): return False
            if c == "m" and quiet and streams[si].name in ("ld", "dma") and quiet(g): return False
            if c == "m": return ns + nv == 0 and g - last_vm >= vm_gap
            if c == "grp": return ns + nv == 0 and (not _is_vm(e[2]) or g - last_vm >= vm_gap)
            if c == "s": return ns + nv + (len(e[2]) if isinstance(e[2], (list, tuple)) else 1) <= 3
            return nv < cap and ns + nv < 3
        while True:
            best = None
            for si, s in enumerate(streams):
                if pos[si] < len(s.q):
                    e = s.q[pos[si]]
                    if g < n:
                        if e[0] > g: continue
                        if e[1] > g and not fits(si, e): continue
                    c = _cls(e[2])
                    key = (0 if e[1] <= g + 1 else 1 if c in ("m", "grp") else 2 if c == "s" else 3, e[1])
                    if best is None or key < bkey:
                        best = si; bkey = key
            if best is None: break
            e = streams[best].q[pos[best]]
            c = _cls(e[2])
            ok = fits(best, e)
            if g < n and not ok: forced += 1
            if _is_vm(e[2]): last_vm = g
            r = max(rank[c], last_rank.get(best, 0))
            last_rank[best] = r
            chosen.append((r, len(chosen), e[2])); pos[best] += 1
            if c == "s": ns += len(e[2]) if isinstance(e[2], (list, tuple)) else 1
            elif c in ("m", "grp"): closed = True; nv += 1
            else: nv += 1
        chosen.sort(key=lambda x: x[:2])
        if g < n and not any(_cls(x[2]) in ("m", "grp") for x in chosen): p.add(WaitFor(backbone[g]))
        for x in chosen: p.add(x[2])
        if g < n: p.add(backbone[g])
    p.stats["forced"] = p.stats.get("forced", 0) + forced

def vr(b, n=1): return f"v{b}" if n == 1 else f"v[{b}:{b+n-1}]"
def ar(b, n=1): return f"a{b}" if n == 1 else f"a[{b}:{b+n-1}]"
def sr(b, n=1): return f"s{b}" if n == 1 else f"s[{b}:{b+n-1}]"

def kernel_text(name, body, vgpr=512, accum=256, sgpr=102):
    t = f".text\n.globl {name}\n.p2align 8\n.type {name},@function\n{name}:\n" + body
    t += f'''.section .rodata,"a"
.p2align 6
.amdhsa_kernel {name}
  .amdhsa_next_free_vgpr {vgpr}
  .amdhsa_next_free_sgpr {sgpr}
  .amdhsa_accum_offset {accum}
  .amdhsa_group_segment_fixed_size 0
  .amdhsa_kernarg_size 80
  .amdhsa_user_sgpr_count 2
  .amdhsa_user_sgpr_kernarg_segment_ptr 1
  .amdhsa_system_sgpr_workgroup_id_x 1
  .amdhsa_float_denorm_mode_32 3
.end_amdhsa_kernel
'''
    return t
```

```python
from common import *
from k_prep import ln_addr, ln_local_stats, ln_finish
MF = "v_mfma_f32_16x16x32_bf16"
RING = 36 * 1024
LDS_CS = 4 * RING
LDS_WQ = 18 * 1024

from fw import _is_vm as _isvm
DBG = set()
def ffn_slice(p, sd, st):
    rr = OPT.get("r", 3)
    p(f"""s_and_b32 s{st}, s{S_XCD}, {(1 << rr) - 1}
    s_lshl_b32 s{st}, s{st}, {5-rr}
    s_and_b32 s{sd}, s{S_IDX}, {(1 << (5-rr)) - 1}
    s_add_u32 s{sd}, s{sd}, s{st}""")

def ffn_pw_issue(p, pw):
    ffn_slice(p, pw.so, 23)
    p(f"s_lshl_b32 s{pw.so}, s{pw.so}, 9\ns_add_u32 s{pw.so}, s{pw.so}, {FW}")
    lane_min8(p, pw.va, 1, 36)
    p.add(pw.issue())

def ffn_phase(p, pw, sc=" sc1", ld=" sc1"):
    if "plain" in DBG: sc = ""
    scp = LOC("p")
    ntw = " nt" if OPT.get("ntw") else ""
    lbh = str(LB(0)) if OPT.get("reuse") else f"s{S_LB}"
    rr = OPT.get("r", 3)
    V_LANE, V_L16, V_L8, V_W, V_CS, V_T0, V_T1 = 1, 2, 3, 4, 5, 6, 7
    WB, XO, ACA, ACB, NM, RS2, CS, TMP, HO, H8 = 8, 32, 64, 96, 128, 132, 136, 152, 176, 240
    ACX = 208
    S_RB, S_Q, S_M, S_SL, S_SRC, S_M0, S_XS, S_H, S_FL, S_P, S_T, S_R = 44, 45, 46, 47, 48, 49, 50, 51, 52, 53, 54, 56
    S_TMP, S_TMP2, S_LASTSRC, S_LASTM0, S_FW = 60, 61, 62, 63, 64
    p("s_barrier")
    sp = OPT.get("stpro")
    if sp: stamp(p, 2)
    p(f"""s_lshr_b32 s{S_RB}, s{S_IDX}, {5-rr}
    s_and_b32 s{S_TMP}, s{S_XCD}, {7 & ~((1 << rr) - 1)}
    s_add_u32 s{S_RB}, s{S_RB}, s{S_TMP}
    s_and_b32 s{S_TMP}, s{S_XCD}, {(1 << rr) - 1}
    s_lshl_b32 s{S_TMP}, s{S_TMP}, {5-rr}
    s_and_b32 s{S_SL}, s{S_IDX}, {(1 << (5-rr)) - 1}
    s_add_u32 s{S_SL}, s{S_SL}, s{S_TMP}
    s_lshl_b32 s{S_FW}, s{S_SL}, 9
    s_add_u32 s{S_FW}, s{S_FW}, {FW}""")
    p(f"""s_lshr_b32 s{S_Q}, s{S_SL}, 2
    s_and_b32 s{S_M}, s{S_SL}, 3
    s_mul_i32 s{S_SRC}, s{S_SL}, {486*1024}
    s_add_u32 s{S_SRC}, s{S_SRC}, {WF}
    s_mul_i32 s{S_LASTM0}, s{S_WAVE}, 9
    s_lshr_b32 s{S_LASTM0}, s{S_LASTM0}, 1
    s_lshl_b32 s{S_LASTM0}, s{S_LASTM0}, 10
    s_add_u32 s{S_LASTSRC}, s{S_SRC}, s{S_LASTM0}
    s_mul_i32 s{S_M0}, s{S_WAVE}, {9*1024}
    s_add_u32 s{S_SRC}, s{S_SRC}, s{S_M0}
    s_lshl_b32 s{S_T}, s{S_RB}, 4
    s_lshl_b32 s{S_TMP}, s{S_WAVE}, 2
    s_add_u32 s{S_T}, s{S_T}, s{S_TMP}
    s_mul_i32 s{S_XS}, s{S_T}, {18*1024}
    s_mul_i32 s{S_P}, s{S_Q}, {XBYTES}
    s_add_u32 s{S_P}, s{S_P}, s{S_XS}
    s_add_u32 s{S_XS}, s{S_XS}, {X1}
    s_add_u32 s{S_XS}, s{S_XS}, s{S_LB}
    s_lshr_b32 s{S_TMP}, s{S_M}, 1
    s_mul_i32 s{S_TMP}, s{S_TMP}, {9*1024}
    s_add_u32 s{S_P}, s{S_P}, s{S_TMP}
    s_add_u32 s{S_P}, s{S_P}, {PB}
    s_add_u32 s{S_P}, s{S_P}, {lbh}
    v_lshlrev_b32 v{V_L8}, 3, v{V_LANE}
    v_mov_b32 v{V_W}, v{V_L16}""")
    rot = OPT.get("rot", 0)
    S_RO, S_XO = 24, 33
    if rot:
        p(f"""s_and_b32 s{S_XO}, s{S_IDX}, {(1 << (5-rr)) - 1}
        s_mul_i32 s{S_XO}, s{S_XO}, 18
        s_lshr_b32 s{S_XO}, s{S_XO}, {5-rr}
        s_lshl_b32 s{S_XO}, s{S_XO}, 10
        s_lshl_b32 s{S_TMP}, s{S_XO}, 1
        s_add_u32 s{S_TMP}, s{S_TMP}, s{S_M0}""")
        for j in range(9):
            p(f"""s_add_u32 s{S_RO+j}, s{S_TMP}, {1024*j}
            s_sub_u32 s{S_TMP2}, s{S_RO+j}, {RING}
            s_cselect_b32 s{S_RO+j}, s{S_RO+j}, s{S_TMP2}""")
        p(f"""s_sub_u32 s{S_TMP}, s{S_SRC}, s{S_M0}
        s_add_u32 s{S_A}, s{P_WS}, s{S_TMP}
        s_addc_u32 s{S_A+1}, s{P_WS+1}, 0
        s_mov_b32 s{S_A+2}, {RING:#x}
        s_mov_b32 s{S_A+3}, 0x20000""")
    def slot_dma(k):
        r = []
        if rot and k < 9:
            if k: r.append([ins(f"s_add_u32 s{S_A}, s{S_A}, {RING}"), ins(f"s_addc_u32 s{S_A+1}, s{S_A+1}, 0")])
            for j in range(9):
                r.append(ins(f"s_add_u32 m0, s{S_M0}, {(k&3)*RING+1024*j}"))
                r.append(ins(f"buffer_load_dwordx4 v{V_L16}, s[{S_A}:{S_A+3}], s{S_RO+j} offen{ntw} lds", f"slot{k}"))
        elif k < 13:
            for g in range(3):
                r.append(ins(f"s_add_u32 m0, s{S_M0}, {(k&3)*RING+4096*g}"))
                r.append(ins(f"s_add_u32 s{S_TMP2}, s{S_SRC}, {k*RING+4096*g}"))
                for j in range(4 if g < 2 else 1):
                    r.append(ins(f"buffer_load_dwordx4 v{V_L16}, {WSR}, s{S_TMP2} offen offset:{1024*j}{ntw} lds", f"slot{k}"))
        else:
            for g in range(2):
                r.append(ins(f"s_add_u32 m0, s{S_LASTM0}, {(k&3)*RING+4096*g}"))
                r.append(ins(f"s_add_u32 s{S_TMP2}, s{S_LASTSRC}, {k*RING+4096*g}"))
                for j in range(4 if g < 1 else 1):
                    r.append(ins(f"buffer_load_dwordx4 v{V_L16}, {WSR}, s{S_TMP2} offen offset:{1024*j}{ntw} lds", f"slot{k}"))
        return r
    xf = lambda c, tt: ar(16 * c + 4 * tt, 4) if c < 16 else vr(XO + 16 * (c - 16) + 4 * tt, 4)
    XB = (59, 66, 68, 69)
    VXA = TMP + 20
    def xload(c):
        r = []
        if rot:
            if c: r.append([ins(f"s_add_u32 s{S_XO}, s{S_XO}, 1024"), ins(f"s_cmp_eq_u32 s{S_XO}, {18*1024}"), ins(f"s_cselect_b32 s{S_XO}, 0, s{S_XO}")])
            r.append(ins(f"s_add_u32 s{XB[c&1]}, s{S_XS}, s{S_XO}"))
            for tt in range(4):
                r.append(ins(f"buffer_load_dwordx4 {xf(c,tt)}, v{VXA+tt}, {WSR}, s{XB[c&1]} offen{ld}"))
            return r
        for tt in range(4):
            if c % 4 == 0: r.append(ins(f"s_add_u32 s{XB[tt]}, s{S_XS}, {tt*18*1024+c*1024}"))
            r.append(ins(f"buffer_load_dwordx4 {xf(c,tt)}, v{V_L16}, {WSR}, s{XB[tt]} offen offset:{1024*(c&3)}{ld}"))
        return r
    if rot:
        for tt in range(4): p(f"v_add_u32 v{VXA+tt}, {tt*18*1024}, v{V_L16}")
    l_nopw = p.label("nopw")
    p(f"s_cmp_lg_u32 s{S_LF}, 0\ns_cbranch_scc1 {l_nopw}")
    p.add(pw.check())
    p(f"{l_nopw}:")
    npre = OPT.get("npre", 3)
    if sp: stamp(p, 3)
    for k in range(npre): p.add(slot_dma(k))
    if sp: stamp(p, 4)
    l_nocs = p.label("nocs")
    p(f"""s_cmp_lg_u32 s{S_LF}, 0
    s_cbranch_scc1 {l_nocs}
    s_cmp_ge_u32 s{S_WAVE}, 2
    s_cbranch_scc1 {l_nocs}
    s_lshl_b32 s{S_TMP}, s{S_SL}, 1
    s_add_u32 s{S_TMP}, s{S_TMP}, s{S_WAVE}
    s_mul_i32 s{S_TMP}, s{S_TMP}, {18*640}
    s_add_u32 s{S_TMP}, s{S_TMP}, {CSP}
    v_lshrrev_b32 v{V_T0}, 2, v{V_LANE}
    v_lshlrev_b32 v{V_T0}, 7, v{V_T0}
    v_and_b32 v{V_T1}, 3, v{V_LANE}
    v_lshl_add_u32 v{V_T0}, v{V_T1}, 4, v{V_T0}
    s_lshl_b32 s{S_TMP2}, s{S_WAVE}, 6
    s_add_u32 s{S_TMP2}, s{S_TMP2}, {LDS_CS}
    v_add_u32 v{V_T0}, s{S_TMP2}, v{V_T0}
    s_mov_b32 exec_hi, 15""")
    for c in range(18):
        if c and c % 6 == 0: p(f"s_add_u32 s{S_TMP}, s{S_TMP}, {6*640}")
        p(f"buffer_load_dwordx4 {vr(64+4*c,4)}, v{V_L16}, {WSR}, s{S_TMP} offen offset:{(c%6)*640} sc1")
    for c in range(1, 18):
        for j in range(4): p(f"v_add_f32 v{64+j}, v{64+j}, v{64+4*c+j}")
    p(f"ds_write_b128 v{V_T0}, v[64:67]\ns_mov_b64 exec, -1")
    p.drain(vm=False)
    p(f"{l_nocs}:")
    p(f"""s_lshr_b32 s{S_TMP}, s{S_T}, 2
    s_lshl_b32 s{S_TMP}, s{S_TMP}, 8
    s_add_u32 s55, s{S_LF}, {F1B}
    v_and_b32 v{V_T1}, 7, v{V_LANE}
    v_min_u32 v{V_T1}, 5, v{V_T1}
    v_and_b32 v{V_T0}, 24, v{V_LANE}
    v_add_lshl_u32 v0, v{V_T1}, v{V_T0}, 3
    v_add_u32 v0, s{S_TMP}, v0
    s_lshl_b32 s{S_TMP}, s{S_XCD}, 4
    s_lshr_b32 s{S_TMP2}, s{S_IDX}, 1
    s_add_u32 s{S_TMP}, s{S_TMP}, s{S_TMP2}
    s_lshl_b32 s{S_TMP}, s{S_TMP}, 6
    v_lshl_add_u32 v{V_T1}, v{V_T1}, 3, s{S_TMP}
    v_cmp_gt_u32 vcc, 32, v{V_LANE}
    v_cndmask_b32 v0, v{V_T1}, v0, vcc""")
    p1 = Poll(p, TMP + 16, 0, 55, "p1", alt=TMP + 18)
    p.add(p1.issue())
    p(f"""s_lshl_b32 s{S_TMP}, s{S_RB}, 5
    s_add_u32 s{S_TMP}, s{S_TMP}, s{S_SL}
    s_mul_i32 s{S_H}, s{S_TMP}, {72*1024}
    s_add_u32 s{S_H}, s{S_H}, {HB}
    s_add_u32 s{S_H}, s{S_H}, {lbh}""")
    for j in range(3):
        p(f"""s_xor_b32 s{S_TMP2}, s{S_TMP}, {j+1}
        s_mul_i32 s{S_R+j}, s{S_TMP2}, {72*1024}
        s_add_u32 s{S_R+j}, s{S_R+j}, {HB}
        s_add_u32 s{S_R+j}, s{S_R+j}, {lbh}""")
    p(f"""s_lshr_b32 s{S_FL}, s{S_TMP}, 2
    s_lshl_b32 s{S_FL}, s{S_FL}, 2
    s_add_u32 s{S_FL}, s{S_FL}, s{S_WAVE}
    s_lshl_b32 s{S_FL}, s{S_FL}, 7
    s_lshl_b32 s{S_TMP2}, s{S_LF}, 2
    s_add_u32 s{S_FL}, s{S_FL}, s{S_TMP2}
    s_add_u32 s{S_FL}, s{S_FL}, {FHB}
    v_lshrrev_b32 v{V_CS}, 4, v{V_LANE}
    v_lshlrev_b32 v{V_CS}, 4, v{V_CS}
    v_add_u32 v{V_CS}, {LDS_CS}, v{V_CS}
    s_lshl_b32 s{S_TMP}, s{S_WAVE}, 12""")
    for r in (S_H, S_R, S_R + 1, S_R + 2):
        p(f"s_add_u32 s{r}, s{r}, s{S_TMP}")
    p(f"s_lshl_b32 s65, s{S_WAVE}, 11\ns_sub_u32 s65, {64*1024}, s65")
    p(f"s_lshl_b32 s67, s{S_M}, 3\ns_add_u32 s67, s67, s{S_FL}")
    frs = []
    first = (8, 0, 1)
    bufs = {8: (ACX, ACX + 16), 0: (ACA, ACA + 16), 1: (ACB, ACB + 16), 2: (HO + 16, TMP)}
    for tile in range(3, 8): bufs[tile] = (ACB, ACB + 16) if tile & 1 else (ACA, ACA + 16)
    def g1(tile, c, mat):
        f = pos_of_tile(tile) * 36 + 2 * c + mat
        return (f, [(vr(bufs[tile][mat] + 4 * tt, 4), xf(c, tt), c == 0) for tt in range(4)])
    marks = {}
    for c in range(18):
        for tile in first:
            for mat in range(2): frs.append(g1(tile, c, mat))
    marks["pass0_end"] = len(frs)
    for tile in range(2, 8):
        marks[f"pass{tile}"] = len(frs)
        for c in range(18):
            for mat in range(2): frs.append(g1(tile, c, mat))
    marks["g2"] = len(frs)
    acc2 = lambda n, tt: 32 + 32 * (n >> 1) + 8 * tt + 4 * (n & 1) if n < 8 else 160 + 4 * tt
    def hstep(st, tt):
        if st < 4: return vr(HO + 16 * st + 4 * tt, 4)
        if st == 4: return vr(H8 + 4 * tt, 4)
        return ar(16 * (st - 5) + 4 * tt, 4)
    order = gemm2_order()
    last_of = {}
    for i, (st, n) in enumerate(order):
        marks.setdefault(f"step{st}", len(frs))
        frs.append((324 + i, [(vr(acc2(n, tt), 4), hstep(st, tt), st == 0) for tt in range(4)]))
        last_of[n] = len(frs)
    NB, LOOK = 6, 4
    bb = []; s_rd = Stream("rd"); s_dma = Stream("dma"); s_ep = Stream("ep"); s_ld = Stream("ld")
    G = lambda s: 4 * s
    cur_base = [0]
    def read(s):
        f = frs[s][0]
        a = ((f // 36) & 3) * RING + (f % 36) * 1024
        r = []
        if s < marks["pass0_end"]:
            if a < 65536: va, off = V_W, a
            else: va, off = V_T1, a - 65536
        else:
            base = ((f // 36) & 3) * RING
            if base != cur_base[0]:
                r.append(f"v_add_u32 v{V_W}, {base - cur_base[0] & 0xffffffff:#x}, v{V_W}")
                cur_base[0] = base
            va, off = V_W, a - base
        r.append(f"ds_read_b128 {vr(WB+4*(s%NB),4)}, v{va} offset:{off}")
        return r
    if sp: stamp(p, 5)
    p.wait_vm(f"slot{npre-1}")
    if sp: stamp(p, 6)
    p("s_barrier")
    if sp: stamp(p, 7)
    for s in range(LOOK): p.add(read(s))
    nsh = 1 << (5 - rr)
    p(f"s_and_b32 s{S_TMP2}, s{S_IDX}, {nsh-1}\ns_mul_i32 s{S_TMP2}, s{S_TMP2}, {576//nsh*128}\ns_add_u32 s{S_TMP2}, s{S_TMP2}, s{S_XS}")
    p.add(p1.check()); stamp(p, 1)
    for sq in (0, 3):
        l_nop = p.label("nopend")
        p(f"s_cmp_eq_u32 s{sq}, 0\ns_cbranch_scc1 {l_nop}")
        p.add(signal_items(sq, V_T0))
        p(f"s_mov_b32 s{sq}, 0\n{l_nop}:")
    if OPT.get("touch", 0): p.add(touch_items(S_TMP2, min(576 // nsh, 128), 0, TMP + 20))
    if "xhit" in DBG: p(f"s_mul_i32 s{S_XS}, s{S_SL}, {486*1024}\ns_add_u32 s{S_XS}, s{S_XS}, {WF}")
    for c in range(OPT.get("xup", 2)): p.add(xload(c))
    p(f"""s_lshl_b32 s{S_TMP}, s{S_T}, 4
    v_add_u32 v{V_T0}, s{S_TMP}, v{V_LANE}
    v_lshlrev_b32 v{V_T0}, 3, v{V_T0}
    s_add_u32 s55, s{S_LB}, {ST}""")
    two = OPT.get("two", 0)
    def stat_loads():
        return sum(([ins(f"s_add_u32 s{S_TMP}, s55, {cg*16384}"), ins(f"buffer_load_dwordx2 {vr(TMP+2*cg,2)}, v{V_T0}, {WSR}, s{S_TMP} offen{ld}")] for cg in range(6)), [])
    if not two: p.add(stat_loads())

    p(f"v_add_u32 v{V_T1}, 0x10000, v{V_L16}")
    seen = {0, 1, 2}
    for k in range(npre, 4):
        for it in slot_dma(k): s_dma.add(it, 200, G(marks["pass0_end"]) - 100)
    bar_gap = {}
    for s, (f, ms) in enumerate(frs):
        for d, b, first in ms:
            bb.append(ins(f"{MF} {d}, {vr(WB+4*(s%NB),4)}, {b}, {'0' if first else d}"))
        t = s + LOOK
        if t < len(frs):
            k = frs[t][0] // 36
            g = G(s) + 1
            if k not in seen:
                seen.add(k)
                s_rd.add(WaitTag(f"slot{k}", "vm"), g, g)
                if k == 3: s_rd.add(Drain(vm=False), g, g)
                s_rd.add("s_barrier", g, g); bar_gap[k] = g
                for kk in ([4, 5, 6] if k == 3 else [k + 2] if k >= 5 else []):
                    if kk <= 13:
                        for j, it in enumerate(slot_dma(kk)): s_dma.add(it, g + 1, g + {4: 50, 5: 150, 6: 260}.get(kk, 120))
            for r in read(t): s_rd.add(r, g, g + 1)
    for t in hp_of(S_LASTSRC, S_TMP2, 1): s_dma.add(t, bar_gap[11] + 60)
    s_dma.add(f"s_mul_i32 s{S_LASTSRC}, s{S_LASTSRC}, {126*1024}", bar_gap[11] + 60)
    s_dma.add(f"s_add_u32 s{S_LASTSRC}, s{S_LASTSRC}, {WQ}", bar_gap[11] + 60)
    s_dma.add([ins(f"s_cmp_lg_u32 s{S_LF}, 0"), ins(f"s_cselect_b32 s{S_LASTSRC}, {WS_BYTES:#x}, s{S_LASTSRC}")], bar_gap[11] + 60)
    for k, f0, sm, cnt in ((11, 36, S_LASTM0, 5), (12, 54, S_M0, 9), (13, 90, S_M0, 9)):
        for j in range(cnt):
            if j % 4 == 0:
                s_dma.add(f"s_add_u32 s{S_TMP2}, s{sm}, {(f0+j)*1024}", bar_gap[k] + 1)
                s_dma.add(f"s_add_u32 m0, s{S_TMP2}, {LDS_WQ}", bar_gap[k] + 1)
                s_dma.add(f"s_add_u32 s{S_TMP2}, s{S_TMP2}, s{S_LASTSRC}", bar_gap[k] + 1)
            s_dma.add(f"buffer_load_dwordx4 v{V_L16}, {WSR}, s{S_TMP2} offen offset:{1024*(j&3)} lds", bar_gap[k] + 1, tag="wq2")
    for c in range(OPT.get("xup", 2), 18):
        for it in xload(c): s_ld.add(it, 0, 24 * c - 60)
    if two:
        ps = Poll(p, TMP + 16, 0, 70, "ps")
        s_ld.add(f"s_add_u32 s70, s{S_LF}, {F1S}", 230)
        for it in ps.issue(False): s_ld.add(it, 230, 250)
        s_ld.add(ps.check(), 300, 301)
        for it in stat_loads(): s_ld.add(it, 302, 340)
    ga = G(marks["pass0_end"]) - 50
    A_, B_, M_, R_ = TMP + 12, TMP + 13, TMP + 14, TMP + 15
    s = lambda cg: TMP + 2 * cg
    e = [f"v_add_f32 v{M_}, v{s(0)}, v{s(1)}", f"v_add_f32 v{R_}, v{s(0)+1}, v{s(1)+1}"]
    for cg in range(2, 6): e += [f"v_add_f32 v{M_}, v{M_}, v{s(cg)}", f"v_add_f32 v{R_}, v{R_}, v{s(cg)+1}"]
    e += [f"v_mul_f32 v{M_}, 0xbae38e39, v{M_}"]
    for cg in range(6):
        e += [f"v_fmamk_f32 v{B_}, v{s(cg)}, 0x3c2aaaab, v{M_}",
              f"v_mul_f32 v{A_}, v{B_}, v{B_}" if cg == 0 else f"v_fmac_f32 v{A_}, v{B_}, v{B_}"]
    e += [f"v_fmac_f32 v{R_}, 0x42c00000, v{A_}", f"v_mov_b32 v{B_}, 0x3727c5ac",
          f"v_fmac_f32 v{B_}, 0x3ae38e39, v{R_}", f"v_rcp_f32 v{R_}, v{B_}",
          f"v_and_b32 v{A_}, 15, v{V_LANE}", f"v_lshlrev_b32 v{A_}, 2, v{A_}"]
    for tt in range(4):
        e += [f"ds_bpermute_b32 v{NM+tt}, v{A_}, v{M_} offset:{64*tt}", f"ds_bpermute_b32 v{RS2+tt}, v{A_}, v{R_} offset:{64*tt}"]
    for x in e: s_ep.add(x, ga, G(marks["pass0_end"]))
    seq = [0, 1, 8, 2, 3, 4, 5, 6, 7]
    csb = lambda tile: CS + 8 * (seq.index(tile) & 1)
    def cs_reads(tile, g):
        for mat in range(2):
            s_ep.add(f"ds_read_b128 {vr(csb(tile)+4*mat,4)}, v{V_CS} offset:{pos_of_tile(tile)*128+64*mat}", g)
    def epilogue(tile, g, dl):
        cb = csb(tile)
        for tt in range(4):
            gq, uq = bufs[tile][0] + 4 * tt, bufs[tile][1] + 4 * tt
            for r in range(4): s_ep.add(f"v_fmac_f32 v{gq+r}, v{cb+r}, v{NM+tt}", g, dl)
            for r in range(4): s_ep.add(f"v_fmac_f32 v{uq+r}, v{cb+4+r}, v{NM+tt}", g, dl)
            for r in range(4): s_ep.add(f"v_mul_f32 v{gq+r}, v{gq+r}, v{RS2+tt}", g, dl)
            for r in range(4): s_ep.add(f"v_mul_f32 v{gq+r}, v{gq+r}, v{uq+r}", g, dl)
            dst = H8 + 4 * tt if tile == 8 else HO + 16 * (tile >> 1) + 4 * tt + 2 * (tile & 1)
            for j in range(2): s_ep.add(f"v_cvt_pk_bf16_f32 v{dst+j}, v{gq+2*j}, v{gq+2*j+1}", g, dl)
            if tile == 8:
                if tt == 0: s_ep.add(f"s_add_u32 s66, s{S_H}, s65", g, dl)
                s_ep.add(f"buffer_store_dwordx2 {vr(dst,2)}, v{V_L8}, {WSR}, s66 offen offset:{512*tt}{sc}", g, dl, tag="h8")
            elif tile & 1:
                if tt == 0: s_ep.add(f"s_add_u32 s66, s{S_H}, {(tile>>1)*16*1024}", g, dl)
                s_ep.add(f"buffer_store_dwordx4 {vr(dst-2,4)}, v{V_L16}, {WSR}, s66 offen offset:{1024*tt}{sc}", g, dl, tag=f"h{tile>>1}")
    gp = lambda t: G(marks[f"pass{t}"]) if t < 8 else G(marks["g2"])
    cs_reads(0, gp(2) - 20); cs_reads(1, gp(2) - 20)
    epilogue(0, gp(2) + 6, gp(3)); cs_reads(8, gp(2)); epilogue(1, gp(2) + 6, gp(3))
    cs_reads(2, gp(2)); epilogue(8, gp(2) + 6, gp(4)); cs_reads(3, gp(3)); epilogue(2, gp(3) + 6, gp(4) + 40)
    for tile in range(3, 8):
        if tile < 7: cs_reads(tile + 1, gp(tile + 1) - 100)
        epilogue(tile, gp(tile + 1) + 6, gp(tile + 1) + (140 if tile < 7 else 60))
    s_sg = Stream("sig")
    def sig(stage, tag, g):
        it = signal_items(71, V_T0, sc)
        s_sg.add(f"s_add_u32 s71, s67, {32*stage}", g - 2, g)
        s_sg.add(it[0], g - 2, g); s_sg.add(it[1], g - 2, g)
        s_sg.add(WaitTag(tag, "vm"), g, g)
        s_sg.add(it[2], g + 1, g + 3, cost=2)
    g7 = G(marks["pass7"]); g2 = G(marks["g2"])
    sig(0, "h1", G(marks["pass5"]) + OPT.get("s0", -6))
    sig(1, "h2", g7 - 4)
    sig(2, "h3", G(marks["step3"]) + OPT.get("s2", 8))
    def addpoll(pl, g_issue, g_check, st=None, sv=True):
        st = st or s_ld
        for it in pl.issue(sv): st.add(it, g_issue - (0 if it.kind == "vmem" else 4), g_issue + 3)
        st.add(pl.check(), g_check, g_check + 1, cost=2)
    gw = G(marks["pass2"]) + OPT.get("gw", 214)
    s_ld.add(f"v_min_u32 v0, 17, v{V_LANE}", gw - 4); s_ld.add(f"v_lshlrev_b32 v0, 3, v0", gw - 4)
    s_ld.add(f"s_add_u32 s55, s{S_FW}, {36*8}", gw - 4)
    pd_ = OPT.get("pdist", 56)
    addpoll(Poll(p, V_T0, 0, 55, "pd"), gw, gw + pd_)
    if OPT.get("dtouch", 1):
        nw = 4 << rr; nl = -(-162 * 8 // nw)
        for t in (f"s_lshr_b32 s55, s{S_IDX}, {5-rr}", f"s_lshl_b32 s55, s55, 2", f"s_add_u32 s55, s55, s{S_WAVE}", f"s_mul_i32 s55, s55, {nl*128}",
                  f"s_mul_i32 s{S_TMP}, s{S_SL}, {486*1024}", f"s_add_u32 s55, s55, s{S_TMP}", f"s_add_u32 s55, s55, {WF+324*1024}"):
            s_ld.add(t, gw + pd_ + 2)
        for it in touch_items(55, nl, 0, V_T0, ""): s_ld.add(it, gw + pd_ + 2)
    polls = [Poll(p, V_T0, 0, 55, f"p{k}") for k in range(3)]
    s_ld.add(f"v_and_b32 v0, 3, v{V_LANE}", g7 - 40 - pd_); s_ld.add(f"v_lshlrev_b32 v0, 3, v0", g7 - 40 - pd_)
    s_ld.add(f"s_mov_b32 s55, s{S_FL}", g7 - 40 - pd_)
    addpoll(polls[0], g7 - 20 - pd_, g7 - 20)
    ldh = ld
    need = lambda st: G(marks[f"step{st}"]) if st < 9 else G(marks["step9"]) + 8 * (st - 9)
    for tt in range(4):
        if tt == 0: s_ld.add(f"s_add_u32 s{S_TMP}, s{S_R}, s65", g7 - 18)
        s_ld.add(f"buffer_load_dwordx2 {vr(H8+4*tt+2,2)}, v{V_L8}, {WSR}, s{S_TMP} offen offset:{512*tt}{ldh}", g7 - 18, need(4) - 150)
    for j in range(2):
        s_ld.add(f"s_add_u32 s{S_TMP}, s{S_R+1+j}, s65", g7 + 8)
        for tt in range(4):
            s_ld.add(f"buffer_load_dwordx2 {ar(4*tt+2*j,2)}, v{V_L8}, {WSR}, s{S_TMP} offen offset:{512*tt}{ldh}", g7 + 8, need(5) - 150)
    def hload(st, g, dl):
        i = st - 6
        s_ld.add(f"s_add_u32 s{S_TMP}, s{S_R+i%3}, {(i//3)*16*1024}", g)
        for tt in range(4):
            s_ld.add(f"buffer_load_dwordx4 {hstep(st,tt)}, v{V_L16}, {WSR}, s{S_TMP} offen offset:{1024*tt}{ldh}", g, dl)
    for st in range(6, 12): hload(st, g7 + 8 * (st - 4), need(st) - 150)
    s_ld.add(f"s_add_u32 s55, s{S_FL}, 32", g2 + 90 - pd_)
    addpoll(polls[1], g2 + 100 - pd_, g2 + 100, sv=False)
    for st in range(12, 15): hload(st, g2 + 101, need(st) - 100)
    gB = G(marks["step7"])
    gB += OPT.get("pb", 12)
    s_ld.add(f"s_add_u32 s55, s{S_FL}, 64", gB - 10 - pd_)
    addpoll(polls[2], gB - pd_, gB, sv=False)
    for st in range(15, 18): hload(st, gB + 1, need(st) - 60)
    s_o = Stream("out")
    gB += 4
    s_o.add(f"s_and_b32 s68, s{S_M}, 1", gB)
    s_o.add(f"s_mul_i32 s69, s68, {5*1024}", gB); s_o.add(f"s_add_u32 s69, s69, s{S_P}", gB)
    s_o.add(f"s_lshr_b32 s59, s{S_M}, 1", gB); s_o.add(f"s_xor_b32 s59, s59, s68", gB); s_o.add(f"s_lshl_b32 s59, s59, 10", gB)
    s_o.add(f"s_lshl_b32 s68, s68, 9", gB); s_o.add(f"s_add_u32 s68, s68, s{S_P}", gB)
    s_o.add(f"v_and_b32 v0, 15, v{V_LANE}", gB); s_o.add(f"v_lshlrev_b32 v0, 5, v0", gB)
    s_o.add(f"v_lshrrev_b32 v{V_CS}, 4, v{V_LANE}", gB); s_o.add(f"v_lshl_add_u32 v0, v{V_CS}, 3, v0", gB)
    for pr in range(4):
        g = G(last_of[2 * pr + 1]) + 4
        if pr == 0: s_o.add("s_add_u32 s69, s69, s59", g - 8)
        if pr == 2: s_o.add("s_mul_i32 s66, s59, 3", g - 8); s_o.add("s_sub_u32 s69, s69, s66", g - 8)
        if pr == 3: s_o.add("s_lshl_b32 s66, s59, 1", g - 8); s_o.add("s_add_u32 s69, s69, s66", g - 8)
        for tt in range(4):
            a = acc2(2 * pr, tt)
            for j in range(4): s_o.add(f"v_cvt_pk_bf16_f32 v{a+j}, v{a+2*j}, v{a+2*j+1}", g)
            s_o.add(f"s_add_u32 s70, s69, {tt*18*1024+pr*1024}", g)
            s_o.add(f"buffer_store_dwordx4 {vr(a,4)}, v{V_L16}, {WSR}, s70 offen{scp}", g, tag="pA" if pr == 1 else "pout")
    if OPT.get("prog", 1):
        g = G(last_of[3]) + OPT.get("ga", 60)
        for t in (f"s_lshl_b32 s71, s{S_RB}, 2", f"s_add_u32 s71, s71, s{S_WAVE}", f"s_lshl_b32 s71, s71, 5", f"s_add_u32 s71, s71, s{S_SL}",
                  f"s_lshl_b32 s71, s71, 3", f"s_add_u32 s71, s71, s{S_LF}", f"s_add_u32 s71, s71, {FPA}"):
            s_sg.add(t, g - 12, g)
        it = signal_items(71, V_T0, scp)
        s_sg.add(it[0], g - 2, g); s_sg.add(it[1], g - 2, g)
        s_sg.add(WaitTag("pA", "vm"), g, g)
        s_sg.add(it[2], g + 1, g + 3)
    g = len(bb)
    for tt in range(4):
        a = acc2(8, tt)
        for j in range(2): s_o.add(f"v_cvt_pk_bf16_f32 v{a+j}, v{a+2*j}, v{a+2*j+1}", g)
        s_o.add(f"s_add_u32 s70, s68, {tt*18*1024+4*1024}", g)
        s_o.add(f"buffer_store_dwordx2 {vr(a,2)}, v0, {WSR}, s70 offen{scp}", g, tag="pout")
    if "nostore" in DBG: s_ep.q = [e for e in s_ep.q if not _isvm(e[2])]; s_o.q = [e for e in s_o.q if not _isvm(e[2])]
    if "nodma" in DBG: s_dma.q = []
    if "noep" in DBG: s_ep.q = [e for e in s_ep.q if getattr(e[2], "kind", "") != "valu"]
    if "nohld" in DBG: s_ld.q = [e for e in s_ld.q if not (e[0] > 500 and _isvm(e[2]) and "dwordx" in e[2].text)]
    s_st = Stream("stamp")
    if STAMP[0] and sp:
        s_st.add(stamp_ins(8), 24, 24); s_st.add(stamp_ins(9), 216, 216)
    elif STAMP[0]:
        for k, mk in enumerate(("pass2", "pass3", "pass5", "pass7", "g2", "step3", "step6", "step9")):
            s_st.add(stamp_ins(2 + k), G(marks[mk]) + 2, G(marks[mk]) + 2)
    weave(p, bb, [s_rd, s_sg, s_ld, s_ep, s_o, s_dma, s_st], wait_gaps=lambda g: g % 4 == 0, quiet=lambda g: g2 + 4 <= g < g2 + 52)
    stamp(p, 10)
    p(f"""s_lshl_b32 s{S_TMP}, s{S_RB}, 2
    s_add_u32 s{S_TMP}, s{S_TMP}, s{S_WAVE}
    s_lshl_b32 s{S_TMP}, s{S_TMP}, 5
    s_add_u32 s{S_TMP}, s{S_TMP}, s{S_SL}
    s_lshl_b32 s{S_TMP}, s{S_TMP}, 3
    s_add_u32 s{S_TMP}, s{S_TMP}, s{S_LF}
    s_add_u32 s{S_TMP}, s{S_TMP}, {FPB}""")
    signal(p, S_TMP, V_T0, "pout", scp)
    stamp(p, 11)

def reduce_phase(p, l, lds_off, sc=" sc1", ld=" sc1", pre=None, w3=None):
    V_LANE = 1
    lh = 0 if OPT.get("reuse") else l
    VROW, VFR, VP, VLD, VX, VS, VO = 3, 4, 5, 16, 128, 152, 160
    if pre: pre()
    p(f"s_lshl_b32 s47, s{S_XCD}, 5\ns_add_u32 s47, s47, s{S_IDX}")
    ln_addr(p, 47, V_LANE, VROW, VFR, 8, 48, wave=False)
    SK, SF = 50, 53
    p(f"s_lshl_b32 s48, s{S_WAVE}, 2")
    for i in range(3):
        p(f"""s_lshr_b32 s{SK+i}, {sum(k << (4*w) for w, k in enumerate(RED_K[i])):#x}, s48
        s_and_b32 s{SK+i}, s{SK+i}, 15
        s_lshl_b32 s{SF+i}, s{SK+i}, 11""")
    p(f"""v_lshrrev_b32 v8, 3, v{V_LANE}
    v_and_b32 v9, 7, v{V_LANE}
    s_and_b32 s48, s47, 1
    s_lshl_b32 s48, s48, 3
    v_add_u32 v9, s48, v9
    v_lshlrev_b32 v9, 4, v9
    v_bfe_u32 v10, v8, 1, 1
    v_and_b32 v11, 1, v8
    v_lshl_add_u32 v9, v11, 4, v9
    v_lshl_add_u32 v9, v10, 9, v9
    v_and_b32 v10, 3, v8
    v_lshlrev_b32 v10, 8, v10
    v_sub_u32 v9, v9, v10
    v_lshrrev_b32 v8, 2, v8""")
    for i in range(3):
        p(f"""s_lshl_b32 s48, s{SK+i}, 1
        v_add_u32 v10, s48, v8
        v_cmp_eq_u32 vcc, 4, v10
        v_cmp_eq_u32 s[56:57], 13, v10
        s_or_b64 vcc, vcc, s[56:57]
        v_cndmask_b32 v10, 0, v9, vcc
        v_add3_u32 v{VP+i}, v{VFR}, v10, s{SF+i}
        s_lshl_b32 s{SK+i}, s{SK+i}, 7""")
    l_skip = p.label("w3a")
    p(f"s_cmp_eq_u32 s{S_WAVE}, 3\ns_cbranch_scc1 {l_skip}")
    for i in range(3):
        p(f"s_add_u32 s48, s{SF+i}, {LB(l)+X1}")
        p(f"buffer_load_dwordx4 {vr(VLD+36*i,4)}, v{VFR}, {WSR}, s48 offen{ld}")
    def pload(q, i):
        p(f"buffer_load_dwordx4 {vr(VLD+36*i+4+4*q,4)}, v{VP+i}, {WSR}, s48 offen{ld}")
    prog = OPT.get("prog", 1)
    p(f"""s_lshr_b32 s49, s47, 3
    s_lshl_b32 s49, s49, 8
    s_add_u32 s58, s49, {FPA+l*0x2000}
    s_add_u32 s49, s49, {FPB+l*0x2000}
    v_and_b32 v10, 31, v{V_LANE}
    v_lshlrev_b32 v10, 3, v10""")
    if prog:
        p.add(Poll(p, 176, 10, 58, "pa").both())
        for q in range(8):
            p(f"s_mov_b32 s48, {LB(lh)+PB+q*XBYTES}"); pload(q, 0)
    pp = Poll(p, 176, 10, 49, "pp")
    p.add(pp.issue(not prog) + pp.check()); stamp(p, 1)
    for q in range(8):
        p(f"s_mov_b32 s48, {LB(lh)+PB+q*XBYTES}")
        for i in range(1 if prog else 0, 3): pload(q, i)
    for i in range(3): unpack8(p, VX + 8 * i, VLD + 36 * i)
    p(f"v_mov_b32 v12, 0x3f80\nv_mov_b32 v13, 0x3f800000")
    for q, i in ([(q, 0) for q in range(8)] + [(q, i) for q in range(8) for i in (1, 2)]):
        if True:
            b = VLD + 36 * i + 4 + 4 * q
            for j in range(4):
                p(f"v_dot2c_f32_bf16 v{VX+8*i+2*j}, v{b+j}, v12\nv_dot2c_f32_bf16 v{VX+8*i+2*j+1}, v{b+j}, v13")
    if l == 0: stamp(p, 3)
    if l == 1: srd(p, S_O, P_OUT, XBYTES)
    else: p(f"s_add_u32 s{S_O}, s{P_WS}, {LB(0)+X2R}\ns_addc_u32 s{S_O+1}, s{P_WS+1}, 0\ns_mov_b32 s{S_O+2}, {XBYTES:#x}\ns_mov_b32 s{S_O+3}, 0x20000")
    for i in range(3):
        for j in range(4): p(f"v_cvt_pk_bf16_f32 v{VO+4*i+j}, v{VX+8*i+2*j}, v{VX+8*i+2*j+1}")
        p(f"buffer_store_dwordx4 {vr(VO+4*i,4)}, v{VROW}, s[{S_O}:{S_O+3}], s{SK+i} offen{sc if l == 0 else ' ' + OPT.get('outsc', 'sc1')}")
    if l == 1:
        p(f"{l_skip}:")
        return
    for i in range(3): unpack8(p, VX + 8 * i, VO + 4 * i)
    ln_local_stats(p, VX, VS, VS + 1, 8)
    p(f"""v_and_b32 v8, 7, v{V_LANE}
    s_mul_i32 s46, s{S_WAVE}, 64
    s_add_u32 s46, s46, {lds_off}
    v_lshl_add_u32 v8, v8, 3, s46
    ds_write_b64 v8, v[{VS}:{VS+1}]""")
    p.drain(vm=False)
    if w3:
        l_join = p.label("join")
        p(f"s_branch {l_join}\n{l_skip}:")
        w3()
        p(f"{l_join}:\ns_barrier")
    else: p(f"{l_skip}:\ns_barrier")
    stamp(p, 4)
    l_skip2 = p.label("w3b")
    p(f"s_cmp_eq_u32 s{S_WAVE}, 3\ns_cbranch_scc1 {l_skip2}")
    p(f"v_and_b32 v8, 7, v{V_LANE}\nv_lshlrev_b32 v8, 3, v8\nv_add_u32 v8, {lds_off}, v8")
    for w in range(3): p(f"ds_read_b64 v[{VS+2*w}:{VS+2*w+1}], v8 offset:{64*w}")
    ln_finish(p, VX, VS, 16, 8)
    for i in range(3):
        p(f"s_add_u32 s46, s{SF+i}, {LB(l+1)+XN}")
        p(f"buffer_store_dwordx4 {vr(16+4*i,4)}, v{VFR}, {WSR}, s46 offen{sc}")
    p(f"s_lshl_b32 s46, s47, 2\ns_add_u32 s46, s46, s{S_WAVE}\ns_lshl_b32 s46, s46, 3\ns_add_u32 s46, s46, {FX(l+1)}")
    stamp(p, 5)
    signal(p, 46, 8)
    p(f"{l_skip2}:")
```

```python
from common import *
from k_prep import *
from k_attn import MF, attn_bias, attn_part, wo_setup, wo_wdma, wo_pre, wo_main
from k_ffn import ffn_phase, ffn_pw_issue, reduce_phase, LDS_CS, LDS_WQ
V_LANE, V_L16 = 1, 2
LDS_EX = LDS_CS + 1152
LDS_LN = LDS_EX + 4 * 3072
LDS_HALO = 0
LDS_STG = 108 * 1024
LDS_TOTAL = 163840
S_AB, S_HP, S_T0, S_WSRC, S_WM0, S_XS, S_HS = 44, 45, 46, 47, 48, 51, 49
VTA, VTB, VTC, VG = 229, 238, 247, 220
A_UA, A_UB, A_UC = 144, 180, 216
S_UA, S_UB, S_UC = 3, 30, 31
SB, SBT = 58, 92

def LD(): return "" if OPT.get("plainld") else " sc1"

def qkv_setup(p, l):
    p.add(ab_of(S_AB, 52, l) + hp_of(S_HP, 52, l))
    p(f"""s_mul_i32 s{S_WM0}, s{S_WAVE}, 21
    s_lshr_b32 s{S_WM0}, s{S_WM0}, 1
    s_lshl_b32 s{S_WM0}, s{S_WM0}, 10
    s_mul_i32 s{S_WSRC}, s{S_HP}, {126*1024}
    s_add_u32 s{S_WSRC}, s{S_WSRC}, s{S_WM0}
    s_add_u32 s{S_WSRC}, s{S_WSRC}, {WQ}""")

def qkv_wdma(g):
    r = []
    for j0 in range(0, 11, 4):
        r.append(ins(f"s_add_u32 m0, s{S_WM0}, {LDS_WQ+g*42*1024+j0*1024}"))
        r.append(ins(f"s_add_u32 s53, s{S_WSRC}, {g*42*1024+j0*1024}"))
        for j in range(j0, min(j0 + 4, 11)):
            r.append(ins(f"buffer_load_dwordx4 v{V_L16}, {WSR}, s53 offen offset:{1024*(j-j0)} lds", f"wq{g}"))
    return r

def qkv_main(p, l, extra=None, pre_signal=None, turn=None):
    V_W, V_HT, V_HN, V_XH = 3, 4, 5, 10
    ACC, HACC, WB, HB_ = 16, 80, 88, 144
    p(f"""s_lshl_b32 s{S_T0}, s{S_AB}, 3
    s_max_u32 s52, s{S_T0}, 1
    s_sub_u32 s52, s52, 1
    s_mul_i32 s{S_HS}, s52, {18*1024}
    s_mul_i32 s50, s{S_WAVE}, 9
    s_lshr_b32 s50, s50, 1
    s_lshl_b32 s50, s50, 10
    s_add_u32 s{S_HS}, s{S_HS}, s50
    s_add_u32 s{S_HS}, s{S_HS}, {LB(l)+XN}
    s_add_u32 s50, s50, {LDS_HALO}
    s_lshl_b32 s54, s52, 6
    s_lshl_b32 s52, s{S_WAVE}, 1
    s_add_u32 s{S_T0}, s{S_T0}, s52
    s_mul_i32 s{S_XS}, s{S_T0}, {18*1024}
    s_add_u32 s{S_XS}, s{S_XS}, {LB(l)+XN}
    s_lshl_b32 s55, s{S_T0}, 6""")
    p(f"""v_and_b32 v6, 3, v{V_LANE}
    v_min_u32 v6, 2, v6
    v_and_b32 v7, 12, v{V_LANE}
    v_add_lshl_u32 v8, v6, v7, 3
    v_add_u32 v8, s55, v8
    v_and_b32 v7, 4, v{V_LANE}
    v_add_lshl_u32 v9, v6, v7, 3
    v_add_u32 v9, s54, v9
    v_and_b32 v7, 16, v{V_LANE}
    v_cmp_eq_u32 vcc, 0, v7
    v_cndmask_b32 v8, v9, v8, vcc""")
    if l == 0 and OPT.get("wtouch0", 0):
        p(f"""s_lshl_b32 s56, s{S_IDX}, 2
        s_add_u32 s56, s56, s{S_WAVE}
        s_mul_i32 s56, s56, 41
        s_mul_i32 s57, s56, 21846
        s_lshr_b32 s57, s57, 20
        v_and_b32 v7, 1, v{V_LANE}
        v_add_u32 v7, s57, v7
        v_min_u32 v7, 107, v7
        v_mul_u32_u24 v9, {magic(18, 108)}, v7
        v_lshrrev_b32 v9, 16, v9
        v_mad_u32_u24 v7, v9, 14, v7
        v_lshlrev_b32 v7, 3, v7
        v_add_u32 v7, {FWO-FX(0)}, v7
        v_cmp_gt_u32 vcc, 24, v{V_LANE}
        v_cndmask_b32 v8, v7, v8, vcc""")
    if l == 0:
        p(f"""v_subrev_u32 v7, 32, v{V_LANE}
        v_min_u32 v7, 17, v7
        s_lshl_b32 s52, s{S_HP}, 8
        s_add_u32 s52, s52, {FWQ-FX(0)}
        v_lshl_add_u32 v7, v7, 3, s52
        v_cmp_gt_u32 vcc, 32, v{V_LANE}
        v_cndmask_b32 v8, v7, v8, vcc""")
    else:
        p(f"s_min_u32 s52, s{S_IDX}, 23")
        sdiv(p, 52, 52, 6, 32)
        p(f"""s_lshl_b32 s53, s{S_XCD}, 2
        s_add_u32 s52, s52, s53
        s_lshl_b32 s52, s52, 2
        s_add_u32 s52, s52, s{S_WAVE}
        s_lshl_b32 s52, s52, 6
        v_and_b32 v7, 4, v{V_LANE}
        v_add_lshl_u32 v7, v6, v7, 3
        v_add_u32 v7, s52, v7
        v_cmp_gt_u32 vcc, 32, v{V_LANE}
        v_cndmask_b32 v8, v7, v8, vcc""")
    p(f"s_mov_b32 s52, {FX(l)}")
    acc = lambda tt, j: vr(ACC + 32 * tt + 4 * j, 4)
    wf = lambda c, t: vr(WB + 28 * (c & 1) + 4 * t, 4)
    hf = lambda h, j: vr(HB_ + 12 * (h & 1) + 4 * j, 4)
    xf = lambda tt, c: ar(72 * tt + 4 * c, 4)
    def reads(c):
        r = [f"v_add_u32 v{V_W}, {9*7168}, v{V_W}"] if c == 9 else []
        return r + [f"ds_read_b128 {wf(c, t)}, v{V_W} offset:{(c%9)*7168+1024*t}" for t in (0, 1, 2, 3, 6, 4, 5)]
    def hreads(h):
        r = [f"v_add_u32 v{v}, {9*7168}, v{v}" for v in (V_HT, V_HN)] if h == 9 else []
        return r + [f"ds_read_b128 {hf(h, 0)}, v{V_XH} offset:{1024*h}", f"ds_read_b128 {hf(h, 1)}, v{V_HT} offset:{(h%9)*7168}",
                    f"ds_read_b128 {hf(h, 2)}, v{V_HN} offset:{(h%9)*7168}"]
    p(f"""s_min_u32 s56, s{S_WAVE}, 2
    s_add_u32 s57, s56, 2
    s_and_b32 s56, s{S_WAVE}, 1
    s_add_u32 s56, s56, 4
    s_cmp_ge_u32 s{S_WAVE}, 2
    s_cselect_b32 s57, 6, s57
    s_lshl_b32 s57, s57, 10
    s_lshl_b32 s56, s56, 10
    v_add_u32 v{V_W}, {LDS_WQ}, v{V_L16}
    v_add_u32 v{V_HT}, s57, v{V_W}
    v_add_u32 v{V_HN}, s56, v{V_W}
    v_add_u32 v{V_XH}, {LDS_HALO}, v{V_L16}""")
    if l == 1:
        p.wait_vm("wq2"); p.drain(lg=False); p("s_barrier")
        p.add(reads(0))
    trickle = None
    if l == 0 and OPT.get("turn0", 1): trickle = turn()
    p("v_mov_b32 v11, v8\ns_mov_b32 s23, s52")
    px = Poll(p, 12, 11, 23, "px", alt=84)
    p.add(px.issue())
    attn_bias(p, S_AB)
    p(f"s_mul_i32 s53, s{S_HP}, {18*128}\ns_add_u32 s53, s53, s{S_XS}")
    p.add(px.check()); stamp(p, 1)
    if OPT.get("touch", 0): p.add(touch_items(53, 18, 11, 12))
    def xload(c):
        r = []
        for tt in range(2):
            if c % 4 == 0: r.append(ins(f"s_add_u32 s{54+tt}, s{S_XS}, {tt*18*1024+c*1024}"))
            r.append(ins(f"buffer_load_dwordx4 a[{72*tt+4*c}:{72*tt+4*c+3}], v{V_L16}, {WSR}, s{54+tt} offen offset:{1024*(c&3)}{LD()}"))
        return r
    def halo():
        r = []
        for g in range(2):
            r.append(ins(f"s_add_u32 m0, s50, {4096*g}")); r.append(ins(f"s_add_u32 s53, s{S_HS}, {4096*g}"))
            for j in range(4 if g == 0 else 1):
                r.append(ins(f"buffer_load_dwordx4 v{V_L16}, {WSR}, s53 offen offset:{1024*j}{LD()} lds", "halo"))
        return r
    sl = Stream("ld")
    if l == 0:
        p("s_barrier")
        p.add(qkv_wdma(0))
        for c in range(6): p.add(xload(c))
        p.add(qkv_wdma(1))
        if not OPT.get("turn0", 1): trickle = turn()
        late = halo() + sum((xload(c) for c in range(6, 12)), []) + qkv_wdma(2) + sum((xload(c) for c in range(12, 18)), [])
    else:
        nup = OPT.get("qup", 3)
        if not OPT.get("qnold"):
            for c in range(nup): p.add(xload(c))
        late = halo() + sum((xload(c) for c in range(nup, 18)), [])
    hs = {c: [] for c in range(18)}
    for h in range(18): hs[6 + h if h < 6 else 12 + (h - 6) // 2].append(h)
    if l == 0:
        p.wait_vm("wq0"); p.drain(vm=False); p("s_barrier")
        p.add(reads(0))
    bb = []; sr_ = Stream("rd"); sh = Stream("hrd")
    hpos = {}
    for c in range(18):
        g0 = len(bb)
        C = lambda d: "0" if c == 0 else d
        main = []
        for j, t in enumerate((0, 1, 2, 3, 6)):
            for tt in range(2): main.append(ins(f"{MF} {acc(tt, j)}, {wf(c, t)}, {xf(tt, c)}, {C(acc(tt, j))}"))
        for j, t in ((5, 4), (6, 5)):
            for tt in range(2): main.append(ins(f"{MF} {acc(tt, j)}, {xf(tt, c)}, {wf(c, t)}, {C(acc(tt, j))}"))
        def hm(h):
            hpos[h] = len(bb)
            z = lambda d: "0" if h == 0 else d
            bb.append(ins(f"{MF} {vr(HACC, 4)}, {hf(h, 1)}, {hf(h, 0)}, {z(vr(HACC, 4))}"))
            bb.append(ins(f"{MF} {vr(HACC+4, 4)}, {hf(h, 0)}, {hf(h, 2)}, {z(vr(HACC+4, 4))}"))
        if len(hs[c]) == 2:
            bb += main[:6]; hm(hs[c][0]); bb += main[6:]; hm(hs[c][1])
        else:
            bb += main
            for h in hs[c]: hm(h)
        if c + 1 < 18:
            tags = []
            if c + 1 == 6: tags = (["wq1"] if l == 0 else []) + ["halo"]
            if c + 1 == 12 and l == 0: tags = ["wq2"]
            for t in tags: sr_.add(WaitTag(t, "vm"), g0 + 1, g0 + 1)
            if tags:
                sr_.add("s_barrier", g0 + 1, g0 + 1)
                if c + 1 == 6: gbar = g0 + 2
            for k, r in enumerate(reads(c + 1)): sr_.add(r, g0 + 1 + 2 * k - (k > 0) - (k > 4), g0 + 12)
    for h in range(18):
        e = max(gbar, hpos[h - 2] + 2 if h >= 2 else 0)
        for r in hreads(h): sh.add(r, e, hpos[h] - 5)
    sw_ = Stream("wt")
    for it in late: sl.add(it, 0)
    gstep = lambda c: next(i for i, m in enumerate(bb) if xf(0, c) in m.text)
    for e in sl.q:
        it = e[2]
        if it.kind == "vmem":
            if it.tag == "halo": e[1] = gstep(5) - 30
            elif it.tag == "wq2": e[1] = gstep(11) - 40
            else: e[1] = gstep((min(r[1] for r in it.dst) % 72) // 4) - 40
    sx = Stream("x")
    if extra:
        for k, it in enumerate(extra):
            if "bc0" in OPT: sx.add(it, OPT["bc0"] + OPT.get("bcs", 8) * k, OPT["bc0"] + OPT.get("bcs", 8) * k + 4)
            else: sl.add(it, 0)
    if l == 0 and OPT.get("wtouch0", 0):
        for t in (f"s_lshl_b32 s56, s{S_IDX}, 2", f"s_add_u32 s56, s56, s{S_WAVE}", f"s_mul_i32 s56, s56, {41*128}", f"s_add_u32 s56, s56, {WOS}"):
            sw_.add(t, OPT.get("wt0", 230) - 20)
        for it in touch_items(56, 41, 11, 218, ""): sw_.add(it, OPT.get("wt0", 230), OPT.get("wt0", 230) + 8)
    if l == 1 and OPT.get("wtouch", 1):
        rr = OPT.get("r", 3); nsl = 1 << (5 - rr); parts = 128 // nsl
        for t in (f"s_lshl_b32 s53, s{S_IDX}, 2", f"s_add_u32 s53, s53, s{S_WAVE}", f"s_mul_i32 s53, s53, {41*128}", f"s_add_u32 s53, s53, {WOS}"):
            sl.add(t, 0)
        for it in touch_items(53, 41, 11, 218, ""): sl.add(it, 0)
        for t in (f"s_and_b32 s53, s{S_XCD}, {(1 << rr) - 1}", f"s_lshl_b32 s53, s53, {5-rr}", f"s_and_b32 s54, s{S_IDX}, {nsl-1}",
                  f"s_add_u32 s53, s53, s54", f"s_mul_i32 s53, s53, {486*1024}", f"s_lshr_b32 s54, s{S_IDX}, {5-rr}", f"s_lshl_b32 s54, s54, 2",
                  f"s_add_u32 s54, s54, s{S_WAVE}", f"s_mul_i32 s54, s54, {1152//parts*128}", f"s_add_u32 s53, s53, s54", f"s_add_u32 s53, s53, {WF}"):
            sl.add(t, 0)
        for it in touch_items(53, min(1152 // parts, 128), 11, 216, ""): sl.add(it, 0)
    str_ = Stream("tr")
    if trickle:
        k = 0
        for it in trickle:
            str_.add(it, OPT.get("tr0", 40) + OPT.get("trs", 24) * k, OPT.get("tr0", 40) + OPT.get("trs", 24) * k + 4)
            if it.kind == "vmem": k += 1
    sst = Stream("st")
    if STAMP[0] and l == 1:
        for k, c in enumerate((1, 6, 12)): sst.add(stamp_ins(9 + k), gstep(c), gstep(c))
    if OPT.get("qnold") and l == 1: sl.q = [e for e in sl.q if not (e[2].kind == "vmem" and e[2].dst)]
    firsts = set(); seen_r = set()
    for g, mm in enumerate(bb):
        key = frozenset(r for r in mm.srcAB if r[0] == "v")
        prev = frozenset(r for r in bb[g-1].srcAB if r[0] == "v") if g else None
        if key != prev: firsts.add(g)
    weave(p, bb, [sr_, sh, sl, str_, sw_, sx, sst], cap=2, vm_gap=4 if l == 0 else OPT.get("qgap", 4), wait_gaps=lambda g: g in firsts)
    stamp(p, 2)
    attn_part(p, l, S_T0, S_HP, LDS_EX, LOC("o"), LDS_LN + 256)
    stamp(p, 3)
    p(f"""s_lshl_b32 s52, s{S_AB}, 2
    s_add_u32 s52, s52, s{S_WAVE}
    s_lshl_b32 s52, s52, 4
    s_add_u32 s52, s52, s{S_HP}
    s_lshl_b32 s52, s52, 3
    s_add_u32 s52, s52, {FO(l)}""")
    if pre_signal: pre_signal()
    signal(p, 52, 8, "ost", LOC("o"))
    stamp(p, 4)

def wo_part(p, l, mid=None, after_poll=None, pwo=None, pre_signal=None):
    S_TB, S_CG, S_T = 44, 45, 46
    wo_setup(p, l)
    if pwo: p.add(pwo.check())
    wo_wdma(p)
    if mid: mid()
    p(f"""s_lshr_b32 s52, s{S_T}, 1
    s_lshl_b32 s52, s52, 7
    s_add_u32 s52, s52, {FO(l)}
    v_and_b32 v10, 15, v{V_LANE}
    v_lshlrev_b32 v10, 3, v10""")
    p(f"s_mul_i32 s53, s{S_CG}, {22*128}\ns_min_u32 s53, s53, {106*128}\ns_add_u32 s53, s53, s49")
    po = Poll(p, 12, 10, 52, "po", alt=176)
    wo_pre(p, l, LD(), po.issue())
    p.add(po.check()); stamp(p, 5)
    if OPT.get("touch", 0): p.add(touch_items(53, 22, 11, 12))
    if after_poll: after_poll()
    def fl(base):
        p(f"""s_lshl_b32 s53, s{S_T}, 3
        s_add_u32 s53, s53, s{S_CG}
        s_lshl_b32 s53, s53, 3
        s_add_u32 s53, s53, {base+l*0x2000}""")
    def after_x1():
        fl(F1B); signal(p, 53, 8, "x1st", LOC("x"))
    two = OPT.get("two", 0)
    wo_main(p, l, LOC("x"), LD(), after_x1 if two else None)
    fl(F1S if two else F1B)
    if pre_signal: pre_signal()
    if two: p("s_mov_b32 s0, s53")
    else: signal(p, 53, 8, "x1st", LOC("x"))
    stamp(p, 8)

def phase0(p):
    VROW, VFR, VRAW, VX, VS, VO = 3, 4, 8, 20, 44, 52
    S_ROLE, S_U, S_ST1, S_ST2, S_F1, S_F2, ST1, ST2 = 55, 67, 56, 57, 0, 1, 44, 84
    srd(p, S_X, P_X, XBYTES)
    srd(p, S_A, P_WQKV, D * 3 * D * 2)
    p(f"v_mov_b32 v{VROW}, 0\nv_mov_b32 v{VFR}, 0")
    l_n = p.label("nonce")
    p(f"""v_mov_b32 v5, 0
    s_or_b32 s44, s2, s{S_WAVE}
    s_cmp_lg_u32 s44, 0
    s_cbranch_scc1 {l_n}
    s_memrealtime s[44:45]""")
    p.drain(vm=False)
    p(f"""v_mov_b32 v6, s44
    v_mov_b32 v7, s45
    s_mov_b64 exec, 1
    global_store_dwordx2 v5, v[6:7], s[{P_DBG}:{P_DBG+1}] sc1
    s_mov_b64 exec, -1
    {l_n}:""")
    stamp(p, 1)
    if OPT.get("fwarm", 1):
        n = -(-(FLAG_END << OPT.get("fsh", 0)) // (128 * 1024))
        p(f"s_lshl_b32 s52, s2, 2\ns_add_u32 s52, s52, s{S_WAVE}\ns_mul_i32 s52, s52, {n*128}\ns_add_u32 s52, s52, {FLAGBASE:#x}")
        p.add(touch_items(52, n, 217, 218, {1: " sc1", 2: "", 3: " sc0 sc1"}[OPT.get("fwarm", 1)]))
    l_w3, l_u = p.label("w3"), p.label("uend")
    p(f"s_cmp_eq_u32 s{S_WAVE}, 3\ns_cbranch_scc1 {l_w3}")
    p(f"s_lshl_b32 s47, s{S_XCD}, 5\ns_add_u32 s47, s47, s{S_IDX}")
    ln_addr(p, 47, V_LANE, VROW, VFR, 6, 48)
    for i in range(3):
        p(f"buffer_load_dwordx4 v[{VRAW+4*i}:{VRAW+4*i+3}], v{VROW}, s[{S_X}:{S_X+3}], 0 offen offset:{128*i}{NT()}")
    p(f"s_branch {l_u}\n{l_w3}:")
    def qissue(stg, st, sf, srd_, tag):
        p(f"""s_lshr_b32 s{sf}, s{S_U}, 4
        s_and_b32 s{S_U}, s{S_U}, 15
        s_mul_i32 s{S_U}, s{S_U}, 18
        s_add_u32 s{S_U}, s{S_U}, s{sf}""")
        qkv_unit_issue(p, S_U, stg, V_LANE, 64, st, srd_, tag)
        p(f"s_lshl_b32 s{sf}, s{st}, 5\ns_add_u32 s{sf}, s{sf}, s{st+1}\ns_lshl_b32 s{sf}, s{sf}, 3\ns_add_u32 s{sf}, s{sf}, {FWQ}")
    l_w = p.label("uw")
    p(f"""s_mov_b32 s{S_ROLE}, 0
    s_mov_b32 s{S_ST1}, 0
    s_mov_b32 s{S_ST2}, 8192
    s_mul_i32 s{S_U}, s{S_XCD}, 36
    s_add_u32 s{S_U}, s{S_U}, s{S_IDX}""")
    qissue(S_ST1, ST1, S_F1, S_A, "au1")
    p(f"""s_cmp_ge_u32 s{S_IDX}, 4
    s_cbranch_scc1 {l_w}
    s_mov_b32 s{S_ROLE}, 1
    s_mul_i32 s{S_U}, s{S_XCD}, 36
    s_add_u32 s{S_U}, s{S_U}, s{S_IDX}
    s_add_u32 s{S_U}, s{S_U}, 32""")
    qissue(S_ST2, ST2, S_F2, S_A, "au2")
    p(f"""s_branch {l_u}
    {l_w}:
    s_cmp_ge_u32 s{S_IDX}, 18
    s_cbranch_scc1 {l_u}
    s_mul_i32 s{S_U}, s{S_XCD}, 14
    s_add_u32 s{S_U}, s{S_U}, s{S_IDX}
    s_sub_u32 s{S_U}, s{S_U}, 4
    s_cmp_ge_u32 s{S_U}, 108
    s_cbranch_scc1 {l_u}
    s_mov_b32 s{S_ROLE}, 2""")
    wo_unit_issue(p, S_U, S_ST2, V_LANE, 64, ST2, S_A, "au2")
    p(f"""s_lshl_b32 s{S_F2}, s{ST2}, 5
    s_add_u32 s{S_F2}, s{S_F2}, s{ST2+1}
    s_lshl_b32 s{S_F2}, s{S_F2}, 3
    s_add_u32 s{S_F2}, s{S_F2}, {FWO}
    {l_u}:""")
    stamp(p, 2)
    if OPT.get("tlb"):
        n = OPT["tlb"]
        p(f"""s_lshl_b32 s52, s{S_IDX}, 2
        s_add_u32 s52, s52, s{S_WAVE}
        s_lshl_b32 s52, s52, 20
        v_min_u32 v218, {n-1}, v{V_LANE}
        v_mul_u32_u24 v218, {(1 << 20) // n}, v218
        buffer_load_dword v218, v218, {WSR}, s52 offen nt""")
    unit_pieces(p, V_LANE, VG, 64)
    def gu_number(s):
        p(f"s_lshr_b32 s52, s{s}, 5\ns_and_b32 s{s}, s{s}, 31\ns_mul_i32 s{s}, s{s}, 36\ns_add_u32 s{s}, s{s}, s52")
    p(f"""s_lshl_b32 s{S_UA}, s{S_XCD}, 7
    s_lshl_b32 s52, s{S_IDX}, 2
    s_add_u32 s53, s52, s{S_WAVE}
    s_add_u32 s{S_UA}, s{S_UA}, s53""")
    gu_number(S_UA)
    ffn_unit_setup(p, S_UA, SB, S_O, SBT); unit_table(p, SB, VG, VTA, 64)

    l_i, l_d, l_b, l_e = p.label("ui"), p.label("ud"), p.label("ub"), p.label("ue")
    p(f"""s_mov_b32 s{S_UB}, -1
    s_mov_b32 s{S_UC}, -1
    s_mul_i32 s54, s{S_XCD}, 72
    s_add_u32 s54, s54, 1152
    s_cmp_ge_u32 s{S_IDX}, 24
    s_cbranch_scc1 {l_i}
    s_cmp_lg_u32 s{S_WAVE}, 3
    s_cbranch_scc1 {l_e}
    s_add_u32 s{S_UB}, s54, s{S_IDX}
    s_add_u32 s{S_UB}, s{S_UB}, 48
    s_branch {l_b}
    {l_i}:
    s_sub_u32 s53, s53, 96
    s_add_u32 s{S_UC}, s54, s53
    s_add_u32 s{S_UB}, s{S_UC}, -16
    s_add_u32 s{S_UC}, s{S_UC}, 16
    s_cmp_ge_u32 s53, 16
    s_cbranch_scc1 {l_d}
    s_lshl_b32 s{S_UB}, s{S_XCD}, 4
    s_add_u32 s{S_UB}, s{S_UB}, s53
    s_add_u32 s{S_UB}, s{S_UB}, 1024""")
    gu_number(S_UB)
    p(f"{l_d}:\n{l_b}:\n{l_e}:")
    for s_u, ab, sd, vt in ((S_UB, A_UB, S_A, VTB), (S_UC, A_UC, S_X, VTC)):
        l_s = p.label("absent")
        for i in range(9): p(f"v_mov_b32 v{vt+i}, 0")
        p(f"s_mov_b32 s{sd+2}, 0\ns_cmp_eq_u32 s{s_u}, -1\ns_cbranch_scc1 {l_s}")
        ffn_unit_setup(p, s_u, SB, sd, SBT); unit_table(p, SB, VG, vt, 64)
        p(f"{l_s}:")
    pn = NoncePoll(p, 6, 5, 0, "pn")
    l2, l3, l4 = p.label("w3"), p.label("w3"), p.label("ln")
    p(f"s_cmp_eq_u32 s{S_WAVE}, 3\ns_cbranch_scc1 {l2}")
    for i in range(3): unpack8(p, VX + 8 * i, VRAW + 4 * i)
    ln_local_stats(p, VX, VS, VS + 1, 64)
    p(f"""v_and_b32 v64, 7, v{V_LANE}
    s_mul_i32 s46, s{S_WAVE}, 64
    s_add_u32 s46, s46, {LDS_LN}
    v_lshl_add_u32 v64, v64, 3, s46
    ds_write_b64 v64, v[{VS}:{VS+1}]""")
    p.drain(vm=False)
    p(f"{l2}:\ns_barrier"); stamp(p, 3)
    p.add(pn.issue())
    p(f"s_cmp_eq_u32 s{S_WAVE}, 3\ns_cbranch_scc1 {l3}")
    p(f"v_and_b32 v64, 7, v{V_LANE}\nv_lshlrev_b32 v64, 3, v64\nv_add_u32 v64, {LDS_LN}, v64")
    for w in range(3): p(f"ds_read_b64 v[{VS+2*w}:{VS+2*w+1}], v64 offset:{64*w}")
    ln_finish(p, VX, VS, VO, 64)
    p(f"s_mov_b32 s46, {LB(0)+XN}")
    for i in range(3):
        if i == 2: p("s_add_u32 s46, s46, 4096")
        p(f"buffer_store_dwordx4 v[{VO+4*i}:{VO+4*i+3}], v{VFR}, {WSR}, s46 offen offset:{2048*(i&1)} sc1", tag="st0")
    p(f"""s_lshl_b32 s{S_F1}, s47, 2
    s_add_u32 s{S_F1}, s{S_F1}, s{S_WAVE}
    s_lshl_b32 s{S_F1}, s{S_F1}, 3
    s_add_u32 s{S_F1}, s{S_F1}, {FX(0)}
    s_mov_b32 s{S_ROLE}, 0
    s_branch {l4}
    {l3}:""")
    qkv_unit_finish(p, S_ST1, V_LANE, V_L16, 72, 64, ST1, " sc1", "au1")
    l_fw = p.label("fw")
    p(f"s_cmp_eq_u32 s{S_ROLE}, 0\ns_cbranch_scc1 {l4}\ns_cmp_eq_u32 s{S_ROLE}, 2\ns_cbranch_scc1 {l_fw}")
    qkv_unit_finish(p, S_ST2, V_LANE, V_L16, 100, 64, ST2, " sc1", "au2")
    p(f"s_branch {l4}\n{l_fw}:")
    wo_unit_finish(p, S_ST2, V_LANE, V_L16, 100, 64, ST2, " sc1", "au2")
    p(f"{l4}:")
    stamp(p, 4)
    p.add(pn.check())
    p(f"v_readfirstlane_b32 s{S_NONCE}, v6\nv_readfirstlane_b32 s{S_NONCE+1}, v7")
    signal(p, S_F1, 6, "st0")
    stamp(p, 5)
    l5 = p.label("norole")
    p(f"s_cmp_eq_u32 s{S_ROLE}, 0\ns_cbranch_scc1 {l5}")
    p.add(signal_items(S_F2, 6)[2])
    p(f"{l5}:")
    p.add(unit_loads(S_O, VTA, A_UA))

def finish_unit(p, s_u, abase, defer=False, s_lds=55):
    p(f"s_mul_i32 s{s_lds}, s{S_WAVE}, 9216\ns_add_u32 s{s_lds}, s{s_lds}, {LDS_STG}")
    return unit_finish(p, s_u, SB, SBT, s_lds, abase, V_LANE, V_L16, 180 if defer else 72, 64, defer=defer)

def idle0(p, pw):
    finish_unit(p, S_UB, A_UB)
    p(f"s_mov_b32 s44, s{SB+U_FLAG}")
    stores = finish_unit(p, S_UC, A_UC, defer=True)
    signal(p, 44, 8)
    p.add(stores)
    p(f"s_mov_b32 s3, s{SB+U_FLAG}\ns_mov_b32 s0, 0")
    ffn_pw_issue(p, pw)

def gen_main(name):
    Poll.ool.clear()
    if OPT.get("reuse") == 2: LSTRIDE[0] = 0
    p = Prog(); end = f"{name}_end"
    OPT.setdefault("codepf", 1)
    prologue(p, end, code_pf=1, pf_reg=219, pf_end=f"{name}_last")
    p(f"s_mov_b32 s{S_LB}, {LB(0)}\ns_mov_b32 s{S_LF}, 0")
    phase0(p)
    stamp_flush(p, 6, 6, light=True)
    qkv_setup(p, 0)
    extra = unit_loads(S_A, VTB, A_UB) + unit_loads(S_X, VTC, A_UC)
    def turn_a():
        st = finish_unit(p, S_UA, A_UA, defer=True, s_lds=57)
        p(f"s_mov_b32 s0, s{SB+U_FLAG}")
        return st
    pwo = Poll(p, 14, 13, 23, "pwo")
    def pre_signal():
        sdiv(p, 53, S_IDX, 6, 32)
        p(f"s_mul_i32 s53, s53, 6\ns_sub_u32 s53, s{S_IDX}, s53\ns_lshl_b32 s53, s53, 8\ns_add_u32 s23, s53, {FWO}")
        lane_min8(p, 13, V_LANE, 18)
        p.add(pwo.issue())
    qkv_main(p, 0, extra, pre_signal, turn_a)
    p.add(signal_items(0, 8)[2])
    l_idle0, l_ffn, l_red1, l_next = p.label("idle0"), p.label("ffn"), p.label("red1"), p.label("next")
    p(f"s_cmp_ge_u32 s{S_IDX}, 24\ns_cbranch_scc1 {l_idle0}")
    pw = Poll(p, 12, 14, 1, "pw")
    wo_part(p, 0, pwo=pwo, pre_signal=lambda: ffn_pw_issue(p, pw))
    stamp_flush(p, 0, 9, light=True)
    if not OPT.get("two", 0): p("s_mov_b32 s0, 0")
    p(f"s_mov_b32 s3, 0\ns_cmp_lg_u32 s{S_WAVE}, 3\ns_cbranch_scc1 {l_ffn}")
    finish_unit(p, S_UB, A_UB)
    p(f"s_mov_b32 s3, s{SB+U_FLAG}\ns_branch {l_ffn}\n{l_idle0}:")
    idle0(p, pw)
    p(f"{l_ffn}:")
    stamp(p, 0)
    ffn_phase(p, pw, sc=LOC("h"), ld=LD())
    stamp_flush(p, 1, 12, light=True, s_row=S_LF)
    p(f"s_cmp_lg_u32 s{S_LF}, 0\ns_cbranch_scc1 {l_red1}")
    stamp(p, 0)
    def w3():
        p.add(hp_of(44, 45, 1))
        p(f"""s_mul_i32 s44, s44, {126*1024}
        s_add_u32 s44, s44, {WQ}""")
        for j in range(36):
            if j % 4 == 0: p(f"s_mov_b32 m0, {LDS_WQ+j*1024}\ns_add_u32 s45, s44, {j*1024}")
            p(f"buffer_load_dwordx4 v{V_L16}, {WSR}, s45 offen offset:{1024*(j&3)} lds", tag="wq2")
    reduce_phase(p, 0, LDS_LN, ld=LD(), pre=lambda: p("s_barrier"), w3=w3)
    qkv_setup(p, 1)
    stamp(p, 2); stamp_flush(p, 2, 6, light=True); stamp(p, 0)
    qkv_main(p, 1)
    p(f"s_cmp_ge_u32 s{S_IDX}, 24\ns_cbranch_scc1 {l_next}")
    wo_part(p, 1)
    stamp_flush(p, 3, 12, light=True)
    p(f"{l_next}:")
    if STAMP[0]: p.drain(vm=False)
    p(f"s_mov_b32 s{S_LB}, {LB(1)}\ns_mov_b32 s{S_LF}, 0x2000\ns_branch {l_ffn}\n{l_red1}:")
    stamp(p, 0)
    reduce_phase(p, 1, LDS_LN, ld=LD())
    stamp(p, 2); p.drain(); stamp(p, 3); stamp_flush(p, 5, 4)
    p(f"{end}:\ns_endpgm")
    for pl in Poll.ool: pl.slow_path(p)
    p.add(Raw(f"{name}_last:\n    s_endpgm"))
    t = p.finalize()
    print(name, p.stats)
    return kernel_text(name, t, vgpr=512, accum=256), (256, 256, LDS_TOTAL)
```

```python
from common import *
def NT(): return " nt" if OPT.get("nt", 1) else ""

def shuffle_dma(p, srd_, ppr, ndma, s_rowbase, s_grs, s_hrs, s_rs, s_lds, v_lane, vt, tag, qkv=False):
    for i in range(ndma):
        p(f"""v_add_u32 v{vt}, {64*i}, v{v_lane}
        v_mul_u32_u24 v{vt+1}, {magic(ppr, 64*ndma)}, v{vt}
        v_lshrrev_b32 v{vt+1}, 16, v{vt+1}
        v_mul_u32_u24 v{vt+2}, {ppr}, v{vt+1}
        v_sub_u32 v{vt}, v{vt}, v{vt+2}""")
        if qkv:
            p(f"""v_mul_u32_u24 v{vt+2}, {magic(5, 16)}, v{vt}
            v_lshrrev_b32 v{vt+2}, 16, v{vt+2}
            v_mul_u32_u24 v{vt+2}, {1152-80}, v{vt+2}
            v_lshl_add_u32 v{vt}, v{vt}, 4, v{vt+2}""")
        else:
            p(f"v_lshlrev_b32 v{vt}, 4, v{vt}")
        p(f"""v_lshrrev_b32 v{vt+2}, 3, v{vt+1}
        v_mul_lo_u32 v{vt+2}, v{vt+2}, s{s_grs}
        v_bfe_u32 v{vt+3}, v{vt+1}, 2, 1
        v_mul_lo_u32 v{vt+3}, v{vt+3}, s{s_hrs}
        v_and_b32 v{vt+1}, 3, v{vt+1}
        v_mul_lo_u32 v{vt+1}, v{vt+1}, s{s_rs}
        v_add3_u32 v{vt}, v{vt}, v{vt+2}, v{vt+3}
        v_add3_u32 v{vt}, v{vt}, v{vt+1}, s{s_rowbase}
        s_add_u32 m0, s{s_lds}, {1024*i}""")
        p(f"buffer_load_dwordx4 v{vt}, s[{srd_}:{srd_+3}], 0 offen{NT()} lds", tag=tag)

def tr_base(p, vd, v_lane, stride, s_lds, vt):
    p(f"""v_lshrrev_b32 v{vd}, 4, v{v_lane}
    v_bfe_u32 v{vt}, v{v_lane}, 2, 2
    v_lshl_add_u32 v{vd}, v{vd}, 3, v{vt}
    v_mul_u32_u24 v{vd}, {stride}, v{vd}
    v_add_u32 v{vd}, s{s_lds}, v{vd}
    v_and_b32 v{vt}, 3, v{v_lane}""")

def tr_frag(p, vf, va, off, stride):
    p(f"ds_read_b64_tr_b16 v[{vf}:{vf+1}], v{va} offset:{off}")
    p(f"ds_read_b64_tr_b16 v[{vf+2}:{vf+3}], v{va} offset:{off+4*stride}")

U_ROW, U_GRS, U_HRS, U_RS, U_PB, U_T8, U_SL, U_CS, U_FLAG, U_D0, U_D4, U_D8, U_S1, U_S2 = range(14)

def ffn_unit_setup(p, s_u, sb, ssrd, st):
    L = p.label
    l_d, l_done = L("ud"), L("udone")
    p(f"s_cmp_ge_u32 s{s_u}, 1152\ns_cbranch_scc1 {l_d}")
    sdiv(p, sb + U_SL, s_u, 36, 1152)
    p(f"""s_mul_i32 s{st}, s{sb+U_SL}, 36
    s_sub_u32 s{st}, s{s_u}, s{st}
    s_and_b32 s{st+1}, s{st}, 1
    s_lshr_b32 s{st+2}, s{st}, 1""")
    if ssrd is not None:
        p(f"""s_cmp_eq_u32 s{st+1}, 0
        s_cselect_b32 s{ssrd}, s{P_WG}, s{P_WU}
        s_cselect_b32 s{ssrd+1}, s{P_WG+1}, s{P_WU+1}
        s_mul_i32 s{sb+U_ROW}, s{st+2}, {32*9216}
        s_mul_i32 s{st+3}, s{sb+U_SL}, 288
        s_add_u32 s{sb+U_ROW}, s{sb+U_ROW}, s{st+3}
        s_mov_b32 s{sb+U_GRS}, {8*9216}
        s_mov_b32 s{sb+U_HRS}, {4*9216}
        s_mov_b32 s{sb+U_RS}, 9216""")
    else:
        p(f"""s_mov_b32 s{sb+U_PB}, 0
        s_mov_b32 s{sb+U_T8}, 256
        s_mul_i32 s{st+3}, s{sb+U_SL}, 486
        s_add_u32 s{st+3}, s{st+3}, s{st}
        s_lshl_b32 s{st+3}, s{st+3}, 10
        s_add_u32 s{sb+U_D8}, s{st+3}, {WF}
        s_add_u32 s{sb}, s{sb+U_D8}, {36*1024}
        s_add_u32 s{sb+1}, s{sb+U_D8}, {108*1024}
        s_add_u32 s{sb+2}, s{sb+U_D8}, {180*1024}
        s_add_u32 s{sb+3}, s{sb+U_D8}, {252*1024}
        s_mov_b32 s{sb+U_S1}, {36*1024}
        s_lshl_b32 s{st+3}, s{sb+U_SL}, 1
        s_add_u32 s{st+3}, s{st+3}, s{st+1}
        s_mul_i32 s{st+3}, s{st+3}, 18
        s_add_u32 s{st+3}, s{st+3}, s{st+2}
        s_mul_i32 s{st+3}, s{st+3}, 640
        s_add_u32 s{sb+U_CS}, s{st+3}, {CSP}
        s_mov_b32 s{sb+U_FLAG}, s{st}""")
    p(f"s_branch {l_done}\n{l_d}:\ns_sub_u32 s{st}, s{s_u}, 1152")
    sdiv(p, sb + U_SL, st, 18, 576)
    p(f"""s_mul_i32 s{st+1}, s{sb+U_SL}, 18
    s_sub_u32 s{st}, s{st}, s{st+1}
    s_and_b32 s{st+1}, s{sb+U_SL}, 3
    s_and_b32 s{st+2}, s{st+1}, 1""")
    if ssrd is not None:
        l_sh, l_rm, l_rows = L("ush"), L("urm"), L("urows")
        p(f"""s_mov_b32 s{ssrd}, s{P_WD}
        s_mov_b32 s{ssrd+1}, s{P_WD+1}
        s_mov_b32 s{sb+U_RS}, 1152
        s_cmp_eq_u32 s{st+2}, 0
        s_mov_b32 s{st+5}, {-144*1152}
        s_cselect_b32 s{st+5}, {144*1152}, s{st+5}
        s_mov_b32 s{sb+U_GRS}, {8*1152}
        s_mov_b32 s{sb+U_HRS}, {4*1152}
        s_cmp_ge_u32 s{st}, 4
        s_cbranch_scc1 {l_sh}
        s_mov_b32 s{st+3}, s{st+1}
        s_lshl_b32 s{st+4}, s{st}, 5
        s_branch {l_rows}
        {l_sh}:
        s_cmp_ge_u32 s{st}, 6
        s_cbranch_scc1 {l_rm}
        s_sub_u32 s{st+3}, s{st}, 4
        s_lshl_b32 s{st+3}, s{st+3}, 1
        s_xor_b32 s{st+3}, s{st+3}, s{st+1}
        s_mov_b32 s{st+4}, 128
        s_mov_b32 s{sb+U_GRS}, {4*1152}
        s_mov_b32 s{sb+U_HRS}, s{st+5}
        s_branch {l_rows}
        {l_rm}:
        s_sub_u32 s{st+3}, s{st}, 6""")
        sdiv(p, st + 4, st + 3, 3, 12)
        p(f"""s_mul_i32 s{st+5}, s{st+4}, 3
        s_sub_u32 s{st+3}, s{st+3}, s{st+5}
        s_add_u32 s{st+3}, s{st+3}, 1
        s_xor_b32 s{st+3}, s{st+3}, s{st+1}
        s_lshl_b32 s{st+4}, s{st+4}, 5
        {l_rows}:
        s_mul_i32 s{st+3}, s{st+3}, 144
        s_add_u32 s{st+3}, s{st+3}, s{st+4}
        s_lshr_b32 s{st+4}, s{sb+U_SL}, 2
        s_mul_i32 s{st+4}, s{st+4}, 576
        s_add_u32 s{st+3}, s{st+3}, s{st+4}
        s_mul_i32 s{st+3}, s{st+3}, 1152
        s_mul_i32 s{st+4}, s{st+1}, 288
        s_add_u32 s{sb+U_ROW}, s{st+3}, s{st+4}""")
    else:
        p(f"""s_mov_b32 s{sb+U_CS}, 0
        s_lshl_b32 s{sb+U_PB}, s{st+2}, 5
        s_cmp_eq_u32 s{st+2}, 0
        s_cselect_b32 s{sb+U_T8}, 256, 0
        s_add_u32 s{sb+U_FLAG}, s{st}, 36
        s_mul_i32 s{st+3}, s{sb+U_SL}, 486
        s_add_u32 s{st+3}, s{st+3}, 324
        s_lshl_b32 s{st+3}, s{st+3}, 10
        s_add_u32 s{st+3}, s{st+3}, {WF}""")
        idx = {k: i for i, k in enumerate(gemm2_order())}
        l_b, l_c = L("ub"), L("uc")
        def dests(st0, nsteps):
            s1, s2 = idx[(st0, 1)] - idx[(st0, 0)], idx[(st0, 2)] - idx[(st0, 0)]
            p(f"s_sub_u32 s{st+4}, s{st}, {st0}\ns_mov_b32 s{sb+U_S1}, {s1*1024}\ns_mov_b32 s{sb+U_S2}, {s2*1024}")
            for n, r in ((0, U_D0), (4, U_D4), (8, U_D8)):
                sd = idx[(st0 + 1, n)] - idx[(st0, n)]
                p(f"""s_mul_i32 s{st+5}, s{st+4}, {sd*1024}
                s_add_u32 s{st+5}, s{st+5}, {idx[(st0, n)]*1024}
                s_add_u32 s{sb+r}, s{st+5}, s{st+3}""")
                for k in range(nsteps):
                    for m in range(n, min(n + 4, 9) if n < 8 else 9):
                        assert idx[(st0 + k, m)] == idx[(st0, n)] + k * sd + (m & 1) * s1 * (n < 8) + ((m >> 1) & 1) * s2 * (n < 8)
        p(f"s_cmp_ge_u32 s{st}, 3\ns_cbranch_scc1 {l_b}")
        l_e = L("ue")
        dests(0, 3); p(f"s_branch {l_e}\n{l_b}:")
        p(f"s_cmp_ge_u32 s{st}, 9\ns_cbranch_scc1 {l_c}")
        dests(3, 6); p(f"s_branch {l_e}\n{l_c}:")
        dests(9, 9)
        p(f"""{l_e}:
        s_add_u32 s{st+4}, s{sb+U_D0}, s{sb+U_S2}
        s_add_u32 s{sb+3}, s{sb+U_D4}, s{sb+U_S2}
        s_lshr_b32 s{st+5}, s{st+1}, 1
        s_cmp_eq_u32 s{st+5}, s{st+2}
        s_cselect_b32 s{sb}, s{sb+U_D0}, s{sb+U_D4}
        s_cselect_b32 s{sb+1}, s{st+4}, s{sb+U_D0}
        s_cselect_b32 s{sb+2}, s{sb+U_D4}, s{st+4}""")
    p(f"{l_done}:")
    if ssrd is not None: p(f"s_mov_b32 s{ssrd+2}, {D*F*2:#x}\ns_mov_b32 s{ssrd+3}, 0x20000")
    else:
        p(f"""s_lshl_b32 s{st+3}, s{sb+U_SL}, 6
        s_add_u32 s{st+3}, s{st+3}, s{sb+U_FLAG}
        s_lshl_b32 s{st+3}, s{st+3}, 3
        s_add_u32 s{sb+U_FLAG}, s{st+3}, {FW}""")

def unit_pieces(p, v_lane, vg, vt):
    for i in range(9):
        p(f"""v_add_u32 v{vt}, {64*i}, v{v_lane}
        v_mul_u32_u24 v{vt+1}, {magic(18, 576)}, v{vt}
        v_lshrrev_b32 v{vt+1}, 16, v{vt+1}
        v_mul_u32_u24 v{vt+2}, 18, v{vt+1}
        v_sub_u32 v{vt}, v{vt}, v{vt+2}
        v_lshl_or_b32 v{vg+i}, v{vt}, 8, v{vt+1}""")

def unit_table(p, sb, vg, vtab, vt):
    for i in range(9):
        p(f"""v_bfe_u32 v{vt}, v{vg+i}, 3, 2
        v_mul_u32_u24 v{vt}, s{sb+U_GRS}, v{vt}
        v_bfe_u32 v{vt+1}, v{vg+i}, 2, 1
        v_mul_lo_u32 v{vt+1}, v{vt+1}, s{sb+U_HRS}
        v_and_b32 v{vt+2}, 3, v{vg+i}
        v_mul_u32_u24 v{vt+2}, s{sb+U_RS}, v{vt+2}
        v_add3_u32 v{vt}, v{vt}, v{vt+1}, v{vt+2}
        v_lshrrev_b32 v{vt+1}, 8, v{vg+i}
        v_lshl_add_u32 v{vt}, v{vt+1}, 4, v{vt}
        v_add_u32 v{vtab+i}, s{sb+U_ROW}, v{vt}""")

def unit_loads(srd_, vtab, abase):
    return [ins(f"buffer_load_dwordx4 a[{abase+4*i}:{abase+4*i+3}], v{vtab+i}, s[{srd_}:{srd_+3}], 0 offen{NT()}") for i in range(9)]

def unit_finish(p, s_u, sb, st, s_lds, abase, v_lane, v_l16, vf, vt, sc=" sc1", defer=False):
    va, vb = vt, vt + 1
    p(f"v_add_u32 v{va}, s{s_lds}, v{v_l16}")
    for i in range(9): p(f"ds_write_b128 v{va}, a[{abase+4*i}:{abase+4*i+3}] offset:{1024*i}")
    ffn_unit_setup(p, s_u, sb, None, st)
    tr_base(p, va, v_lane, 288, s_lds, vt + 2)
    p(f"""v_lshl_add_u32 v{vb}, v{vt+2}, 3, v{va}
    v_add_u32 v{vb}, s{sb+U_T8}, v{vb}
    v_lshl_add_u32 v{va}, v{vt+2}, 4, v{va}
    v_add_u32 v{va}, s{sb+U_PB}, v{va}""")
    for n in range(9):
        if n < 8: tr_frag(p, vf + 4 * n, va, 64 * (n >> 1) + 8 * (n & 1), 288)
        else: tr_frag(p, vf + 4 * n, vb, 0, 288)
    stores = []
    for n in range(9):
        base = sb + (n >> 1) if n < 8 else sb + U_D8
        if n & 1:
            stores.append(ins(f"s_add_u32 s{st}, s{base}, s{sb+U_S1}")); base = st
        stores.append(ins(f"buffer_store_dwordx4 v[{vf+4*n}:{vf+4*n+3}], v{v_l16}, s[{S_WS}:{S_WS+3}], s{base} offen{sc}"))
    if not defer: p.add(stores)
    l_skip = p.label("nocs")
    p(f"s_cmp_eq_u32 s{sb+U_CS}, 0\ns_cbranch_scc1 {l_skip}")
    vo, vd = vt + 4, (vf + 36 if not defer else 72)
    for j in range(4): p(f"v_mov_b32 v{vo+j}, {BF16_ONES:#x}")
    for n in range(9):
        p(f"v_mfma_f32_16x16x32_bf16 v[{vd+4*n}:{vd+4*n+3}], v[{vf+4*n}:{vf+4*n+3}], v[{vo}:{vo+3}], 0")
    p(f"""v_and_b32 v{vt+2}, 15, v{v_lane}
    v_add_u32 v{vt+3}, 1, v{vt+2}
    v_cmp_gt_u32 vcc, 8, v{vt+2}
    v_and_b32 v{va}, 48, v{v_lane}
    v_cndmask_b32 v{vt+3}, 0, v{vt+3}, vcc
    v_cmp_eq_u32 vcc, 9, v{vt+2}
    v_cndmask_b32 v{vt+3}, v{vt+3}, v{vt+2}, vcc
    v_lshlrev_b32 v{vt+3}, 6, v{vt+3}
    v_add_u32 v{vt+3}, v{vt+3}, v{va}""")
    for n in range(1, 9):
        p(f"v_cmp_eq_u32 vcc, {n}, v{vt+2}")
        for j in range(4): p(f"v_cndmask_b32 v{vd+j}, v{vd+j}, v{vd+4*n+j}, vcc")
    p(f"""s_mov_b32 exec_lo, 0x03ff03ff
    s_mov_b32 exec_hi, 0x03ff03ff
    buffer_store_dwordx4 v[{vd}:{vd+3}], v{vt+3}, s[{S_WS}:{S_WS+3}], s{sb+U_CS} offen{sc}
    s_mov_b64 exec, -1
    {l_skip}:""")
    return stores

def qkv_unit_issue(p, s_u, s_lds, v_lane, vt, st, srd_=S_A, tag="au"):
    sdiv(p, st, s_u, 18, 288)
    p(f"""s_mul_i32 s{st+1}, s{st}, 18
    s_sub_u32 s{st+1}, s{s_u}, s{st+1}
    s_mul_i32 s{st+2}, s{st}, 72
    s_and_b32 s{st+3}, s{st+2}, 8
    s_and_b32 s{st+2}, s{st+2}, -16
    s_mul_i32 s{st+4}, s{st+1}, {32*3456}
    s_add_u32 s{st+2}, s{st+2}, s{st+4}
    s_mov_b32 s{st+4}, {3456-240}
    s_mul_i32 s{st+7}, s{s_u}, {7*1024}""")
    srd(p, srd_, P_WQKV, D * 3 * D * 2)
    for i in range(8):
        p(f"""v_add_u32 v{vt}, {64*i}, v{v_lane}
        v_mul_u32_u24 v{vt+1}, {magic(15, 512)}, v{vt}
        v_lshrrev_b32 v{vt+1}, 16, v{vt+1}
        v_mad_i32_i24 v{vt+2}, v{vt+1}, -15, v{vt}
        v_mul_u32_u24 v{vt+2}, {magic(5, 16)}, v{vt+2}
        v_lshrrev_b32 v{vt+2}, 16, v{vt+2}
        v_mul_u32_u24 v{vt+2}, {1152-80}, v{vt+2}
        v_mad_u32_u24 v{vt+1}, v{vt+1}, s{st+4}, v{vt+2}
        v_lshl_add_u32 v{vt}, v{vt}, 4, v{vt+1}
        s_add_u32 m0, s{s_lds}, {1024*i}""")
        p(f"buffer_load_dwordx4 v{vt}, s[{srd_}:{srd_+3}], s{st+2} offen{NT()} lds", tag=tag)

def qkv_unit_finish(p, s_lds, v_lane, v_l16, vf, vt, st, sc="", tag="au"):
    va, vb = vt, vt + 1
    tr_base(p, va, v_lane, 240, s_lds, vt + 2)
    p(f"""v_add_u32 v{va}, s{st+3}, v{va}
    v_and_b32 v{vt+3}, 1, v{vt+2}
    v_mul_u32_u24 v{vt+3}, 160, v{vt+3}
    v_lshrrev_b32 v{vb}, 1, v{vt+2}
    v_mul_u32_u24 v{vb}, 80, v{vb}
    v_add3_u32 v{vb}, v{vb}, v{vt+3}, v{va}
    v_cmp_eq_u32 vcc, 3, v{vt+2}
    v_cndmask_b32 v{vb}, v{vb}, v{va}, vcc
    v_lshl_add_u32 v{va}, v{vt+2}, 3, v{va}""")
    p.wait_vm(tag)
    for t in range(6): tr_frag(p, vf + 4 * t, va, 80 * (t >> 1) + 40 * (t & 1), 240)
    tr_frag(p, vf + 24, vb, 32, 240)
    p(f"v_and_b32 v{vt+2}, 15, v{v_lane}\nv_cmp_gt_u32 vcc, 12, v{vt+2}")
    for j in range(4): p(f"v_cndmask_b32 v{vf+24+j}, 0, v{vf+24+j}, vcc")
    p(f"s_add_u32 s{st+7}, s{st+7}, {WQ}")
    for t in range(7):
        if t == 4: p(f"s_add_u32 s{st+7}, s{st+7}, 4096")
        p(f"buffer_store_dwordx4 v[{vf+4*t}:{vf+4*t+3}], v{v_l16}, s[{S_WS}:{S_WS+3}], s{st+7} offen offset:{(t&3)*1024}{sc}", tag="st0")

def qkv_unit(p, s_u, s_lds, v_lane, v_l16, vf, vt, st, sc=""):
    qkv_unit_issue(p, s_u, s_lds, v_lane, vt, st); qkv_unit_finish(p, s_lds, v_lane, v_l16, vf, vt, st, sc)

def wo_unit_issue(p, s_u, s_lds, v_lane, vt, st, srd_=S_A, tag="au"):
    sdiv(p, st, s_u, 18, 108)
    p(f"""s_mul_i32 s{st+1}, s{st}, 18
    s_sub_u32 s{st+1}, s{s_u}, s{st+1}
    s_mul_i32 s{st+2}, s{st+1}, {36*1152}
    s_sub_u32 s{st+3}, s{st+1}, 16
    s_mul_i32 s{st+3}, s{st+3}, {288*1152}
    s_add_u32 s{st+3}, s{st+3}, {16*1152}
    s_cmp_lt_u32 s{st+1}, 16
    s_cselect_b32 s{st+2}, s{st+2}, s{st+3}
    s_mov_b32 s{st+4}, {72*1152}
    s_mov_b32 s{st+5}, {36*1152}
    s_cselect_b32 s{st+4}, {4*1152}, s{st+4}
    s_cselect_b32 s{st+5}, {20*1152}, s{st+5}
    s_mul_i32 s{st+3}, s{st}, 192
    s_add_u32 s{st+2}, s{st+2}, s{st+3}
    s_mov_b32 s{st+6}, 1152
    s_mul_i32 s{st+7}, s{s_u}, {6*1024}""")
    srd(p, srd_, P_WO, D * D * 2)
    shuffle_dma(p, srd_, 12, 6, st + 2, st + 4, st + 5, st + 6, s_lds, v_lane, vt, tag)

def wo_unit_finish(p, s_lds, v_lane, v_l16, vf, vt, st, sc="", tag="au"):
    va = vt
    tr_base(p, va, v_lane, 192, s_lds, vt + 2)
    p(f"v_lshl_add_u32 v{va}, v{vt+2}, 4, v{va}")
    p.wait_vm(tag)
    for t in range(6): tr_frag(p, vf + 4 * t, va, 64 * (t >> 1) + 8 * (t & 1), 192)
    p(f"s_add_u32 s{st+7}, s{st+7}, {WOS}")
    for t in range(6):
        if t == 4: p(f"s_add_u32 s{st+7}, s{st+7}, 4096")
        p(f"buffer_store_dwordx4 v[{vf+4*t}:{vf+4*t+3}], v{v_l16}, s[{S_WS}:{S_WS+3}], s{st+7} offen offset:{(t&3)*1024}{sc}", tag="st0")

def wo_unit(p, s_u, s_lds, v_lane, v_l16, vf, vt, st, sc=""):
    wo_unit_issue(p, s_u, s_lds, v_lane, vt, st); wo_unit_finish(p, s_lds, v_lane, v_l16, vf, vt, st, sc)

def ln_addr(p, s_tg, v_lane, v_row, v_frag, vt, st, wave=True):
    p(f"""v_and_b32 v{vt}, 7, v{v_lane}
    v_lshrrev_b32 v{vt+1}, 3, v{v_lane}
    s_lshl_b32 s{st}, s{s_tg}, 3
    v_add_u32 v{v_row}, s{st}, v{vt}
    v_mul_u32_u24 v{v_row}, 1152, v{v_row}
    s_mul_i32 s{st}, s{S_WAVE}, {24*16*wave}
    v_lshl_add_u32 v{v_row}, v{vt+1}, 4, v{v_row}
    v_add_u32 v{v_row}, s{st}, v{v_row}
    s_lshr_b32 s{st}, s{s_tg}, 1
    s_mul_i32 s{st}, s{st}, {18*1024}
    s_and_b32 s{st+1}, s{s_tg}, 1
    s_lshl_b32 s{st+1}, s{st+1}, 7
    s_add_u32 s{st}, s{st}, s{st+1}
    s_mul_i32 s{st+1}, s{S_WAVE}, {6*1024*wave}
    s_add_u32 s{st}, s{st}, s{st+1}
    v_lshlrev_b32 v{vt}, 4, v{vt}
    v_lshl_add_u32 v{vt}, v{vt+1}, 8, v{vt}
    v_add_u32 v{v_frag}, s{st}, v{vt}""")

def ln_local_stats(p, vx, v_sum, v_m2, vt):
    p(f"v_add_f32 v{v_sum}, v{vx}, v{vx+1}\nv_add_f32 v{vt}, v{vx+2}, v{vx+3}")
    for j in range(4, 24, 2):
        p(f"v_add_f32 v{v_sum}, v{v_sum}, v{vx+j}\nv_add_f32 v{vt}, v{vt}, v{vx+j+1}")
    p(f"v_add_f32 v{v_sum}, v{v_sum}, v{vt}")
    xsum8(p, v_sum); xsum_g(p, v_sum, vt)
    p(f"v_mul_f32 v{vt+1}, {1/192!r}, v{v_sum}".replace(repr(1/192), "0x3baaaaab"))
    p(f"v_sub_f32 v{vt}, v{vx}, v{vt+1}\nv_mul_f32 v{v_m2}, v{vt}, v{vt}")
    for j in range(1, 24):
        p(f"v_sub_f32 v{vt+2+(j&1)}, v{vx+j}, v{vt+1}\nv_fmac_f32 v{v_m2}, v{vt+2+(j&1)}, v{vt+2+(j&1)}")
    xsum8(p, v_m2); xsum_g(p, v_m2, vt)

def ln_finish(p, vx, vs, vo, vt):
    mean, a, b = vt, vt + 1, vt + 2
    p(f"""v_add_f32 v{mean}, v{vs}, v{vs+2}
    v_add_f32 v{mean}, v{mean}, v{vs+4}
    v_mul_f32 v{mean}, 0x3ae38e39, v{mean}
    v_add_f32 v{a}, v{vs+1}, v{vs+3}
    v_add_f32 v{a}, v{a}, v{vs+5}""")
    for w in range(3):
        p(f"""v_mul_f32 v{b}, 0x3baaaaab, v{vs+2*w}
        v_sub_f32 v{b}, v{b}, v{mean}
        v_mul_f32 v{b}, v{b}, v{b}
        v_fmac_f32 v{a}, 0x43400000, v{b}""")
    p(f"v_mul_f32 v{a}, 0x3ae38e39, v{a}")
    round_bf16(p, a)
    p(f"v_add_f32 v{a}, 0x3727c5ac, v{a}")
    round_bf16(p, a)
    p(f"v_sqrt_f32 v{a}, v{a}")
    round_bf16(p, a)
    p(f"v_rcp_f32 v{a}, v{a}")
    round_bf16(p, mean)
    for j in range(0, 24, 2):
        p(f"""v_sub_f32 v{vx+j}, v{vx+j}, v{mean}
        v_sub_f32 v{vx+j+1}, v{vx+j+1}, v{mean}
        v_cvt_pk_bf16_f32 v{b}, v{vx+j}, v{vx+j+1}
        v_lshlrev_b32 v{vx+j}, 16, v{b}
        v_and_b32 v{vx+j+1}, 0xffff0000, v{b}
        v_mul_f32 v{vx+j}, v{vx+j}, v{a}
        v_mul_f32 v{vx+j+1}, v{vx+j+1}, v{a}
        v_cvt_pk_bf16_f32 v{vo+j//2}, v{vx+j}, v{vx+j+1}""")
```

```python
KB = 1024
S, D, F = 2048, 576, 4608
NT, NC = 128, 18
WS_BYTES = 268435456
WQ  = 0x0
WOS = 0x200000
CSP = 0x2C0000
CSF = 0x380000
FLAGS = 0
FLAGBASE = 0x8000000
WF  = 0x400000
LSTRIDE = [0x3000000]
def LB(l): return 0x1400000 + l * LSTRIDE[0]
XN, OM, OR_, X1, ST, X2R, HB, PB = 0x0, 0x240000, 0x440000, 0x480000, 0x6C0000, 0x700000, 0x940000, 0x1C00000
XBYTES = S * D * 2

def pos_of_tile(n): return 0 if n == 8 else n + 1

def gemm2_order():
    o = []
    for st in range(3):
        for n in (0, 1, 2, 3, 8): o.append((st, n))
    for st in range(3):
        for n in range(4, 8): o.append((st, n))
    for st in range(3, 9):
        for n in range(9): o.append((st, n))
    for grp in ((0, 1), (2, 3), (4, 5), (6, 7), (8,)):
        for st in range(9, 18):
            for n in grp: o.append((st, n))
    assert len(o) == 162
    return o

def d_step_rows(q, m, step):
    Fb = lambda mm: 576 * q + 144 * mm
    if step < 4: Fa, G, H = Fb(m) + 32 * step, 8, 4
    elif step == 4: Fa, G, H = Fb(m) + 128, 4, Fb(m ^ 1) - Fb(m)
    elif step == 5: Fa, G, H = Fb(m ^ 2) + 128, 4, Fb(m ^ 3) - Fb(m ^ 2)
    else:
        i = step - 6
        Fa, G, H = Fb(m ^ (i % 3 + 1)) + 32 * (i // 3), 8, 4
    return [Fa + (r >> 3) * G + ((r >> 2) & 1) * H + (r & 3) for r in range(32)]

def tile_cols(n, pb, t8):
    if n == 8: return [t8 + i for i in range(16)]
    return [pb + 32 * (n >> 1) + 8 * (i >> 2) + 4 * (n & 1) + (i & 3) for i in range(16)]

def wo_rows(c):
    if c < 16: Fa, G, H = 36 * c, 4, 20
    else: Fa, G, H = 36 * 8 * (c - 16) + 16, 72, 36
    return [Fa + (r >> 3) * G + ((r >> 2) & 1) * H + (r & 3) for r in range(32)]

def qkv_cols(hp, tile):
    b = 36 * hp
    if tile < 6:
        return [576 * (tile >> 1) + b + 20 * (tile & 1) + i for i in range(16)]
    return [b + 16 + i for i in range(4)] + [1152 + b + 16 + i for i in range(4)] + [576 + b + 16 + i for i in range(4)] + [None] * 4

def FX(l): return FLAGS + 0x0000 + l * 0x2000
def FO(l): return FLAGS + 0x4000 + l * 0x2000
F1B = FLAGS + 0x8000
FHB = FLAGS + 0xC000
FPB = FLAGS + 0x1C000
FWQ = FLAGS + 0x20000
FWO = FLAGS + 0x21000
FW  = FLAGS + 0x22000
FPA = FLAGS + 0x26000
F1S = FLAGS + 0x2A000
FLAG_END = 0x2E000

def d_group(m, pr):
    return (1, 2, 0, 3)[pr] if m in (1, 2) else pr
RED_K = ((0, 3, 5), (7, 1, 2), (4, 6, 8))
```

```python
from common import *
from k_prep import ln_addr, ln_local_stats, ln_finish
MF = "v_mfma_f32_16x16x32_bf16"
RING = 36 * 1024
LDS_CS = 4 * RING
LDS_WQ = 18 * 1024

from fw import _is_vm as _isvm
DBG = set()
def ffn_slice(p, sd, st):
    rr = OPT.get("r", 3)
    p(f"""s_and_b32 s{st}, s{S_XCD}, {(1 << rr) - 1}
    s_lshl_b32 s{st}, s{st}, {5-rr}
    s_and_b32 s{sd}, s{S_IDX}, {(1 << (5-rr)) - 1}
    s_add_u32 s{sd}, s{sd}, s{st}""")

def ffn_pw_issue(p, pw):
    ffn_slice(p, pw.so, 23)
    p(f"s_lshl_b32 s{pw.so}, s{pw.so}, 9\ns_add_u32 s{pw.so}, s{pw.so}, {FW}")
    lane_min8(p, pw.va, 1, 36)
    p.add(pw.issue())

def ffn_phase(p, pw, sc=" sc1", ld=" sc1"):
    if "plain" in DBG: sc = ""
    scp = LOC("p")
    ntw = " nt" if OPT.get("ntw") else ""
    lbh = str(LB(0)) if OPT.get("reuse") else f"s{S_LB}"
    rr = OPT.get("r", 3)
    V_LANE, V_L16, V_L8, V_W, V_CS, V_T0, V_T1 = 1, 2, 3, 4, 5, 6, 7
    WB, XO, ACA, ACB, NM, RS2, CS, TMP, HO, H8 = 8, 32, 64, 96, 128, 132, 136, 152, 176, 240
    ACX = 208
    S_RB, S_Q, S_M, S_SL, S_SRC, S_M0, S_XS, S_H, S_FL, S_P, S_T, S_R = 44, 45, 46, 47, 48, 49, 50, 51, 52, 53, 54, 56
    S_TMP, S_TMP2, S_LASTSRC, S_LASTM0, S_FW = 60, 61, 62, 63, 64
    p("s_barrier")
    sp = OPT.get("stpro")
    if sp: stamp(p, 2)
    p(f"""s_lshr_b32 s{S_RB}, s{S_IDX}, {5-rr}
    s_and_b32 s{S_TMP}, s{S_XCD}, {7 & ~((1 << rr) - 1)}
    s_add_u32 s{S_RB}, s{S_RB}, s{S_TMP}
    s_and_b32 s{S_TMP}, s{S_XCD}, {(1 << rr) - 1}
    s_lshl_b32 s{S_TMP}, s{S_TMP}, {5-rr}
    s_and_b32 s{S_SL}, s{S_IDX}, {(1 << (5-rr)) - 1}
    s_add_u32 s{S_SL}, s{S_SL}, s{S_TMP}
    s_lshl_b32 s{S_FW}, s{S_SL}, 9
    s_add_u32 s{S_FW}, s{S_FW}, {FW}""")
    p(f"""s_lshr_b32 s{S_Q}, s{S_SL}, 2
    s_and_b32 s{S_M}, s{S_SL}, 3
    s_mul_i32 s{S_SRC}, s{S_SL}, {486*1024}
    s_add_u32 s{S_SRC}, s{S_SRC}, {WF}
    s_mul_i32 s{S_LASTM0}, s{S_WAVE}, 9
    s_lshr_b32 s{S_LASTM0}, s{S_LASTM0}, 1
    s_lshl_b32 s{S_LASTM0}, s{S_LASTM0}, 10
    s_add_u32 s{S_LASTSRC}, s{S_SRC}, s{S_LASTM0}
    s_mul_i32 s{S_M0}, s{S_WAVE}, {9*1024}
    s_add_u32 s{S_SRC}, s{S_SRC}, s{S_M0}
    s_lshl_b32 s{S_T}, s{S_RB}, 4
    s_lshl_b32 s{S_TMP}, s{S_WAVE}, 2
    s_add_u32 s{S_T}, s{S_T}, s{S_TMP}
    s_mul_i32 s{S_XS}, s{S_T}, {18*1024}
    s_mul_i32 s{S_P}, s{S_Q}, {XBYTES}
    s_add_u32 s{S_P}, s{S_P}, s{S_XS}
    s_add_u32 s{S_XS}, s{S_XS}, {X1}
    s_add_u32 s{S_XS}, s{S_XS}, s{S_LB}
    s_lshr_b32 s{S_TMP}, s{S_M}, 1
    s_mul_i32 s{S_TMP}, s{S_TMP}, {9*1024}
    s_add_u32 s{S_P}, s{S_P}, s{S_TMP}
    s_add_u32 s{S_P}, s{S_P}, {PB}
    s_add_u32 s{S_P}, s{S_P}, {lbh}
    v_lshlrev_b32 v{V_L8}, 3, v{V_LANE}
    v_mov_b32 v{V_W}, v{V_L16}""")
    rot = OPT.get("rot", 0)
    S_RO, S_XO = 24, 33
    if rot:
        p(f"""s_and_b32 s{S_XO}, s{S_IDX}, {(1 << (5-rr)) - 1}
        s_mul_i32 s{S_XO}, s{S_XO}, 18
        s_lshr_b32 s{S_XO}, s{S_XO}, {5-rr}
        s_lshl_b32 s{S_XO}, s{S_XO}, 10
        s_lshl_b32 s{S_TMP}, s{S_XO}, 1
        s_add_u32 s{S_TMP}, s{S_TMP}, s{S_M0}""")
        for j in range(9):
            p(f"""s_add_u32 s{S_RO+j}, s{S_TMP}, {1024*j}
            s_sub_u32 s{S_TMP2}, s{S_RO+j}, {RING}
            s_cselect_b32 s{S_RO+j}, s{S_RO+j}, s{S_TMP2}""")
        p(f"""s_sub_u32 s{S_TMP}, s{S_SRC}, s{S_M0}
        s_add_u32 s{S_A}, s{P_WS}, s{S_TMP}
        s_addc_u32 s{S_A+1}, s{P_WS+1}, 0
        s_mov_b32 s{S_A+2}, {RING:#x}
        s_mov_b32 s{S_A+3}, 0x20000""")
    def slot_dma(k):
        r = []
        if rot and k < 9:
            if k: r.append([ins(f"s_add_u32 s{S_A}, s{S_A}, {RING}"), ins(f"s_addc_u32 s{S_A+1}, s{S_A+1}, 0")])
            for j in range(9):
                r.append(ins(f"s_add_u32 m0, s{S_M0}, {(k&3)*RING+1024*j}"))
                r.append(ins(f"buffer_load_dwordx4 v{V_L16}, s[{S_A}:{S_A+3}], s{S_RO+j} offen{ntw} lds", f"slot{k}"))
        elif k < 13:
            for g in range(3):
                r.append(ins(f"s_add_u32 m0, s{S_M0}, {(k&3)*RING+4096*g}"))
                r.append(ins(f"s_add_u32 s{S_TMP2}, s{S_SRC}, {k*RING+4096*g}"))
                for j in range(4 if g < 2 else 1):
                    r.append(ins(f"buffer_load_dwordx4 v{V_L16}, {WSR}, s{S_TMP2} offen offset:{1024*j}{ntw} lds", f"slot{k}"))
        else:
            for g in range(2):
                r.append(ins(f"s_add_u32 m0, s{S_LASTM0}, {(k&3)*RING+4096*g}"))
                r.append(ins(f"s_add_u32 s{S_TMP2}, s{S_LASTSRC}, {k*RING+4096*g}"))
                for j in range(4 if g < 1 else 1):
                    r.append(ins(f"buffer_load_dwordx4 v{V_L16}, {WSR}, s{S_TMP2} offen offset:{1024*j}{ntw} lds", f"slot{k}"))
        return r
    xf = lambda c, tt: ar(16 * c + 4 * tt, 4) if c < 16 else vr(XO + 16 * (c - 16) + 4 * tt, 4)
    XB = (59, 66, 68, 69)
    VXA = TMP + 20
    def xload(c):
        r = []
        if rot:
            if c: r.append([ins(f"s_add_u32 s{S_XO}, s{S_XO}, 1024"), ins(f"s_cmp_eq_u32 s{S_XO}, {18*1024}"), ins(f"s_cselect_b32 s{S_XO}, 0, s{S_XO}")])
            r.append(ins(f"s_add_u32 s{XB[c&1]}, s{S_XS}, s{S_XO}"))
            for tt in range(4):
                r.append(ins(f"buffer_load_dwordx4 {xf(c,tt)}, v{VXA+tt}, {WSR}, s{XB[c&1]} offen{ld}"))
            return r
        for tt in range(4):
            if c % 4 == 0: r.append(ins(f"s_add_u32 s{XB[tt]}, s{S_XS}, {tt*18*1024+c*1024}"))
            r.append(ins(f"buffer_load_dwordx4 {xf(c,tt)}, v{V_L16}, {WSR}, s{XB[tt]} offen offset:{1024*(c&3)}{ld}"))
        return r
    if rot:
        for tt in range(4): p(f"v_add_u32 v{VXA+tt}, {tt*18*1024}, v{V_L16}")
    l_nopw = p.label("nopw")
    p(f"s_cmp_lg_u32 s{S_LF}, 0\ns_cbranch_scc1 {l_nopw}")
    p.add(pw.check())
    p(f"{l_nopw}:")
    npre = OPT.get("npre", 3)
    if sp: stamp(p, 3)
    for k in range(npre): p.add(slot_dma(k))
    if sp: stamp(p, 4)
    l_nocs = p.label("nocs")
    p(f"""s_cmp_lg_u32 s{S_LF}, 0
    s_cbranch_scc1 {l_nocs}
    s_cmp_ge_u32 s{S_WAVE}, 2
    s_cbranch_scc1 {l_nocs}
    s_lshl_b32 s{S_TMP}, s{S_SL}, 1
    s_add_u32 s{S_TMP}, s{S_TMP}, s{S_WAVE}
    s_mul_i32 s{S_TMP}, s{S_TMP}, {18*640}
    s_add_u32 s{S_TMP}, s{S_TMP}, {CSP}
    v_lshrrev_b32 v{V_T0}, 2, v{V_LANE}
    v_lshlrev_b32 v{V_T0}, 7, v{V_T0}
    v_and_b32 v{V_T1}, 3, v{V_LANE}
    v_lshl_add_u32 v{V_T0}, v{V_T1}, 4, v{V_T0}
    s_lshl_b32 s{S_TMP2}, s{S_WAVE}, 6
    s_add_u32 s{S_TMP2}, s{S_TMP2}, {LDS_CS}
    v_add_u32 v{V_T0}, s{S_TMP2}, v{V_T0}
    s_mov_b32 exec_hi, 15""")
    for c in range(18):
        if c and c % 6 == 0: p(f"s_add_u32 s{S_TMP}, s{S_TMP}, {6*640}")
        p(f"buffer_load_dwordx4 {vr(64+4*c,4)}, v{V_L16}, {WSR}, s{S_TMP} offen offset:{(c%6)*640} sc1")
    for c in range(1, 18):
        for j in range(4): p(f"v_add_f32 v{64+j}, v{64+j}, v{64+4*c+j}")
    p(f"ds_write_b128 v{V_T0}, v[64:67]\ns_mov_b64 exec, -1")
    p.drain(vm=False)
    p(f"{l_nocs}:")
    p(f"""s_lshr_b32 s{S_TMP}, s{S_T}, 2
    s_lshl_b32 s{S_TMP}, s{S_TMP}, 8
    s_add_u32 s55, s{S_LF}, {F1B}
    v_and_b32 v{V_T1}, 7, v{V_LANE}
    v_min_u32 v{V_T1}, 5, v{V_T1}
    v_and_b32 v{V_T0}, 24, v{V_LANE}
    v_add_lshl_u32 v0, v{V_T1}, v{V_T0}, 3
    v_add_u32 v0, s{S_TMP}, v0
    s_lshl_b32 s{S_TMP}, s{S_XCD}, 4
    s_lshr_b32 s{S_TMP2}, s{S_IDX}, 1
    s_add_u32 s{S_TMP}, s{S_TMP}, s{S_TMP2}
    s_lshl_b32 s{S_TMP}, s{S_TMP}, 6
    v_lshl_add_u32 v{V_T1}, v{V_T1}, 3, s{S_TMP}
    v_cmp_gt_u32 vcc, 32, v{V_LANE}
    v_cndmask_b32 v0, v{V_T1}, v0, vcc""")
    p1 = Poll(p, TMP + 16, 0, 55, "p1", alt=TMP + 18)
    p.add(p1.issue())
    p(f"""s_lshl_b32 s{S_TMP}, s{S_RB}, 5
    s_add_u32 s{S_TMP}, s{S_TMP}, s{S_SL}
    s_mul_i32 s{S_H}, s{S_TMP}, {72*1024}
    s_add_u32 s{S_H}, s{S_H}, {HB}
    s_add_u32 s{S_H}, s{S_H}, {lbh}""")
    for j in range(3):
        p(f"""s_xor_b32 s{S_TMP2}, s{S_TMP}, {j+1}
        s_mul_i32 s{S_R+j}, s{S_TMP2}, {72*1024}
        s_add_u32 s{S_R+j}, s{S_R+j}, {HB}
        s_add_u32 s{S_R+j}, s{S_R+j}, {lbh}""")
    p(f"""s_lshr_b32 s{S_FL}, s{S_TMP}, 2
    s_lshl_b32 s{S_FL}, s{S_FL}, 2
    s_add_u32 s{S_FL}, s{S_FL}, s{S_WAVE}
    s_lshl_b32 s{S_FL}, s{S_FL}, 7
    s_lshl_b32 s{S_TMP2}, s{S_LF}, 2
    s_add_u32 s{S_FL}, s{S_FL}, s{S_TMP2}
    s_add_u32 s{S_FL}, s{S_FL}, {FHB}
    v_lshrrev_b32 v{V_CS}, 4, v{V_LANE}
    v_lshlrev_b32 v{V_CS}, 4, v{V_CS}
    v_add_u32 v{V_CS}, {LDS_CS}, v{V_CS}
    s_lshl_b32 s{S_TMP}, s{S_WAVE}, 12""")
    for r in (S_H, S_R, S_R + 1, S_R + 2):
        p(f"s_add_u32 s{r}, s{r}, s{S_TMP}")
    p(f"s_lshl_b32 s65, s{S_WAVE}, 11\ns_sub_u32 s65, {64*1024}, s65")
    p(f"s_lshl_b32 s67, s{S_M}, 3\ns_add_u32 s67, s67, s{S_FL}")
    frs = []
    first = (8, 0, 1)
    bufs = {8: (ACX, ACX + 16), 0: (ACA, ACA + 16), 1: (ACB, ACB + 16), 2: (HO + 16, TMP)}
    for tile in range(3, 8): bufs[tile] = (ACB, ACB + 16) if tile & 1 else (ACA, ACA + 16)
    def g1(tile, c, mat):
        f = pos_of_tile(tile) * 36 + 2 * c + mat
        return (f, [(vr(bufs[tile][mat] + 4 * tt, 4), xf(c, tt), c == 0) for tt in range(4)])
    marks = {}
    for c in range(18):
        for tile in first:
            for mat in range(2): frs.append(g1(tile, c, mat))
    marks["pass0_end"] = len(frs)
    for tile in range(2, 8):
        marks[f"pass{tile}"] = len(frs)
        for c in range(18):
            for mat in range(2): frs.append(g1(tile, c, mat))
    marks["g2"] = len(frs)
    acc2 = lambda n, tt: 32 + 32 * (n >> 1) + 8 * tt + 4 * (n & 1) if n < 8 else 160 + 4 * tt
    def hstep(st, tt):
        if st < 4: return vr(HO + 16 * st + 4 * tt, 4)
        if st == 4: return vr(H8 + 4 * tt, 4)
        return ar(16 * (st - 5) + 4 * tt, 4)
    order = gemm2_order()
    last_of = {}
    for i, (st, n) in enumerate(order):
        marks.setdefault(f"step{st}", len(frs))
        frs.append((324 + i, [(vr(acc2(n, tt), 4), hstep(st, tt), st == 0) for tt in range(4)]))
        last_of[n] = len(frs)
    NB, LOOK = 6, 4
    bb = []; s_rd = Stream("rd"); s_dma = Stream("dma"); s_ep = Stream("ep"); s_ld = Stream("ld")
    G = lambda s: 4 * s
    cur_base = [0]
    def read(s):
        f = frs[s][0]
        a = ((f // 36) & 3) * RING + (f % 36) * 1024
        r = []
        if s < marks["pass0_end"]:
            if a < 65536: va, off = V_W, a
            else: va, off = V_T1, a - 65536
        else:
            base = ((f // 36) & 3) * RING
            if base != cur_base[0]:
                r.append(f"v_add_u32 v{V_W}, {base - cur_base[0] & 0xffffffff:#x}, v{V_W}")
                cur_base[0] = base
            va, off = V_W, a - base
        r.append(f"ds_read_b128 {vr(WB+4*(s%NB),4)}, v{va} offset:{off}")
        return r
    if sp: stamp(p, 5)
    p.wait_vm(f"slot{npre-1}")
    if sp: stamp(p, 6)
    p("s_barrier")
    if sp: stamp(p, 7)
    for s in range(LOOK): p.add(read(s))
    nsh = 1 << (5 - rr)
    p(f"s_and_b32 s{S_TMP2}, s{S_IDX}, {nsh-1}\ns_mul_i32 s{S_TMP2}, s{S_TMP2}, {576//nsh*128}\ns_add_u32 s{S_TMP2}, s{S_TMP2}, s{S_XS}")
    p.add(p1.check()); stamp(p, 1)
    for sq in (0, 3):
        l_nop = p.label("nopend")
        p(f"s_cmp_eq_u32 s{sq}, 0\ns_cbranch_scc1 {l_nop}")
        p.add(signal_items(sq, V_T0))
        p(f"s_mov_b32 s{sq}, 0\n{l_nop}:")
    if OPT.get("touch", 0): p.add(touch_items(S_TMP2, min(576 // nsh, 128), 0, TMP + 20))
    if "xhit" in DBG: p(f"s_mul_i32 s{S_XS}, s{S_SL}, {486*1024}\ns_add_u32 s{S_XS}, s{S_XS}, {WF}")
    for c in range(OPT.get("xup", 2)): p.add(xload(c))
    p(f"""s_lshl_b32 s{S_TMP}, s{S_T}, 4
    v_add_u32 v{V_T0}, s{S_TMP}, v{V_LANE}
    v_lshlrev_b32 v{V_T0}, 3, v{V_T0}
    s_add_u32 s55, s{S_LB}, {ST}""")
    two = OPT.get("two", 0)
    def stat_loads():
        return sum(([ins(f"s_add_u32 s{S_TMP}, s55, {cg*16384}"), ins(f"buffer_load_dwordx2 {vr(TMP+2*cg,2)}, v{V_T0}, {WSR}, s{S_TMP} offen{ld}")] for cg in range(6)), [])
    if not two: p.add(stat_loads())

    p(f"v_add_u32 v{V_T1}, 0x10000, v{V_L16}")
    seen = {0, 1, 2}
    for k in range(npre, 4):
        for it in slot_dma(k): s_dma.add(it, 200, G(marks["pass0_end"]) - 100)
    bar_gap = {}
    for s, (f, ms) in enumerate(frs):
        for d, b, first in ms:
            bb.append(ins(f"{MF} {d}, {vr(WB+4*(s%NB),4)}, {b}, {'0' if first else d}"))
        t = s + LOOK
        if t < len(frs):
            k = frs[t][0] // 36
            g = G(s) + 1
            if k not in seen:
                seen.add(k)
                s_rd.add(WaitTag(f"slot{k}", "vm"), g, g)
                if k == 3: s_rd.add(Drain(vm=False), g, g)
                s_rd.add("s_barrier", g, g); bar_gap[k] = g
                for kk in ([4, 5, 6] if k == 3 else [k + 2] if k >= 5 else []):
                    if kk <= 13:
                        for j, it in enumerate(slot_dma(kk)): s_dma.add(it, g + 1, g + {4: 50, 5: 150, 6: 260}.get(kk, 120))
            for r in read(t): s_rd.add(r, g, g + 1)
    for t in hp_of(S_LASTSRC, S_TMP2, 1): s_dma.add(t, bar_gap[11] + 60)
    s_dma.add(f"s_mul_i32 s{S_LASTSRC}, s{S_LASTSRC}, {126*1024}", bar_gap[11] + 60)
    s_dma.add(f"s_add_u32 s{S_LASTSRC}, s{S_LASTSRC}, {WQ}", bar_gap[11] + 60)
    s_dma.add([ins(f"s_cmp_lg_u32 s{S_LF}, 0"), ins(f"s_cselect_b32 s{S_LASTSRC}, {WS_BYTES:#x}, s{S_LASTSRC}")], bar_gap[11] + 60)
    for k, f0, sm, cnt in ((11, 36, S_LASTM0, 5), (12, 54, S_M0, 9), (13, 90, S_M0, 9)):
        for j in range(cnt):
            if j % 4 == 0:
                s_dma.add(f"s_add_u32 s{S_TMP2}, s{sm}, {(f0+j)*1024}", bar_gap[k] + 1)
                s_dma.add(f"s_add_u32 m0, s{S_TMP2}, {LDS_WQ}", bar_gap[k] + 1)
                s_dma.add(f"s_add_u32 s{S_TMP2}, s{S_TMP2}, s{S_LASTSRC}", bar_gap[k] + 1)
            s_dma.add(f"buffer_load_dwordx4 v{V_L16}, {WSR}, s{S_TMP2} offen offset:{1024*(j&3)} lds", bar_gap[k] + 1, tag="wq2")
    for c in range(OPT.get("xup", 2), 18):
        for it in xload(c): s_ld.add(it, 0, 24 * c - 60)
    if two:
        ps = Poll(p, TMP + 16, 0, 70, "ps")
        s_ld.add(f"s_add_u32 s70, s{S_LF}, {F1S}", 230)
        for it in ps.issue(False): s_ld.add(it, 230, 250)
        s_ld.add(ps.check(), 300, 301)
        for it in stat_loads(): s_ld.add(it, 302, 340)
    ga = G(marks["pass0_end"]) - 50
    A_, B_, M_, R_ = TMP + 12, TMP + 13, TMP + 14, TMP + 15
    s = lambda cg: TMP + 2 * cg
    e = [f"v_add_f32 v{M_}, v{s(0)}, v{s(1)}", f"v_add_f32 v{R_}, v{s(0)+1}, v{s(1)+1}"]
    for cg in range(2, 6): e += [f"v_add_f32 v{M_}, v{M_}, v{s(cg)}", f"v_add_f32 v{R_}, v{R_}, v{s(cg)+1}"]
    e += [f"v_mul_f32 v{M_}, 0xbae38e39, v{M_}"]
    for cg in range(6):
        e += [f"v_fmamk_f32 v{B_}, v{s(cg)}, 0x3c2aaaab, v{M_}",
              f"v_mul_f32 v{A_}, v{B_}, v{B_}" if cg == 0 else f"v_fmac_f32 v{A_}, v{B_}, v{B_}"]
    e += [f"v_fmac_f32 v{R_}, 0x42c00000, v{A_}", f"v_mov_b32 v{B_}, 0x3727c5ac",
          f"v_fmac_f32 v{B_}, 0x3ae38e39, v{R_}", f"v_rcp_f32 v{R_}, v{B_}",
          f"v_and_b32 v{A_}, 15, v{V_LANE}", f"v_lshlrev_b32 v{A_}, 2, v{A_}"]
    for tt in range(4):
        e += [f"ds_bpermute_b32 v{NM+tt}, v{A_}, v{M_} offset:{64*tt}", f"ds_bpermute_b32 v{RS2+tt}, v{A_}, v{R_} offset:{64*tt}"]
    for x in e: s_ep.add(x, ga, G(marks["pass0_end"]))
    seq = [0, 1, 8, 2, 3, 4, 5, 6, 7]
    csb = lambda tile: CS + 8 * (seq.index(tile) & 1)
    def cs_reads(tile, g):
        for mat in range(2):
            s_ep.add(f"ds_read_b128 {vr(csb(tile)+4*mat,4)}, v{V_CS} offset:{pos_of_tile(tile)*128+64*mat}", g)
    def epilogue(tile, g, dl):
        cb = csb(tile)
        for tt in range(4):
            gq, uq = bufs[tile][0] + 4 * tt, bufs[tile][1] + 4 * tt
            for r in range(4): s_ep.add(f"v_fmac_f32 v{gq+r}, v{cb+r}, v{NM+tt}", g, dl)
            for r in range(4): s_ep.add(f"v_fmac_f32 v{uq+r}, v{cb+4+r}, v{NM+tt}", g, dl)
            for r in range(4): s_ep.add(f"v_mul_f32 v{gq+r}, v{gq+r}, v{RS2+tt}", g, dl)
            for r in range(4): s_ep.add(f"v_mul_f32 v{gq+r}, v{gq+r}, v{uq+r}", g, dl)
            dst = H8 + 4 * tt if tile == 8 else HO + 16 * (tile >> 1) + 4 * tt + 2 * (tile & 1)
            for j in range(2): s_ep.add(f"v_cvt_pk_bf16_f32 v{dst+j}, v{gq+2*j}, v{gq+2*j+1}", g, dl)
            if tile == 8:
                if tt == 0: s_ep.add(f"s_add_u32 s66, s{S_H}, s65", g, dl)
                s_ep.add(f"buffer_store_dwordx2 {vr(dst,2)}, v{V_L8}, {WSR}, s66 offen offset:{512*tt}{sc}", g, dl, tag="h8")
            elif tile & 1:
                if tt == 0: s_ep.add(f"s_add_u32 s66, s{S_H}, {(tile>>1)*16*1024}", g, dl)
                s_ep.add(f"buffer_store_dwordx4 {vr(dst-2,4)}, v{V_L16}, {WSR}, s66 offen offset:{1024*tt}{sc}", g, dl, tag=f"h{tile>>1}")
    gp = lambda t: G(marks[f"pass{t}"]) if t < 8 else G(marks["g2"])
    cs_reads(0, gp(2) - 20); cs_reads(1, gp(2) - 20)
    epilogue(0, gp(2) + 6, gp(3)); cs_reads(8, gp(2)); epilogue(1, gp(2) + 6, gp(3))
    cs_reads(2, gp(2)); epilogue(8, gp(2) + 6, gp(4)); cs_reads(3, gp(3)); epilogue(2, gp(3) + 6, gp(4) + 40)
    for tile in range(3, 8):
        if tile < 7: cs_reads(tile + 1, gp(tile + 1) - 100)
        epilogue(tile, gp(tile + 1) + 6, gp(tile + 1) + (140 if tile < 7 else 60))
    s_sg = Stream("sig")
    def sig(stage, tag, g):
        it = signal_items(71, V_T0, sc)
        s_sg.add(f"s_add_u32 s71, s67, {32*stage}", g - 2, g)
        s_sg.add(it[0], g - 2, g); s_sg.add(it[1], g - 2, g)
        s_sg.add(WaitTag(tag, "vm"), g, g)
        s_sg.add(it[2], g + 1, g + 3, cost=2)
    g7 = G(marks["pass7"]); g2 = G(marks["g2"])
    sig(0, "h1", G(marks["pass5"]) + OPT.get("s0", -6))
    sig(1, "h2", g7 - 4)
    sig(2, "h3", G(marks["step3"]) + OPT.get("s2", 8))
    def addpoll(pl, g_issue, g_check, st=None, sv=True):
        st = st or s_ld
        for it in pl.issue(sv): st.add(it, g_issue - (0 if it.kind == "vmem" else 4), g_issue + 3)
        st.add(pl.check(), g_check, g_check + 1, cost=2)
    gw = G(marks["pass2"]) + OPT.get("gw", 214)
    s_ld.add(f"v_min_u32 v0, 17, v{V_LANE}", gw - 4); s_ld.add(f"v_lshlrev_b32 v0, 3, v0", gw - 4)
    s_ld.add(f"s_add_u32 s55, s{S_FW}, {36*8}", gw - 4)
    pd_ = OPT.get("pdist", 56)
    addpoll(Poll(p, V_T0, 0, 55, "pd"), gw, gw + pd_)
    if OPT.get("dtouch", 1):
        nw = 4 << rr; nl = -(-162 * 8 // nw)
        for t in (f"s_lshr_b32 s55, s{S_IDX}, {5-rr}", f"s_lshl_b32 s55, s55, 2", f"s_add_u32 s55, s55, s{S_WAVE}", f"s_mul_i32 s55, s55, {nl*128}",
                  f"s_mul_i32 s{S_TMP}, s{S_SL}, {486*1024}", f"s_add_u32 s55, s55, s{S_TMP}", f"s_add_u32 s55, s55, {WF+324*1024}"):
            s_ld.add(t, gw + pd_ + 2)
        for it in touch_items(55, nl, 0, V_T0, ""): s_ld.add(it, gw + pd_ + 2)
    polls = [Poll(p, V_T0, 0, 55, f"p{k}") for k in range(3)]
    s_ld.add(f"v_and_b32 v0, 3, v{V_LANE}", g7 - 40 - pd_); s_ld.add(f"v_lshlrev_b32 v0, 3, v0", g7 - 40 - pd_)
    s_ld.add(f"s_mov_b32 s55, s{S_FL}", g7 - 40 - pd_)
    addpoll(polls[0], g7 - 20 - pd_, g7 - 20)
    ldh = ld
    need = lambda st: G(marks[f"step{st}"]) if st < 9 else G(marks["step9"]) + 8 * (st - 9)
    for tt in range(4):
        if tt == 0: s_ld.add(f"s_add_u32 s{S_TMP}, s{S_R}, s65", g7 - 18)
        s_ld.add(f"buffer_load_dwordx2 {vr(H8+4*tt+2,2)}, v{V_L8}, {WSR}, s{S_TMP} offen offset:{512*tt}{ldh}", g7 - 18, need(4) - 150)
    for j in range(2):
        s_ld.add(f"s_add_u32 s{S_TMP}, s{S_R+1+j}, s65", g7 + 8)
        for tt in range(4):
            s_ld.add(f"buffer_load_dwordx2 {ar(4*tt+2*j,2)}, v{V_L8}, {WSR}, s{S_TMP} offen offset:{512*tt}{ldh}", g7 + 8, need(5) - 150)
    def hload(st, g, dl):
        i = st - 6
        s_ld.add(f"s_add_u32 s{S_TMP}, s{S_R+i%3}, {(i//3)*16*1024}", g)
        for tt in range(4):
            s_ld.add(f"buffer_load_dwordx4 {hstep(st,tt)}, v{V_L16}, {WSR}, s{S_TMP} offen offset:{1024*tt}{ldh}", g, dl)
    for st in range(6, 12): hload(st, g7 + 8 * (st - 4), need(st) - 150)
    s_ld.add(f"s_add_u32 s55, s{S_FL}, 32", g2 + 90 - pd_)
    addpoll(polls[1], g2 + 100 - pd_, g2 + 100, sv=False)
    for st in range(12, 15): hload(st, g2 + 101, need(st) - 100)
    gB = G(marks["step7"])
    gB += OPT.get("pb", 12)
    s_ld.add(f"s_add_u32 s55, s{S_FL}, 64", gB - 10 - pd_)
    addpoll(polls[2], gB - pd_, gB, sv=False)
    for st in range(15, 18): hload(st, gB + 1, need(st) - 60)
    s_o = Stream("out")
    gB += 4
    s_o.add(f"s_and_b32 s68, s{S_M}, 1", gB)
    s_o.add(f"s_mul_i32 s69, s68, {5*1024}", gB); s_o.add(f"s_add_u32 s69, s69, s{S_P}", gB)
    s_o.add(f"s_lshr_b32 s59, s{S_M}, 1", gB); s_o.add(f"s_xor_b32 s59, s59, s68", gB); s_o.add(f"s_lshl_b32 s59, s59, 10", gB)
    s_o.add(f"s_lshl_b32 s68, s68, 9", gB); s_o.add(f"s_add_u32 s68, s68, s{S_P}", gB)
    s_o.add(f"v_and_b32 v0, 15, v{V_LANE}", gB); s_o.add(f"v_lshlrev_b32 v0, 5, v0", gB)
    s_o.add(f"v_lshrrev_b32 v{V_CS}, 4, v{V_LANE}", gB); s_o.add(f"v_lshl_add_u32 v0, v{V_CS}, 3, v0", gB)
    for pr in range(4):
        g = G(last_of[2 * pr + 1]) + 4
        if pr == 0: s_o.add("s_add_u32 s69, s69, s59", g - 8)
        if pr == 2: s_o.add("s_mul_i32 s66, s59, 3", g - 8); s_o.add("s_sub_u32 s69, s69, s66", g - 8)
        if pr == 3: s_o.add("s_lshl_b32 s66, s59, 1", g - 8); s_o.add("s_add_u32 s69, s69, s66", g - 8)
        for tt in range(4):
            a = acc2(2 * pr, tt)
            for j in range(4): s_o.add(f"v_cvt_pk_bf16_f32 v{a+j}, v{a+2*j}, v{a+2*j+1}", g)
            s_o.add(f"s_add_u32 s70, s69, {tt*18*1024+pr*1024}", g)
            s_o.add(f"buffer_store_dwordx4 {vr(a,4)}, v{V_L16}, {WSR}, s70 offen{scp}", g, tag="pA" if pr == 1 else "pout")
    if OPT.get("prog", 1):
        g = G(last_of[3]) + OPT.get("ga", 60)
        for t in (f"s_lshl_b32 s71, s{S_RB}, 2", f"s_add_u32 s71, s71, s{S_WAVE}", f"s_lshl_b32 s71, s71, 5", f"s_add_u32 s71, s71, s{S_SL}",
                  f"s_lshl_b32 s71, s71, 3", f"s_add_u32 s71, s71, s{S_LF}", f"s_add_u32 s71, s71, {FPA}"):
            s_sg.add(t, g - 12, g)
        it = signal_items(71, V_T0, scp)
        s_sg.add(it[0], g - 2, g); s_sg.add(it[1], g - 2, g)
        s_sg.add(WaitTag("pA", "vm"), g, g)
        s_sg.add(it[2], g + 1, g + 3)
    g = len(bb)
    for tt in range(4):
        a = acc2(8, tt)
        for j in range(2): s_o.add(f"v_cvt_pk_bf16_f32 v{a+j}, v{a+2*j}, v{a+2*j+1}", g)
        s_o.add(f"s_add_u32 s70, s68, {tt*18*1024+4*1024}", g)
        s_o.add(f"buffer_store_dwordx2 {vr(a,2)}, v0, {WSR}, s70 offen{scp}", g, tag="pout")
    if "nostore" in DBG: s_ep.q = [e for e in s_ep.q if not _isvm(e[2])]; s_o.q = [e for e in s_o.q if not _isvm(e[2])]
    if "nodma" in DBG: s_dma.q = []
    if "halfrd" in DBG:
        k = [0]
        def keep(e):
            if getattr(e[2], "kind", "") == "ds": k[0] += 1; return k[0] % 2 == 0
            return True
        s_rd.q = [e for e in s_rd.q if keep(e)]
    if "nors2" in DBG: s_ep.q = [e for e in s_ep.q if not (getattr(e[2], "op", "") == "v_mul_f32" and any(("v", RS2 + t) in e[2].src for t in range(4)))]
    if "noep" in DBG: s_ep.q = [e for e in s_ep.q if getattr(e[2], "kind", "") != "valu"]
    if "nohld" in DBG: s_ld.q = [e for e in s_ld.q if not (e[0] > 500 and _isvm(e[2]) and "dwordx" in e[2].text)]
    s_st = Stream("stamp")
    if STAMP[0] and sp:
        s_st.add(stamp_ins(8), 24, 24); s_st.add(stamp_ins(9), 216, 216)
    elif STAMP[0]:
        for k, mk in enumerate(("pass2", "pass3", "pass5", "pass7", "g2", "step3", "step6", "step9")):
            s_st.add(stamp_ins(2 + k), G(marks[mk]) + 2, G(marks[mk]) + 2)
    weave(p, bb, [s_rd, s_sg, s_ld, s_ep, s_o, s_dma, s_st], wait_gaps=lambda g: g % 4 == 0, quiet=lambda g: g2 + 4 <= g < g2 + 52)
    stamp(p, 10)
    p(f"""s_lshl_b32 s{S_TMP}, s{S_RB}, 2
    s_add_u32 s{S_TMP}, s{S_TMP}, s{S_WAVE}
    s_lshl_b32 s{S_TMP}, s{S_TMP}, 5
    s_add_u32 s{S_TMP}, s{S_TMP}, s{S_SL}
    s_lshl_b32 s{S_TMP}, s{S_TMP}, 3
    s_add_u32 s{S_TMP}, s{S_TMP}, s{S_LF}
    s_add_u32 s{S_TMP}, s{S_TMP}, {FPB}""")
    signal(p, S_TMP, V_T0, "pout", scp)
    stamp(p, 11)

def reduce_phase(p, l, lds_off, sc=" sc1", ld=" sc1", pre=None, w3=None):
    V_LANE = 1
    lh = 0 if OPT.get("reuse") else l
    VROW, VFR, VP, VLD, VX, VS, VO = 3, 4, 5, 16, 128, 152, 160
    if pre: pre()
    p(f"s_lshl_b32 s47, s{S_XCD}, 5\ns_add_u32 s47, s47, s{S_IDX}")
    ln_addr(p, 47, V_LANE, VROW, VFR, 8, 48, wave=False)
    SK, SF = 50, 53
    p(f"s_lshl_b32 s48, s{S_WAVE}, 2")
    for i in range(3):
        p(f"""s_lshr_b32 s{SK+i}, {sum(k << (4*w) for w, k in enumerate(RED_K[i])):#x}, s48
        s_and_b32 s{SK+i}, s{SK+i}, 15
        s_lshl_b32 s{SF+i}, s{SK+i}, 11""")
    p(f"""v_lshrrev_b32 v8, 3, v{V_LANE}
    v_and_b32 v9, 7, v{V_LANE}
    s_and_b32 s48, s47, 1
    s_lshl_b32 s48, s48, 3
    v_add_u32 v9, s48, v9
    v_lshlrev_b32 v9, 4, v9
    v_bfe_u32 v10, v8, 1, 1
    v_and_b32 v11, 1, v8
    v_lshl_add_u32 v9, v11, 4, v9
    v_lshl_add_u32 v9, v10, 9, v9
    v_and_b32 v10, 3, v8
    v_lshlrev_b32 v10, 8, v10
    v_sub_u32 v9, v9, v10
    v_lshrrev_b32 v8, 2, v8""")
    for i in range(3):
        p(f"""s_lshl_b32 s48, s{SK+i}, 1
        v_add_u32 v10, s48, v8
        v_cmp_eq_u32 vcc, 4, v10
        v_cmp_eq_u32 s[56:57], 13, v10
        s_or_b64 vcc, vcc, s[56:57]
        v_cndmask_b32 v10, 0, v9, vcc
        v_add3_u32 v{VP+i}, v{VFR}, v10, s{SF+i}
        s_lshl_b32 s{SK+i}, s{SK+i}, 7""")
    l_skip = p.label("w3a")
    p(f"s_cmp_eq_u32 s{S_WAVE}, 3\ns_cbranch_scc1 {l_skip}")
    for i in range(3):
        p(f"s_add_u32 s48, s{SF+i}, {LB(l)+X1}")
        p(f"buffer_load_dwordx4 {vr(VLD+36*i,4)}, v{VFR}, {WSR}, s48 offen{ld}")
    def pload(q, i):
        p(f"buffer_load_dwordx4 {vr(VLD+36*i+4+4*q,4)}, v{VP+i}, {WSR}, s48 offen{ld}")
    prog = OPT.get("prog", 1)
    p(f"""s_lshr_b32 s49, s47, 3
    s_lshl_b32 s49, s49, 8
    s_add_u32 s58, s49, {FPA+l*0x2000}
    s_add_u32 s49, s49, {FPB+l*0x2000}
    v_and_b32 v10, 31, v{V_LANE}
    v_lshlrev_b32 v10, 3, v10""")
    if prog:
        p.add(Poll(p, 176, 10, 58, "pa").both())
        for q in range(8):
            p(f"s_mov_b32 s48, {LB(lh)+PB+q*XBYTES}"); pload(q, 0)
    pp = Poll(p, 176, 10, 49, "pp")
    p.add(pp.issue(not prog) + pp.check()); stamp(p, 1)
    for q in range(8):
        p(f"s_mov_b32 s48, {LB(lh)+PB+q*XBYTES}")
        for i in range(1 if prog else 0, 3): pload(q, i)
    for i in range(3): unpack8(p, VX + 8 * i, VLD + 36 * i)
    p(f"v_mov_b32 v12, 0x3f80\nv_mov_b32 v13, 0x3f800000")
    for q, i in ([(q, 0) for q in range(8)] + [(q, i) for q in range(8) for i in (1, 2)]):
        if True:
            b = VLD + 36 * i + 4 + 4 * q
            for j in range(4):
                p(f"v_dot2c_f32_bf16 v{VX+8*i+2*j}, v{b+j}, v12\nv_dot2c_f32_bf16 v{VX+8*i+2*j+1}, v{b+j}, v13")
    if l == 0: stamp(p, 3)
    if l == 1: srd(p, S_O, P_OUT, XBYTES)
    else: p(f"s_add_u32 s{S_O}, s{P_WS}, {LB(0)+X2R}\ns_addc_u32 s{S_O+1}, s{P_WS+1}, 0\ns_mov_b32 s{S_O+2}, {XBYTES:#x}\ns_mov_b32 s{S_O+3}, 0x20000")
    for i in range(3):
        for j in range(4): p(f"v_cvt_pk_bf16_f32 v{VO+4*i+j}, v{VX+8*i+2*j}, v{VX+8*i+2*j+1}")
        p(f"buffer_store_dwordx4 {vr(VO+4*i,4)}, v{VROW}, s[{S_O}:{S_O+3}], s{SK+i} offen{sc if l == 0 else ' ' + OPT.get('outsc', 'sc1')}")
    if l == 1:
        p(f"{l_skip}:")
        return
    for i in range(3): unpack8(p, VX + 8 * i, VO + 4 * i)
    ln_local_stats(p, VX, VS, VS + 1, 8)
    p(f"""v_and_b32 v8, 7, v{V_LANE}
    s_mul_i32 s46, s{S_WAVE}, 64
    s_add_u32 s46, s46, {lds_off}
    v_lshl_add_u32 v8, v8, 3, s46
    ds_write_b64 v8, v[{VS}:{VS+1}]""")
    p.drain(vm=False)
    if w3:
        l_join = p.label("join")
        p(f"s_branch {l_join}\n{l_skip}:")
        w3()
        p(f"{l_join}:\ns_barrier")
    else: p(f"{l_skip}:\ns_barrier")
    stamp(p, 4)
    l_skip2 = p.label("w3b")
    p(f"s_cmp_eq_u32 s{S_WAVE}, 3\ns_cbranch_scc1 {l_skip2}")
    p(f"v_and_b32 v8, 7, v{V_LANE}\nv_lshlrev_b32 v8, 3, v8\nv_add_u32 v8, {lds_off}, v8")
    for w in range(3): p(f"ds_read_b64 v[{VS+2*w}:{VS+2*w+1}], v8 offset:{64*w}")
    ln_finish(p, VX, VS, 16, 8)
    for i in range(3):
        p(f"s_add_u32 s46, s{SF+i}, {LB(l+1)+XN}")
        p(f"buffer_store_dwordx4 {vr(16+4*i,4)}, v{VFR}, {WSR}, s46 offen{sc}")
    p(f"s_lshl_b32 s46, s47, 2\ns_add_u32 s46, s46, s{S_WAVE}\ns_lshl_b32 s46, s46, 3\ns_add_u32 s46, s46, {FX(l+1)}")
    stamp(p, 5)
    signal(p, 46, 8)
    p(f"{l_skip2}:")
```
